```python
import torch

def _softmax(x, axis=-1):
    return torch.softmax(x, dim=axis)

def _gelu(x):
    return torch.nn.functional.gelu(x, approximate='tanh')

def _silu(x):
    return torch.nn.functional.silu(x)

def _sigmoid(x):
    return torch.sigmoid(x)

def _layernorm(x, axis=-1, eps=1e-05):
    m = x.mean(dim=axis, keepdim=True)
    v = x.var(dim=axis, keepdim=True, unbiased=False)
    return (x - m) / torch.sqrt(v + eps)

def _scatter_add(tgt, idx, src, axis=0):
    return tgt.clone().index_add_(axis, idx, src)

def _segment_sum(src, seg, n):
    out = torch.zeros((n,) + src.shape[1:], dtype=src.dtype)
    return out.index_add_(0, seg, src)

def _pad(x, pw):
    flat = tuple((v for pair in reversed(pw) for v in pair))
    return torch.nn.functional.pad(x, flat)
kernel_name = 'sequential_preLN__memory_aug_recurrent_mem_tr__glu_gated_swiglu__prompt'

def setup_inputs():

    _w = lambda a: (lambda t: t.to(torch.bfloat16) if t.is_floating_point() else t)(torch.as_tensor(a))

    def _A_setup():
        B, S, Dm = (1, 2048, 576)
        H, Dh = (32, 128)
        M, seg = (8, 32)
        seg = min(seg, S)
        S = S // seg * seg
        return {'x': _w((lambda *s: torch.randn(*s, dtype=torch.bfloat16) * 0.05)(B, S, Dm)), 'mem0': _w((lambda *s: torch.randn(*s, dtype=torch.bfloat16) * 0.2)(B, M, Dm)), 'Wq': _w((lambda *s: torch.randn(*s, dtype=torch.bfloat16) * 1.6)(Dm, H, Dh) * Dm ** (-0.5)), 'Wk': _w((lambda *s: torch.randn(*s, dtype=torch.bfloat16) * 1.6)(Dm, H, Dh) * Dm ** (-0.5)), 'Wv': _w((lambda *s: torch.randn(*s, dtype=torch.bfloat16) * 0.2)(Dm, H, Dh) * Dm ** (-0.5)), 'Wo': _w((lambda *s: torch.randn(*s, dtype=torch.bfloat16) * 0.2)(H, Dh, Dm) * (H * Dh) ** (-0.5)), 'seg_len': seg}
    _A_in = _A_setup()

    def _B_setup():
        B, S, D, F = (1, 2048, 576, 4608)
        return {'x': _w((lambda *s: torch.randn(*s, dtype=torch.bfloat16) * 0.05)(B, S, D)), 'w1': _w((lambda *s: torch.randn(*s, dtype=torch.bfloat16) * 0.2)(D, F) * (2.0 / D) ** 0.5), 'w3': _w((lambda *s: torch.randn(*s, dtype=torch.bfloat16) * 0.2)(D, F) * (2.0 / D) ** 0.5), 'w2': _w((lambda *s: torch.randn(*s, dtype=torch.bfloat16) * 0.2)(F, D) * (2.0 / F) ** 0.5)}
    _B_in = _B_setup()
    return {'A_x': _A_in['x'], 'A_mem0': _A_in['mem0'], 'A_Wq': _A_in['Wq'], 'A_Wk': _A_in['Wk'], 'A_Wv': _A_in['Wv'], 'A_Wo': _A_in['Wo'], 'A_seg_len': _A_in['seg_len'], 'B_x': _B_in['x'], 'B_w1': _B_in['w1'], 'B_w3': _B_in['w3'], 'B_w2': _B_in['w2']}

def reference(A_x, A_mem0, A_Wq, A_Wk, A_Wv, A_Wo, A_seg_len, B_x, B_w1, B_w3, B_w2):

    def _A_ref(x, mem0, Wq, Wk, Wv, Wo, seg_len):
        B, S, Dm = x.shape
        H, Dh = (Wq.shape[1], Wq.shape[2])
        M = mem0.shape[1]
        scale = Dh ** (-0.5)
        n_seg = S // seg_len
        L = M + seg_len
        idx = torch.arange(L)
        mask = (idx[:, None] < M) | (idx[:, None] >= idx[None, :])
        mem = mem0
        outs = []
        for s in range(n_seg):
            xs = x[:, s * seg_len:(s + 1) * seg_len, :].clone()
            h = torch.concatenate([mem, xs], axis=1)
            q = torch.einsum('btd,dhe->bhte', h, Wq)
            k = torch.einsum('btd,dhe->bhte', h, Wk)
            v = torch.einsum('btd,dhe->bhte', h, Wv)
            scores = torch.einsum('bhqe,bhke->bhqk', q, k) * scale
            scores = torch.where(mask[None, None], scores, -1000000000.0)
            p = _softmax(scores, axis=-1)
            o = torch.einsum('bhqk,bhke->bhqe', p, v)
            o = torch.einsum('bhte,hed->btd', o, Wo)
            mem = o[:, :M, :].clone()
            outs.append(o[:, M:, :])
        return torch.concatenate(outs, axis=1)

    def _B_ref(x, w1, w3, w2):
        gate = torch.einsum('bsd,df->bsf', x, w1)
        up = torch.einsum('bsd,df->bsf', x, w3)
        h = _silu(gate) * up
        out = torch.einsum('bsf,fd->bsd', h, w2)
        return out
    x = A_x
    h = x + _A_ref(_layernorm(x, axis=-1), A_mem0, A_Wq, A_Wk, A_Wv, A_Wo, A_seg_len)
    h2 = h + _B_ref(_layernorm(h, axis=-1), B_w1, B_w3, B_w2)
    return h2
```

```python
class Asm:
    _uid = [0]
    def __init__(self):
        self.lines = []
    def __call__(self, s=""):
        for l in s.split("\n"):
            self.lines.append(l)
    def c(self, s):
        self.lines.append("  ; " + s)
    def label(self, base):
        Asm._uid[0] += 1
        return f"L_{base}_{Asm._uid[0]}"
    def put(self, lab):
        self.lines.append(lab + ":")
    def text(self):
        return "\n".join(self.lines) + "\n"

def v(i, n=1):
    return f"v{i}" if n == 1 else f"v[{i}:{i+n-1}]"
def a(i, n=1):
    return f"a{i}" if n == 1 else f"a[{i}:{i+n-1}]"
def s(i, n=1):
    return f"s{i}" if n == 1 else f"s[{i}:{i+n-1}]"
def reg(r, n=1):
    return v(r[1], n) if r[0] == 'v' else a(r[1], n)

KBUF = 0x0000000
VBUF = 0x1000000
QBUF = 0x2000000
KM   = 0x3000000
VM   = 0x3800000
H1   = 0x4000000
H1_PROD = 10624
H1_SLOT = 32 * H1_PROD
H2   = 0x4200000
H2_SLOT = 9216
FLAGS = 0x4300000
XN   = 0x4400000
XF   = 0x4680000
OBUF = 0x4900000
HBUF = 0x5900000
HN   = 0x5C00000
ACT  = 0x6000000
PART = 0x7400000
PART2 = 0x9C00000
WS_USED = 0xC400000
OOB = 0x80000000
```

```python
from asmlib import *

L_MEM, L_XEX, L_MEX, L_OEX, L_W = 0, 9216, 13312, 14336, 16384

vA, vXw, vM, vOw, vR, vP, vIdx, vH1 = 0, 1, 2, 3, 4, 5, 6, 7
vSel, vSelR, vKx, vVx = 8, 10, 14, 22
sW = 4
sWS = 8
sH, sWv_, sStep = 12, 13, 14
sC = 15
sKoff, sKm, sH1st, sH1h, sH1ld, sH2pub, sH2pl = 16, 17, 18, 19, 20, 21, 22
sIsRed, sJ, sT0, sT1, sT2, sT3 = 23, 24, 25, 26, 27, 28
sPoll = 29
sH1rs, sH2rs = 30, 31
sFlagOff = 32
sX1, sX2, sX3 = 33, 34, 35
sW256 = 36
sMaskMw = 38
sPi0, sPih = 40, 41
sH1so, sH1ho, sW1024 = 42, 43, 37
sTm = 44

def frag_q(tau, c): return ('a', (tau*9 + c)*8)
def frag_k(tau, c):
    f = tau*9 + c
    return ('a', 144 + 8*f) if f < 14 else ('v', 80 + 8*(f-14))
def frag_v(tau, c):
    return ('v', 112 + 72*tau + 8*c)
def frag_o(tl, kap):
    return ('lds', 4*tl + kap)

def lds_frag_addr(f):
    off = L_W + f*4096
    return off // 65536, off % 65536

def nop(o, n):
    while n > 0:
        k = min(n, 16)
        o(f"  s_nop {k-1}")
        n -= k

def emit_consts(o):
    o.c("---- R lane constants; v0 holds lane id on entry (0..63), s13 = wave")
    o(f"""
  v_mov_b32 v30, v0                 ; lane
  v_and_b32 v31, 15, v30            ; c
  v_lshrrev_b32 v32, 4, v30         ; g
  v_and_b32 v33, 7, v30             ; t
  v_bfe_u32 v34, v30, 3, 1          ; u
  v_lshlrev_b32 v{vA}, 4, v30
  s_lshl_b32 s{sT0}, s{sWv_}, 10
  v_add_u32 v{vXw}, s{sT0}, v{vA}
  v_and_b32 v35, 1, v32             ; g%2
  v_lshlrev_b32 v{vM}, 7, v35
  v_lshl_add_u32 v{vM}, v33, 4, v{vM}
  ; vOw = (w/2)*1024 + (g/2)*256 + (w%2)*128 + t*16 + (g%2)*8 ; u==0 only
  s_lshr_b32 s{sT0}, s{sWv_}, 1
  s_lshl_b32 s{sT0}, s{sT0}, 10
  s_and_b32 s{sT1}, s{sWv_}, 1
  s_lshl_b32 s{sT1}, s{sT1}, 7
  s_add_u32 s{sT0}, s{sT0}, s{sT1}
  s_add_u32 s{sT0}, s{sT0}, {L_OEX}
  v_lshrrev_b32 v36, 1, v32         ; g/2
  v_lshlrev_b32 v{vOw}, 8, v36
  v_lshl_add_u32 v{vOw}, v33, 4, v{vOw}
  v_lshl_add_u32 v{vOw}, v35, 3, v{vOw}
  v_add_u32 v{vOw}, s{sT0}, v{vOw}
  v_mov_b32 v37, 0x7ffffff0
  v_cmp_eq_u32 vcc, 0, v34
  s_nop 1
  v_cndmask_b32 v{vOw}, v37, v{vOw}, vcc
  v_mov_b32 v37, 0x80000000
  v_cndmask_b32 v{vH1}, v37, v{vA}, vcc
  ; idx
  v_mov_b32 v38, 0x44444444
  v_mov_b32 v39, 0xeeeeeeee
  v_cndmask_b32 v{vIdx}, v39, v38, vcc
  s_lshl_b32 s{sJ}, s{sH}, 1
  s_add_u32 s{sJ}, s{sJ}, s{sWv_}
  s_add_u32 s{sT0}, s{sH}, 64
  s_cmp_eq_u32 s{sWv_}, 2
  s_cselect_b32 s{sJ}, s{sT0}, s{sJ}
  s_cmp_lt_u32 s{sWv_}, 2
  s_cselect_b32 s{sIsRed}, 1, 0
  s_cmp_eq_u32 s{sWv_}, 2
  s_cselect_b32 s{sT0}, 1, 0
  s_cmp_lt_u32 s{sH}, 8
  s_cselect_b32 s{sT1}, 1, 0
  s_and_b32 s{sT0}, s{sT0}, s{sT1}
  s_or_b32 s{sIsRed}, s{sIsRed}, s{sT0}
  s_cmp_eq_u32 s{sIsRed}, 0
  s_cselect_b32 s{sJ}, 0, s{sJ}
  ; unit j=(pi=j/4, g4=j%4): H1 offset of its 128B segment
  s_lshr_b32 s{sT0}, s{sJ}, 2            ; pi
  s_and_b32 s{sT1}, s{sJ}, 3             ; g4
  s_cmp_gt_u32 s{sT0}, 13
  s_cselect_b32 s{sT2}, 2, 0
  s_cmp_gt_u32 s{sT0}, 4
  s_cselect_b32 s{sT3}, 1, 0
  s_cmp_gt_u32 s{sT0}, 13
  s_cselect_b32 s{sT3}, 2, s{sT3}
  s_sub_u32 s{sT2}, s{sT0}, s{sT3}
  s_lshr_b32 s{sT3}, s{sT2}, 1
  s_lshl_b32 s{sT3}, s{sT3}, 10          ; (q/2)*1024
  s_and_b32 s{sT2}, s{sT2}, 1
  s_lshl_b32 s{sT2}, s{sT2}, 7           ; (q%2)*128
  s_add_u32 s{sT3}, s{sT3}, s{sT2}
  s_cmp_eq_u32 s{sT0}, 4
  s_cselect_b32 s{sT3}, 8192, s{sT3}
  s_cmp_eq_u32 s{sT0}, 13
  s_cselect_b32 s{sT3}, 9216, s{sT3}
  s_lshl_b32 s{sT1}, s{sT1}, 8
  s_add_u32 s{sT0}, s{sT3}, s{sT1}       ; + g4*256
  s_lshr_b32 s{sT1}, s{sJ}, 2
  s_cmp_eq_u32 s{sT1}, 4
  s_cselect_b32 s{sT2}, 2, s{sIsRed}
  s_cmp_eq_u32 s{sT1}, 13
  s_cselect_b32 s{sT2}, 2, s{sT2}
  s_cmp_eq_u32 s{sIsRed}, 0
  s_cselect_b32 s{sIsRed}, 0, s{sT2}
  v_lshl_add_u32 v40, v34, 2, v32
  v_mul_u32_u24 v40, {H1_PROD}, v40
  v_lshl_add_u32 v40, v33, 4, v40
  v_add_u32 v{vR}, s{sT0}, v40
  s_cmp_eq_u32 s{sIsRed}, 0
  s_cselect_b32 s{sT1}, 0x80000000, 0
  v_lshlrev_b32 v40, 4, v33
  v_lshl_add_u32 v40, v32, 3, v40
  s_lshl_b32 s{sT0}, s{sJ}, 7
  v_add_u32 v40, s{sT0}, v40
  v_and_b32 v41, 40, v30
  v_cmp_eq_u32 vcc, 0, v41
  s_nop 1
  v_cndmask_b32 v{vP}, v37, v40, vcc
  v_or_b32 v{vP}, s{sT1}, v{vP}
  s_mov_b64 s[{sMaskMw}:{sMaskMw+1}], vcc     ; lanes u==0,g<2
  ; Sel: e = c - 4*(g%2)
  v_lshlrev_b32 v40, 2, v35
  v_sub_u32 v40, v31, v40
  v_mov_b32 v41, 0x3f80
  v_mov_b32 v42, 0x3f800000
  v_mov_b32 v{vSel}, 0
  v_mov_b32 v{vSel+1}, 0
  v_cmp_eq_u32 vcc, 0, v40
  s_nop 1
  v_cndmask_b32 v{vSel}, v{vSel}, v41, vcc
  v_cmp_eq_u32 vcc, 1, v40
  s_nop 1
  v_cndmask_b32 v{vSel}, v{vSel}, v42, vcc
  v_cmp_eq_u32 vcc, 2, v40
  s_nop 1
  v_cndmask_b32 v{vSel+1}, v{vSel+1}, v41, vcc
  v_cmp_eq_u32 vcc, 3, v40
  s_nop 1
  v_cndmask_b32 v{vSel+1}, v{vSel+1}, v42, vcc""")
    for r in range(4):
        o(f"""  v_mov_b32 v{vSelR+r}, 0
  v_cmp_eq_u32 vcc, {2*r}, v31
  s_nop 1
  v_cndmask_b32 v{vSelR+r}, v{vSelR+r}, v41, vcc
  v_cmp_eq_u32 vcc, {2*r+1}, v31
  s_nop 1
  v_cndmask_b32 v{vSelR+r}, v{vSelR+r}, v42, vcc""")
    o(f"""
  s_lshl_b32 s{sW1024}, s{sWv_}, 10
  s_mov_b32 s{sC}, 0x3e0293ee        ; 128^-0.5 * log2(e) = 0.12751743
  s_add_u32 s{sT0}, s{sWv_}, 1
  s_and_b32 s{sT0}, s{sT0}, 3
  s_lshl_b32 s{sX1}, s{sT0}, 10
  s_add_u32 s{sX1}, s{sX1}, {L_XEX}
  s_add_u32 s{sT0}, s{sWv_}, 2
  s_and_b32 s{sT0}, s{sT0}, 3
  s_lshl_b32 s{sX2}, s{sT0}, 10
  s_add_u32 s{sX2}, s{sX2}, {L_XEX}
  s_add_u32 s{sT0}, s{sWv_}, 3
  s_and_b32 s{sT0}, s{sT0}, 3
  s_lshl_b32 s{sX3}, s{sT0}, 10
  s_add_u32 s{sX3}, s{sX3}, {L_XEX}
  s_lshl_b32 s{sW256}, s{sWv_}, 8
  s_add_u32 s{sW256}, s{sW256}, {L_MEX}
  s_mul_i32 s{sPi0}, s{sWv_}, 9
  s_add_u32 s{sPi0}, s{sPi0}, 1
  s_lshr_b32 s{sPi0}, s{sPi0}, 1
  s_lshr_b32 s{sPih}, s{sWv_}, 1
  s_mul_i32 s{sPih}, s{sPih}, 9
  s_add_u32 s{sPih}, s{sPih}, 4
""")

def emit_weights(o):
    o.c("---- weight prologue")
    vLdW, vLdO, vLdOh, vScr, vT, vT2, vT2h, vF1, vF2 = 30, 31, 32, 33, 34, 35, 36, 37, 38
    TMP = 40
    o(f"""
  v_lshrrev_b32 v46, 4, v{vA}        ; lane
  v_lshrrev_b32 v45, 2, v46          ; l/4
  v_and_b32 v44, 3, v46              ; l%4
  v_lshlrev_b32 v{vLdW}, 13, v45
  v_lshl_add_u32 v{vLdW}, v44, 4, v{vLdW}      ; (l/4)*8192 + (l%4)*16
  v_mul_u32_u24 v{vLdOh}, 1152, v45
  v_lshl_add_u32 v{vLdOh}, v44, 4, v{vLdOh}    ; (l/4)*1152 + (l%4)*16
  v_lshrrev_b32 v43, 3, v46          ; l/8
  v_and_b32 v42, 7, v46
  v_mul_u32_u24 v{vLdO}, 1152, v43
  v_lshl_add_u32 v{vLdO}, v42, 4, v{vLdO}      ; (l/8)*1152 + (l%8)*16
  s_lshl_b32 s{sT0}, s{sWv_}, 12
  v_add_u32 v{vScr}, s{sT0}, v{vA}             ; scratch + l*16
  ; tr lane decomposition: gb=l/16, r'=(l%16)/4, c'=l%4
  v_lshrrev_b32 v43, 4, v46          ; gb
  v_bfe_u32 v42, v46, 2, 2           ; r'
  ; row = 16*(gb/2) + 4*(gb%2) + 8*(r'/2) + r'%2
  v_lshrrev_b32 v41, 1, v43
  v_lshlrev_b32 v41, 4, v41
  v_and_b32 v40, 1, v43
  v_lshl_add_u32 v41, v40, 2, v41
  v_lshrrev_b32 v40, 1, v42
  v_lshl_add_u32 v41, v40, 3, v41
  v_and_b32 v40, 1, v42
  v_add_u32 v41, v41, v40
  v_lshlrev_b32 v{vT}, 6, v41
  v_lshl_add_u32 v{vT}, v44, 3, v{vT}
  v_add_u32 v{vT}, s{sT0}, v{vT}
  v_lshl_add_u32 v41, v43, 3, v42
  v_lshlrev_b32 v{vT2}, 7, v41
  v_lshl_add_u32 v{vT2}, v44, 4, v{vT2}
  v_add_u32 v{vT2}, s{sT0}, v{vT2}
  v_lshlrev_b32 v{vT2h}, 6, v41
  v_lshl_add_u32 v{vT2h}, v44, 4, v{vT2h}
  v_add_u32 v{vT2h}, s{sT0}, v{vT2h}
  s_and_b32 s{sT1}, s{sWv_}, 1
  s_lshl_b32 s{sT1}, s{sT1}, 3
  v_add_u32 v{vT2h}, s{sT1}, v{vT2h}
  v_add_u32 v{vF1}, 0x10000, v{vXw}
  v_add_u32 v{vF2}, 0x20000, v{vXw}
""")
    def ldsaddr(f):
        b, imm = lds_frag_addr(f)
        return (vXw, vF1, vF2)[b], imm
    chunks = []
    for c in range(9): chunks.append(('q', c))
    for c in range(9): chunks.append(('k', c))
    for kap in range(4):
        chunks += [('o', kap, 0), ('o', kap, 1), ('oh', kap)]
    for c in range(9): chunks.append(('v', c))
    def dests(ch):
        if ch[0] == 'q': return [frag_q(0, ch[1]), frag_q(1, ch[1])]
        if ch[0] == 'k': return [frag_k(0, ch[1]), frag_k(1, ch[1])]
        if ch[0] == 'v': return [frag_v(0, ch[1]), frag_v(1, ch[1])]
        if ch[0] == 'o': return [frag_o(4*ch[2]+i, ch[1]) for i in range(4)]
        return [frag_o(8, ch[1])]
    def dest_vregs(ch):
        n = 8 if ch[0] in 'qkv' else 4
        r = set()
        for d in dests(ch):
            if d[0] == 'v': r |= set(range(d[1], d[1]+n))
        return r
    bufs = [48, 64] + list(range(80, 256, 16))
    n = len(chunks)
    MAXIN = 10
    used_final = set()
    assign = {}
    inflight = []
    nxt = 0
    sched = []
    final_before = []
    acc = set()
    for m in range(n):
        final_before.append(set(acc))
        acc |= dest_vregs(chunks[m])
    proc = 0
    busy = {}
    while proc < n:
        while nxt < n and len(inflight) < MAXIN:
            cand = None
            for b in bufs:
                if b in busy: continue
                rs = set(range(b, b+16))
                if rs & final_before[nxt]: continue
                cand = b; break
            if cand is None: break
            busy[cand] = nxt; assign[nxt] = cand; inflight.append(nxt); sched.append(('issue', nxt)); nxt += 1
        sched.append(('proc', proc))
        del busy[assign[proc]]
        inflight.remove(proc)
        proc += 1
    def nloads(ch): return 2 if ch[0] == 'oh' else 4
    srd_cur = None
    ptr = {'q': 50, 'k': 52, 'v': 54, 'o': 56, 'oh': 56}
    srd = {'q': 64, 'k': 68, 'v': 72, 'o': 76, 'oh': 76}
    for k_, p in (('q', 50), ('k', 52), ('v', 54), ('o', 56)):
        o(f"""  s_mov_b32 s{srd[k_]}, s{p}
  s_and_b32 s{srd[k_]+1}, s{p+1}, 0xffff
  s_mov_b32 s{srd[k_]+2}, 4718592
  s_mov_b32 s{srd[k_]+3}, 0x20000""")
    o(f"""  s_lshl_b32 s80, s{sH}, 8
  s_lshl_b32 s81, s{sWv_}, 6
  s_add_u32 s80, s80, s81            ; h*256 + w*64
  s_mul_i32 s82, s{sH}, {128*1152}
  s_lshl_b32 s83, s{sPi0}, 6
  s_add_u32 s83, s83, s82
  s_lshl_b32 s84, s{sPih}, 6
  s_add_u32 s84, s84, s82""")
    outstanding = []
    for kind, m in sched:
        ch = chunks[m]; b = assign[m]
        if kind == 'issue':
            if ch[0] in 'qkv':
                for i in range(4):
                    o(f"  s_add_u32 s85, s80, {(64*ch[1] + 16*i)*8192}")
                    o(f"  buffer_load_dwordx4 {v(b+4*i,4)}, v{vLdW}, s[{srd[ch[0]]}:{srd[ch[0]]+3}], s85 offen")
            elif ch[0] == 'o':
                for i in range(4):
                    o(f"  s_add_u32 s85, s83, {(32*ch[1] + 8*i)*1152 + ch[2]*128}")
                    o(f"  buffer_load_dwordx4 {v(b+4*i,4)}, v{vLdO}, s[76:79], s85 offen")
            else:
                for i in range(2):
                    o(f"  s_add_u32 s85, s84, {(32*ch[1] + 16*i)*1152}")
                    o(f"  buffer_load_dwordx4 {v(b+4*i,4)}, v{vLdOh}, s[76:79], s85 offen")
            outstanding.append(m)
        else:
            idx = outstanding.index(m)
            later = sum(nloads(chunks[x]) for x in outstanding[idx+1:])
            o(f"  s_waitcnt vmcnt({min(later,63)})")
            outstanding = outstanding[idx+1:]
            for i in range(nloads(ch)):
                o(f"  ds_write_b128 v{vScr}, {v(b+4*i,4)} offset:{1024*i}")
            o("  s_waitcnt lgkmcnt(0)")
            post = []
            if ch[0] in 'qkv':
                for tau, d in enumerate(dests(ch)):
                    for r, off in ((0, 0), (2, 128), (4, 2048), (6, 2176)):
                        if d[0] == 'lds':
                            dst = v(TMP + r, 2)
                        else:
                            dst = reg((d[0], d[1]+r), 2)
                        o(f"  ds_read_b64_tr_b16 {dst}, v{vT} offset:{off + 32*tau}")
                    if d[0] == 'lds':
                        post.append((d[1], TMP)); post.append((d[1]+1, TMP+4))
            elif ch[0] == 'o':
                tmpi = 0
                for i, d in enumerate(dests(ch)):
                    pim, x = i // 2, i % 2
                    if d[0] == 'lds':
                        base = TMP + 4*(tmpi % 2)
                        dst0, dst1 = v(base, 2), v(base+2, 2)
                    else:
                        dst0, dst1 = reg((d[0], d[1]), 2), reg((d[0], d[1]+2), 2)
                    o(f"  ds_read_b64_tr_b16 {dst0}, v{vT2} offset:{64*pim + 8*x}")
                    o(f"  ds_read_b64_tr_b16 {dst1}, v{vT2} offset:{512 + 64*pim + 8*x}")
                    if d[0] == 'lds':
                        tmpi += 1
                        o("  s_waitcnt lgkmcnt(0)")
                        ar, imm = ldsaddr(d[1])
                        o(f"  ds_write_b128 v{ar}, {v(base,4)} offset:{imm}")
                        o("  s_waitcnt lgkmcnt(0)")
            else:
                d = dests(ch)[0]
                assert d[0] == 'lds' or d[0] == 'v'
                if d[0] == 'lds':
                    dst0, dst1 = v(TMP, 2), v(TMP+2, 2)
                else:
                    dst0, dst1 = reg((d[0], d[1]), 2), reg((d[0], d[1]+2), 2)
                o(f"  ds_read_b64_tr_b16 {dst0}, v{vT2h} offset:0")
                o(f"  ds_read_b64_tr_b16 {dst1}, v{vT2h} offset:256")
                if d[0] == 'lds':
                    post.append((d[1], TMP))
            o("  s_waitcnt lgkmcnt(0)")
            for f, t in post:
                ar, imm = ldsaddr(f)
                o(f"  ds_write_b128 v{ar}, {v(t,4)} offset:{imm}")
            if post: o("  s_waitcnt lgkmcnt(0)")


Q0, Q1, K0, K1, V0, V1 = 30, 34, 38, 42, 46, 50
W = [54, 58, 62]
T, U, QS = 66, 70, 74

class Cnt:
    def __init__(self, o, name, maxv):
        self.o, self.name, self.maxv, self.q = o, name, maxv, []
    def issue(self, tag):
        self.q.append(tag)
        assert len(self.q) <= self.maxv + 1, (self.name, self.q)
    def wait(self, tag):
        if tag not in self.q: return
        i = len(self.q) - 1 - self.q[::-1].index(tag)
        n = len(self.q) - 1 - i
        self.o(f"  s_waitcnt {self.name}cnt({n})")
        self.q = self.q[i+1:]
    def waitall(self):
        self.o(f"  s_waitcnt {self.name}cnt(0)")
        self.q = []

def smf(o, d, aop, b):
    o(f"  v_smfmac_f32_16x16x64_bf16 {v(d,4)}, {v(aop,4)}, {reg(b,8)}, v{vIdx}")


POLL_LIMIT = 1 << 22
PUB = 'sc1'
vDummy = 79

def emit_loop(o, L, stf, timing=False, fdelay=0, adelay=0):
    WSr = f"s[{sWS}:{sWS+3}]"
    lg = Cnt(o, "lgkm", 15)
    def dsr(dst, ar, off, tag):
        o(f"  ds_read_b128 {v(dst,4)}, v{ar} offset:{off}")
        lg.issue(tag)
    def stamp(k):
        if timing:
            o(f"  s_memtime s[{86+2*k}:{87+2*k}]")
    T, U, QS, MW = 66, 70, 74, 78
    o(f"{L}_loop:")
    stamp(0)
    for c in range(3):
        dsr(W[c], vA, L_MEM + 1024*c, f"A{c}")
    side = []
    side += [f"  v_mov_b32 v70, s{sStep}", f"  v_mov_b32 v71, s{sFlagOff}", f"  buffer_store_dword v70, v71, {WSr}, 0 offen {PUB}"]
    side += [f"  v_lshlrev_b32 v72, 1, v{vA}", f"  s_add_u32 s{sKoff}, s{sKoff}, {32*8192}", f"  s_add_u32 s{sT1}, s{sKoff}, {VBUF-KBUF}",
             f"  buffer_load_dword v{vDummy}, v72, {WSr}, s{sKoff} offen", f"  buffer_load_dword v{vDummy}, v72, {WSr}, s{sT1} offen"]
    side += [f"  s_mov_b32 s{sH1rs}, s{sH1ld}", f"  s_sub_u32 s{sH1ld}, {2*H1+H1_SLOT}, s{sH1ld}", f"  s_add_u32 s{sKm}, s{sKm}, {32*4096}",
             f"  s_add_u32 s{sH1st}, s{sH1ld}, s{sH1so}", f"  s_add_u32 s{sH1h}, s{sH1ld}, s{sH1ho}",
             f"  s_sub_u32 s{sT0}, s{sStep}, 1", f"  s_and_b32 s{sT0}, s{sT0}, 3", f"  s_mul_i32 s{sT0}, s{sT0}, {H2_SLOT}", f"  s_add_u32 s{sH2rs}, s{sT0}, {H2}",
             f"  s_add_u32 s{sT0}, s{sStep}, 1", f"  s_and_b32 s{sT0}, s{sT0}, 3", f"  s_mul_i32 s{sT0}, s{sT0}, {H2_SLOT}",
             f"  s_add_u32 s{sH2pub}, s{sT0}, {H2}", f"  s_add_u32 s{sH2pl}, s{sH2pub}, s{sW1024}",
             f"  v_add_u32 v{MW}, s{sW256}, v{vM}", f"  v_cndmask_b32 v{MW}, -16, v{MW}, s[{sMaskMw}:{sMaskMw+1}]"]
    NV_AFTER_KV = 3

    def pop(n):
        for _ in range(n):
            if side: o(side.pop(0))
    o.c("QK phase")
    for c in range(9):
        lg.wait(f"A{c}")
        a_ = W[c % 3]
        smf(o, Q0, a_, frag_q(0, c)); pop(1)
        smf(o, Q1, a_, frag_q(1, c)); pop(1)
        smf(o, K0, a_, frag_k(0, c)); pop(1 if c < 8 else 0)
        smf(o, K1, a_, frag_k(1, c))
        if c + 3 <= 8:
            dsr(a_, vA, L_MEM + 1024*(c+3), f"A{c+3}")
    assert not side, side
    stamp(1)
    o.c("transpose q,k")
    def vpass(c, slot):
        smf(o, V0, W[slot], frag_v(0, c)); smf(o, V1, W[slot], frag_v(1, c))
    nop(o, 4)
    o(f"  v_cvt_pk_bf16_f32 v{T}, v{Q0}, v{Q0+1}")
    o(f"  v_cvt_pk_bf16_f32 v{T+1}, v{Q0+2}, v{Q0+3}")
    o(f"  v_cvt_pk_bf16_f32 v{T+2}, v{Q1}, v{Q1+1}")
    o(f"  v_cvt_pk_bf16_f32 v{T+3}, v{Q1+2}, v{Q1+3}")
    o(f"  v_cvt_pk_bf16_f32 v{U}, v{K0}, v{K0+1}")
    o(f"  v_mfma_f32_16x16x16_bf16 {v(Q0,4)}, {v(T,2)}, {v(vSel,2)}, 0")
    o(f"  v_cvt_pk_bf16_f32 v{U+1}, v{K0+2}, v{K0+3}")
    o(f"  v_cvt_pk_bf16_f32 v{U+2}, v{K1}, v{K1+1}")
    o(f"  v_mfma_f32_16x16x16_bf16 {v(Q1,4)}, {v(T+2,2)}, {v(vSel,2)}, 0")
    o(f"  v_cvt_pk_bf16_f32 v{U+3}, v{K1+2}, v{K1+3}")
    nop(o, 1)
    o(f"  v_mfma_f32_16x16x16_bf16 {v(K0,4)}, {v(U,2)}, {v(vSel,2)}, 0")
    o(f"  v_mfma_f32_16x16x16_bf16 {v(K1,4)}, {v(U+2,2)}, {v(vSel,2)}, 0")
    smf(o, V0, W[0], frag_v(0, 6))
    nop(o, 3)
    o(f"  v_cvt_pk_bf16_f32 v{T}, v{Q0}, v{Q0+1}")
    o(f"  v_cvt_pk_bf16_f32 v{T+1}, v{Q0+2}, v{Q0+3}")
    o(f"  v_cvt_pk_bf16_f32 v{T+2}, v{Q1}, v{Q1+1}")
    o(f"  v_cvt_pk_bf16_f32 v{T+3}, v{Q1+2}, v{Q1+3}")
    smf(o, V1, W[0], frag_v(1, 6))
    dsr(W[0], vA, L_MEM, "B0")
    for i in range(4):
        o(f"  v_mov_b32_dpp v{QS+i}, v{T+i} row_ror:8 row_mask:0xf bank_mask:0xf")
    o(f"  s_waitcnt vmcnt({NV_AFTER_KV})")
    o(f"  v_mfma_f32_16x16x32_bf16 {v(Q0,4)}, {v(vKx,4)}, {v(T,4)}, 0")
    o(f"  v_cvt_pk_bf16_f32 v{U}, v{K0}, v{K0+1}")
    o(f"  v_cvt_pk_bf16_f32 v{U+1}, v{K0+2}, v{K0+3}")
    o(f"  v_mfma_f32_16x16x32_bf16 {v(Q0,4)}, {v(vKx+4,4)}, {v(QS,4)}, {v(Q0,4)}")
    o(f"  v_cvt_pk_bf16_f32 v{U+2}, v{K1}, v{K1+1}")
    o(f"  v_cvt_pk_bf16_f32 v{U+3}, v{K1+2}, v{K1+3}")
    nop(o, 2)
    o(f"  v_mfma_f32_16x16x32_bf16 {v(Q1,4)}, {v(U,4)}, {v(T,4)}, 0")
    vpass(7, 1)
    dsr(W[1], vA, L_MEM + 1024, "B1")
    o(f"  ds_write_b128 v{vXw}, {v(Q0,4)} offset:{L_XEX}"); lg.issue("Xw")
    nop(o, 3)
    o(f"  ds_write_b128 v{MW}, {v(Q1,4)}"); lg.issue("Mw")
    o(f"  buffer_store_dwordx4 {v(U,4)}, v{vH1}, {WSr}, s{sKm} offen {PUB}")
    vpass(8, 2)
    dsr(W[2], vA, L_MEM + 2048, "B2")
    lab = o.label("nors")
    o(f"  s_cmp_eq_u32 s{sIsRed}, 0")
    o(f"  s_cbranch_scc1 {lab}")
    o(f"  v_mov_b32 v38, -1")
    for it in range(4):
        o(f"  s_add_u32 s{sT0}, s{sH1rs}, {it*8*H1_PROD}")
        o(f"  buffer_store_dword v38, v{vR}, {WSr}, s{sT0} offen {stf}")
    o(f"  buffer_store_dword v38, v{vP}, {WSr}, s{sH2rs} offen {stf}")
    o(f"  s_cmp_eq_u32 s{sIsRed}, 2")
    o(f"  s_cbranch_scc0 {lab}")
    for it in range(4):
        o(f"  s_add_u32 s{sT0}, s{sH1rs}, {it*8*H1_PROD}")
        o(f"  buffer_store_dword v38, v{vR}, {WSr}, s{sT0} offen offset:8 {stf}")
    o.put(lab)
    lg.wait("Mw")
    o("  s_barrier")
    stamp(2)
    o.c("exchange reads")
    XP = [Q0, vKx, vKx+4, 74]
    MP = [Q1, 66, 70, 38]
    for k in range(4):
        dsr(XP[k], vA, L_XEX + 1024*k, f"XP{k}")
    for k in range(4):
        dsr(MP[k], vM, L_MEX + 256*k, f"MP{k}")
    lg.wait("B0")
    vpass(0, 0)
    dsr(W[0], vA, L_MEM + 3072, "B3")
    lg.wait("B1")
    vpass(1, 1)
    dsr(W[1], vA, L_MEM + 4096, "B4")
    lg.wait("B2")
    vpass(2, 2)
    dsr(W[2], vA, L_MEM + 5120, "B5")
    lg.wait("XP3")
    for k in range(1, 4):
        o(f"  v_pk_add_f32 {v(Q0,2)}, {v(Q0,2)}, {v(XP[k],2)}")
        o(f"  v_pk_add_f32 {v(Q0+2,2)}, {v(Q0+2,2)}, {v(XP[k]+2,2)}")
    lg.wait("MP3")
    for k in range(1, 4):
        o(f"  v_pk_add_f32 {v(Q1,2)}, {v(Q1,2)}, {v(MP[k],2)}")
        o(f"  v_pk_add_f32 {v(Q1+2,2)}, {v(Q1+2,2)}, {v(MP[k]+2,2)}")
    WIN = [14, 18, 22, 26, 38, 42, 66, 70]
    lds_list = [(tl, kap, frag_o(tl, kap)[1]) for tl in range(9) for kap in range(4)]
    slot_of = {}
    st = dict(issued=0)
    BASE = (vXw, 78, 78)
    def issue_frag():
        n = st['issued']
        if n >= len(lds_list): return
        tl, kap, f = lds_list[n]
        sl = WIN[n % len(WIN)]
        b, imm = lds_frag_addr(f)
        if b == 2 and lds_frag_addr(f-1)[0] == 1:
            o(f"  v_add_u32 v78, 0x10000, v78")
        dsr(sl, BASE[b], imm, f"wo{n}")
        slot_of[(tl, kap)] = (sl, n)
        st['issued'] = n + 1
    o.c("softmax")
    MX, TM = 78, 42
    o(f"  v_max3_f32 v{MX}, v{Q0}, v{Q0+1}, v{Q0+2}")
    o(f"  v_max3_f32 v{TM}, v{Q0+3}, v{Q1}, v{Q1+1}")
    o(f"  v_max3_f32 v{MX}, v{MX}, v{Q1+2}, v{Q1+3}")
    lg.wait("B3")
    o(f"  v_max_f32 v{MX}, v{MX}, v{TM}")
    smf(o, V0, W[0], frag_v(0, 3))
    issue_frag()
    o(f"  v_max_f32_dpp v{MX}, v{MX}, v{MX} row_ror:8 row_mask:0xf bank_mask:0xf")
    smf(o, V1, W[0], frag_v(1, 3))
    o(f"  v_mov_b32 v{TM}, v{MX}")
    issue_frag()
    lg.wait("B4")
    smf(o, V0, W[1], frag_v(0, 4))
    o(f"  v_permlane16_swap_b32 v{MX}, v{TM}")
    smf(o, V1, W[1], frag_v(1, 4))
    o(f"  v_max_f32 v{MX}, v{MX}, v{TM}")
    o(f"  v_mov_b32 v{TM}, v{MX}")
    lg.wait("B5")
    smf(o, V0, W[2], frag_v(0, 5))
    smf(o, V1, W[2], frag_v(1, 5))
    o(f"  v_permlane32_swap_b32 v{MX}, v{TM}")
    o(f"  v_max_f32 v{MX}, v{MX}, v{TM}")
    o(f"  v_mul_f32 v{MX}, s{sC}, v{MX}")
    for i in range(8):
        o(f"  v_fma_f32 v{Q0+i}, v{Q0+i}, s{sC}, -v{MX}")
    for i in range(8):
        o(f"  v_exp_f32 v{Q0+i}, v{Q0+i}")
    PX, PM, PXs, LA, LB, VP = 74, 76, 70, 72, 73, 66
    o(f"  v_cvt_pk_bf16_f32 v{VP}, v{V0}, v{V0+1}")
    o(f"  v_cvt_pk_bf16_f32 v{PX}, v{Q0}, v{Q0+1}")
    o(f"  v_cvt_pk_bf16_f32 v{PX+1}, v{Q0+2}, v{Q0+3}")
    o(f"  v_cvt_pk_bf16_f32 v{VP+1}, v{V0+2}, v{V0+3}")
    o(f"  v_cvt_pk_bf16_f32 v{PM}, v{Q1}, v{Q1+1}")
    o(f"  v_cvt_pk_bf16_f32 v{PM+1}, v{Q1+2}, v{Q1+3}")
    o.c("PV")
    D0, D1 = 38, 42
    o(f"  v_mfma_f32_16x16x16_bf16 {v(D0,4)}, {v(vVx,2)}, {v(PX,2)}, 0")
    o(f"  v_mov_b32_dpp v{PXs}, v{PX} row_ror:8 row_mask:0xf bank_mask:0xf")
    o(f"  v_mov_b32_dpp v{PXs+1}, v{PX+1} row_ror:8 row_mask:0xf bank_mask:0xf")
    o(f"  v_mfma_f32_16x16x16_bf16 {v(D1,4)}, {v(vVx+4,2)}, {v(PX,2)}, 0")
    o(f"  v_cvt_pk_bf16_f32 v{VP+2}, v{V1}, v{V1+1}")
    o(f"  v_cvt_pk_bf16_f32 v{VP+3}, v{V1+2}, v{V1+3}")
    o(f"  v_mfma_f32_16x16x16_bf16 {v(D0,4)}, {v(VP,2)}, {v(PM,2)}, {v(D0,4)}")
    o(f"  v_add_f32 v{LA}, v{Q0}, v{Q0+1}")
    o(f"  v_add_f32 v{LB}, v{Q0+2}, v{Q0+3}")
    o(f"  v_mfma_f32_16x16x16_bf16 {v(D0,4)}, {v(vVx+2,2)}, {v(PXs,2)}, {v(D0,4)}")
    o(f"  v_add_f32 v{LA}, v{LA}, v{LB}")
    o(f"  v_add_f32 v{LB}, v{Q1}, v{Q1+1}")
    o(f"  v_mfma_f32_16x16x16_bf16 {v(D1,4)}, {v(vVx+6,2)}, {v(PXs,2)}, {v(D1,4)}")
    o(f"  v_add_f32 v{MX}, v{Q1+2}, v{Q1+3}")
    o(f"  v_add_f32 v{LB}, v{LB}, v{MX}")
    o(f"  v_mfma_f32_16x16x16_bf16 {v(D1,4)}, {v(VP+2,2)}, {v(PM,2)}, {v(D1,4)}")
    o(f"  v_fmamk_f32 v{LA}, v{LB}, 0x3e800000, v{LA}")
    o(f"  s_add_u32 s{sT3}, s{sKm}, {VM-KM}")
    nop(o, 1)
    o(f"  v_add_f32_dpp v{LA}, v{LA}, v{LA} row_ror:8 row_mask:0xf bank_mask:0xf")
    o(f"  s_cmp_eq_u32 s{sStep}, 63")
    o(f"  v_mov_b32 v{LB}, v{LA}")
    o(f"  s_cbranch_scc1 {L}_done")
    issue_frag()
    o(f"  v_permlane16_swap_b32 v{LA}, v{LB}")
    o(f"  v_add_f32 v{LA}, v{LA}, v{LB}")
    o(f"  v_mov_b32 v{LB}, v{LA}")
    issue_frag()
    nop(o, 1)
    o(f"  v_permlane32_swap_b32 v{LA}, v{LB}")
    o(f"  v_add_f32 v{LA}, v{LA}, v{LB}")
    o(f"  v_rcp_f32 v78, v{LA}")
    O0 = 70
    nop(o, 1)
    for i in range(0, 8, 2):
        o(f"  v_pk_mul_f32 {v(D0+i,2)}, {v(D0+i,2)}, {v(78,2)} op_sel_hi:[1,0]")
    o(f"  v_cvt_pk_bf16_f32 v{O0}, v{D0}, v{D0+1}")
    o(f"  v_cvt_pk_bf16_f32 v{O0+1}, v{D0+2}, v{D0+3}")
    o(f"  ds_write_b64 v{vOw}, {v(O0,2)}"); lg.issue("Ow0")
    o(f"  v_cvt_pk_bf16_f32 v{O0+2}, v{D1}, v{D1+1}")
    o(f"  v_cvt_pk_bf16_f32 v{O0+3}, v{D1+2}, v{D1+3}")
    o(f"  ds_write_b64 v{vOw}, {v(O0+2,2)} offset:512"); lg.issue("Ow1")
    o(f"  v_add_u32 v78, 0x10000, v{vXw}")
    issue_frag(); issue_frag()
    o(f"  buffer_store_dwordx4 {v(VP,4)}, v{vA}, {WSr}, s{sT3} offen {PUB}")
    lg.wait("Ow1")
    o("  s_barrier")
    stamp(3)
    o.c("E phase")
    B = [46, 50, 54, 58]
    for k in range(4):
        dsr(B[k], vA, L_OEX + (k//2)*1024 + (k%2)*128, f"ob{k}")
    issue_frag(); issue_frag()
    D = [30, 34]
    PK, PKB = 62, 74
    for tl in range(9):
        post = []
        d = D[tl % 2]
        pend = []
        if tl >= 1:
            prev = tl - 1
            dd = D[prev % 2]; x = prev % 2; p = prev // 2
            pk = PK if p % 2 == 0 else PKB
            pend = [f"  v_cvt_pk_bf16_f32 v{pk+2*x}, v{dd}, v{dd+1}", f"  v_cvt_pk_bf16_f32 v{pk+2*x+1}, v{dd+2}, v{dd+3}"]
            if x == 1 and p % 2 == 1:
                post = ["  s_nop 0"] + [f"  v_mov_b32_dpp v{PK+i}, v{PKB+i} row_ror:8 row_mask:0xf bank_mask:0xc" for i in range(4)]
                post.append(f"  buffer_store_dwordx4 {v(PK,4)}, v{vA}, {WSr}, s{sH1st} offen offset:{1024*(p//2)} {stf}")
            else:
                post = []
        if tl >= 1: lg.wait(f"wo{4*tl+3}")
        for n_ in range(4):
            kap = n_
            if tl == 0: lg.wait(f"ob{kap}")
            sl, n = slot_of[(tl, kap)]
            if tl == 0: lg.wait(f"wo{n}")
            cin = "0" if n_ == 0 else v(d, 4)
            o(f"  v_mfma_f32_16x16x32_bf16 {v(d,4)}, {v(sl,4)}, {v(B[kap],4)}, {cin}")
            issue_frag()
            if n_ == 2 and pend:
                for x_ in pend: o(x_)
                pend = []
            if n_ == 3 and post:
                for x_ in post: o(x_)
                post = []
    for r in range(38, 46): o(f"  v_mov_b32 v{r}, 0")
    d = D[0]
    o(f"  v_cvt_pk_bf16_f32 v{PK}, v{d}, v{d+1}")
    o(f"  v_cvt_pk_bf16_f32 v{PK+1}, v{d+2}, v{d+3}")
    o(f"  buffer_store_dwordx2 {v(PK,2)}, v{vH1}, {WSr}, s{sH1h} offen {stf}")
    assert not lg.q, lg.q
    stamp(4)
    for r in list(range(30, 38)) + list(range(46, 54)): o(f"  v_mov_b32 v{r}, 0")
    nop(o, fdelay)
    o.c("F: reducers")
    o(f"  s_cmp_eq_u32 s{sIsRed}, 0")
    o(f"  s_cbranch_scc1 {L}_cons")
    o(f"  s_add_u32 s{sT1}, s{sH1ld}, {8*H1_PROD}")
    o(f"  s_add_u32 s{sT2}, s{sH1ld}, {16*H1_PROD}")
    o(f"  s_add_u32 s{sT3}, s{sH1ld}, {24*H1_PROD}")
    o(f"{L}_rp:")
    if timing: o("  s_add_u32 s80, s80, 1\n  s_memtime s[64:65]")
    o(f"  buffer_load_dwordx4 {v(54,4)}, v{vR}, {WSr}, s{sH1ld} offen sc1")
    o(f"  buffer_load_dwordx4 {v(58,4)}, v{vR}, {WSr}, s{sT1} offen sc1")
    o(f"  buffer_load_dwordx4 {v(62,4)}, v{vR}, {WSr}, s{sT2} offen sc1")
    o(f"  buffer_load_dwordx4 {v(66,4)}, v{vR}, {WSr}, s{sT3} offen sc1")
    o(f"  s_add_u32 s{sPoll}, s{sPoll}, 1")
    o(f"  s_cmp_gt_u32 s{sPoll}, {POLL_LIMIT}")
    o(f"  s_cbranch_scc1 {L}_bail")
    o(f"  s_waitcnt vmcnt(3)")
    o(f"  v_mfma_f32_16x16x32_bf16 {v(70,4)}, {v(vSelR,4)}, {v(54,4)}, 0")
    o(f"  s_waitcnt vmcnt(2)")
    o(f"  v_mfma_f32_16x16x32_bf16 {v(70,4)}, {v(vSelR,4)}, {v(58,4)}, {v(70,4)}")
    o(f"  s_waitcnt vmcnt(1)")
    o(f"  v_mfma_f32_16x16x32_bf16 {v(70,4)}, {v(vSelR,4)}, {v(62,4)}, {v(70,4)}")
    o(f"  s_waitcnt vmcnt(0)")
    if timing: o("  s_memtime s[66:67]")
    o(f"  v_mfma_f32_16x16x32_bf16 {v(70,4)}, {v(vSelR,4)}, {v(66,4)}, {v(70,4)}")
    nop(o, 8)
    o(f"  v_cmp_u_f32 vcc, v70, v70")
    o(f"  s_cbranch_vccnz {L}_rp")
    for i in range(4):
        o(f"  v_add_f32_dpp v{70+i}, v{70+i}, v{70+i} row_ror:8 row_mask:0xf bank_mask:0xf")
    o(f"  v_cvt_pk_bf16_f32 v74, v70, v71")
    o(f"  v_cvt_pk_bf16_f32 v75, v72, v73")
    o(f"  buffer_store_dwordx2 {v(74,2)}, v{vP}, {WSr}, s{sH2pub} offen {stf}")
    o(f"{L}_cons:")
    o(f"  s_barrier")
    stamp(5)
    o.c("A: gather mem(s+1)")
    o(f"  s_add_u32 s{sT1}, s{sH2pl}, 4096")
    o(f"  s_add_u32 s{sT2}, s{sH2pub}, 8192")
    nop(o, adelay)
    o(f"  s_cmp_eq_u32 s{sWv_}, 0")
    o(f"  s_cbranch_scc1 {L}_cp3")
    o(f"{L}_cp:")
    if timing: o("  s_add_u32 s81, s81, 1\n  s_memtime s[68:69]")
    o(f"  buffer_load_dwordx4 {v(58,4)}, v{vA}, {WSr}, s{sH2pl} offen sc1")
    o(f"  buffer_load_dwordx4 {v(62,4)}, v{vA}, {WSr}, s{sT1} offen sc1")
    o(f"  s_add_u32 s{sPoll}, s{sPoll}, 1")
    o(f"  s_cmp_gt_u32 s{sPoll}, {POLL_LIMIT}")
    o(f"  s_cbranch_scc1 {L}_bail")
    o(f"  s_waitcnt vmcnt(0)")
    if timing: o("  s_memtime s[70:71]")
    o(f"  v_max3_u32 v70, v58, v60, v62")
    o(f"  v_max_u32 v70, v70, v64")
    o(f"  v_cmp_eq_u32 vcc, -1, v70")
    o(f"  s_cbranch_vccnz {L}_cp")
    o(f"  ds_write_b128 v{vXw}, {v(58,4)} offset:{L_MEM}")
    o(f"  ds_write_b128 v{vXw}, {v(62,4)} offset:{L_MEM+4096}")
    o(f"  s_branch {L}_cj")
    o(f"{L}_cp3:")
    if timing: o("  s_add_u32 s81, s81, 1\n  s_memtime s[68:69]")
    o(f"  buffer_load_dwordx4 {v(58,4)}, v{vA}, {WSr}, s{sH2pl} offen sc1")
    o(f"  buffer_load_dwordx4 {v(62,4)}, v{vA}, {WSr}, s{sT1} offen sc1")
    o(f"  buffer_load_dwordx4 {v(66,4)}, v{vA}, {WSr}, s{sT2} offen sc1")
    o(f"  s_add_u32 s{sPoll}, s{sPoll}, 1")
    o(f"  s_cmp_gt_u32 s{sPoll}, {POLL_LIMIT}")
    o(f"  s_cbranch_scc1 {L}_bail")
    o(f"  s_waitcnt vmcnt(0)")
    if timing: o("  s_memtime s[70:71]")
    o(f"  v_max3_u32 v70, v58, v60, v62")
    o(f"  v_max3_u32 v70, v70, v64, v66")
    o(f"  v_max_u32 v70, v70, v68")
    o(f"  v_cmp_eq_u32 vcc, -1, v70")
    o(f"  s_cbranch_vccnz {L}_cp3")
    o(f"  ds_write_b128 v{vXw}, {v(58,4)} offset:{L_MEM}")
    o(f"  ds_write_b128 v{vXw}, {v(62,4)} offset:{L_MEM+4096}")
    o(f"  ds_write_b128 v{vA}, {v(66,4)} offset:{L_MEM+8192}")
    o(f"{L}_cj:")
    if timing: o("  s_memtime s[72:73]")
    o.c("K/V of the next step (L2-warm through the touch loads)")
    o(f"  s_add_u32 s{sT1}, s{sKoff}, {VBUF-KBUF}")
    o(f"  buffer_load_dwordx4 {v(vKx,4)}, v{vA}, {WSr}, s{sKoff} offen")
    o(f"  buffer_load_dwordx4 {v(vKx+4,4)}, v{vA}, {WSr}, s{sKoff} offen offset:1024")
    o(f"  buffer_load_dwordx4 {v(vVx,4)}, v{vA}, {WSr}, s{sT1} offen")
    o(f"  buffer_load_dwordx4 {v(vVx+4,4)}, v{vA}, {WSr}, s{sT1} offen offset:1024")
    o(f"  s_add_u32 s{sStep}, s{sStep}, 1")
    o(f"  s_waitcnt lgkmcnt(0)")
    o(f"  s_barrier")
    if timing:
        o(f"  s_memtime s[98:99]\n  s_waitcnt lgkmcnt(0)")
        lab = o.label("nost")
        o(f"  s_cmp_eq_u32 s{sStep}, 21")
        o(f"  s_cbranch_scc0 {lab}")
        for k, sr in enumerate([86,88,90,92,94,96,98,64,66,68,70,72]):
            o(f"  v_mov_b32 v74, s{sr}")
            o(f"  s_lshl_b32 s{sT0}, s{sH}, 2\n  s_add_u32 s{sT0}, s{sT0}, s{sWv_}\n  s_lshl_b32 s{sT0}, s{sT0}, 6\n  s_add_u32 s{sT0}, s{sT0}, {FLAGS + 4096 + 4*k}")
            o(f"  v_mov_b32 v75, s{sT0}")
            o(f"  buffer_store_dword v74, v75, {WSr}, 0 offen")
        o.put(lab)
    o(f"  s_branch {L}_loop")
    o(f"{L}_bail:")
    o(f"  s_mov_b32 s{sStep}, 1000")
    o(f"{L}_done:")
    o(f"  buffer_store_dwordx4 {v(66,4)}, v{vA}, {WSr}, s{sT3} offen sc1")
    o(f"  s_waitcnt vmcnt(0) lgkmcnt(0)")
    o(f"  v_mov_b32 v78, 64")
    o(f"  v_mov_b32 v77, s{sFlagOff}")
    o(f"  buffer_store_dword v78, v77, {WSr}, 0 offen sc1")
    o(f"  s_waitcnt vmcnt(0)")

def emit_init(o, L):
    WSr = f"s[{sWS}:{sWS+3}]"
    o.c("sentinel init")
    o(f"""  v_mov_b32 v66, -1
  v_mov_b32 v67, -1
  v_mov_b32 v68, -1
  v_mov_b32 v69, -1
  s_mul_i32 s{sT1}, s{sH}, {H1_PROD}
  s_add_u32 s{sT1}, s{sT1}, {H1}""")
    for slot in range(2):
        o(f"  s_lshl_b32 s{sT2}, s{sWv_}, 11\n  s_add_u32 s{sT2}, s{sT2}, s{sT1}\n  s_add_u32 s{sT2}, s{sT2}, {slot*H1_SLOT}")
        for p in range(2):
            o(f"  buffer_store_dwordx4 {v(66,4)}, v{vA}, {WSr}, s{sT2} offen offset:{1024*p}")
        o(f"  s_lshr_b32 s{sT2}, s{sWv_}, 1\n  s_lshl_b32 s{sT2}, s{sT2}, 10\n  s_add_u32 s{sT2}, s{sT2}, s{sT1}\n  s_add_u32 s{sT2}, s{sT2}, {slot*H1_SLOT + 8192}")
        o(f"  buffer_store_dwordx4 {v(66,4)}, v{vA}, {WSr}, s{sT2} offen")
    lab = o.label("noh2")
    o(f"""  s_lshl_b32 s{sT0}, s{sH}, 2
  s_add_u32 s{sT0}, s{sT0}, s{sWv_}
  s_lshl_b32 s{sFlagOff}, s{sT0}, 2
  s_add_u32 s{sFlagOff}, s{sFlagOff}, {FLAGS}
  s_cmp_lt_u32 s{sT0}, 36
  s_cbranch_scc0 {lab}
  s_lshl_b32 s{sT0}, s{sT0}, 10
  s_add_u32 s{sT0}, s{sT0}, {H2}
  buffer_store_dwordx4 {v(66,4)}, v{vA}, {WSr}, s{sT0} offen
{lab}:""")

def emit_mem0(o):
    WSr = f"s[{sWS}:{sWS+3}]"
    o.c("mem0 -> LDS: piece (j=8c+2g+u, t) = mem0[t][8j..8j+8)")
    o(f"""  s_mov_b32 s64, s48
  s_and_b32 s65, s49, 0xffff
  s_mov_b32 s66, 9216
  s_mov_b32 s67, 0x20000
  v_lshrrev_b32 v62, 4, v{vA}         ; lane
  v_and_b32 v63, 7, v62               ; t
  v_lshrrev_b32 v64, 3, v62           ; 2g+u
  v_mul_u32_u24 v63, 1152, v63
  v_lshl_add_u32 v63, v64, 4, v63     ; t*1152 + (2g+u)*16
  s_lshl_b32 s{sT0}, s{sWv_}, 7
  s_add_u32 s{sT1}, s{sT0}, 512
  buffer_load_dwordx4 {v(66,4)}, v63, s[64:67], s{sT0} offen
  buffer_load_dwordx4 {v(70,4)}, v63, s[64:67], s{sT1} offen
  buffer_load_dwordx4 {v(74,4)}, v63, s[64:67], 0 offen offset:1024
  s_waitcnt vmcnt(0)
  s_barrier
  ds_write_b128 v{vXw}, {v(66,4)} offset:{L_MEM}
  ds_write_b128 v{vXw}, {v(70,4)} offset:{L_MEM+4096}
  ds_write_b128 v{vA}, {v(74,4)} offset:{L_MEM+8192}""")
    for r in range(30, 54):
        o(f"  v_mov_b32 v{r}, 0")
    o(f"""  s_mov_b32 s{sStep}, 0
  s_mov_b32 s{sPoll}, 0
  s_mov_b32 s80, 0
  s_mov_b32 s81, 0
  s_lshl_b32 s{sKoff}, s{sH}, 13
  s_lshl_b32 s{sT1}, s{sWv_}, 11
  s_add_u32 s{sKoff}, s{sKoff}, s{sT1}
  s_lshl_b32 s{sKm}, s{sH}, 12
  s_add_u32 s{sKm}, s{sKm}, s{sW1024}
  s_add_u32 s{sKm}, s{sKm}, {KM - 32*4096}
  s_mov_b32 s{sH1ld}, {H1 + H1_SLOT}
  s_mul_i32 s{sT1}, s{sH}, {H1_PROD}
  s_lshl_b32 s{sT2}, s{sWv_}, 11
  s_add_u32 s{sH1so}, s{sT1}, s{sT2}
  s_lshr_b32 s{sT2}, s{sWv_}, 1
  s_lshl_b32 s{sT2}, s{sT2}, 10
  s_add_u32 s{sH1ho}, s{sT1}, s{sT2}
  s_add_u32 s{sH1ho}, s{sH1ho}, 8192
  s_and_b32 s{sT2}, s{sWv_}, 1
  s_lshl_b32 s{sT2}, s{sT2}, 3
  s_add_u32 s{sH1ho}, s{sH1ho}, s{sT2}
  s_add_u32 s{sT1}, s{sKoff}, {VBUF-KBUF}
  buffer_load_dwordx4 {v(vKx,4)}, v{vA}, {WSr}, s{sKoff} offen
  buffer_load_dwordx4 {v(vKx+4,4)}, v{vA}, {WSr}, s{sKoff} offen offset:1024
  buffer_load_dwordx4 {v(vVx,4)}, v{vA}, {WSr}, s{sT1} offen
  buffer_load_dwordx4 {v(vVx+4,4)}, v{vA}, {WSr}, s{sT1} offen offset:1024
  s_waitcnt lgkmcnt(0)
  s_barrier""")
```

```python
from asmlib import *
import rgen
from rgen import *
def make_r_kernel(name, fd=32, ad=16):
    o = Asm()
    o(f".globl {name}\n.p2align 8\n.type {name},@function\n{name}:")
    o(f"""
  s_cmp_ge_u32 s2, 256
  s_cbranch_scc1 {name}_end
  s_load_dwordx2 s[48:49], s[0:1], 8
  s_load_dwordx2 s[50:51], s[0:1], 16
  s_load_dwordx2 s[52:53], s[0:1], 24
  s_load_dwordx2 s[54:55], s[0:1], 32
  s_load_dwordx2 s[56:57], s[0:1], 40
  s_load_dwordx2 s[58:59], s[0:1], 104
  s_load_dwordx2 s[60:61], s[0:1], 96
  s_getreg_b32 s3, hwreg(HW_REG_XCC_ID)
  s_and_b32 s3, s3, 0xf
  v_lshrrev_b32 v1, 6, v0
  s_nop 1
  v_readfirstlane_b32 s{sWv_}, v1
  v_and_b32 v0, 63, v0
  s_waitcnt lgkmcnt(0)
  s_mov_b32 s{sWS}, s58
  s_and_b32 s{sWS+1}, s59, 0xffff
  s_mov_b32 s{sWS+2}, {WS_USED}
  s_mov_b32 s{sWS+3}, 0x20000
  s_cmp_eq_u32 s{sWv_}, 0
  s_cbranch_scc0 {name}_t1
  s_lshl_b32 s{sT0}, s3, 2
  v_mov_b32 v1, s{sT0}
  v_mov_b32 v2, 1
  s_mov_b64 s[20:21], exec
  s_mov_b64 exec, 1
  global_atomic_add v3, v1, v2, s[60:61] sc0
  s_waitcnt vmcnt(0)
  v_mov_b32 v4, 0
  ds_write_b32 v4, v3
  s_waitcnt lgkmcnt(0)
  s_mov_b64 exec, s[20:21]
{name}_t1:
  s_barrier
  v_mov_b32 v4, 0
  ds_read_b32 v3, v4
  s_waitcnt lgkmcnt(0)
  v_readfirstlane_b32 s{sH}, v3
  s_barrier
  s_cmp_eq_u32 s3, 0
  s_cbranch_scc0 {name}_end
  s_cmp_lt_u32 s{sH}, 32
  s_cbranch_scc0 {name}_end
""")
    emit_consts(o)
    emit_init(o, name)
    emit_weights(o)
    o(f"""
  s_waitcnt vmcnt(0)
  s_barrier
  s_cmp_eq_u32 s{sWv_}, 0
  s_cbranch_scc0 {name}_tb
  v_mov_b32 v62, 64
  v_mov_b32 v63, 1
  s_mov_b64 s[20:21], exec
  s_mov_b64 exec, 1
  global_atomic_add v62, v63, s[60:61]
  s_mov_b64 exec, s[20:21]
  s_mov_b32 s{sPoll}, 0
{name}_tb0:
  s_add_u32 s{sPoll}, s{sPoll}, 1
  s_cmp_gt_u32 s{sPoll}, 1000000
  s_cbranch_scc1 {name}_tb
  global_load_dword v64, v62, s[60:61] sc1
  s_waitcnt vmcnt(0)
  v_cmp_gt_u32 vcc, 32, v64
  s_cbranch_vccnz {name}_tb0
{name}_tb:
  s_barrier
""")
    emit_mem0(o)
    emit_loop(o, name + "_R", "", False, fd, ad)
    o(f"{name}_end:\n  s_endpgm")
    kd = f"""
.p2align 6
.amdhsa_kernel {name}
  .amdhsa_next_free_vgpr 512
  .amdhsa_next_free_sgpr 102
  .amdhsa_accum_offset 256
  .amdhsa_group_segment_fixed_size 0
  .amdhsa_kernarg_size 112
  .amdhsa_user_sgpr_count 2
  .amdhsa_user_sgpr_kernarg_segment_ptr 1
  .amdhsa_system_sgpr_workgroup_id_x 1
.end_amdhsa_kernel
"""
    return (name, 256, 163840, o.text(), kd)
```

```python
from asmlib import *
from rgen import Cnt, nop

sWS = 8
sWv = 13
sB1, sB2 = 64, 68
sAo = 72
sBo1, sBo2 = 73, 74
sT = [76, 77, 78, 79, 80, 81, 82, 83]
P_X, P_WQ, P_WK, P_WV, P_WO, P_W1, P_W3, P_W2, P_OUT = 84, 86, 88, 90, 92, 94, 96, 98, 100

def srd(o, dst, ptr, size):
    o(f"  s_mov_b32 s{dst}, s{ptr}\n  s_and_b32 s{dst+1}, s{ptr+1}, 0xffff\n  s_mov_b32 s{dst+2}, {size}\n  s_mov_b32 s{dst+3}, 0x20000")

class Gemm:
    def __init__(self, MB, NB, KT, swap, ldb, nrb_stride, PA=2, dual=False):
        self.MB, self.NB, self.KT, self.swap, self.ldb, self.PA, self.dual = MB, NB, KT, swap, ldb, PA, dual
        self.rbs = nrb_stride
        self.NS = NB // 2
        self.vA, self.vD = 0, 1
        self.vT = 2
        self.vBf = 8
        self.vAcc = self.vBf + 2*NB*4
        self.vFree = self.vAcc + MB*NB*16
    def acc(self, mb, nb): return self.vAcc + (mb*self.NB + nb)*16
    def setup(self, o):
        o(f"""
  v_lshrrev_b32 v10, 3, v0           ; l/8
  v_and_b32 v11, 7, v0               ; l%8
  v_bfe_u32 v12, v0, 4, 1            ; (l/16)%2
  v_lshlrev_b32 v12, 2, v12
  v_xor_b32 v11, v11, v12
  s_mov_b32 s{sT[0]}, {self.ldb}
  v_mul_lo_u32 v{self.vD}, v10, s{sT[0]}
  v_lshl_add_u32 v{self.vD}, v11, 4, v{self.vD}
  ; tr address: row=(4hi + r'), ch=(l/16)%2, c'=l%4
  v_lshrrev_b32 v10, 5, v0           ; hi
  v_bfe_u32 v11, v0, 2, 2            ; r'
  v_lshl_add_u32 v10, v10, 2, v11    ; 4hi + r'
  v_lshlrev_b32 v10, 7, v10          ; *128
  v_bfe_u32 v12, v0, 4, 1            ; ch
  v_lshl_add_u32 v10, v12, 5, v10
  v_and_b32 v12, 3, v0
  v_lshl_add_u32 v10, v12, 3, v10
  v_lshrrev_b32 v11, 1, v11          ; s = (r'/2)
  v_lshlrev_b32 v11, 6, v11          ; s*64
  v_add_u32 v{self.vT}, v10, v11
  v_xor_b32 v11, 64, v11
  v_add_u32 v{self.vT+1}, v10, v11
  v_add_u32 v{self.vT+2}, 0x10000, v{self.vT}
  v_add_u32 v{self.vT+3}, 0x10000, v{self.vT+1}
  v_add_u32 v{self.vT+4}, 0x20000, v{self.vT}
  v_add_u32 v{self.vT+5}, 0x20000, v{self.vT+1}
  v_lshlrev_b32 v0, 4, v0
""")
    def areg(self, t, mb, ks): return ((t % (self.PA+1))*self.MB + mb)*16 + ks*4
    def issue_tile(self, o, vm, t):
        for sub in range(self.NS):
            srdreg = sB2 if (self.dual and sub == 1) else sB1
            sbo = sBo2 if (self.dual and sub == 1) else sBo1
            colb = 0 if self.dual else sub*128
            for j in range(2):
                lds = t*self.NS*8192 + sub*8192 + j*1024
                o(f"  s_add_u32 m0, s{sT[7]}, {lds}")
                o(f"  s_add_u32 s{sT[0]}, s{sbo}, {(64*t + 8*j)*self.ldb + colb}")
                o(f"  buffer_load_dwordx4 v{self.vD}, s[{srdreg}:{srdreg+3}], s{sT[0]} offen lds")
                vm.issue(f"B{t}")
        for mb in range(self.MB):
            o(f"  s_add_u32 s{sT[0]}, s{sAo}, {mb*self.rbs + 4096*t}")
            for ks in range(4):
                o(f"  buffer_load_dwordx4 {a(self.areg(t,mb,ks),4)}, v{self.vA}, s[{sWS}:{sWS+3}], s{sT[0]} offen offset:{1024*ks}")
                vm.issue(f"A{t}")
    def bfrag(self, buf, nb): return self.vBf + (buf*self.NB + nb)*4
    def read_b(self, o, lg, t, ks, buf):
        kb, q = ks // 2, ks % 2
        for nb in range(self.NB):
            sub, par = nb // 2, nb % 2
            for z in range(2):
                off = t*self.NS*8192 + sub*8192 + (32*kb + 8*q + 16*z)*128
                b, imm = off // 65536, off % 65536
                o(f"  ds_read_b64_tr_b16 {v(self.bfrag(buf,nb)+2*z,2)}, v{self.vT + 2*b + par} offset:{imm}")
                lg.issue(f"R{t}_{ks}")
    def run(self, o, pre_issue=None):
        MB, NB, KT, PA = self.MB, self.NB, self.KT, self.PA
        vm = Cnt(o, "vm", 63); lg = Cnt(o, "lgkm", 15)
        for t in range(min(PA+1, KT)):
            self.issue_tile(o, vm, t)
        vm.wait("B0"); vm.wait("A0") if "A0" in vm.q else None
        o("  s_barrier")
        self.read_b(o, lg, 0, 0, 0)
        step = 0
        for t in range(KT):
            for ks in range(4):
                buf = step % 2
                nt, nks = (t, ks+1) if ks < 3 else (t+1, 0)
                if ks == 3 and t+1 < KT:
                    vm.wait(f"B{t+1}"); vm.wait(f"A{t+1}")
                    o("  s_barrier")
                lg.wait(f"R{t}_{ks}")
                if nt < KT:
                    self.read_b(o, lg, nt, nks, 1-buf)
                for mb in range(MB):
                    for nb in range(NB):
                        a_, b_ = a(self.areg(t,mb,ks),4), v(self.bfrag(buf,nb),4)
                        c = v(self.acc(mb,nb),16)
                        x, y = (b_, a_) if self.swap else (a_, b_)
                        cin = "0" if step == 0 else c
                        o(f"  v_mfma_f32_32x32x16_bf16 {c}, {x}, {y}, {cin}")
                if ks == 3 and t+PA+1 < KT:
                    self.issue_tile(o, vm, t+PA+1)
                step += 1
        nop(o, 12)


def lane_setup(o):
    o(f"""  v_lshrrev_b32 v1, 6, v0
  s_nop 1
  v_readfirstlane_b32 s{sWv}, v1
  v_and_b32 v0, 63, v0""")

def kv_store_off(o, vdst, vlane16):
    o(f"""  v_bfe_u32 v{vdst}, v{vlane16}, 8, 1          ; (l/16)%2
  v_lshlrev_b32 v{vdst}, 10, v{vdst}
  v_lshrrev_b32 v{vdst+1}, 9, v{vlane16}       ; l/32
  v_lshl_add_u32 v{vdst}, v{vdst+1}, 8, v{vdst}
  v_and_b32 v{vdst+1}, 0xf0, v{vlane16}        ; (l%16)*16
  v_add_u32 v{vdst}, v{vdst}, v{vdst+1}""")

def pack_piece(o, dst, acc, q):
    o(f"  v_cvt_pk_bf16_f32 v{dst}, v{acc+4*q}, v{acc+4*q+1}")
    o(f"  v_cvt_pk_bf16_f32 v{dst+1}, v{acc+4*q+2}, v{acc+4*q+3}")
    o(f"  v_cvt_pk_bf16_f32 v{dst+2}, v{acc+4*q+8}, v{acc+4*q+9}")
    o(f"  v_cvt_pk_bf16_f32 v{dst+3}, v{acc+4*q+10}, v{acc+4*q+11}")

def stage_ln(o, src_kind, stf):
    WS = f"s[{sWS}:{sWS+3}]"
    srd(o, sB1, P_X, 2048*576*2)
    o(f"""
  v_and_b32 v1, 31, v0                ; token
  v_lshrrev_b32 v2, 5, v0             ; hi
  v_mul_u32_u24 v3, 1152, v1
  v_lshl_add_u32 v3, v2, 4, v3
  s_mul_i32 s{sT[0]}, s20, {32*1152}
  s_lshl_b32 s{sT[1]}, s{sWv}, 6
  s_add_u32 s{sT[0]}, s{sT[0]}, s{sT[1]}
  v_lshlrev_b32 v0, 4, v0
  v_mov_b32 v4, 0x80000000
  s_cmp_lt_u32 s{sWv}, 2
  s_cselect_b32 s{sT[2]}, 0, 0x80000000
  v_or_b32 v5, s{sT[2]}, v3""")
    for i in range(5):
        vo = 3 if i < 4 else 5
        for j in range(2):
            o(f"  buffer_load_dwordx4 {v(16+8*i+4*j,4)}, v{vo}, s[{sB1}:{sB1+3}], s{sT[0]} offen offset:{256*i+32*j}")
    o("  s_waitcnt vmcnt(0)")
    for i in range(5):
        A_, B_ = 16+8*i, 20+8*i
        for r in (A_, B_):
            o(f"  v_permlane32_swap_b32 v{r}, v{r+2}")
            o(f"  v_permlane32_swap_b32 v{r+1}, v{r+3}")
    for i in range(5):
        A_, B_ = 16+8*i, 20+8*i
        for k in range(2):
            o(f"  v_swap_b32 v{A_+2+k}, v{B_+k}")
    o(f"""  s_mul_i32 s{sT[3]}, s20, {18*2048}
  s_lshl_b32 s{sT[4]}, s{sWv}, 11
  s_add_u32 s{sT[3]}, s{sT[3]}, s{sT[4]}      ; rb*18*2048 + w*2048
  v_or_b32 v6, s{sT[2]}, v0""")
    for i in range(5):
        vo = 0 if i < 4 else 6
        o(f"  s_add_u32 s{sT[4]}, s{sT[3]}, {XF + i*4*2048}")
        o(f"  buffer_store_dwordx4 {v(16+8*i,4)}, v{vo}, {WS}, s{sT[4]} offen {stf}")
        o(f"  buffer_store_dwordx4 {v(20+8*i,4)}, v{vo}, {WS}, s{sT[4]} offen offset:1024 {stf}")
    ln_core(o, 16, 40, XN, sT[3], 0, 6, stf)

def ln_core(o, R0, NR, dstbase, sOff, vo_full, vo_last, stf):
    WS = f"s[{sWS}:{sWS+3}]"
    F = 64
    for r in range(NR):
        o(f"  v_lshlrev_b32 v{F+2*r}, 16, v{R0+r}")
        o(f"  v_and_b32 v{F+2*r+1}, 0xffff0000, v{R0+r}")
    o("  v_mov_b32 v8, 0\n  v_mov_b32 v9, 0")
    for r in range(2*NR):
        o(f"  v_add_f32 v8, v8, v{F+r}")
    def xreduce(reg, slot):
        o(f"  v_mov_b32 v10, v{reg}\n  s_nop 1\n  v_permlane32_swap_b32 v{reg}, v10\n  v_add_f32 v{reg}, v{reg}, v10")
        o(f"  v_and_b32 v11, 0x1f0, v0\n  v_lshrrev_b32 v11, 2, v11          ; token*4")
        o(f"  s_lshl_b32 s{sT[5]}, s{sWv}, 7\n  v_add_u32 v12, s{sT[5]}, v11")
        o(f"  ds_write_b32 v12, v{reg} offset:{slot*512}\n  s_waitcnt lgkmcnt(0)\n  s_barrier")
        for w in range(4):
            o(f"  ds_read_b32 v{12+w}, v11 offset:{slot*512 + w*128}")
        o(f"  s_waitcnt lgkmcnt(0)\n  v_add_f32 v12, v12, v13\n  v_add_f32 v14, v14, v15\n  v_add_f32 v{reg}, v12, v14")
    xreduce(8, 0)
    o("  v_mul_f32 v8, 0x3ae38e39, v8")
    for r in range(2*NR):
        o(f"  v_sub_f32 v{F+r}, v{F+r}, v8")
    o(f"  s_cmp_lt_u32 s{sWv}, 2\n  s_cselect_b32 s{sT[6]}, 1.0, 0")
    for r in range(2*NR - 16, 2*NR):
        o(f"  v_mul_f32 v{F+r}, s{sT[6]}, v{F+r}")
    for r in range(2*NR):
        o(f"  v_fmac_f32 v9, v{F+r}, v{F+r}")
    xreduce(9, 1)
    o("""  v_mov_b32 v10, 0x3727c5ac          ; 1e-5
  v_fmac_f32 v10, 0x3ae38e39, v9
  v_rsq_f32 v9, v10
  s_nop 0""")
    for r in range(NR):
        o(f"  v_mul_f32 v{F+2*r}, v9, v{F+2*r}\n  v_mul_f32 v{F+2*r+1}, v9, v{F+2*r+1}")
        o(f"  v_cvt_pk_bf16_f32 v{R0+r}, v{F+2*r}, v{F+2*r+1}")
    for i in range(NR // 8):
        vo = vo_full if i < NR//8 - 1 else vo_last
        o(f"  s_add_u32 s{sT[4]}, s{sOff}, {dstbase + i*4*2048}")
        o(f"  buffer_store_dwordx4 {v(R0+8*i,4)}, v{vo}, {WS}, s{sT[4]} offen {stf}")
        o(f"  buffer_store_dwordx4 {v(R0+8*i+4,4)}, v{vo}, {WS}, s{sT[4]} offen offset:1024 {stf}")

def stage_a(o, stf):
    WS = f"s[{sWS}:{sWS+3}]"
    for swap, name in ((True, "qk"), (False, "v")):
        pass
    lab_v, lab_e = o.label("a_v"), o.label("a_e")
    g = Gemm(2, 4, 9, True, 8192, 18*2048)
    g.setup(o)
    o(f"""  s_lshr_b32 s22, s21, 5
  s_and_b32 s23, s21, 31
  s_cmp_eq_u32 s22, 0
  s_cselect_b32 s{sT[0]}, s{P_WK}, s{P_WQ}
  s_cselect_b32 s{sT[1]}, s{P_WK+1}, s{P_WQ+1}
  s_cmp_eq_u32 s22, 1
  s_cselect_b32 s{sT[0]}, s{P_WV}, s{sT[0]}
  s_cselect_b32 s{sT[1]}, s{P_WV+1}, s{sT[1]}""")
    srd(o, sB1, sT[0], 4718592)
    o(f"""  s_lshl_b32 s{sBo1}, s23, 8              ; head*256
  s_mul_i32 s{sT[0]}, s{sWv}, {16*8192}
  s_add_u32 s{sBo1}, s{sBo1}, s{sT[0]}
  s_lshl_b32 s{sT[7]}, s{sWv}, 11
  s_lshl_b32 s{sAo}, s20, 3
  s_lshl_b32 s{sT[0]}, s{sWv}, 1
  s_add_u32 s{sAo}, s{sAo}, s{sT[0]}
  s_mov_b32 s24, s{sAo}
  s_mul_i32 s{sAo}, s{sAo}, {18*2048}
  s_add_u32 s{sAo}, s{sAo}, {XN}
  s_cmp_eq_u32 s22, 1
  s_cbranch_scc1 {lab_v}""")
    g.run(o)
    o(f"  s_branch {lab_e}")
    o.put(lab_v)
    g2 = Gemm(2, 4, 9, False, 8192, 18*2048)
    g2.run(o)
    o.put(lab_e)
    vo = g.vFree
    kv_store_off(o, vo, 0)
    o(f"""  s_cmp_eq_u32 s22, 0
  s_cselect_b32 s{sT[0]}, {KBUF}, {QBUF}
  s_cmp_eq_u32 s22, 1
  s_cselect_b32 s{sT[0]}, {VBUF}, s{sT[0]}
  s_lshl_b32 s{sT[1]}, s24, 5
  s_add_u32 s{sT[1]}, s{sT[1]}, s23
  s_lshl_b32 s{sT[1]}, s{sT[1]}, 13
  s_add_u32 s{sT[0]}, s{sT[0]}, s{sT[1]}""")
    P = vo + 2
    n = 0
    for mb in range(2):
        for nb in range(4):
            o(f"  s_add_u32 s{sT[1]}, s{sT[0]}, {mb*32*8192 + nb*2048}")
            for q in range(2):
                d = P + 4*(n % 4); n += 1
                pack_piece(o, d, g.acc(mb, nb), q)
                o(f"  buffer_store_dwordx4 {v(d,4)}, v{vo}, {WS}, s{sT[1]} offen offset:{512*q} {stf}")

def stage_b(o, stf):
    WS = f"s[{sWS}:{sWS+3}]"
    Q, K, KMr, V, VMr, SX, SM, OA = 16, 48, 80, 112, 144, 160, 176, 192
    o("  v_lshlrev_b32 v0, 4, v0")
    kv_store_off(o, 1, 0)
    o(f"""  v_lshrrev_b32 v3, 9, v0              ; hi
  v_bfe_u32 v4, v0, 4, 5                ; l%32 (token / key / e_local)
  v_lshlrev_b32 v5, 8, v3
  v_lshl_add_u32 v5, v4, 4, v5
  v_mov_b32 v6, 0x80000000
  v_cmp_gt_u32 vcc, 8, v4
  s_nop 1
  v_cndmask_b32 v5, v6, v5, vcc
  ; vm offset: hi*256 + (l%16)*16 + ((l%32)/16)*8
  v_lshlrev_b32 v6, 8, v3
  v_and_b32 v7, 0xf0, v0
  v_add_u32 v6, v6, v7
  v_bfe_u32 v7, v0, 8, 1
  v_lshl_add_u32 v6, v7, 3, v6
  v_lshlrev_b32 v7, 2, v3
  v_sub_u32 v7, v4, v7
  s_lshl_b32 s{sT[0]}, s20, 5
  s_add_u32 s{sT[0]}, s{sT[0]}, s21          ; seg*32+head
  s_lshl_b32 s{sT[1]}, s{sT[0]}, 13          ; *8192
  s_lshl_b32 s{sT[2]}, s{sT[0]}, 12          ; *4096
  s_add_u32 s{sT[3]}, s{sT[1]}, {QBUF}
  s_add_u32 s{sT[4]}, s{sT[1]}, {VBUF}
  s_add_u32 s{sT[5]}, s{sT[2]}, {KM}
  s_add_u32 s{sT[6]}, s{sT[2]}, {VM}""")
    for b in range(4):
        for q in range(2):
            ks = 2*b + q
            off = b*2048 + q*512
            so, imm = (off // 4096)*4096, off % 4096
            if so:
                o(f"  s_add_u32 s22, s{sT[3]}, {so}\n  s_add_u32 s23, s{sT[1]}, {so}")
            else:
                o(f"  s_mov_b32 s22, s{sT[3]}\n  s_mov_b32 s23, s{sT[1]}")
            o(f"  buffer_load_dwordx4 {v(Q+4*ks,4)}, v1, {WS}, s22 offen offset:{imm}")
            o(f"  buffer_load_dwordx4 {v(K+4*ks,4)}, v1, {WS}, s23 offen offset:{imm}")
            o(f"  buffer_load_dwordx4 {v(KMr+4*ks,4)}, v5, {WS}, s{sT[5]} offen offset:{b*1024 + q*512} sc1")
    for b in range(4):
        for q in range(2):
            off = b*2048 + q*512
            so, imm = (off // 4096)*4096, off % 4096
            o(f"  s_add_u32 s22, s{sT[4]}, {so}")
            o(f"  buffer_load_dwordx4 {v(V+8*b+4*q,4)}, v1, {WS}, s22 offen offset:{imm}")
            o(f"  buffer_load_dwordx2 {v(VMr+4*b+2*q,2)}, v6, {WS}, s{sT[6]} offen offset:{b*1024 + q*512} sc1")
    o("  s_waitcnt vmcnt(16)")
    for ks in range(8):
        o(f"  v_mfma_f32_32x32x16_bf16 {v(SX,16)}, {v(K+4*ks,4)}, {v(Q+4*ks,4)}, {'0' if ks == 0 else v(SX,16)}")
        o(f"  v_mfma_f32_32x32x16_bf16 {v(SM,16)}, {v(KMr+4*ks,4)}, {v(Q+4*ks,4)}, {'0' if ks == 0 else v(SM,16)}")
    nop(o, 16)
    o("  v_mov_b32 v8, 0xff7fffff")
    for r in range(16):
        key = 8*(r//4) + r % 4
        o(f"  v_cmp_gt_i32 vcc, {key}, v7\n  s_nop 1\n  v_cndmask_b32 v{SX+r}, v{SX+r}, v8, vcc")
    o(f"  v_max3_f32 v9, v{SX}, v{SX+1}, v{SX+2}")
    for r in range(3, 15, 2):
        o(f"  v_max3_f32 v9, v9, v{SX+r}, v{SX+r+1}")
    o(f"  v_max3_f32 v9, v9, v{SX+15}, v{SM}")
    o(f"  v_max3_f32 v9, v9, v{SM+1}, v{SM+2}")
    o(f"  v_max_f32 v9, v9, v{SM+3}")
    o("  v_mov_b32 v10, v9\n  s_nop 1\n  v_permlane32_swap_b32 v9, v10\n  v_max_f32 v9, v9, v10")
    o("  s_mov_b32 s22, 0x3e0293ee\n  v_mul_f32 v9, s22, v9")
    regs = [SX+r for r in range(16)] + [SM+r for r in range(4)]
    for r in regs: o(f"  v_fma_f32 v{r}, v{r}, s22, -v9")
    for r in regs: o(f"  v_exp_f32 v{r}, v{r}")
    o(f"  s_nop 0\n  v_add_f32 v10, v{regs[0]}, v{regs[1]}")
    for r in regs[2:]: o(f"  v_add_f32 v10, v10, v{r}")
    o("  v_mov_b32 v11, v10\n  s_nop 1\n  v_permlane32_swap_b32 v10, v11\n  v_add_f32 v10, v10, v11\n  v_rcp_f32 v10, v10")
    PX, PM = Q, Q+8
    pack_piece(o, PX, SX, 0); pack_piece(o, PX+4, SX, 1)
    o(f"  v_cvt_pk_bf16_f32 v{PM}, v{SM}, v{SM+1}\n  v_cvt_pk_bf16_f32 v{PM+1}, v{SM+2}, v{SM+3}")
    o("  s_waitcnt vmcnt(0)\n  s_nop 1")
    for half in range(2):
        for b in range(4):
            o(f"  v_mfma_f32_32x32x8_bf16 {v(OA+16*b,16)}, {v(VMr+4*b+2*half,2)}, {v(PM,2)}, {'0' if half == 0 else v(OA+16*b,16)}")
    nop(o, 8)
    for q in range(2):
        for b in range(4):
            o(f"  v_mfma_f32_32x32x16_bf16 {v(OA+16*b,16)}, {v(V+8*b+4*q,4)}, {v(PX+4*q,4)}, {v(OA+16*b,16)}")
    nop(o, 16)
    o(f"""  s_mul_i32 s22, s20, {128*2048}
  s_lshl_b32 s23, s21, 13                   ; head*4*2048
  s_add_u32 s22, s22, s23
  s_add_u32 s22, s22, {OBUF}""")
    n = 0
    for b in range(4):
        for r in range(16): o(f"  v_mul_f32 v{OA+16*b+r}, v10, v{OA+16*b+r}")
        o(f"  s_add_u32 s23, s22, {b*2048}")
        for q in range(2):
            d = K + 4*(n % 8); n += 1
            pack_piece(o, d, OA+16*b, q)
            o(f"  buffer_store_dwordx4 {v(d,4)}, v0, {WS}, s23 offen offset:{1024*q} {stf}")

def stage_ce(o, which, stf):
    WS = f"s[{sWS}:{sWS+3}]"
    if which == 'C': KT, NKB, Abase, PW, wsz, part = 8, 128, OBUF, P_WO, 4718592, PART
    else:            KT, NKB, Abase, PW, wsz, part = 9, 144, ACT, P_W2, 5308416, PART2
    g = Gemm(1, 2, KT, True, 1152, NKB*2048)
    g.setup(o)
    srd(o, sB1, PW, wsz)
    o(f"""  s_mul_i32 s{sBo1}, s22, {KT*64*1152}
  s_lshl_b32 s{sT[0]}, s21, 7
  s_add_u32 s{sBo1}, s{sBo1}, s{sT[0]}
  s_mul_i32 s{sT[0]}, s{sWv}, {16*1152}
  s_add_u32 s{sBo1}, s{sBo1}, s{sT[0]}
  s_lshl_b32 s{sT[7]}, s{sWv}, 11
  s_lshl_b32 s24, s20, 2
  s_add_u32 s24, s24, s{sWv}
  s_mul_i32 s{sAo}, s24, {NKB*2048}
  s_mul_i32 s{sT[0]}, s22, {KT*4096}
  s_add_u32 s{sAo}, s{sAo}, s{sT[0]}
  s_add_u32 s{sAo}, s{sAo}, {Abase}""")
    g.run(o)
    o(f"""  s_lshl_b32 s{sT[0]}, s22, 6
  s_add_u32 s{sT[0]}, s{sT[0]}, s24
  s_mul_i32 s{sT[0]}, s{sT[0]}, 18
  s_lshl_b32 s{sT[1]}, s21, 1
  s_add_u32 s{sT[0]}, s{sT[0]}, s{sT[1]}
  s_lshl_b32 s{sT[0]}, s{sT[0]}, 12
  s_add_u32 s{sT[0]}, s{sT[0]}, {part}""")
    for nb in range(2):
        o(f"  s_add_u32 s{sT[1]}, s{sT[0]}, {nb*4096}")
        for r4 in range(4):
            o(f"  buffer_store_dwordx4 {v(g.acc(0,nb)+4*r4,4)}, v0, {WS}, s{sT[1]} offen offset:{1024*r4} {stf}")

def reduce_parts(o, part, resbase, ldf):
    WS = f"s[{sWS}:{sWS+3}]"
    F, Tm, RES = 64, 160, 16
    o(f"""  s_mul_i32 s{sT[3]}, s20, {18*2048}
  s_lshl_b32 s{sT[4]}, s{sWv}, 11
  s_add_u32 s{sT[3]}, s{sT[3]}, s{sT[4]}
  s_cmp_lt_u32 s{sWv}, 2
  s_cselect_b32 s{sT[2]}, 0, 0x80000000
  v_or_b32 v6, s{sT[2]}, v0""")
    for i in range(5):
        vo = 0 if i < 4 else 6
        o(f"  s_add_u32 s{sT[4]}, s{sT[3]}, {resbase + i*4*2048}")
        o(f"  buffer_load_dwordx4 {v(RES+8*i,4)}, v{vo}, {WS}, s{sT[4]} offen {ldf}")
        o(f"  buffer_load_dwordx4 {v(RES+8*i+4,4)}, v{vo}, {WS}, s{sT[4]} offen offset:1024 {ldf}")
    o(f"""  s_mul_i32 s{sT[5]}, s20, {18*4096}
  s_lshl_b32 s{sT[4]}, s{sWv}, 12
  s_add_u32 s{sT[5]}, s{sT[5]}, s{sT[4]}
  s_add_u32 s{sT[5]}, s{sT[5]}, {part}""")
    for i in range(5):
        vo = 0 if i < 4 else 6
        for sp in range(8):
            o(f"  s_add_u32 s{sT[4]}, s{sT[5]}, {sp*64*18*4096 + i*4*4096}")
            dst = F + 16*i if sp == 0 else Tm + 16*((sp-1) % 4)
            for r4 in range(4):
                o(f"  buffer_load_dwordx4 {v(dst+4*r4,4)}, v{vo}, {WS}, s{sT[4]} offen offset:{1024*r4} {ldf}")
            if sp == 4 or sp == 7:
                o("  s_waitcnt vmcnt(0)")
                lo = 1 if sp == 4 else 5
                for s2 in range(lo, sp+1):
                    src = Tm + 16*((s2-1) % 4)
                    for r in range(0, 16, 2):
                        o(f"  v_pk_add_f32 {v(F+16*i+r,2)}, {v(F+16*i+r,2)}, {v(src+r,2)}")
    for i in range(5):
        for q in range(2):
            for half in range(2):
                for k in range(2):
                    src = RES + 8*i + 4*q + 2*half + k
                    d = F + 16*i + 4*(q + 2*half) + 2*k
                    o(f"  v_lshlrev_b32 v8, 16, v{src}\n  v_and_b32 v9, 0xffff0000, v{src}")
                    o(f"  v_add_f32 v{d}, v{d}, v8\n  v_add_f32 v{d+1}, v{d+1}, v9")

def stage_ln2(o, stf, ldf):
    WS = f"s[{sWS}:{sWS+3}]"
    o("  v_lshlrev_b32 v0, 4, v0")
    reduce_parts(o, PART, XF, ldf)
    R0 = 16
    for i in range(5):
        pack_piece(o, R0+8*i, 64+16*i, 0); pack_piece(o, R0+8*i+4, 64+16*i, 1)
    for i in range(5):
        vo = 0 if i < 4 else 6
        o(f"  s_add_u32 s{sT[4]}, s{sT[3]}, {HBUF + i*4*2048}")
        o(f"  buffer_store_dwordx4 {v(R0+8*i,4)}, v{vo}, {WS}, s{sT[4]} offen {stf}")
        o(f"  buffer_store_dwordx4 {v(R0+8*i+4,4)}, v{vo}, {WS}, s{sT[4]} offen offset:1024 {stf}")
    o("  s_nop 1")
    ln_core(o, R0, 40, HN, sT[3], 0, 6, stf)

def stage_f(o, ldf):
    o("  v_lshlrev_b32 v0, 4, v0")
    reduce_parts(o, PART2, HBUF, ldf)
    srd(o, sB1, P_OUT, 2048*576*2)
    o(f"""  v_bfe_u32 v1, v0, 4, 5              ; token
  v_lshrrev_b32 v2, 9, v0             ; hi
  v_mul_u32_u24 v3, 1152, v1
  v_lshl_add_u32 v3, v2, 4, v3
  v_or_b32 v4, s{sT[2]}, v3
  s_mul_i32 s{sT[0]}, s20, {32*1152}
  s_lshl_b32 s{sT[1]}, s{sWv}, 6
  s_add_u32 s{sT[0]}, s{sT[0]}, s{sT[1]}""")
    for i in range(5):
        F = 64 + 16*i
        D = 16 + 8*i
        for q in range(4):
            o(f"  v_cvt_pk_bf16_f32 v{D+2*q}, v{F+4*q}, v{F+4*q+1}\n  v_cvt_pk_bf16_f32 v{D+2*q+1}, v{F+4*q+2}, v{F+4*q+3}")
        o("  s_nop 1")
        for j in range(2):
            o(f"  v_permlane32_swap_b32 v{D+4*j}, v{D+4*j+2}\n  v_permlane32_swap_b32 v{D+4*j+1}, v{D+4*j+3}")
        vo = 3 if i < 4 else 4
        for j in range(2):
            o(f"  buffer_store_dwordx4 {v(D+4*j,4)}, v{vo}, s[{sB1}:{sB1+3}], s{sT[0]} offen offset:{256*i + 32*j}")

def stage_d(o, stf):
    WS = f"s[{sWS}:{sWS+3}]"
    g = Gemm(1, 4, 9, True, 9216, 18*2048, dual=True)
    g.setup(o)
    srd(o, sB1, P_W1, 5308416)
    srd(o, sB2, P_W3, 5308416)
    o(f"""  s_lshl_b32 s{sBo1}, s21, 7
  s_mul_i32 s{sT[0]}, s{sWv}, {16*9216}
  s_add_u32 s{sBo1}, s{sBo1}, s{sT[0]}
  s_mov_b32 s{sBo2}, s{sBo1}
  s_lshl_b32 s{sT[7]}, s{sWv}, 11
  s_lshl_b32 s24, s20, 2
  s_add_u32 s24, s24, s{sWv}
  s_mul_i32 s{sAo}, s24, {18*2048}
  s_add_u32 s{sAo}, s{sAo}, {HN}""")
    g.run(o)
    o(f"""  s_mul_i32 s{sT[0]}, s24, {144*2048}
  s_lshl_b32 s{sT[1]}, s21, 12
  s_add_u32 s{sT[0]}, s{sT[0]}, s{sT[1]}
  s_add_u32 s{sT[0]}, s{sT[0]}, {ACT}
  s_mov_b32 s{sT[2]}, 0xbfb8aa3b           ; -log2(e)""")
    Tm = g.vFree
    for nb in range(2):
        G_, U_ = g.acc(0, nb), g.acc(0, nb+2)
        for r in range(16):
            o(f"  v_mul_f32 v{Tm+r}, s{sT[2]}, v{G_+r}")
        for r in range(16):
            o(f"  v_exp_f32 v{Tm+r}, v{Tm+r}")
        for r in range(16):
            o(f"  v_add_f32 v{Tm+r}, 1.0, v{Tm+r}")
        for r in range(16):
            o(f"  v_rcp_f32 v{Tm+r}, v{Tm+r}")
        for r in range(16):
            o(f"  v_mul_f32 v{G_+r}, v{G_+r}, v{U_+r}")
        for r in range(16):
            o(f"  v_mul_f32 v{G_+r}, v{G_+r}, v{Tm+r}")
        for q in range(2):
            d = Tm + 16 + 4*q
            pack_piece(o, d, G_, q)
            o(f"  buffer_store_dwordx4 {v(d,4)}, v0, {WS}, s{sT[0]} offen offset:{nb*2048 + q*1024} {stf}")
```

```python
import sys
from asmlib import *
import rgen, wgen
from wgen import *

NAME = "sequential_preLN__memory_aug_recurrent_mem_tr__glu_gated_swiglu__prompt"

def wprolog(o, name, nunits):
    o(f".globl {name}\n.p2align 8\n.type {name},@function\n{name}:")
    o(f"""  s_cmp_ge_u32 s2, {nunits}
  s_cbranch_scc1 {name}_end
  s_load_dwordx2 s[{P_X}:{P_X+1}], s[0:1], 0
  s_load_dwordx2 s[{P_WQ}:{P_WQ+1}], s[0:1], 16
  s_load_dwordx2 s[{P_WK}:{P_WK+1}], s[0:1], 24
  s_load_dwordx2 s[{P_WV}:{P_WV+1}], s[0:1], 32
  s_load_dwordx2 s[{P_WO}:{P_WO+1}], s[0:1], 40
  s_load_dwordx2 s[{P_W1}:{P_W1+1}], s[0:1], 64
  s_load_dwordx2 s[{P_W3}:{P_W3+1}], s[0:1], 72
  s_load_dwordx2 s[{P_W2}:{P_W2+1}], s[0:1], 80
  s_load_dwordx2 s[{P_OUT}:{P_OUT+1}], s[0:1], 88
  s_load_dwordx2 s[58:59], s[0:1], 104""")
    lane_setup(o)
    o(f"""  s_waitcnt lgkmcnt(0)
  s_mov_b32 s{sWS}, s58
  s_and_b32 s{sWS+1}, s59, 0xffff
  s_mov_b32 s{sWS+2}, {WS_USED}
  s_mov_b32 s{sWS+3}, 0x20000""")
def wepilog(o, name):
    o(f"  s_waitcnt vmcnt(0)\n{name}_end:\n  s_endpgm")
def kd(name, vg, acc):
    return f"""
.p2align 6
.amdhsa_kernel {name}
  .amdhsa_next_free_vgpr {vg}
  .amdhsa_next_free_sgpr 102
  .amdhsa_accum_offset {acc}
  .amdhsa_group_segment_fixed_size 0
  .amdhsa_kernarg_size 112
  .amdhsa_user_sgpr_count 2
  .amdhsa_user_sgpr_kernarg_segment_ptr 1
  .amdhsa_system_sgpr_workgroup_id_x 1
.end_amdhsa_kernel
"""
def divmod_s(o, src, d, q, r):
    m = (1 << 32) // d + 1
    o(f"  s_mul_hi_u32 s{q}, s{src}, {m}\n  s_mul_i32 s{r}, s{q}, {d}\n  s_sub_u32 s{r}, s{src}, s{r}")

kernels = []
def add(name, grid, lds, body, vg=512, acc=256):
    o = Asm(); wprolog(o, name, grid); body(o); wepilog(o, name)
    kernels.append((name, grid, lds, o.text(), kd(name, vg, acc)))

def k_ln1(o):
    o("  s_mov_b32 s20, s2"); stage_ln(o, 'x', "")
def k_a(o):
    o("  s_and_b32 s20, s2, 7\n  s_lshr_b32 s21, s2, 3"); stage_a(o, "")
def k_b(o):
    o(f"  s_lshr_b32 s20, s2, 3\n  s_and_b32 s21, s2, 7\n  s_lshl_b32 s21, s21, 2\n  s_add_u32 s21, s21, s{sWv}"); stage_b(o, "")
def k_c(which):
    def f(o):
        divmod_s(o, 2, 72, 20, 23)
        divmod_s(o, 23, 8, 21, 22)
        stage_ce(o, which, "")
    return f
def k_ln2(o):
    o("  s_mov_b32 s20, s2"); stage_ln2(o, "", "")
def k_d(o):
    divmod_s(o, 2, 72, 20, 21); stage_d(o, "")
def k_f(o):
    o("  s_mov_b32 s20, s2"); stage_f(o, "")

add("ln1_kernel", 64, 4096, k_ln1, 256, 256)
add("qkv_kernel", 768, 147456, k_a)
import rtest_gen_lib as RT
kernels.append(RT.make_r_kernel("rec_kernel"))
add("attn_kernel", 512, 0, k_b, 256, 256)
add("wo_kernel", 1152, 65536, k_c('C'), 256, 128)
add("ln2_kernel", 64, 4096, k_ln2, 256, 256)
add("ffn1_kernel", 1152, 147456, k_d, 256, 128)
add("ffn2_kernel", 1152, 73728, k_c('E'), 256, 128)
add("fin_kernel", 64, 4096, k_f, 256, 256)

hdr = open("cdna_kernels/" + NAME + ".s.ref").read().split("; Override launch")[0]
txt = hdr
for n, g, lds, t, k in kernels:
    txt += f"; @launch kernel={n} grid=({g},1,1) block=(256,1,1) lds={lds}\n"
txt += '.amdgcn_target "amdgcn-amd-amdhsa--gfx950"\n.text\n'
for n, g, lds, t, k in kernels: txt += t
txt += '.section .rodata,"a"\n'
for n, g, lds, t, k in kernels: txt += k
out = sys.argv[1] if len(sys.argv) > 1 else "multi.s"
open(out, "w").write(txt)
import json; json.dump([(n, g, lds) for n, g, lds, t, k in kernels], open("multi.json", "w"))
```

```python
class Asm:
    _uid = [0]
    def __init__(self):
        self.lines = []
    def __call__(self, s=""):
        for l in s.split("\n"):
            self.lines.append(l)
    def c(self, s):
        self.lines.append("  ; " + s)
    def label(self, base):
        Asm._uid[0] += 1
        return f"L_{base}_{Asm._uid[0]}"
    def put(self, lab):
        self.lines.append(lab + ":")
    def text(self):
        return "\n".join(self.lines) + "\n"

def v(i, n=1):
    return f"v{i}" if n == 1 else f"v[{i}:{i+n-1}]"
def a(i, n=1):
    return f"a{i}" if n == 1 else f"a[{i}:{i+n-1}]"
def s(i, n=1):
    return f"s{i}" if n == 1 else f"s[{i}:{i+n-1}]"
def reg(r, n=1):
    return v(r[1], n) if r[0] == 'v' else a(r[1], n)

KBUF = 0x0000000
VBUF = 0x1000000
QBUF = 0x2000000
KM   = 0x3000000
VM   = 0x3800000
H1   = 0xC400000
H1_PROD = 10624
H1_SLOT = 32 * H1_PROD
H2   = 0x4000000
H2_SLOT = 9216
MEM0IMG = 0x4240000
FLAGS = 0x4300000
RFLAG = FLAGS + 0x20000
XN   = 0x4400000
XF   = 0x4680000
OBUF = 0x4900000
HBUF = 0x5900000
HN   = 0x5C00000
ACT  = 0x6000000
PART = 0x7400000
PART2 = 0x9C00000
WS_USED = 0xDC00000
OOB = 0x80000000
```

```python
from asmlib import *

L_MEM, L_XEX, L_MEX, L_OEX, L_W = 0, 9216, 13312, 14336, 16384

vA, vXw, vM, vOw, vR, vP, vIdx, vH1 = 0, 1, 2, 3, 4, 5, 6, 7
vSel, vSelR, vKx, vVx = 8, 10, 14, 22
sW = 4
sWS = 8
sH, sWv_, sStep = 12, 13, 14
sC = 15
sKoff, sKm, sH1st, sH1h, sH1ld, sH2pub, sH2pl = 16, 17, 18, 19, 20, 21, 22
sIsRed, sJ, sT0, sT1, sT2, sT3 = 23, 24, 25, 26, 27, 28
sPoll = 29
sH1rs, sH2rs = 30, 31
sFlagOff = 32
sX1, sX2, sX3 = 33, 34, 35
sW256 = 36
sMaskMw = 38
sPi0, sPih = 40, 41
sH1so, sH1ho, sW1024 = 42, 43, 37
sUnit = 45
sH2tch = 46
sTm = 44

def frag_q(tau, c): return ('a', (tau*9 + c)*8)
def frag_k(tau, c):
    f = tau*9 + c
    return ('a', 144 + 8*f) if f < 14 else ('v', 80 + 8*(f-14))
def frag_v(tau, c):
    return ('v', 112 + 72*tau + 8*c)
def frag_o(tl, kap):
    return ('lds', 4*tl + kap)

def lds_frag_addr(f):
    off = L_W + f*4096
    return off // 65536, off % 65536

def nop(o, n):
    while n > 0:
        k = min(n, 16)
        o(f"  s_nop {k-1}")
        n -= k

def emit_consts(o):
    o.c("---- R lane constants; v0 holds lane id on entry (0..63), s13 = wave")
    o(f"""
  v_mov_b32 v30, v0                 ; lane
  v_and_b32 v31, 15, v30            ; c
  v_lshrrev_b32 v32, 4, v30         ; g
  v_and_b32 v33, 7, v30             ; t
  v_bfe_u32 v34, v30, 3, 1          ; u
  v_lshlrev_b32 v{vA}, 4, v30
  s_lshl_b32 s{sT0}, s{sWv_}, 10
  v_add_u32 v{vXw}, s{sT0}, v{vA}
  v_and_b32 v35, 1, v32             ; g%2
  v_lshlrev_b32 v{vM}, 7, v35
  v_lshl_add_u32 v{vM}, v33, 4, v{vM}
  ; vOw = (w/2)*1024 + (g/2)*256 + (w%2)*128 + t*16 + (g%2)*8 ; u==0 only
  s_lshr_b32 s{sT0}, s{sWv_}, 1
  s_lshl_b32 s{sT0}, s{sT0}, 10
  s_and_b32 s{sT1}, s{sWv_}, 1
  s_lshl_b32 s{sT1}, s{sT1}, 7
  s_add_u32 s{sT0}, s{sT0}, s{sT1}
  s_add_u32 s{sT0}, s{sT0}, {L_OEX}
  v_lshrrev_b32 v36, 1, v32         ; g/2
  v_lshlrev_b32 v{vOw}, 8, v36
  v_lshl_add_u32 v{vOw}, v33, 4, v{vOw}
  v_lshl_add_u32 v{vOw}, v35, 3, v{vOw}
  v_add_u32 v{vOw}, s{sT0}, v{vOw}
  v_mov_b32 v37, 0x7ffffff0
  v_cmp_eq_u32 vcc, 0, v34
  s_nop 1
  v_cndmask_b32 v{vOw}, v37, v{vOw}, vcc
  v_mov_b32 v37, 0x80000000
  v_cndmask_b32 v{vH1}, v37, v{vA}, vcc
  ; idx
  v_mov_b32 v38, 0x44444444
  v_mov_b32 v39, 0xeeeeeeee
  v_cndmask_b32 v{vIdx}, v39, v38, vcc
  s_lshl_b32 s{sJ}, s{sH}, 1
  s_add_u32 s{sJ}, s{sJ}, s{sWv_}
  s_add_u32 s{sT0}, s{sH}, 64
  s_cmp_eq_u32 s{sWv_}, 2
  s_cselect_b32 s{sJ}, s{sT0}, s{sJ}
  s_cmp_lt_u32 s{sWv_}, 2
  s_cselect_b32 s{sIsRed}, 1, 0
  s_cmp_eq_u32 s{sWv_}, 2
  s_cselect_b32 s{sT0}, 1, 0
  s_cmp_lt_u32 s{sH}, 8
  s_cselect_b32 s{sT1}, 1, 0
  s_and_b32 s{sT0}, s{sT0}, s{sT1}
  s_or_b32 s{sIsRed}, s{sIsRed}, s{sT0}
  s_cmp_eq_u32 s{sIsRed}, 0
  s_cselect_b32 s{sJ}, 0, s{sJ}
  ; unit j=(pi=j/4, g4=j%4): H1 offset of its 128B segment
  s_lshr_b32 s{sT0}, s{sJ}, 2            ; pi
  s_and_b32 s{sT1}, s{sJ}, 3             ; g4
  s_cmp_gt_u32 s{sT0}, 13
  s_cselect_b32 s{sT2}, 2, 0
  s_cmp_gt_u32 s{sT0}, 4
  s_cselect_b32 s{sT3}, 1, 0
  s_cmp_gt_u32 s{sT0}, 13
  s_cselect_b32 s{sT3}, 2, s{sT3}
  s_sub_u32 s{sT2}, s{sT0}, s{sT3}
  s_lshr_b32 s{sT3}, s{sT2}, 1
  s_lshl_b32 s{sT3}, s{sT3}, 10          ; (q/2)*1024
  s_and_b32 s{sT2}, s{sT2}, 1
  s_lshl_b32 s{sT2}, s{sT2}, 7           ; (q%2)*128
  s_add_u32 s{sT3}, s{sT3}, s{sT2}
  s_cmp_eq_u32 s{sT0}, 4
  s_cselect_b32 s{sT3}, 8192, s{sT3}
  s_cmp_eq_u32 s{sT0}, 13
  s_cselect_b32 s{sT3}, 9216, s{sT3}
  s_lshl_b32 s{sT1}, s{sT1}, 8
  s_add_u32 s{sT0}, s{sT3}, s{sT1}       ; + g4*256
  s_lshr_b32 s{sT1}, s{sJ}, 2
  s_cmp_eq_u32 s{sT1}, 4
  s_cselect_b32 s{sT2}, 2, s{sIsRed}
  s_cmp_eq_u32 s{sT1}, 13
  s_cselect_b32 s{sT2}, 2, s{sT2}
  s_cmp_eq_u32 s{sIsRed}, 0
  s_cselect_b32 s{sIsRed}, 0, s{sT2}
  v_lshl_add_u32 v40, v34, 2, v32
  v_mul_u32_u24 v40, {H1_PROD}, v40
  v_lshl_add_u32 v40, v33, 4, v40
  v_add_u32 v{vR}, s{sT0}, v40
  s_cmp_eq_u32 s{sIsRed}, 0
  s_cselect_b32 s{sT1}, 0x80000000, 0
  s_cselect_b32 s{sUnit}, 0x80000000, s{sT0}
  v_lshlrev_b32 v40, 4, v33
  v_lshl_add_u32 v40, v32, 3, v40
  s_lshl_b32 s{sT0}, s{sJ}, 7
  v_add_u32 v40, s{sT0}, v40
  v_and_b32 v41, 40, v30
  v_cmp_eq_u32 vcc, 0, v41
  s_nop 1
  v_cndmask_b32 v{vP}, v37, v40, vcc
  v_or_b32 v{vP}, s{sT1}, v{vP}
  s_mov_b64 s[{sMaskMw}:{sMaskMw+1}], vcc     ; lanes u==0,g<2
  ; Sel: e = c - 4*(g%2)
  v_lshlrev_b32 v40, 2, v35
  v_sub_u32 v40, v31, v40
  v_mov_b32 v41, 0x3f80
  v_mov_b32 v42, 0x3f800000
  v_mov_b32 v{vSel}, 0
  v_mov_b32 v{vSel+1}, 0
  v_cmp_eq_u32 vcc, 0, v40
  s_nop 1
  v_cndmask_b32 v{vSel}, v{vSel}, v41, vcc
  v_cmp_eq_u32 vcc, 1, v40
  s_nop 1
  v_cndmask_b32 v{vSel}, v{vSel}, v42, vcc
  v_cmp_eq_u32 vcc, 2, v40
  s_nop 1
  v_cndmask_b32 v{vSel+1}, v{vSel+1}, v41, vcc
  v_cmp_eq_u32 vcc, 3, v40
  s_nop 1
  v_cndmask_b32 v{vSel+1}, v{vSel+1}, v42, vcc""")
    for r in range(4):
        o(f"""  v_mov_b32 v{vSelR+r}, 0
  v_cmp_eq_u32 vcc, {2*r}, v31
  s_nop 1
  v_cndmask_b32 v{vSelR+r}, v{vSelR+r}, v41, vcc
  v_cmp_eq_u32 vcc, {2*r+1}, v31
  s_nop 1
  v_cndmask_b32 v{vSelR+r}, v{vSelR+r}, v42, vcc""")
    o(f"""
  s_lshl_b32 s{sW1024}, s{sWv_}, 10
  s_lshl_b32 s{sH2tch}, s{sH}, 2
  s_add_u32 s{sH2tch}, s{sH2tch}, s{sWv_}
  s_lshl_b32 s{sH2tch}, s{sH2tch}, 6
  s_add_u32 s{sH2tch}, s{sH2tch}, {H2_SLOT}
  s_mov_b32 s{sC}, 0x3e0293ee        ; 128^-0.5 * log2(e) = 0.12751743
  s_add_u32 s{sT0}, s{sWv_}, 1
  s_and_b32 s{sT0}, s{sT0}, 3
  s_lshl_b32 s{sX1}, s{sT0}, 10
  s_add_u32 s{sX1}, s{sX1}, {L_XEX}
  s_add_u32 s{sT0}, s{sWv_}, 2
  s_and_b32 s{sT0}, s{sT0}, 3
  s_lshl_b32 s{sX2}, s{sT0}, 10
  s_add_u32 s{sX2}, s{sX2}, {L_XEX}
  s_add_u32 s{sT0}, s{sWv_}, 3
  s_and_b32 s{sT0}, s{sT0}, 3
  s_lshl_b32 s{sX3}, s{sT0}, 10
  s_add_u32 s{sX3}, s{sX3}, {L_XEX}
  s_lshl_b32 s{sW256}, s{sWv_}, 8
  s_add_u32 s{sW256}, s{sW256}, {L_MEX}
  s_mul_i32 s{sPi0}, s{sWv_}, 9
  s_add_u32 s{sPi0}, s{sPi0}, 1
  s_lshr_b32 s{sPi0}, s{sPi0}, 1
  s_lshr_b32 s{sPih}, s{sWv_}, 1
  s_mul_i32 s{sPih}, s{sPih}, 9
  s_add_u32 s{sPih}, s{sPih}, 4
""")

def emit_weights(o):
    o.c("---- weight prologue")
    vLdW, vLdO, vLdOh, vScr, vT, vT2, vT2h, vF1, vF2 = 30, 31, 32, 33, 34, 35, 36, 37, 38
    TMP = 40
    o(f"""
  v_lshrrev_b32 v46, 4, v{vA}        ; lane
  v_lshrrev_b32 v45, 2, v46          ; l/4
  v_and_b32 v44, 3, v46              ; l%4
  v_lshlrev_b32 v{vLdW}, 13, v45
  v_lshl_add_u32 v{vLdW}, v44, 4, v{vLdW}      ; (l/4)*8192 + (l%4)*16
  v_mul_u32_u24 v{vLdOh}, 1152, v45
  v_lshl_add_u32 v{vLdOh}, v44, 4, v{vLdOh}    ; (l/4)*1152 + (l%4)*16
  v_lshrrev_b32 v43, 3, v46          ; l/8
  v_and_b32 v42, 7, v46
  v_mul_u32_u24 v{vLdO}, 1152, v43
  v_lshl_add_u32 v{vLdO}, v42, 4, v{vLdO}      ; (l/8)*1152 + (l%8)*16
  s_lshl_b32 s{sT0}, s{sWv_}, 12
  v_add_u32 v{vScr}, s{sT0}, v{vA}             ; scratch + l*16
  ; tr lane decomposition: gb=l/16, r'=(l%16)/4, c'=l%4
  v_lshrrev_b32 v43, 4, v46          ; gb
  v_bfe_u32 v42, v46, 2, 2           ; r'
  ; row = 16*(gb/2) + 4*(gb%2) + 8*(r'/2) + r'%2
  v_lshrrev_b32 v41, 1, v43
  v_lshlrev_b32 v41, 4, v41
  v_and_b32 v40, 1, v43
  v_lshl_add_u32 v41, v40, 2, v41
  v_lshrrev_b32 v40, 1, v42
  v_lshl_add_u32 v41, v40, 3, v41
  v_and_b32 v40, 1, v42
  v_add_u32 v41, v41, v40
  v_lshlrev_b32 v{vT}, 6, v41
  v_lshl_add_u32 v{vT}, v44, 3, v{vT}
  v_add_u32 v{vT}, s{sT0}, v{vT}
  v_lshl_add_u32 v41, v43, 3, v42
  v_lshlrev_b32 v{vT2}, 7, v41
  v_lshl_add_u32 v{vT2}, v44, 4, v{vT2}
  v_add_u32 v{vT2}, s{sT0}, v{vT2}
  v_lshlrev_b32 v{vT2h}, 6, v41
  v_lshl_add_u32 v{vT2h}, v44, 4, v{vT2h}
  v_add_u32 v{vT2h}, s{sT0}, v{vT2h}
  s_and_b32 s{sT1}, s{sWv_}, 1
  s_lshl_b32 s{sT1}, s{sT1}, 3
  v_add_u32 v{vT2h}, s{sT1}, v{vT2h}
  v_add_u32 v{vF1}, 0x10000, v{vXw}
  v_add_u32 v{vF2}, 0x20000, v{vXw}
""")
    def ldsaddr(f):
        b, imm = lds_frag_addr(f)
        return (vXw, vF1, vF2)[b], imm
    chunks = []
    for c in range(9): chunks.append(('q', c))
    for c in range(9): chunks.append(('k', c))
    for kap in range(4):
        chunks += [('o', kap, 0), ('o', kap, 1), ('oh', kap)]
    for c in range(9): chunks.append(('v', c))
    def dests(ch):
        if ch[0] == 'q': return [frag_q(0, ch[1]), frag_q(1, ch[1])]
        if ch[0] == 'k': return [frag_k(0, ch[1]), frag_k(1, ch[1])]
        if ch[0] == 'v': return [frag_v(0, ch[1]), frag_v(1, ch[1])]
        if ch[0] == 'o': return [frag_o(4*ch[2]+i, ch[1]) for i in range(4)]
        return [frag_o(8, ch[1])]
    def dest_vregs(ch):
        n = 8 if ch[0] in 'qkv' else 4
        r = set()
        for d in dests(ch):
            if d[0] == 'v': r |= set(range(d[1], d[1]+n))
        return r
    bufs = [48, 64] + list(range(80, 256, 16))
    n = len(chunks)
    MAXIN = 10
    used_final = set()
    assign = {}
    inflight = []
    nxt = 0
    sched = []
    final_before = []
    acc = set()
    for m in range(n):
        final_before.append(set(acc))
        acc |= dest_vregs(chunks[m])
    proc = 0
    busy = {}
    while proc < n:
        while nxt < n and len(inflight) < MAXIN:
            cand = None
            for b in bufs:
                if b in busy: continue
                rs = set(range(b, b+16))
                if rs & final_before[nxt]: continue
                cand = b; break
            if cand is None: break
            busy[cand] = nxt; assign[nxt] = cand; inflight.append(nxt); sched.append(('issue', nxt)); nxt += 1
        sched.append(('proc', proc))
        del busy[assign[proc]]
        inflight.remove(proc)
        proc += 1
    def nloads(ch): return 2 if ch[0] == 'oh' else 4
    srd_cur = None
    ptr = {'q': 50, 'k': 52, 'v': 54, 'o': 56, 'oh': 56}
    srd = {'q': 64, 'k': 68, 'v': 72, 'o': 76, 'oh': 76}
    for k_, p in (('q', 50), ('k', 52), ('v', 54), ('o', 56)):
        o(f"""  s_mov_b32 s{srd[k_]}, s{p}
  s_and_b32 s{srd[k_]+1}, s{p+1}, 0xffff
  s_mov_b32 s{srd[k_]+2}, 4718592
  s_mov_b32 s{srd[k_]+3}, 0x20000""")
    o(f"""  s_lshl_b32 s80, s{sH}, 8
  s_lshl_b32 s81, s{sWv_}, 6
  s_add_u32 s80, s80, s81            ; h*256 + w*64
  s_mul_i32 s82, s{sH}, {128*1152}
  s_lshl_b32 s83, s{sPi0}, 6
  s_add_u32 s83, s83, s82
  s_lshl_b32 s84, s{sPih}, 6
  s_add_u32 s84, s84, s82""")
    outstanding = []
    for kind, m in sched:
        ch = chunks[m]; b = assign[m]
        if kind == 'issue':
            if ch[0] in 'qkv':
                for i in range(4):
                    o(f"  s_add_u32 s85, s80, {(64*ch[1] + 16*i)*8192}")
                    o(f"  buffer_load_dwordx4 {v(b+4*i,4)}, v{vLdW}, s[{srd[ch[0]]}:{srd[ch[0]]+3}], s85 offen")
            elif ch[0] == 'o':
                for i in range(4):
                    o(f"  s_add_u32 s85, s83, {(32*ch[1] + 8*i)*1152 + ch[2]*128}")
                    o(f"  buffer_load_dwordx4 {v(b+4*i,4)}, v{vLdO}, s[76:79], s85 offen")
            else:
                for i in range(2):
                    o(f"  s_add_u32 s85, s84, {(32*ch[1] + 16*i)*1152}")
                    o(f"  buffer_load_dwordx4 {v(b+4*i,4)}, v{vLdOh}, s[76:79], s85 offen")
            outstanding.append(m)
        else:
            idx = outstanding.index(m)
            later = sum(nloads(chunks[x]) for x in outstanding[idx+1:])
            o(f"  s_waitcnt vmcnt({min(later,63)})")
            outstanding = outstanding[idx+1:]
            for i in range(nloads(ch)):
                o(f"  ds_write_b128 v{vScr}, {v(b+4*i,4)} offset:{1024*i}")
            o("  s_waitcnt lgkmcnt(0)")
            post = []
            if ch[0] in 'qkv':
                for tau, d in enumerate(dests(ch)):
                    for r, off in ((0, 0), (2, 128), (4, 2048), (6, 2176)):
                        if d[0] == 'lds':
                            dst = v(TMP + r, 2)
                        else:
                            dst = reg((d[0], d[1]+r), 2)
                        o(f"  ds_read_b64_tr_b16 {dst}, v{vT} offset:{off + 32*tau}")
                    if d[0] == 'lds':
                        post.append((d[1], TMP)); post.append((d[1]+1, TMP+4))
            elif ch[0] == 'o':
                tmpi = 0
                for i, d in enumerate(dests(ch)):
                    pim, x = i // 2, i % 2
                    if d[0] == 'lds':
                        base = TMP + 4*(tmpi % 2)
                        dst0, dst1 = v(base, 2), v(base+2, 2)
                    else:
                        dst0, dst1 = reg((d[0], d[1]), 2), reg((d[0], d[1]+2), 2)
                    o(f"  ds_read_b64_tr_b16 {dst0}, v{vT2} offset:{64*pim + 8*x}")
                    o(f"  ds_read_b64_tr_b16 {dst1}, v{vT2} offset:{512 + 64*pim + 8*x}")
                    if d[0] == 'lds':
                        tmpi += 1
                        o("  s_waitcnt lgkmcnt(0)")
                        ar, imm = ldsaddr(d[1])
                        o(f"  ds_write_b128 v{ar}, {v(base,4)} offset:{imm}")
                        o("  s_waitcnt lgkmcnt(0)")
            else:
                d = dests(ch)[0]
                assert d[0] == 'lds' or d[0] == 'v'
                if d[0] == 'lds':
                    dst0, dst1 = v(TMP, 2), v(TMP+2, 2)
                else:
                    dst0, dst1 = reg((d[0], d[1]), 2), reg((d[0], d[1]+2), 2)
                o(f"  ds_read_b64_tr_b16 {dst0}, v{vT2h} offset:0")
                o(f"  ds_read_b64_tr_b16 {dst1}, v{vT2h} offset:256")
                if d[0] == 'lds':
                    post.append((d[1], TMP))
            o("  s_waitcnt lgkmcnt(0)")
            for f, t in post:
                ar, imm = ldsaddr(f)
                o(f"  ds_write_b128 v{ar}, {v(t,4)} offset:{imm}")
            if post: o("  s_waitcnt lgkmcnt(0)")


Q0, Q1, K0, K1, V0, V1 = 30, 34, 38, 42, 46, 50
W = [54, 58, 62]
T, U, QS = 66, 70, 74

class Cnt:
    def __init__(self, o, name, maxv):
        self.o, self.name, self.maxv, self.q = o, name, maxv, []
    def issue(self, tag):
        self.q.append(tag)
        assert len(self.q) <= self.maxv + 1, (self.name, self.q)
    def wait(self, tag):
        if tag not in self.q: return
        i = len(self.q) - 1 - self.q[::-1].index(tag)
        n = len(self.q) - 1 - i
        self.o(f"  s_waitcnt {self.name}cnt({n})")
        self.q = self.q[i+1:]
    def waitall(self):
        self.o(f"  s_waitcnt {self.name}cnt(0)")
        self.q = []

def smf(o, d, aop, b):
    o(f"  v_smfmac_f32_16x16x64_bf16 {v(d,4)}, {v(aop,4)}, {reg(b,8)}, v{vIdx}")


POLL_LIMIT = 1 << 20
PUBF = 'sc1'
PUBK = 'sc1'
PUBV = 'sc1'
KVF = ''
KVPOS = 'qk'
KVCNT = None
TOUCH = True
RESETW = False
vDummy = 79

def emit_loop(o, L, stf, timing=False, fdelay=0, adelay=0):
    WSr = f"s[{sWS}:{sWS+3}]"
    lg = Cnt(o, "lgkm", 15)
    def dsr(dst, ar, off, tag):
        o(f"  ds_read_b128 {v(dst,4)}, v{ar} offset:{off}")
        lg.issue(tag)
    def stamp(k):
        if timing:
            o(f"  s_memtime s[{86+2*k}:{87+2*k}]")
    T, U, QS, MW = 66, 70, 74, 78
    o(f"{L}_loop:")
    stamp(0)
    for c in range(3):
        dsr(W[c], vA, L_MEM + 1024*c, f"A{c}")
    if KVCNT is not None:
        lp = o.label("kvok")
        o(f"  v_readfirstlane_b32 s{sT0}, v{vDummy}")
        o(f"  s_cmp_ge_u32 s{sT0}, 64")
        o(f"  s_cbranch_scc1 {lp}")
        o(f"  s_add_u32 s{sT0}, s{sStep}, 1\n  s_min_u32 s{sT0}, s{sT0}, 63\n  s_lshr_b32 s{sT0}, s{sT0}, 2\n  s_lshl_b32 s{sT0}, s{sT0}, 7\n  s_add_u32 s{sT0}, s{sT0}, {KVCNT}")
        o(f"  v_mov_b32 v72, s{sT0}")
        o(f"{lp}_p:\n  buffer_load_dword v73, v72, {WSr}, 0 offen sc1\n  s_waitcnt vmcnt(0)\n  v_readfirstlane_b32 s{sT0}, v73\n  s_add_u32 s{sPoll}, s{sPoll}, 1\n  s_cmp_gt_u32 s{sPoll}, {POLL_LIMIT}\n  s_cbranch_scc1 {L}_bail\n  s_cmp_ge_u32 s{sT0}, 64\n  s_cbranch_scc0 {lp}_p")
        o.put(lp)
    side = []
    if KVPOS == 'qk': side += [f"  s_add_u32 s{sT1}, s{sKoff}, {VBUF-KBUF}",
             f"  buffer_load_dwordx4 {v(vKx,4)}, v{vA}, {WSr}, s{sKoff} offen {KVF}", None,
             f"  buffer_load_dwordx4 {v(vKx+4,4)}, v{vA}, {WSr}, s{sKoff} offen offset:1024 {KVF}", None, None,
             f"  buffer_load_dwordx4 {v(vVx,4)}, v{vA}, {WSr}, s{sT1} offen {KVF}", None, None,
             f"  buffer_load_dwordx4 {v(vVx+4,4)}, v{vA}, {WSr}, s{sT1} offen offset:1024 {KVF}", None]
    side += [f"  v_bfe_u32 v72, v{vA}, 4, 5", f"  v_lshlrev_b32 v72, 6, v72", f"  v_lshrrev_b32 v73, 9, v{vA}", f"  v_lshl_add_u32 v72, v73, 24, v72",
             f"  s_add_u32 s{sKoff}, s{sKoff}, {32*8192}", f"  buffer_load_dword v{vDummy}, v72, {WSr}, s{sKoff} offen {KVF}"]
    side += [f"  v_bfe_u32 v73, v{vA}, 4, 5", f"  v_mul_u32_u24 v73, {H1_PROD}, v73", f"  v_lshrrev_b32 v72, 9, v{vA}", f"  v_lshl_add_u32 v73, v72, 6, v73", f"  v_add_u32 v73, s{sUnit}, v73",
             f"  s_add_u32 s{sT0}, s{sH1ld}, {H1_SLOT}", f"  buffer_load_dword v{vDummy}, v73, {WSr}, s{sT0} offen sc1",
             f"  s_add_u32 s{sT0}, s{sH2pub}, s{sH2tch}", f"  v_lshlrev_b32 v72, 9, v{vA}", f"  s_mov_b64 exec, 3\n  buffer_load_dword v{vDummy}, v72, {WSr}, s{sT0} offen sc1\n  s_mov_b64 exec, -1"]
    if KVCNT is not None:
        side += [f"  s_add_u32 s{sT0}, s{sStep}, 2\n  s_min_u32 s{sT0}, s{sT0}, 63\n  s_lshr_b32 s{sT0}, s{sT0}, 2\n  s_lshl_b32 s{sT0}, s{sT0}, 7",
                 f"  s_add_u32 s{sT0}, s{sT0}, {KVCNT}\n  v_mov_b32 v72, s{sT0}", f"  buffer_load_dword v{vDummy}, v72, {WSr}, 0 offen sc1"]
    side += [f"  v_mov_b32 v70, s{sStep}", f"  v_mov_b32 v71, s{sFlagOff}", f"  s_mov_b64 exec, 1\n  buffer_store_dword v70, v71, {WSr}, 0 offen {PUBF}\n  s_mov_b64 exec, -1"]
    side += [f"  v_add_u32 v{MW}, s{sW256}, v{vM}", f"  v_cndmask_b32 v{MW}, -16, v{MW}, s[{sMaskMw}:{sMaskMw+1}]"]
    NV_AFTER_KV = 4 + (1 if KVCNT is not None else 0)
    def pop(n):
        for _ in range(n):
            if side:
                x = side.pop(0)
                if x: o(x)
    o.c("QK phase")
    for c in range(9):
        lg.wait(f"A{c}")
        a_ = W[c % 3]
        smf(o, Q0, a_, frag_q(0, c)); pop(1)
        smf(o, Q1, a_, frag_q(1, c)); pop(2 if c >= 6 else 1)
        smf(o, K0, a_, frag_k(0, c)); pop(1 if c < 8 else 0)
        smf(o, K1, a_, frag_k(1, c))
        if c + 3 <= 8:
            dsr(a_, vA, L_MEM + 1024*(c+3), f"A{c+3}")
        if c < 8: pop(1)
    assert not side, side
    stamp(1)
    o.c("transpose q,k")
    def vpass(c, slot):
        smf(o, V0, W[slot], frag_v(0, c)); smf(o, V1, W[slot], frag_v(1, c))
    nop(o, 2)
    o(f"  v_cvt_pk_bf16_f32 v{T}, v{Q0}, v{Q0+1}")
    o(f"  v_cvt_pk_bf16_f32 v{T+1}, v{Q0+2}, v{Q0+3}")
    o(f"  v_cvt_pk_bf16_f32 v{T+2}, v{Q1}, v{Q1+1}")
    o(f"  v_cvt_pk_bf16_f32 v{T+3}, v{Q1+2}, v{Q1+3}")
    nop(o, 2)
    o(f"  v_cvt_pk_bf16_f32 v{U}, v{K0}, v{K0+1}")
    o(f"  v_mfma_f32_16x16x16_bf16 {v(Q0,4)}, {v(T,2)}, {v(vSel,2)}, 0")
    o(f"  v_cvt_pk_bf16_f32 v{U+1}, v{K0+2}, v{K0+3}")
    o(f"  v_cvt_pk_bf16_f32 v{U+2}, v{K1}, v{K1+1}")
    o(f"  v_mfma_f32_16x16x16_bf16 {v(Q1,4)}, {v(T+2,2)}, {v(vSel,2)}, 0")
    o(f"  v_cvt_pk_bf16_f32 v{U+3}, v{K1+2}, v{K1+3}")
    nop(o, 1)
    o(f"  v_mfma_f32_16x16x16_bf16 {v(K0,4)}, {v(U,2)}, {v(vSel,2)}, 0")
    o(f"  v_mfma_f32_16x16x16_bf16 {v(K1,4)}, {v(U+2,2)}, {v(vSel,2)}, 0")
    smf(o, V0, W[0], frag_v(0, 6))
    nop(o, 3)
    o(f"  v_cvt_pk_bf16_f32 v{T}, v{Q0}, v{Q0+1}")
    o(f"  v_cvt_pk_bf16_f32 v{T+1}, v{Q0+2}, v{Q0+3}")
    o(f"  v_cvt_pk_bf16_f32 v{T+2}, v{Q1}, v{Q1+1}")
    o(f"  v_cvt_pk_bf16_f32 v{T+3}, v{Q1+2}, v{Q1+3}")
    smf(o, V1, W[0], frag_v(1, 6))
    dsr(W[0], vA, L_MEM, "B0")
    for i in range(4):
        o(f"  v_mov_b32_dpp v{QS+i}, v{T+i} row_ror:8 row_mask:0xf bank_mask:0xf")
    o(f"  s_waitcnt vmcnt({NV_AFTER_KV})")
    o(f"  v_mfma_f32_16x16x32_bf16 {v(Q0,4)}, {v(vKx,4)}, {v(T,4)}, 0")
    o(f"  v_cvt_pk_bf16_f32 v{U}, v{K0}, v{K0+1}")
    o(f"  v_cvt_pk_bf16_f32 v{U+1}, v{K0+2}, v{K0+3}")
    o(f"  v_mfma_f32_16x16x32_bf16 {v(Q0,4)}, {v(vKx+4,4)}, {v(QS,4)}, {v(Q0,4)}")
    o(f"  v_cvt_pk_bf16_f32 v{U+2}, v{K1}, v{K1+1}")
    o(f"  v_cvt_pk_bf16_f32 v{U+3}, v{K1+2}, v{K1+3}")
    nop(o, 2)
    o(f"  v_mfma_f32_16x16x32_bf16 {v(Q1,4)}, {v(U,4)}, {v(T,4)}, 0")
    vpass(7, 1)
    dsr(W[1], vA, L_MEM + 1024, "B1")
    o(f"  ds_write_b128 v{vXw}, {v(Q0,4)} offset:{L_XEX}"); lg.issue("Xw")
    nop(o, 3)
    o(f"  ds_write_b128 v{MW}, {v(Q1,4)}"); lg.issue("Mw")
    o(f"  buffer_store_dwordx4 {v(U,4)}, v{vH1}, {WSr}, s{sKm} offen {PUBK}")
    vpass(8, 2)
    dsr(W[2], vA, L_MEM + 2048, "B2")
    lg.wait("B0")
    vpass(0, 0)
    dsr(W[0], vA, L_MEM + 3072, "B3")
    lg.wait("Mw")
    o("  s_barrier")
    stamp(2)
    o.c("exchange reads")
    XP = [Q0, vKx, vKx+4, 74]
    MP = [Q1, 66, 42, 38]
    for k in range(4):
        dsr(XP[k], vA, L_XEX + 1024*k, f"XP{k}")
    for k in range(4):
        dsr(MP[k], vM, L_MEX + 256*k, f"MP{k}")
    lg.wait("B1")
    vpass(1, 1)
    dsr(W[1], vA, L_MEM + 4096, "B4")
    lg.wait("B2")
    vpass(2, 2)
    dsr(W[2], vA, L_MEM + 5120, "B5")
    lg.wait("B3")
    vpass(3, 0)
    lg.wait("XP3")
    for k in range(1, 4):
        o(f"  v_pk_add_f32 {v(Q0,2)}, {v(Q0,2)}, {v(XP[k],2)}")
        o(f"  v_pk_add_f32 {v(Q0+2,2)}, {v(Q0+2,2)}, {v(XP[k]+2,2)}")
    lg.wait("MP3")
    for k in range(1, 4):
        o(f"  v_pk_add_f32 {v(Q1,2)}, {v(Q1,2)}, {v(MP[k],2)}")
        o(f"  v_pk_add_f32 {v(Q1+2,2)}, {v(Q1+2,2)}, {v(MP[k]+2,2)}")
    WIN = [14, 18, 22, 26, 38, 42, 66, 70]
    lds_list = [(tl, kap, frag_o(tl, kap)[1]) for tl in range(9) for kap in range(4)]
    slot_of = {}
    st = dict(issued=0)
    BASE = (vXw, 78, 78)
    def issue_frag():
        n = st['issued']
        if n >= len(lds_list): return
        tl, kap, f = lds_list[n]
        sl = WIN[n % len(WIN)]
        b, imm = lds_frag_addr(f)
        if b == 2 and lds_frag_addr(f-1)[0] == 1:
            o(f"  v_add_u32 v78, 0x10000, v78")
        dsr(sl, BASE[b], imm, f"wo{n}")
        slot_of[(tl, kap)] = (sl, n)
        st['issued'] = n + 1
    o.c("softmax")
    MX, TM = 78, 42
    o(f"  v_max3_f32 v{MX}, v{Q0}, v{Q0+1}, v{Q0+2}")
    o(f"  v_max3_f32 v{TM}, v{Q0+3}, v{Q1}, v{Q1+1}")
    o(f"  v_max3_f32 v{MX}, v{MX}, v{Q1+2}, v{Q1+3}")
    o(f"  v_max_f32 v{MX}, v{MX}, v{TM}")
    lg.wait("B4")
    smf(o, V0, W[1], frag_v(0, 4))
    issue_frag()
    o(f"  v_max_f32_dpp v{MX}, v{MX}, v{MX} row_ror:8 row_mask:0xf bank_mask:0xf")
    smf(o, V1, W[1], frag_v(1, 4))
    o(f"  v_mov_b32 v{TM}, v{MX}")
    issue_frag()
    lg.wait("B5")
    smf(o, V0, W[2], frag_v(0, 5))
    o(f"  v_permlane16_swap_b32 v{MX}, v{TM}")
    o(f"  v_max_f32 v{MX}, v{MX}, v{TM}")
    o(f"  v_mov_b32 v{TM}, v{MX}")
    smf(o, V1, W[2], frag_v(1, 5))
    nop(o, 1)
    o(f"  v_permlane32_swap_b32 v{MX}, v{TM}")
    o(f"  v_max_f32 v{MX}, v{MX}, v{TM}")
    o(f"  v_mul_f32 v{MX}, s{sC}, v{MX}")
    for i in range(8):
        o(f"  v_fma_f32 v{Q0+i}, v{Q0+i}, s{sC}, -v{MX}")
    PX, PM, PXs, LA, LB, VP = 74, 76, 70, 72, 73, 66
    for i in range(8):
        o(f"  v_exp_f32 v{Q0+i}, v{Q0+i}")
    o(f"  v_cvt_pk_bf16_f32 v{VP}, v{V0}, v{V0+1}")
    o(f"  v_cvt_pk_bf16_f32 v{PX}, v{Q0}, v{Q0+1}")
    o(f"  v_cvt_pk_bf16_f32 v{PX+1}, v{Q0+2}, v{Q0+3}")
    o(f"  v_cvt_pk_bf16_f32 v{PM}, v{Q1}, v{Q1+1}")
    o(f"  v_cvt_pk_bf16_f32 v{PM+1}, v{Q1+2}, v{Q1+3}")
    o.c("PV (+ l-sum chain in its shadow)")
    D0, D1 = 38, 42
    o(f"  v_mfma_f32_16x16x16_bf16 {v(D0,4)}, {v(vVx,2)}, {v(PX,2)}, 0")
    o(f"  v_pk_add_f32 {v(LA,2)}, {v(Q0,2)}, {v(Q0+2,2)}")
    o(f"  v_pk_add_f32 {v(Q1,2)}, {v(Q1,2)}, {v(Q1+2,2)}")
    o(f"  v_mfma_f32_16x16x16_bf16 {v(D1,4)}, {v(vVx+4,2)}, {v(PX,2)}, 0")
    o(f"  v_mov_b32_dpp v{PXs}, v{PX} row_ror:8 row_mask:0xf bank_mask:0xf")
    o(f"  v_mov_b32_dpp v{PXs+1}, v{PX+1} row_ror:8 row_mask:0xf bank_mask:0xf")
    o(f"  v_add_f32 v{LA}, v{LA}, v{LB}")
    o(f"  v_add_f32 v{LB}, v{Q1}, v{Q1+1}")
    o(f"  v_cvt_pk_bf16_f32 v{VP+1}, v{V0+2}, v{V0+3}")
    o(f"  v_fmamk_f32 v{LA}, v{LB}, 0x3e800000, v{LA}")
    o(f"  v_mfma_f32_16x16x16_bf16 {v(D0,4)}, {v(vVx+2,2)}, {v(PXs,2)}, {v(D0,4)}")
    o(f"  v_cvt_pk_bf16_f32 v{VP+2}, v{V1}, v{V1+1}")
    o(f"  v_add_f32_dpp v{LA}, v{LA}, v{LA} row_ror:8 row_mask:0xf bank_mask:0xf")
    o(f"  v_mfma_f32_16x16x16_bf16 {v(D1,4)}, {v(vVx+6,2)}, {v(PXs,2)}, {v(D1,4)}")
    o(f"  v_cvt_pk_bf16_f32 v{VP+3}, v{V1+2}, v{V1+3}")
    o(f"  v_mov_b32 v{LB}, v{LA}")
    o(f"  v_mfma_f32_16x16x16_bf16 {v(D0,4)}, {v(VP,2)}, {v(PM,2)}, {v(D0,4)}")
    o(f"  s_add_u32 s{sT3}, s{sKm}, {VM-KM}")
    o(f"  v_permlane16_swap_b32 v{LA}, v{LB}")
    o(f"  v_mfma_f32_16x16x16_bf16 {v(D1,4)}, {v(VP+2,2)}, {v(PM,2)}, {v(D1,4)}")
    o(f"  v_add_f32 v{LA}, v{LA}, v{LB}")
    o(f"  s_cmp_eq_u32 s{sStep}, 63")
    o(f"  v_mov_b32 v{LB}, v{LA}")
    o(f"  s_cbranch_scc1 {L}_done")
    issue_frag()
    o(f"  v_permlane32_swap_b32 v{LA}, v{LB}")
    o(f"  v_add_f32 v{LA}, v{LA}, v{LB}")
    o(f"  v_rcp_f32 v78, v{LA}")
    issue_frag()
    O0 = 70
    nop(o, 2)
    for i in range(0, 8, 2):
        o(f"  v_pk_mul_f32 {v(D0+i,2)}, {v(D0+i,2)}, {v(78,2)} op_sel_hi:[1,0]")
    o(f"  v_cvt_pk_bf16_f32 v{O0}, v{D0}, v{D0+1}")
    o(f"  v_cvt_pk_bf16_f32 v{O0+1}, v{D0+2}, v{D0+3}")
    o(f"  ds_write_b64 v{vOw}, {v(O0,2)}"); lg.issue("Ow0")
    o(f"  v_cvt_pk_bf16_f32 v{O0+2}, v{D1}, v{D1+1}")
    o(f"  v_cvt_pk_bf16_f32 v{O0+3}, v{D1+2}, v{D1+3}")
    o(f"  ds_write_b64 v{vOw}, {v(O0+2,2)} offset:512"); lg.issue("Ow1")
    o(f"  v_add_u32 v78, 0x10000, v{vXw}")
    o(f"  buffer_store_dwordx4 {v(VP,4)}, v{vA}, {WSr}, s{sT3} offen {PUBV}")
    issue_frag(); issue_frag()
    lg.wait("Ow1")
    o("  s_barrier")
    stamp(3)
    o.c("E phase")
    B = [46, 50, 54, 58]
    for k in range(4):
        dsr(B[k], vA, L_OEX + (k//2)*1024 + (k%2)*128, f"ob{k}")
    issue_frag(); issue_frag()
    D = [30, 34]
    PK, PKB = 62, 74
    for tl in range(9):
        post = []
        d = D[tl % 2]
        pend = []
        if tl >= 1:
            prev = tl - 1
            dd = D[prev % 2]; x = prev % 2; p = prev // 2
            pk = PK if p % 2 == 0 else PKB
            pend = [f"  v_cvt_pk_bf16_f32 v{pk+2*x}, v{dd}, v{dd+1}", f"  v_cvt_pk_bf16_f32 v{pk+2*x+1}, v{dd+2}, v{dd+3}"]
            if x == 1 and p % 2 == 1:
                post = ["  s_nop 0"] + [f"  v_mov_b32_dpp v{PK+i}, v{PKB+i} row_ror:8 row_mask:0xf bank_mask:0xc" for i in range(4)]
                post.append(f"  buffer_store_dwordx4 {v(PK,4)}, v{vA}, {WSr}, s{sH1st} offen offset:{1024*(p//2)} {stf}")
            else:
                post = []
        if tl >= 1: lg.wait(f"wo{4*tl+3}")
        for n_ in range(4):
            kap = n_
            if tl == 0: lg.wait(f"ob{kap}")
            sl, n = slot_of[(tl, kap)]
            if tl == 0: lg.wait(f"wo{n}")
            cin = "0" if n_ == 0 else v(d, 4)
            o(f"  v_mfma_f32_16x16x32_bf16 {v(d,4)}, {v(sl,4)}, {v(B[kap],4)}, {cin}")
            issue_frag()
            if n_ == 2 and pend:
                for x_ in pend: o(x_)
                pend = []
            if n_ == 3 and post:
                for x_ in post: o(x_)
                post = []
    for r in range(38, 46): o(f"  v_mov_b32 v{r}, 0")
    d = D[0]
    o(f"  v_cvt_pk_bf16_f32 v{PK}, v{d}, v{d+1}")
    o(f"  v_cvt_pk_bf16_f32 v{PK+1}, v{d+2}, v{d+3}")
    o(f"  buffer_store_dwordx2 {v(PK,2)}, v{vH1}, {WSr}, s{sH1h} offen {stf}")
    assert not lg.q, lg.q
    stamp(4)
    for r in list(range(30, 38)) + list(range(46, 54)): o(f"  v_mov_b32 v{r}, 0")
    nop(o, fdelay)
    o.c("F: reducers")
    o(f"  s_cmp_eq_u32 s{sIsRed}, 0")
    o(f"  s_cbranch_scc1 {L}_cons")
    o(f"  s_add_u32 s{sT1}, s{sH1ld}, {8*H1_PROD}")
    o(f"  s_add_u32 s{sT2}, s{sH1ld}, {16*H1_PROD}")
    o(f"  s_add_u32 s{sT3}, s{sH1ld}, {24*H1_PROD}")
    def f_loads():
        o(f"  buffer_load_dwordx4 {v(54,4)}, v{vR}, {WSr}, s{sH1ld} offen sc1")
        o(f"  buffer_load_dwordx4 {v(58,4)}, v{vR}, {WSr}, s{sT1} offen sc1")
        o(f"  buffer_load_dwordx4 {v(62,4)}, v{vR}, {WSr}, s{sT2} offen sc1")
        o(f"  buffer_load_dwordx4 {v(66,4)}, v{vR}, {WSr}, s{sT3} offen sc1")
    def f_mfma(n):
        for k in range(4):
            o(f"  s_waitcnt vmcnt({n+3-k})")
            if timing and k == 3: o("  s_memtime s[66:67]")
            o(f"  v_mfma_f32_16x16x32_bf16 {v(70,4)}, {v(vSelR,4)}, {v(54+4*k,4)}, {'0' if k == 0 else v(70,4)}")
    if timing: o("  s_add_u32 s80, s80, 1\n  s_memtime s[64:65]")
    f_loads()
    f_mfma(0)
    o(f"  s_branch {L}_rc")
    o(f"{L}_rp:")
    if timing: o("  s_add_u32 s80, s80, 1\n  s_memtime s[64:65]")
    f_loads()
    o(f"  s_add_u32 s{sPoll}, s{sPoll}, 1")
    o(f"  s_cmp_gt_u32 s{sPoll}, {POLL_LIMIT}")
    o(f"  s_cbranch_scc1 {L}_bail")
    f_mfma(0)
    o(f"{L}_rc:")
    nop(o, 8)
    o(f"  v_cmp_u_f32 vcc, v70, v70")
    o(f"  s_cbranch_vccnz {L}_rp")
    for i in range(4):
        o(f"  v_add_f32_dpp v{70+i}, v{70+i}, v{70+i} row_ror:8 row_mask:0xf bank_mask:0xf")
    o(f"  v_cvt_pk_bf16_f32 v74, v70, v71")
    o(f"  v_cvt_pk_bf16_f32 v75, v72, v73")
    o(f"  buffer_store_dwordx2 {v(74,2)}, v{vP}, {WSr}, s{sH2pub} offen {stf}")
    o(f"{L}_cons:")
    o(f"  s_barrier")
    stamp(5)
    o.c("A: gather mem(s+1); per-step scalar updates double as the publish->visible delay")
    o(f"  s_add_u32 s{sH2pl}, s{sH2pub}, s{sW1024}")
    o(f"  s_add_u32 s{sT1}, s{sH2pl}, 4096")
    o(f"  s_add_u32 s{sT2}, s{sH2pub}, 8192")
    o(f"  s_add_u32 s{sStep}, s{sStep}, 1")
    for x in [f"  s_add_u32 s{sH1ld}, s{sH1ld}, {H1_SLOT}", f"  s_add_u32 s{sKm}, s{sKm}, {32*4096}",
             f"  s_add_u32 s{sH1st}, s{sH1ld}, s{sH1so}", f"  s_add_u32 s{sH1h}, s{sH1ld}, s{sH1ho}",
             f"  s_add_u32 s{sH2pub}, s{sH2pub}, {H2_SLOT}"]:
        o(x)
    nop(o, adelay)
    o(f"  s_cmp_eq_u32 s{sWv_}, 0")
    o(f"  s_cbranch_scc1 {L}_cp3")
    o(f"{L}_cp:")
    if timing: o("  s_add_u32 s81, s81, 1\n  s_memtime s[68:69]")
    o(f"  buffer_load_dwordx4 {v(58,4)}, v{vA}, {WSr}, s{sH2pl} offen sc1")
    o(f"  buffer_load_dwordx4 {v(62,4)}, v{vA}, {WSr}, s{sT1} offen sc1")
    o(f"  s_add_u32 s{sPoll}, s{sPoll}, 1")
    o(f"  s_cmp_gt_u32 s{sPoll}, {POLL_LIMIT}")
    o(f"  s_cbranch_scc1 {L}_bail")
    o(f"  s_waitcnt vmcnt(0)")
    if timing: o("  s_memtime s[70:71]")
    o(f"  v_max3_u32 v70, v58, v60, v62")
    o(f"  v_max_u32 v70, v70, v64")
    o(f"  v_cmp_eq_u32 vcc, -1, v70")
    o(f"  s_cbranch_vccnz {L}_cp")
    o(f"  ds_write_b128 v{vXw}, {v(58,4)} offset:{L_MEM}")
    o(f"  ds_write_b128 v{vXw}, {v(62,4)} offset:{L_MEM+4096}")
    o(f"  s_branch {L}_cj")
    o(f"{L}_cp3:")
    if timing: o("  s_add_u32 s81, s81, 1\n  s_memtime s[68:69]")
    o(f"  buffer_load_dwordx4 {v(58,4)}, v{vA}, {WSr}, s{sH2pl} offen sc1")
    o(f"  buffer_load_dwordx4 {v(62,4)}, v{vA}, {WSr}, s{sT1} offen sc1")
    o(f"  buffer_load_dwordx4 {v(66,4)}, v{vA}, {WSr}, s{sT2} offen sc1")
    o(f"  s_add_u32 s{sPoll}, s{sPoll}, 1")
    o(f"  s_cmp_gt_u32 s{sPoll}, {POLL_LIMIT}")
    o(f"  s_cbranch_scc1 {L}_bail")
    o(f"  s_waitcnt vmcnt(0)")
    if timing: o("  s_memtime s[70:71]")
    o(f"  v_max3_u32 v70, v58, v60, v62")
    o(f"  v_max3_u32 v70, v70, v64, v66")
    o(f"  v_max_u32 v70, v70, v68")
    o(f"  v_cmp_eq_u32 vcc, -1, v70")
    o(f"  s_cbranch_vccnz {L}_cp3")
    o(f"  ds_write_b128 v{vXw}, {v(58,4)} offset:{L_MEM}")
    o(f"  ds_write_b128 v{vXw}, {v(62,4)} offset:{L_MEM+4096}")
    o(f"  ds_write_b128 v{vA}, {v(66,4)} offset:{L_MEM+8192}")
    o(f"{L}_cj:")
    if timing: o("  s_memtime s[72:73]")
    if KVPOS == 'a':
        o(f"  s_add_u32 s{sT1}, s{sKoff}, {VBUF-KBUF}")
        o(f"  buffer_load_dwordx4 {v(vKx,4)}, v{vA}, {WSr}, s{sKoff} offen {KVF}")
        o(f"  buffer_load_dwordx4 {v(vKx+4,4)}, v{vA}, {WSr}, s{sKoff} offen offset:1024 {KVF}")
        o(f"  buffer_load_dwordx4 {v(vVx,4)}, v{vA}, {WSr}, s{sT1} offen {KVF}")
        o(f"  buffer_load_dwordx4 {v(vVx+4,4)}, v{vA}, {WSr}, s{sT1} offen offset:1024 {KVF}")
    o(f"  s_waitcnt lgkmcnt(0)")
    o(f"  s_barrier")
    if timing:
        lab2 = o.label("nort")
        o(f"  s_memrealtime s[82:83]\n  s_memtime s[98:99]\n  s_waitcnt lgkmcnt(0)")
        o(f"  s_lshl_b32 s{sT0}, s{sH}, 2\n  s_add_u32 s{sT0}, s{sT0}, s{sWv_}\n  s_cmp_eq_u32 s{sT0}, 0\n  s_cbranch_scc0 {lab2}")
        o(f"  s_lshl_b32 s{sT0}, s{sStep}, 3\n  s_add_u32 s{sT0}, s{sT0}, {FLAGS + 0x3000}\n  v_mov_b32 v74, s82\n  v_mov_b32 v75, s98\n  v_mov_b32 v76, s{sT0}\n  buffer_store_dwordx2 v[74:75], v76, {WSr}, 0 offen")
        o.put(lab2)
        lab = o.label("nost")
        o(f"  s_cmp_eq_u32 s{sStep}, 21")
        o(f"  s_cbranch_scc0 {lab}")
        for k, sr in enumerate([86,88,90,92,94,96,98,64,66,68,70,72]):
            o(f"  v_mov_b32 v74, s{sr}")
            o(f"  s_lshl_b32 s{sT0}, s{sH}, 2\n  s_add_u32 s{sT0}, s{sT0}, s{sWv_}\n  s_lshl_b32 s{sT0}, s{sT0}, 6\n  s_add_u32 s{sT0}, s{sT0}, {FLAGS + 4096 + 4*k}")
            o(f"  v_mov_b32 v75, s{sT0}")
            o(f"  buffer_store_dword v74, v75, {WSr}, 0 offen")
        o.put(lab)
    o(f"  s_branch {L}_loop")
    o(f"{L}_bail:")
    o(f"  s_endpgm")
    o(f"{L}_done:")
    o(f"  buffer_store_dwordx4 {v(66,4)}, v{vA}, {WSr}, s{sT3} offen sc1")
    o(f"  s_waitcnt vmcnt(0) lgkmcnt(0)")
    o(f"  s_barrier")
    o(f"  s_cmp_lg_u32 s{sWv_}, 0\n  s_cbranch_scc1 {L}_fin")
    o(f"  v_mov_b32 v78, 64")
    o(f"  v_mov_b32 v77, s{sFlagOff}")
    o(f"  s_mov_b64 exec, 1\n  buffer_store_dword v78, v77, {WSr}, 0 offen sc1\n  s_mov_b64 exec, -1")
    o(f"  s_waitcnt vmcnt(0)")
    o(f"{L}_fin:")

def emit_init(o, L):
    WSr = f"s[{sWS}:{sWS+3}]"
    lab = o.label("noh2")
    o(f"""  s_lshl_b32 s{sT0}, s{sH}, 2
  s_add_u32 s{sT0}, s{sT0}, s{sWv_}
  s_lshl_b32 s{sFlagOff}, s{sH}, 7
  s_add_u32 s{sFlagOff}, s{sFlagOff}, {RFLAG}
  s_cmp_lg_u32 s{sWv_}, 0
  s_cselect_b32 s{sFlagOff}, 0x80000000, s{sFlagOff}
{lab}:""")

def emit_mem0(o):
    WSr = f"s[{sWS}:{sWS+3}]"
    o.c("mem0 -> LDS: piece (j=8c+2g+u, t) = mem0[t][8j..8j+8)")
    o(f"""  s_mov_b32 s64, s48
  s_and_b32 s65, s49, 0xffff
  s_mov_b32 s66, 9216
  s_mov_b32 s67, 0x20000
  v_lshrrev_b32 v62, 4, v{vA}         ; lane
  v_and_b32 v63, 7, v62               ; t
  v_lshrrev_b32 v64, 3, v62           ; 2g+u
  v_mul_u32_u24 v63, 1152, v63
  v_lshl_add_u32 v63, v64, 4, v63     ; t*1152 + (2g+u)*16
  s_lshl_b32 s{sT0}, s{sWv_}, 7
  s_add_u32 s{sT1}, s{sT0}, 512
  buffer_load_dwordx4 {v(66,4)}, v63, s[64:67], s{sT0} offen
  buffer_load_dwordx4 {v(70,4)}, v63, s[64:67], s{sT1} offen
  buffer_load_dwordx4 {v(74,4)}, v63, s[64:67], 0 offen offset:1024
  s_waitcnt vmcnt(0)
  s_barrier
  ds_write_b128 v{vXw}, {v(66,4)} offset:{L_MEM}
  ds_write_b128 v{vXw}, {v(70,4)} offset:{L_MEM+4096}
  ds_write_b128 v{vA}, {v(74,4)} offset:{L_MEM+8192}""")
    for r in range(30, 54):
        o(f"  v_mov_b32 v{r}, 0")
    o(f"""  s_mov_b32 s{sStep}, 0
  s_mov_b32 s{sPoll}, 0
  s_mov_b32 s80, 0
  s_mov_b32 s81, 0
  s_lshl_b32 s{sKoff}, s{sH}, 13
  s_lshl_b32 s{sT1}, s{sWv_}, 11
  s_add_u32 s{sKoff}, s{sKoff}, s{sT1}
  s_lshl_b32 s{sKm}, s{sH}, 12
  s_add_u32 s{sKm}, s{sKm}, s{sW1024}
  s_add_u32 s{sKm}, s{sKm}, {KM}
  s_mov_b32 s{sH1ld}, {H1}
  s_mul_i32 s{sT1}, s{sH}, {H1_PROD}
  s_lshl_b32 s{sT2}, s{sWv_}, 11
  s_add_u32 s{sH1so}, s{sT1}, s{sT2}
  s_lshr_b32 s{sT2}, s{sWv_}, 1
  s_lshl_b32 s{sT2}, s{sT2}, 10
  s_add_u32 s{sH1ho}, s{sT1}, s{sT2}
  s_add_u32 s{sH1ho}, s{sH1ho}, 8192
  s_and_b32 s{sT2}, s{sWv_}, 1
  s_lshl_b32 s{sT2}, s{sT2}, 3
  s_add_u32 s{sH1ho}, s{sH1ho}, s{sT2}
  s_add_u32 s{sH1st}, s{sH1ld}, s{sH1so}
  s_add_u32 s{sH1h}, s{sH1ld}, s{sH1ho}
  s_mov_b32 s{sH2pub}, {H2 + H2_SLOT}
  v_bfe_u32 v73, v{vA}, 4, 5
  v_mul_u32_u24 v73, {H1_PROD}, v73
  v_add_u32 v73, s{sUnit}, v73
  buffer_load_dword v{vDummy}, v73, {WSr}, s{sH1ld} offen sc1
  s_add_u32 s{sT0}, s{sH2pub}, s{sW1024}
  v_lshlrev_b32 v72, 3, v{vA}
  buffer_load_dword v{vDummy}, v72, {WSr}, s{sT0} offen sc1
  s_add_u32 s{sT1}, s{sKoff}, {VBUF-KBUF}
  buffer_load_dwordx4 {v(vKx,4)}, v{vA}, {WSr}, s{sKoff} offen
  buffer_load_dwordx4 {v(vKx+4,4)}, v{vA}, {WSr}, s{sKoff} offen offset:1024
  buffer_load_dwordx4 {v(vVx,4)}, v{vA}, {WSr}, s{sT1} offen
  buffer_load_dwordx4 {v(vVx+4,4)}, v{vA}, {WSr}, s{sT1} offen offset:1024
  s_waitcnt vmcnt(0) lgkmcnt(0)
  v_mov_b32 v{vDummy}, 64
  s_barrier""")
```

```python
from asmlib import *
from rgen import Cnt, nop

sWS = 8
sWv = 13
sB1, sB2 = 64, 68
sAo = 72
sBo1, sBo2 = 73, 74
sT = [76, 77, 78, 79, 80, 81, 82, 83]
P_X, P_WQ, P_WK, P_WV, P_WO, P_W1, P_W3, P_W2, P_OUT = 84, 86, 88, 90, 92, 94, 96, 98, 100

def srd(o, dst, ptr, size):
    o(f"  s_mov_b32 s{dst}, s{ptr}\n  s_and_b32 s{dst+1}, s{ptr+1}, 0xffff\n  s_mov_b32 s{dst+2}, {size}\n  s_mov_b32 s{dst+3}, 0x20000")

TIMING = False
LDF = ''
class Gemm:
    def __init__(self, MB, NB, KT, swap, ldb, nrb_stride, PA=2, dual=False):
        self.MB, self.NB, self.KT, self.swap, self.ldb, self.PA, self.dual = MB, NB, KT, swap, ldb, PA, dual
        self.rbs = nrb_stride
        self.NS = NB // 2
        self.vA, self.vD = 0, 1
        self.vT = 2
        self.vBf = 8
        self.vAcc = self.vBf + 2*NB*4
        self.vFree = self.vAcc + MB*NB*16
    def acc(self, mb, nb): return self.vAcc + (mb*self.NB + nb)*16
    def setup(self, o):
        o(f"""
  v_lshrrev_b32 v10, 3, v0           ; l/8
  v_and_b32 v11, 7, v0               ; l%8
  v_bfe_u32 v12, v0, 4, 1            ; (l/16)%2
  v_lshlrev_b32 v12, 2, v12
  v_xor_b32 v11, v11, v12
  s_mov_b32 s{sT[0]}, {self.ldb}
  v_mul_lo_u32 v{self.vD}, v10, s{sT[0]}
  v_lshl_add_u32 v{self.vD}, v11, 4, v{self.vD}
  ; tr address: row=(4hi + r'), ch=(l/16)%2, c'=l%4
  v_lshrrev_b32 v10, 5, v0           ; hi
  v_bfe_u32 v11, v0, 2, 2            ; r'
  v_lshl_add_u32 v10, v10, 2, v11    ; 4hi + r'
  v_lshlrev_b32 v10, 7, v10          ; *128
  v_bfe_u32 v12, v0, 4, 1            ; ch
  v_lshl_add_u32 v10, v12, 5, v10
  v_and_b32 v12, 3, v0
  v_lshl_add_u32 v10, v12, 3, v10
  v_lshrrev_b32 v11, 1, v11          ; s = (r'/2)
  v_lshlrev_b32 v11, 6, v11          ; s*64
  v_add_u32 v{self.vT}, v10, v11
  v_xor_b32 v11, 64, v11
  v_add_u32 v{self.vT+1}, v10, v11
  v_add_u32 v{self.vT+2}, 0x10000, v{self.vT}
  v_add_u32 v{self.vT+3}, 0x10000, v{self.vT+1}
  v_add_u32 v{self.vT+4}, 0x20000, v{self.vT}
  v_add_u32 v{self.vT+5}, 0x20000, v{self.vT+1}
  v_lshlrev_b32 v0, 4, v0
""")
    def areg(self, t, mb, ks): return ((t % (self.PA+1))*self.MB + mb)*16 + ks*4
    def issue_tile(self, o, vm, t):
        for sub in range(self.NS):
            srdreg = sB2 if (self.dual and sub == 1) else sB1
            sbo = sBo2 if (self.dual and sub == 1) else sBo1
            colb = 0 if self.dual else sub*128
            for j in range(2):
                lds = t*self.NS*8192 + sub*8192 + j*1024
                o(f"  s_add_u32 m0, s{sT[7]}, {lds}")
                o(f"  s_add_u32 s{sT[0]}, s{sbo}, {(64*t + 8*j)*self.ldb + colb}")
                o(f"  buffer_load_dwordx4 v{self.vD}, s[{srdreg}:{srdreg+3}], s{sT[0]} offen lds")
                vm.issue(f"B{t}")
        for mb in range(self.MB):
            o(f"  s_add_u32 s{sT[0]}, s{sAo}, {mb*self.rbs + 4096*t}")
            for ks in range(4):
                o(f"  buffer_load_dwordx4 {a(self.areg(t,mb,ks),4)}, v{self.vA}, s[{sWS}:{sWS+3}], s{sT[0]} offen offset:{1024*ks} {LDF}")
                vm.issue(f"A{t}")
    def bfrag(self, buf, nb): return self.vBf + (buf*self.NB + nb)*4
    def read_b(self, o, lg, t, ks, buf):
        kb, q = ks // 2, ks % 2
        for nb in range(self.NB):
            sub, par = nb // 2, nb % 2
            for z in range(2):
                off = t*self.NS*8192 + sub*8192 + (32*kb + 8*q + 16*z)*128
                b, imm = off // 65536, off % 65536
                o(f"  ds_read_b64_tr_b16 {v(self.bfrag(buf,nb)+2*z,2)}, v{self.vT + 2*b + par} offset:{imm}")
                lg.issue(f"R{t}_{ks}")
    def run(self, o, pre_issue=None):
        MB, NB, KT, PA = self.MB, self.NB, self.KT, self.PA
        vm = Cnt(o, "vm", 63); lg = Cnt(o, "lgkm", 15)
        if TIMING: o("  s_memtime s[26:27]")
        for t in range(min(PA+1, KT)):
            self.issue_tile(o, vm, t)
        vm.wait("B0"); vm.wait("A0") if "A0" in vm.q else None
        o("  s_barrier")
        if TIMING: o("  s_memtime s[28:29]")
        self.read_b(o, lg, 0, 0, 0)
        step = 0
        for t in range(KT):
            for ks in range(4):
                buf = step % 2
                nt, nks = (t, ks+1) if ks < 3 else (t+1, 0)
                if ks == 3 and t+1 < KT:
                    vm.wait(f"B{t+1}"); vm.wait(f"A{t+1}")
                    o("  s_barrier")
                lg.wait(f"R{t}_{ks}")
                if nt < KT:
                    self.read_b(o, lg, nt, nks, 1-buf)
                for mb in range(MB):
                    for nb in range(NB):
                        a_, b_ = a(self.areg(t,mb,ks),4), v(self.bfrag(buf,nb),4)
                        c = v(self.acc(mb,nb),16)
                        x, y = (b_, a_) if self.swap else (a_, b_)
                        cin = "0" if step == 0 else c
                        o(f"  v_mfma_f32_32x32x16_bf16 {c}, {x}, {y}, {cin}")
                if ks == 3 and t+PA+1 < KT:
                    self.issue_tile(o, vm, t+PA+1)
                step += 1
        nop(o, 12)
        if TIMING: o("  s_memtime s[30:31]")


def lane_setup(o):
    o(f"""  v_lshrrev_b32 v1, 6, v0
  s_nop 1
  v_readfirstlane_b32 s{sWv}, v1
  v_and_b32 v0, 63, v0""")

def kv_store_off(o, vdst, vlane16):
    o(f"""  v_bfe_u32 v{vdst}, v{vlane16}, 8, 1          ; (l/16)%2
  v_lshlrev_b32 v{vdst}, 10, v{vdst}
  v_lshrrev_b32 v{vdst+1}, 9, v{vlane16}       ; l/32
  v_lshl_add_u32 v{vdst}, v{vdst+1}, 8, v{vdst}
  v_and_b32 v{vdst+1}, 0xf0, v{vlane16}        ; (l%16)*16
  v_add_u32 v{vdst}, v{vdst}, v{vdst+1}""")

def pack_piece(o, dst, acc, q):
    o(f"  v_cvt_pk_bf16_f32 v{dst}, v{acc+4*q}, v{acc+4*q+1}")
    o(f"  v_cvt_pk_bf16_f32 v{dst+1}, v{acc+4*q+2}, v{acc+4*q+3}")
    o(f"  v_cvt_pk_bf16_f32 v{dst+2}, v{acc+4*q+8}, v{acc+4*q+9}")
    o(f"  v_cvt_pk_bf16_f32 v{dst+3}, v{acc+4*q+10}, v{acc+4*q+11}")

def stage_ln(o, src_kind, stf):
    WS = f"s[{sWS}:{sWS+3}]"
    srd(o, sB1, P_X, 2048*576*2)
    o(f"""
  v_and_b32 v1, 31, v0                ; token
  v_lshrrev_b32 v2, 5, v0             ; hi
  v_mul_u32_u24 v3, 1152, v1
  v_lshl_add_u32 v3, v2, 4, v3
  s_mul_i32 s{sT[0]}, s20, {32*1152}
  s_lshl_b32 s{sT[1]}, s{sWv}, 6
  s_add_u32 s{sT[0]}, s{sT[0]}, s{sT[1]}
  v_lshlrev_b32 v0, 4, v0
  v_mov_b32 v4, 0x80000000
  s_cmp_lt_u32 s{sWv}, 2
  s_cselect_b32 s{sT[2]}, 0, 0x80000000
  v_or_b32 v5, s{sT[2]}, v3""")
    for i in range(5):
        vo = 3 if i < 4 else 5
        for j in range(2):
            o(f"  buffer_load_dwordx4 {v(16+8*i+4*j,4)}, v{vo}, s[{sB1}:{sB1+3}], s{sT[0]} offen offset:{256*i+32*j}")
    o("  s_waitcnt vmcnt(0)")
    for i in range(5):
        A_, B_ = 16+8*i, 20+8*i
        for r in (A_, B_):
            o(f"  v_permlane32_swap_b32 v{r}, v{r+2}")
            o(f"  v_permlane32_swap_b32 v{r+1}, v{r+3}")
    for i in range(5):
        A_, B_ = 16+8*i, 20+8*i
        for k in range(2):
            o(f"  v_swap_b32 v{A_+2+k}, v{B_+k}")
    o(f"""  s_mul_i32 s{sT[3]}, s20, {18*2048}
  s_lshl_b32 s{sT[4]}, s{sWv}, 11
  s_add_u32 s{sT[3]}, s{sT[3]}, s{sT[4]}      ; rb*18*2048 + w*2048
  v_or_b32 v6, s{sT[2]}, v0""")
    for i in range(5):
        vo = 0 if i < 4 else 6
        o(f"  s_add_u32 s{sT[4]}, s{sT[3]}, {XF + i*4*2048}")
        o(f"  buffer_store_dwordx4 {v(16+8*i,4)}, v{vo}, {WS}, s{sT[4]} offen {stf}")
        o(f"  buffer_store_dwordx4 {v(20+8*i,4)}, v{vo}, {WS}, s{sT[4]} offen offset:1024 {stf}")
    ln_core(o, 16, 40, XN, sT[3], 0, 6, stf)

def ln_core(o, R0, NR, dstbase, sOff, vo_full, vo_last, stf):
    WS = f"s[{sWS}:{sWS+3}]"
    F = 64
    for r in range(NR):
        o(f"  v_lshlrev_b32 v{F+2*r}, 16, v{R0+r}")
        o(f"  v_and_b32 v{F+2*r+1}, 0xffff0000, v{R0+r}")
    o("  v_mov_b32 v8, 0\n  v_mov_b32 v9, 0")
    for r in range(2*NR):
        o(f"  v_add_f32 v8, v8, v{F+r}")
    def xreduce(reg, slot):
        o(f"  v_mov_b32 v10, v{reg}\n  s_nop 1\n  v_permlane32_swap_b32 v{reg}, v10\n  v_add_f32 v{reg}, v{reg}, v10")
        o(f"  v_and_b32 v11, 0x1f0, v0\n  v_lshrrev_b32 v11, 2, v11          ; token*4")
        o(f"  s_lshl_b32 s{sT[5]}, s{sWv}, 7\n  v_add_u32 v12, s{sT[5]}, v11")
        o(f"  ds_write_b32 v12, v{reg} offset:{slot*512}\n  s_waitcnt lgkmcnt(0)\n  s_barrier")
        for w in range(4):
            o(f"  ds_read_b32 v{12+w}, v11 offset:{slot*512 + w*128}")
        o(f"  s_waitcnt lgkmcnt(0)\n  v_add_f32 v12, v12, v13\n  v_add_f32 v14, v14, v15\n  v_add_f32 v{reg}, v12, v14")
    xreduce(8, 0)
    o("  v_mul_f32 v8, 0x3ae38e39, v8")
    for r in range(2*NR):
        o(f"  v_sub_f32 v{F+r}, v{F+r}, v8")
    o(f"  s_cmp_lt_u32 s{sWv}, 2\n  s_cselect_b32 s{sT[6]}, 1.0, 0")
    for r in range(2*NR - 16, 2*NR):
        o(f"  v_mul_f32 v{F+r}, s{sT[6]}, v{F+r}")
    for r in range(2*NR):
        o(f"  v_fmac_f32 v9, v{F+r}, v{F+r}")
    xreduce(9, 1)
    o("""  v_mov_b32 v10, 0x3727c5ac          ; 1e-5
  v_fmac_f32 v10, 0x3ae38e39, v9
  v_rsq_f32 v9, v10
  s_nop 0""")
    for r in range(NR):
        o(f"  v_mul_f32 v{F+2*r}, v9, v{F+2*r}\n  v_mul_f32 v{F+2*r+1}, v9, v{F+2*r+1}")
        o(f"  v_cvt_pk_bf16_f32 v{R0+r}, v{F+2*r}, v{F+2*r+1}")
    for i in range(NR // 8):
        vo = vo_full if i < NR//8 - 1 else vo_last
        o(f"  s_add_u32 s{sT[4]}, s{sOff}, {dstbase + i*4*2048}")
        o(f"  buffer_store_dwordx4 {v(R0+8*i,4)}, v{vo}, {WS}, s{sT[4]} offen {stf}")
        o(f"  buffer_store_dwordx4 {v(R0+8*i+4,4)}, v{vo}, {WS}, s{sT[4]} offen offset:1024 {stf}")

def stage_a(o, stf):
    WS = f"s[{sWS}:{sWS+3}]"
    for swap, name in ((True, "qk"), (False, "v")):
        pass
    lab_v, lab_e = o.label("a_v"), o.label("a_e")
    g = Gemm(2, 4, 9, True, 8192, 18*2048)
    g.setup(o)
    o(f"""  s_lshr_b32 s22, s21, 5
  s_and_b32 s23, s21, 31
  s_cmp_eq_u32 s22, 0
  s_cselect_b32 s{sT[0]}, s{P_WK}, s{P_WQ}
  s_cselect_b32 s{sT[1]}, s{P_WK+1}, s{P_WQ+1}
  s_cmp_eq_u32 s22, 1
  s_cselect_b32 s{sT[0]}, s{P_WV}, s{sT[0]}
  s_cselect_b32 s{sT[1]}, s{P_WV+1}, s{sT[1]}""")
    srd(o, sB1, sT[0], 4718592)
    o(f"""  s_lshl_b32 s{sBo1}, s23, 8              ; head*256
  s_mul_i32 s{sT[0]}, s{sWv}, {16*8192}
  s_add_u32 s{sBo1}, s{sBo1}, s{sT[0]}
  s_lshl_b32 s{sT[7]}, s{sWv}, 11
  s_lshl_b32 s{sAo}, s20, 3
  s_lshl_b32 s{sT[0]}, s{sWv}, 1
  s_add_u32 s{sAo}, s{sAo}, s{sT[0]}
  s_mov_b32 s24, s{sAo}
  s_mul_i32 s{sAo}, s{sAo}, {18*2048}
  s_add_u32 s{sAo}, s{sAo}, {XN}
  s_cmp_eq_u32 s22, 1
  s_cbranch_scc1 {lab_v}""")
    g.run(o)
    o(f"  s_branch {lab_e}")
    o.put(lab_v)
    g2 = Gemm(2, 4, 9, False, 8192, 18*2048)
    g2.run(o)
    o.put(lab_e)
    vo = g.vFree
    kv_store_off(o, vo, 0)
    o(f"""  s_cmp_eq_u32 s22, 0
  s_cselect_b32 s{sT[0]}, {KBUF}, {QBUF}
  s_cmp_eq_u32 s22, 1
  s_cselect_b32 s{sT[0]}, {VBUF}, s{sT[0]}
  s_lshl_b32 s{sT[1]}, s24, 5
  s_add_u32 s{sT[1]}, s{sT[1]}, s23
  s_lshl_b32 s{sT[1]}, s{sT[1]}, 13
  s_add_u32 s{sT[0]}, s{sT[0]}, s{sT[1]}""")
    P = vo + 2
    n = 0
    for mb in range(2):
        for nb in range(4):
            o(f"  s_add_u32 s{sT[1]}, s{sT[0]}, {mb*32*8192 + nb*2048}")
            for q in range(2):
                d = P + 4*(n % 4); n += 1
                pack_piece(o, d, g.acc(mb, nb), q)
                o(f"  buffer_store_dwordx4 {v(d,4)}, v{vo}, {WS}, s{sT[1]} offen offset:{512*q} {stf}")

def stage_b(o, stf, wait_r=False):
    WS = f"s[{sWS}:{sWS+3}]"
    Q, K, KMr, V, VMr, SX, SM, OA = 16, 48, 80, 112, 144, 160, 176, 192
    o("  v_lshlrev_b32 v0, 4, v0")
    kv_store_off(o, 1, 0)
    o(f"""  v_lshrrev_b32 v3, 9, v0              ; hi
  v_bfe_u32 v4, v0, 4, 5                ; l%32 (token / key / e_local)
  v_lshlrev_b32 v5, 8, v3
  v_lshl_add_u32 v5, v4, 4, v5
  v_mov_b32 v6, 0x80000000
  v_cmp_gt_u32 vcc, 8, v4
  s_nop 1
  v_cndmask_b32 v5, v6, v5, vcc
  ; vm offset: hi*256 + (l%16)*16 + ((l%32)/16)*8
  v_lshlrev_b32 v6, 8, v3
  v_and_b32 v7, 0xf0, v0
  v_add_u32 v6, v6, v7
  v_bfe_u32 v7, v0, 8, 1
  v_lshl_add_u32 v6, v7, 3, v6
  v_lshlrev_b32 v7, 2, v3
  v_sub_u32 v7, v4, v7
  s_lshl_b32 s{sT[0]}, s20, 5
  s_add_u32 s{sT[0]}, s{sT[0]}, s21          ; seg*32+head
  s_lshl_b32 s{sT[1]}, s{sT[0]}, 13          ; *8192
  s_lshl_b32 s{sT[2]}, s{sT[0]}, 12          ; *4096
  s_add_u32 s{sT[3]}, s{sT[1]}, {QBUF}
  s_add_u32 s{sT[4]}, s{sT[1]}, {VBUF}
  s_add_u32 s{sT[5]}, s{sT[2]}, {KM}
  s_add_u32 s{sT[6]}, s{sT[2]}, {VM}""")
    for b in range(4):
        for q in range(2):
            ks = 2*b + q
            off = b*2048 + q*512
            so, imm = (off // 4096)*4096, off % 4096
            if so:
                o(f"  s_add_u32 s22, s{sT[3]}, {so}\n  s_add_u32 s23, s{sT[1]}, {so}\n  s_add_u32 s25, s{sT[4]}, {so}")
            else:
                o(f"  s_mov_b32 s22, s{sT[3]}\n  s_mov_b32 s23, s{sT[1]}\n  s_mov_b32 s25, s{sT[4]}")
            o(f"  buffer_load_dwordx4 {v(Q+4*ks,4)}, v1, {WS}, s22 offen offset:{imm} {LDF}")
            o(f"  buffer_load_dwordx4 {v(K+4*ks,4)}, v1, {WS}, s23 offen offset:{imm} {LDF}")
            o(f"  buffer_load_dwordx4 {v(V+8*b+4*q,4)}, v1, {WS}, s25 offen offset:{imm} {LDF}")
    if HOOK:
        o("  s_waitcnt vmcnt(24)\n  s_barrier"); HOOK(o)
    if wait_r:
        lp = o.label("rw")
        o(f"""  s_lshl_b32 s22, s21, 7
  s_add_u32 s22, s22, {RFLAG}
  v_mov_b32 v8, s22
  s_mov_b32 s24, 0
{lp}:
  buffer_load_dword v9, v8, {WS}, 0 offen sc1
  s_waitcnt vmcnt(0)
  v_readfirstlane_b32 s23, v9
  s_cmp_gt_u32 s23, s20
  s_cbranch_scc1 {lp}_ok
  s_sleep 8
  s_add_u32 s24, s24, 1
  s_cmp_lt_u32 s24, 300000
  s_cbranch_scc1 {lp}
  s_endpgm
{lp}_ok:""")
    for b in range(4):
        for q in range(2):
            ks = 2*b + q
            o(f"  buffer_load_dwordx4 {v(KMr+4*ks,4)}, v5, {WS}, s{sT[5]} offen offset:{b*1024 + q*512} sc1")
            o(f"  buffer_load_dwordx2 {v(VMr+4*b+2*q,2)}, v6, {WS}, s{sT[6]} offen offset:{b*1024 + q*512} sc1")
    o("  s_waitcnt vmcnt(16)")
    for ks in range(8):
        o(f"  v_mfma_f32_32x32x16_bf16 {v(SX,16)}, {v(K+4*ks,4)}, {v(Q+4*ks,4)}, {'0' if ks == 0 else v(SX,16)}")
    o("  s_waitcnt vmcnt(0)")
    for ks in range(8):
        o(f"  v_mfma_f32_32x32x16_bf16 {v(SM,16)}, {v(KMr+4*ks,4)}, {v(Q+4*ks,4)}, {'0' if ks == 0 else v(SM,16)}")
    nop(o, 16)
    o("  v_mov_b32 v8, 0xff7fffff")
    for r in range(16):
        key = 8*(r//4) + r % 4
        o(f"  v_cmp_gt_i32 vcc, {key}, v7\n  s_nop 1\n  v_cndmask_b32 v{SX+r}, v{SX+r}, v8, vcc")
    o(f"  v_max3_f32 v9, v{SX}, v{SX+1}, v{SX+2}")
    for r in range(3, 15, 2):
        o(f"  v_max3_f32 v9, v9, v{SX+r}, v{SX+r+1}")
    o(f"  v_max3_f32 v9, v9, v{SX+15}, v{SM}")
    o(f"  v_max3_f32 v9, v9, v{SM+1}, v{SM+2}")
    o(f"  v_max_f32 v9, v9, v{SM+3}")
    o("  v_mov_b32 v10, v9\n  s_nop 1\n  v_permlane32_swap_b32 v9, v10\n  v_max_f32 v9, v9, v10")
    o("  s_mov_b32 s22, 0x3e0293ee\n  v_mul_f32 v9, s22, v9")
    regs = [SX+r for r in range(16)] + [SM+r for r in range(4)]
    for r in regs: o(f"  v_fma_f32 v{r}, v{r}, s22, -v9")
    for r in regs: o(f"  v_exp_f32 v{r}, v{r}")
    o(f"  s_nop 0\n  v_add_f32 v10, v{regs[0]}, v{regs[1]}")
    for r in regs[2:]: o(f"  v_add_f32 v10, v10, v{r}")
    o("  v_mov_b32 v11, v10\n  s_nop 1\n  v_permlane32_swap_b32 v10, v11\n  v_add_f32 v10, v10, v11\n  v_rcp_f32 v10, v10")
    PX, PM = Q, Q+8
    pack_piece(o, PX, SX, 0); pack_piece(o, PX+4, SX, 1)
    o(f"  v_cvt_pk_bf16_f32 v{PM}, v{SM}, v{SM+1}\n  v_cvt_pk_bf16_f32 v{PM+1}, v{SM+2}, v{SM+3}")
    o("  s_waitcnt vmcnt(0)\n  s_nop 1")
    for half in range(2):
        for b in range(4):
            o(f"  v_mfma_f32_32x32x8_bf16 {v(OA+16*b,16)}, {v(VMr+4*b+2*half,2)}, {v(PM,2)}, {'0' if half == 0 else v(OA+16*b,16)}")
    nop(o, 8)
    for q in range(2):
        for b in range(4):
            o(f"  v_mfma_f32_32x32x16_bf16 {v(OA+16*b,16)}, {v(V+8*b+4*q,4)}, {v(PX+4*q,4)}, {v(OA+16*b,16)}")
    nop(o, 16)
    o(f"""  s_mul_i32 s22, s20, {128*2048}
  s_lshl_b32 s23, s21, 13                   ; head*4*2048
  s_add_u32 s22, s22, s23
  s_add_u32 s22, s22, {OBUF}""")
    n = 0
    for b in range(4):
        for r in range(16): o(f"  v_mul_f32 v{OA+16*b+r}, v10, v{OA+16*b+r}")
        o(f"  s_add_u32 s23, s22, {b*2048}")
        for q in range(2):
            d = K + 4*(n % 8); n += 1
            pack_piece(o, d, OA+16*b, q)
            o(f"  buffer_store_dwordx4 {v(d,4)}, v0, {WS}, s23 offen offset:{1024*q} {stf}")

def stage_ce(o, which, stf):
    WS = f"s[{sWS}:{sWS+3}]"
    if which == 'C': KT, NKB, Abase, PW, wsz, part = 8, 128, OBUF, P_WO, 4718592, PART
    else:            KT, NKB, Abase, PW, wsz, part = 9, 144, ACT, P_W2, 5308416, PART2
    g = Gemm(1, 2, KT, True, 1152, NKB*2048)
    g.setup(o)
    srd(o, sB1, PW, wsz)
    o(f"""  s_mul_i32 s{sBo1}, s22, {KT*64*1152}
  s_lshl_b32 s{sT[0]}, s21, 7
  s_add_u32 s{sBo1}, s{sBo1}, s{sT[0]}
  s_mul_i32 s{sT[0]}, s{sWv}, {16*1152}
  s_add_u32 s{sBo1}, s{sBo1}, s{sT[0]}
  s_lshl_b32 s{sT[7]}, s{sWv}, 11
  s_lshl_b32 s24, s20, 2
  s_add_u32 s24, s24, s{sWv}
  s_mul_i32 s{sAo}, s24, {NKB*2048}
  s_mul_i32 s{sT[0]}, s22, {KT*4096}
  s_add_u32 s{sAo}, s{sAo}, s{sT[0]}
  s_add_u32 s{sAo}, s{sAo}, {Abase}""")
    g.run(o)
    o(f"""  s_lshl_b32 s{sT[0]}, s22, 6
  s_add_u32 s{sT[0]}, s{sT[0]}, s24
  s_mul_i32 s{sT[0]}, s{sT[0]}, 18
  s_lshl_b32 s{sT[1]}, s21, 1
  s_add_u32 s{sT[0]}, s{sT[0]}, s{sT[1]}
  s_lshl_b32 s{sT[0]}, s{sT[0]}, 12
  s_add_u32 s{sT[0]}, s{sT[0]}, {part}""")
    for nb in range(2):
        o(f"  s_add_u32 s{sT[1]}, s{sT[0]}, {nb*4096}")
        for r4 in range(4):
            o(f"  buffer_store_dwordx4 {v(g.acc(0,nb)+4*r4,4)}, v0, {WS}, s{sT[1]} offen offset:{1024*r4} {stf}")

def reduce_parts(o, part, resbase, ldf):
    WS = f"s[{sWS}:{sWS+3}]"
    F, Tm, RES = 64, 160, 16
    o(f"""  s_mul_i32 s{sT[3]}, s20, {18*2048}
  s_lshl_b32 s{sT[4]}, s{sWv}, 11
  s_add_u32 s{sT[3]}, s{sT[3]}, s{sT[4]}
  s_cmp_lt_u32 s{sWv}, 2
  s_cselect_b32 s{sT[2]}, 0, 0x80000000
  v_or_b32 v6, s{sT[2]}, v0""")
    for i in range(5):
        vo = 0 if i < 4 else 6
        o(f"  s_add_u32 s{sT[4]}, s{sT[3]}, {resbase + i*4*2048}")
        o(f"  buffer_load_dwordx4 {v(RES+8*i,4)}, v{vo}, {WS}, s{sT[4]} offen {ldf}")
        o(f"  buffer_load_dwordx4 {v(RES+8*i+4,4)}, v{vo}, {WS}, s{sT[4]} offen offset:1024 {ldf}")
    o(f"""  s_mul_i32 s{sT[5]}, s20, {18*4096}
  s_lshl_b32 s{sT[4]}, s{sWv}, 12
  s_add_u32 s{sT[5]}, s{sT[5]}, s{sT[4]}
  s_add_u32 s{sT[5]}, s{sT[5]}, {part}""")
    for i in range(5):
        vo = 0 if i < 4 else 6
        for sp in range(8):
            o(f"  s_add_u32 s{sT[4]}, s{sT[5]}, {sp*64*18*4096 + i*4*4096}")
            dst = F + 16*i if sp == 0 else Tm + 16*((sp-1) % 4)
            for r4 in range(4):
                o(f"  buffer_load_dwordx4 {v(dst+4*r4,4)}, v{vo}, {WS}, s{sT[4]} offen offset:{1024*r4} {ldf}")
            if sp == 4 or sp == 7:
                o("  s_waitcnt vmcnt(0)")
                lo = 1 if sp == 4 else 5
                for s2 in range(lo, sp+1):
                    src = Tm + 16*((s2-1) % 4)
                    for r in range(0, 16, 2):
                        o(f"  v_pk_add_f32 {v(F+16*i+r,2)}, {v(F+16*i+r,2)}, {v(src+r,2)}")
    for i in range(5):
        for q in range(2):
            for half in range(2):
                for k in range(2):
                    src = RES + 8*i + 4*q + 2*half + k
                    d = F + 16*i + 4*(q + 2*half) + 2*k
                    o(f"  v_lshlrev_b32 v8, 16, v{src}\n  v_and_b32 v9, 0xffff0000, v{src}")
                    o(f"  v_add_f32 v{d}, v{d}, v8\n  v_add_f32 v{d+1}, v{d+1}, v9")

def stage_ln2(o, stf, ldf):
    WS = f"s[{sWS}:{sWS+3}]"
    o("  v_lshlrev_b32 v0, 4, v0")
    reduce_parts(o, PART, XF, ldf)
    R0 = 16
    for i in range(5):
        pack_piece(o, R0+8*i, 64+16*i, 0); pack_piece(o, R0+8*i+4, 64+16*i, 1)
    for i in range(5):
        vo = 0 if i < 4 else 6
        o(f"  s_add_u32 s{sT[4]}, s{sT[3]}, {HBUF + i*4*2048}")
        o(f"  buffer_store_dwordx4 {v(R0+8*i,4)}, v{vo}, {WS}, s{sT[4]} offen {stf}")
        o(f"  buffer_store_dwordx4 {v(R0+8*i+4,4)}, v{vo}, {WS}, s{sT[4]} offen offset:1024 {stf}")
    o("  s_nop 1")
    ln_core(o, R0, 40, HN, sT[3], 0, 6, stf)

def stage_f(o, ldf):
    o("  v_lshlrev_b32 v0, 4, v0")
    reduce_parts(o, PART2, HBUF, ldf)
    srd(o, sB1, P_OUT, 2048*576*2)
    o(f"""  v_bfe_u32 v1, v0, 4, 5              ; token
  v_lshrrev_b32 v2, 9, v0             ; hi
  v_mul_u32_u24 v3, 1152, v1
  v_lshl_add_u32 v3, v2, 4, v3
  v_or_b32 v4, s{sT[2]}, v3
  s_mul_i32 s{sT[0]}, s20, {32*1152}
  s_lshl_b32 s{sT[1]}, s{sWv}, 6
  s_add_u32 s{sT[0]}, s{sT[0]}, s{sT[1]}""")
    for i in range(5):
        F = 64 + 16*i
        D = 16 + 8*i
        for q in range(4):
            o(f"  v_cvt_pk_bf16_f32 v{D+2*q}, v{F+4*q}, v{F+4*q+1}\n  v_cvt_pk_bf16_f32 v{D+2*q+1}, v{F+4*q+2}, v{F+4*q+3}")
        o("  s_nop 1")
        for j in range(2):
            o(f"  v_permlane32_swap_b32 v{D+4*j}, v{D+4*j+2}\n  v_permlane32_swap_b32 v{D+4*j+1}, v{D+4*j+3}")
        vo = 3 if i < 4 else 4
        for j in range(2):
            o(f"  buffer_store_dwordx4 {v(D+4*j,4)}, v{vo}, s[{sB1}:{sB1+3}], s{sT[0]} offen offset:{256*i + 32*j}")

def stage_d(o, stf):
    WS = f"s[{sWS}:{sWS+3}]"
    g = Gemm(1, 4, 9, True, 9216, 18*2048, dual=True)
    g.setup(o)
    srd(o, sB1, P_W1, 5308416)
    srd(o, sB2, P_W3, 5308416)
    o(f"""  s_lshl_b32 s{sBo1}, s21, 7
  s_mul_i32 s{sT[0]}, s{sWv}, {16*9216}
  s_add_u32 s{sBo1}, s{sBo1}, s{sT[0]}
  s_mov_b32 s{sBo2}, s{sBo1}
  s_lshl_b32 s{sT[7]}, s{sWv}, 11
  s_lshl_b32 s24, s20, 2
  s_add_u32 s24, s24, s{sWv}
  s_mul_i32 s{sAo}, s24, {18*2048}
  s_add_u32 s{sAo}, s{sAo}, {HN}""")
    g.run(o)
    o(f"""  s_mul_i32 s{sT[0]}, s24, {144*2048}
  s_lshl_b32 s{sT[1]}, s21, 12
  s_add_u32 s{sT[0]}, s{sT[0]}, s{sT[1]}
  s_add_u32 s{sT[0]}, s{sT[0]}, {ACT}
  s_mov_b32 s{sT[2]}, 0xbfb8aa3b           ; -log2(e)""")
    Tm = g.vFree
    for nb in range(2):
        G_, U_ = g.acc(0, nb), g.acc(0, nb+2)
        for r in range(16):
            o(f"  v_mul_f32 v{Tm+r}, s{sT[2]}, v{G_+r}")
        for r in range(16):
            o(f"  v_exp_f32 v{Tm+r}, v{Tm+r}")
        for r in range(16):
            o(f"  v_add_f32 v{Tm+r}, 1.0, v{Tm+r}")
        for r in range(16):
            o(f"  v_rcp_f32 v{Tm+r}, v{Tm+r}")
        for r in range(16):
            o(f"  v_mul_f32 v{G_+r}, v{G_+r}, v{U_+r}")
        for r in range(16):
            o(f"  v_mul_f32 v{G_+r}, v{G_+r}, v{Tm+r}")
        for q in range(2):
            d = Tm + 16 + 4*q
            pack_piece(o, d, G_, q)
            o(f"  buffer_store_dwordx4 {v(d,4)}, v0, {WS}, s{sT[0]} offen offset:{nb*2048 + q*1024} {stf}")


def stage_s(o, stf):
    WS = f"s[{sWS}:{sWS+3}]"
    o("  v_lshlrev_b32 v0, 4, v0")
    for r in range(4): o(f"  v_mov_b32 v{4+r}, -1")
    o(f"""  s_mul_i32 s{sT[0]}, s20, {H1_SLOT}
  s_lshl_b32 s{sT[1]}, s{sWv}, 10
  s_add_u32 s{sT[0]}, s{sT[0]}, s{sT[1]}
  s_add_u32 s{sT[0]}, s{sT[0]}, {H1}
  s_mov_b32 s{sT[2]}, 0""")
    lp = o.label("sf")
    nblk = H1_SLOT // 1024
    assert H1_SLOT % 4096 == 0
    o(f"""{lp}:
  buffer_store_dwordx4 v[4:7], v0, {WS}, s{sT[0]} offen {stf}
  s_add_u32 s{sT[0]}, s{sT[0]}, 4096
  s_add_u32 s{sT[2]}, s{sT[2]}, 1
  s_cmp_lt_u32 s{sT[2]}, {nblk // 4}
  s_cbranch_scc1 {lp}""")
    o(f"""  s_add_u32 s{sT[0]}, s20, 1
  s_mul_i32 s{sT[0]}, s{sT[0]}, {H2_SLOT}
  s_lshl_b32 s{sT[1]}, s{sWv}, 10
  s_add_u32 s{sT[0]}, s{sT[0]}, s{sT[1]}
  s_add_u32 s{sT[0]}, s{sT[0]}, {H2}
  buffer_store_dwordx4 v[4:7], v0, {WS}, s{sT[0]} offen {stf}
  s_add_u32 s{sT[0]}, s{sT[0]}, 4096
  buffer_store_dwordx4 v[4:7], v0, {WS}, s{sT[0]} offen {stf}
  s_mul_i32 s{sT[0]}, s20, {H2_SLOT}
  s_add_u32 s{sT[0]}, s{sT[0]}, {H2 + H2_SLOT + 8192}
  buffer_store_dwordx4 v[4:7], v0, {WS}, s{sT[0]} offen {stf}""")

def reduce8(o, part, resbase):
    WS = f"s[{sWS}:{sWS+3}]"
    F, T0 = 16, 40
    o(f"""  v_and_b32 v1, 7, v0                 ; token8
  v_bfe_u32 v2, v0, 3, 1              ; hi
  v_lshrrev_b32 v3, 4, v0             ; r4
  s_lshl_b32 s{sT[0]}, s21, 3
  v_add_u32 v4, s{sT[0]}, v1
  v_lshl_add_u32 v4, v2, 5, v4
  v_lshlrev_b32 v5, 4, v4             ; *16
  v_lshl_add_u32 v6, v3, 10, v5
  v_and_b32 v7, 1, v3
  v_lshl_add_u32 v7, v7, 10, v5
  v_lshrrev_b32 v8, 1, v3
  v_lshl_add_u32 v7, v8, 3, v7
  s_cmp_lt_u32 s{sWv}, 2
  s_cselect_b32 s{sT[2]}, 0, 0x80000000
  v_or_b32 v9, s{sT[2]}, v6
  v_or_b32 v10, s{sT[2]}, v7
  s_mul_i32 s{sT[3]}, s20, {18*2048}
  s_lshl_b32 s{sT[4]}, s{sWv}, 11
  s_add_u32 s{sT[3]}, s{sT[3]}, s{sT[4]}
  s_mul_i32 s{sT[5]}, s20, {18*4096}
  s_lshl_b32 s{sT[4]}, s{sWv}, 12
  s_add_u32 s{sT[5]}, s{sT[5]}, s{sT[4]}
  s_add_u32 s{sT[5]}, s{sT[5]}, {part}""")
    for i in range(5):
        o(f"  s_add_u32 s{sT[4]}, s{sT[3]}, {resbase + i*4*2048}")
        o(f"  buffer_load_dwordx2 {v(200+2*i,2)}, v{7 if i < 4 else 10}, {WS}, s{sT[4]} offen sc1")
    for i in range(5):
        for sp in range(8):
            o(f"  s_add_u32 s{sT[4]}, s{sT[5]}, {sp*64*18*4096 + i*4*4096}")
            o(f"  buffer_load_dwordx4 {v(T0+(8*i+sp)*4,4)}, v{6 if i < 4 else 9}, {WS}, s{sT[4]} offen sc1")
    for i in range(5):
        o(f"  s_waitcnt vmcnt({8*(4-i)})")
        if i == 0 and HOOK:
            o("  s_barrier"); HOOK(o)
        b = T0 + 32*i
        for k in range(2):
            o(f"  v_pk_add_f32 {v(b+2*k,2)}, {v(b+2*k,2)}, {v(b+4+2*k,2)}")
            o(f"  v_pk_add_f32 {v(b+8+2*k,2)}, {v(b+8+2*k,2)}, {v(b+12+2*k,2)}")
            o(f"  v_pk_add_f32 {v(b+16+2*k,2)}, {v(b+16+2*k,2)}, {v(b+20+2*k,2)}")
            o(f"  v_pk_add_f32 {v(b+24+2*k,2)}, {v(b+24+2*k,2)}, {v(b+28+2*k,2)}")
            o(f"  v_pk_add_f32 {v(b+2*k,2)}, {v(b+2*k,2)}, {v(b+8+2*k,2)}")
            o(f"  v_pk_add_f32 {v(b+16+2*k,2)}, {v(b+16+2*k,2)}, {v(b+24+2*k,2)}")
            o(f"  v_pk_add_f32 {v(b+2*k,2)}, {v(b+2*k,2)}, {v(b+16+2*k,2)}")
        for k in range(2):
            src = 200 + 2*i + k
            o(f"  v_lshlrev_b32 v12, 16, v{src}\n  v_and_b32 v13, 0xffff0000, v{src}")
            o(f"  v_add_f32 v{F+4*i+2*k}, v{b+2*k}, v12\n  v_add_f32 v{F+4*i+2*k+1}, v{b+2*k+1}, v13")

def xred8(o, reg, slot):
    o(f"  s_nop 1\n  v_add_f32_dpp v{reg}, v{reg}, v{reg} row_ror:8 row_mask:0xf bank_mask:0xf")
    o(f"  v_mov_b32 v12, v{reg}\n  s_nop 1\n  v_permlane16_swap_b32 v{reg}, v12\n  v_add_f32 v{reg}, v{reg}, v12")
    o(f"  v_mov_b32 v12, v{reg}\n  s_nop 1\n  v_permlane32_swap_b32 v{reg}, v12\n  v_add_f32 v{reg}, v{reg}, v12")
    o(f"  v_lshlrev_b32 v12, 2, v1\n  s_lshl_b32 s{sT[6]}, s{sWv}, 5\n  v_add_u32 v13, s{sT[6]}, v12")
    o(f"  ds_write_b32 v13, v{reg} offset:{slot*128}\n  s_waitcnt lgkmcnt(0)\n  s_barrier")
    for w in range(4): o(f"  ds_read_b32 v{36+w}, v12 offset:{slot*128 + w*32}")
    o(f"  s_waitcnt lgkmcnt(0)\n  v_add_f32 v36, v36, v37\n  v_add_f32 v38, v38, v39\n  v_add_f32 v{reg}, v36, v38")

def stage_ln2b(o, stf):
    WS = f"s[{sWS}:{sWS+3}]"
    F = 16
    reduce8(o, PART, XF)
    H = 200
    for i in range(5):
        o(f"  v_cvt_pk_bf16_f32 v{H+2*i}, v{F+4*i}, v{F+4*i+1}\n  v_cvt_pk_bf16_f32 v{H+2*i+1}, v{F+4*i+2}, v{F+4*i+3}")
    for i in range(5):
        o(f"  s_add_u32 s{sT[4]}, s{sT[3]}, {HBUF + i*4*2048}")
        o(f"  buffer_store_dwordx2 {v(H+2*i,2)}, v{7 if i < 4 else 10}, {WS}, s{sT[4]} offen {stf}")
    for i in range(5):
        for k in range(2):
            o(f"  v_lshlrev_b32 v{F+4*i+2*k}, 16, v{H+2*i+k}\n  v_and_b32 v{F+4*i+2*k+1}, 0xffff0000, v{H+2*i+k}")
    o(f"  v_add_f32 v14, v{F}, v{F+1}")
    for r in range(2, 20): o(f"  v_add_f32 v14, v14, v{F+r}")
    xred8(o, 14, 0)
    o("  v_mul_f32 v14, 0x3ae38e39, v14")
    for r in range(20): o(f"  v_sub_f32 v{F+r}, v{F+r}, v14")
    o(f"  s_cmp_lt_u32 s{sWv}, 2\n  s_cselect_b32 s{sT[6]}, 1.0, 0")
    for r in range(16, 20): o(f"  v_mul_f32 v{F+r}, s{sT[6]}, v{F+r}")
    o(f"  v_mul_f32 v15, v{F}, v{F}")
    for r in range(1, 20): o(f"  v_fmac_f32 v15, v{F+r}, v{F+r}")
    xred8(o, 15, 1)
    o("  v_mov_b32 v12, 0x3727c5ac\n  v_fmac_f32 v12, 0x3ae38e39, v15\n  v_rsq_f32 v15, v12\n  s_nop 0")
    for r in range(20): o(f"  v_mul_f32 v{F+r}, v15, v{F+r}")
    H2_ = 210
    for i in range(5):
        o(f"  v_cvt_pk_bf16_f32 v{H2_+2*i}, v{F+4*i}, v{F+4*i+1}\n  v_cvt_pk_bf16_f32 v{H2_+2*i+1}, v{F+4*i+2}, v{F+4*i+3}")
    for i in range(5):
        o(f"  s_add_u32 s{sT[4]}, s{sT[3]}, {HN + i*4*2048}")
        o(f"  buffer_store_dwordx2 {v(H2_+2*i,2)}, v{7 if i < 4 else 10}, {WS}, s{sT[4]} offen {stf}")

def stage_fb(o):
    F = 16
    reduce8(o, PART2, HBUF)
    srd(o, sB1, P_OUT, 2048*576*2)
    o(f"""  s_lshl_b32 s{sT[0]}, s20, 5
  s_lshl_b32 s{sT[1]}, s21, 3
  s_add_u32 s{sT[0]}, s{sT[0]}, s{sT[1]}
  s_mul_i32 s{sT[0]}, s{sT[0]}, 1152
  s_lshl_b32 s{sT[1]}, s{sWv}, 6
  s_add_u32 s{sT[0]}, s{sT[0]}, s{sT[1]}
  v_mul_u32_u24 v11, 1152, v1
  v_lshl_add_u32 v11, v3, 4, v11
  v_lshl_add_u32 v11, v2, 3, v11
  v_or_b32 v12, s{sT[2]}, v11""")
    H = 200
    for i in range(5):
        o(f"  v_cvt_pk_bf16_f32 v{H+2*i}, v{F+4*i}, v{F+4*i+1}\n  v_cvt_pk_bf16_f32 v{H+2*i+1}, v{F+4*i+2}, v{F+4*i+3}")
    for i in range(5):
        o(f"  buffer_store_dwordx2 {v(H+2*i,2)}, v{11 if i < 4 else 12}, s[{sB1}:{sB1+3}], s{sT[0]} offen offset:{256*i}")

NODMA = False
HOOK = None
class Gemm2(Gemm):
    def __init__(self, NB, KT, NC, NSLOT, swap, ldb, colstep, dual=False, resident=True, PA=3):
        super().__init__(1, NB, KT, swap, ldb, 0, PA, dual)
        self.NC, self.NSLOT, self.colstep, self.resident = NC, NSLOT, colstep, resident
    def areg2(self, t, ks):
        return (t*4 + ks)*4 if self.resident else ((t % (self.PA+1))*4 + ks)*4
    def issueB(self, o, vm, n):
        j, t = divmod(n, self.KT)
        slot = n % self.NSLOT
        for sub in range(self.NS):
            srdreg = sB2 if (self.dual and sub == 1) else sB1
            sbo = sBo2 if (self.dual and sub == 1) else sBo1
            colb = 0 if self.dual else sub*128
            for jj in range(2):
                lds = slot*self.NS*8192 + sub*8192 + jj*1024
                o(f"  s_add_u32 m0, s{sT[7]}, {lds}")
                o(f"  s_add_u32 s{sT[0]}, s{sbo}, {(64*t + 8*jj)*self.ldb + colb + j*self.colstep}")
                o(f"  buffer_load_dwordx4 v{self.vD}, s[{srdreg}:{srdreg+3}], s{sT[0]} offen lds")
                vm.issue(f"B{n}")
    def issueA(self, o, vm, t):
        o(f"  s_add_u32 s{sT[0]}, s{sAo}, {4096*t}")
        for ks in range(4):
            o(f"  buffer_load_dwordx4 {a(self.areg2(t,ks),4)}, v{self.vA}, s[{sWS}:{sWS+3}], s{sT[0]} offen offset:{1024*ks} {LDF}")
            vm.issue(f"A{t}")
    def readB(self, o, lg, n, ks, buf):
        kb, q = ks // 2, ks % 2
        slot = n % self.NSLOT
        for nb in range(self.NB):
            sub, par = nb // 2, nb % 2
            for z in range(2):
                off = slot*self.NS*8192 + sub*8192 + (32*kb + 8*q + 16*z)*128
                b, imm = off // 65536, off % 65536
                o(f"  ds_read_b64_tr_b16 {v(self.bfrag(buf,nb)+2*z,2)}, v{self.vT + 2*b + par} offset:{imm}")
                lg.issue(f"R{n}_{ks}")
    def run2(self, o, epilogue):
        NB, KT, NC, NS_ = self.NB, self.KT, self.NC, self.NSLOT
        NE = NC*KT
        vm = Cnt(o, "vm", 63); lg = Cnt(o, "lgkm", 15)
        nb_per = self.NS*2
        st = dict(nB=0, nA=0)
        def B_ops(n):
            j_, t = divmod(n, KT); slot = n % NS_
            ops = []
            for sub in range(self.NS):
                srdreg = sB2 if (self.dual and sub == 1) else sB1
                sbo = sBo2 if (self.dual and sub == 1) else sBo1
                colb = 0 if self.dual else sub*128
                for jj in range(2):
                    lds = slot*self.NS*8192 + sub*8192 + jj*1024
                    def f(lds=lds, sbo=sbo, srdreg=srdreg, off=(64*t + 8*jj)*self.ldb + colb + j_*self.colstep, n=n):
                        o(f"  s_add_u32 m0, s{sT[7]}, {lds}")
                        o(f"  s_add_u32 s{sT[0]}, s{sbo}, {off}")
                        if not (NODMA and n >= 4): o(f"  buffer_load_dwordx4 v{self.vD}, s[{srdreg}:{srdreg+3}], s{sT[0]} offen lds")
                        else: o("  buffer_load_dword v250, v0, s[8:11], 0 offen")
                        vm.issue(f"B{n}")
                    ops.append(f)
            return ops
        def A_ops(t):
            ops = []
            for ks in range(4):
                def f(t=t, ks=ks):
                    o(f"  s_add_u32 s{sT[0]}, s{sAo}, {4096*t}")
                    o(f"  buffer_load_dwordx4 {a(self.areg2(t,ks),4)}, v{self.vA}, s[{sWS}:{sWS+3}], s{sT[0]} offen offset:{1024*ks} {LDF}")
                    vm.issue(f"A{t}")
                ops.append(f)
            return ops
        def R_ops(n, ks, buf):
            kb, q = ks // 2, ks % 2; slot = n % NS_
            ops = []
            for nb in range(NB):
                sub, par = nb // 2, nb % 2
                for z in range(2):
                    off = slot*self.NS*8192 + sub*8192 + (32*kb + 8*q + 16*z)*128
                    b, imm = off // 65536, off % 65536
                    def f(nb=nb, z=z, b=b, imm=imm, par=par):
                        o(f"  ds_read_b64_tr_b16 {v(self.bfrag(buf,nb)+2*z,2)}, v{self.vT + 2*b + par} offset:{imm}")
                        lg.issue(f"R{n}_{ks}_{nb}")
                    ops.append(f)
            return ops
        init = min(4, KT)
        for i in range(init):
            for f in B_ops(st['nB']): f()
            st['nB'] += 1
            for f in A_ops(st['nA']): f()
            st['nA'] += 1
        vm.wait("A0")
        o("  s_barrier")
        if HOOK: HOOK(o)
        for f in R_ops(0, 0, 0): f()
        step = 0
        memq = []
        for n in range(NE):
            j, t = divmod(n, KT)
            for ks in range(4):
                buf = step % 2
                nn, nks = (n, ks+1) if ks < 3 else (n+1, 0)
                if ks == 3 and n+1 < NE:
                    need = {f"B{n+1}"} | ({f"A{t+1}"} if (j == 0 and t+1 < KT) else set())
                    while any(tg in need for tg, _ in memq): memq.pop(0)[1]()
                    vm.wait(f"B{n+1}")
                    if j == 0 and t+1 < KT: vm.wait(f"A{t+1}")
                    o("  s_barrier")
                rops = R_ops(nn, nks, 1-buf) if nn < NE else []
                per = -(-len(rops) // NB)
                for nb in range(NB):
                    lg.wait(f"R{n}_{ks}_{nb}")
                    a_, b_ = a(self.areg2(t,ks),4), v(self.bfrag(buf,nb),4)
                    c = v(self.acc(0,nb),16)
                    x, y = (b_, a_) if self.swap else (a_, b_)
                    cin = "0" if (t == 0 and ks == 0) else c
                    o(f"  v_mfma_f32_32x32x16_bf16 {c}, {x}, {y}, {cin}")
                    for f in rops[nb*per:(nb+1)*per]: f()
                    if nb == NB-1 or nb == NB//2 - 1:
                        if memq: memq.pop(0)[1]()
                if ks == 3 and n+1 < NE:
                    assert not memq or True
                    k = 0
                    pend = len(memq)
                    while st['nA'] < KT and k < 2 and len(vm.q) + pend + 4 <= 58 and (self.resident or st['nA'] <= t + self.PA + 1):
                        memq += [(f"A{st['nA']}", f) for f in A_ops(st['nA'])]; st['nA'] += 1; k += 1; pend += 4
                    k = 0
                    while st['nB'] < NE and st['nB'] <= n - 1 + NS_ and k < 2 and len(vm.q) + pend + nb_per <= 58:
                        memq += [(f"B{st['nB']}", f) for f in B_ops(st['nB'])]; st['nB'] += 1; k += 1; pend += nb_per
                step += 1
            if t == KT-1:
                nop(o, 12)
                epilogue(j, vm)
        assert not memq
        assert st['nB'] >= NE

def stage_a2(o, stf, NC=4):
    WS = f"s[{sWS}:{sWS+3}]"
    lab_v, lab_e = o.label("a2v"), o.label("a2e")
    g = Gemm2(4, 9, NC, 9, True, 8192, 256)
    g.setup(o)
    o(f"""  s_cmp_eq_u32 s21, 0
  s_cselect_b32 s{sT[0]}, s{P_WK}, s{P_WQ}
  s_cselect_b32 s{sT[1]}, s{P_WK+1}, s{P_WQ+1}
  s_cmp_eq_u32 s21, 1
  s_cselect_b32 s{sT[0]}, s{P_WV}, s{sT[0]}
  s_cselect_b32 s{sT[1]}, s{P_WV+1}, s{sT[1]}""")
    srd(o, sB1, sT[0], 4718592)
    o(f"""  s_mul_i32 s23, s22, {NC}
  s_lshl_b32 s{sBo1}, s23, 8
  s_mul_i32 s{sT[0]}, s{sWv}, {16*8192}
  s_add_u32 s{sBo1}, s{sBo1}, s{sT[0]}
  s_lshl_b32 s{sT[7]}, s{sWv}, 11
  s_lshl_b32 s24, s20, 2
  s_add_u32 s24, s24, s{sWv}
  s_mul_i32 s{sAo}, s24, {18*2048}
  s_add_u32 s{sAo}, s{sAo}, {XN}
  s_cmp_eq_u32 s21, 0
  s_cselect_b32 s{sT[6]}, {KBUF}, {QBUF}
  s_cmp_eq_u32 s21, 1
  s_cselect_b32 s{sT[6]}, {VBUF}, s{sT[6]}
  s_lshl_b32 s{sT[5]}, s24, 5
  s_add_u32 s{sT[5]}, s{sT[5]}, s23
  s_lshl_b32 s{sT[5]}, s{sT[5]}, 13
  s_add_u32 s{sT[6]}, s{sT[6]}, s{sT[5]}""")
    vo = g.vFree
    kv_store_off(o, vo, 0)
    P = vo + 2
    def epi(gg):
        def f(j, vm):
            n = 0
            for nb in range(4):
                o(f"  s_add_u32 s{sT[1]}, s{sT[6]}, {j*8192 + nb*2048}")
                for q in range(2):
                    d = P + 4*(n % 4); n += 1
                    pack_piece(o, d, gg.acc(0, nb), q)
                    o(f"  buffer_store_dwordx4 {v(d,4)}, v{vo}, {WS}, s{sT[1]} offen offset:{512*q} {stf}")
                    vm.issue("S")
        return f
    o(f"  s_cmp_eq_u32 s21, 1\n  s_cbranch_scc1 {lab_v}")
    g.run2(o, epi(g))
    o(f"  s_branch {lab_e}")
    o.put(lab_v)
    g2 = Gemm2(4, 9, NC, 9, False, 8192, 256)
    g2.run2(o, epi(g2))
    o.put(lab_e)

def stage_d2(o, stf, NC=3):
    WS = f"s[{sWS}:{sWS+3}]"
    g = Gemm2(4, 9, NC, 9, True, 9216, 128, dual=True)
    g.setup(o)
    srd(o, sB1, P_W1, 5308416)
    srd(o, sB2, P_W3, 5308416)
    o(f"""  s_mul_i32 s23, s21, {NC}
  s_lshl_b32 s{sBo1}, s23, 7
  s_mul_i32 s{sT[0]}, s{sWv}, {16*9216}
  s_add_u32 s{sBo1}, s{sBo1}, s{sT[0]}
  s_mov_b32 s{sBo2}, s{sBo1}
  s_lshl_b32 s{sT[7]}, s{sWv}, 11
  s_lshl_b32 s24, s20, 2
  s_add_u32 s24, s24, s{sWv}
  s_mul_i32 s{sAo}, s24, {18*2048}
  s_add_u32 s{sAo}, s{sAo}, {HN}
  s_mul_i32 s{sT[6]}, s24, {144*2048}
  s_lshl_b32 s{sT[5]}, s23, 12
  s_add_u32 s{sT[6]}, s{sT[6]}, s{sT[5]}
  s_add_u32 s{sT[6]}, s{sT[6]}, {ACT}
  s_mov_b32 s{sT[2]}, 0xbfb8aa3b           ; -log2(e)""")
    Tm = g.vFree
    def epi(j, vm):
        o(f"  s_add_u32 s{sT[1]}, s{sT[6]}, {j*4096}")
        for nb in range(2):
            G_, U_ = g.acc(0, nb), g.acc(0, nb+2)
            for r in range(16): o(f"  v_mul_f32 v{Tm+r}, s{sT[2]}, v{G_+r}")
            for r in range(16): o(f"  v_exp_f32 v{Tm+r}, v{Tm+r}")
            for r in range(16): o(f"  v_add_f32 v{Tm+r}, 1.0, v{Tm+r}")
            for r in range(16): o(f"  v_rcp_f32 v{Tm+r}, v{Tm+r}")
            for r in range(16): o(f"  v_mul_f32 v{G_+r}, v{G_+r}, v{U_+r}")
            for r in range(16): o(f"  v_mul_f32 v{G_+r}, v{G_+r}, v{Tm+r}")
            for q in range(2):
                d = Tm + 16 + 4*(2*nb+q)
                pack_piece(o, d, G_, q)
                o(f"  buffer_store_dwordx4 {v(d,4)}, v0, {WS}, s{sT[1]} offen offset:{nb*2048 + q*1024} {stf}")
                vm.issue("S")
    g.run2(o, epi)

def stage_ce2(o, which, stf, NB=6):
    WS = f"s[{sWS}:{sWS+3}]"
    if which == 'C': KT, NKB, Abase, PW, wsz, part = 8, 128, OBUF, P_WO, 4718592, PART
    else:            KT, NKB, Abase, PW, wsz, part = 9, 144, ACT, P_W2, 5308416, PART2
    g = Gemm2(NB, KT, 1, 6 if NB == 6 else KT, True, 1152, 0, resident=True)
    g.setup(o)
    srd(o, sB1, PW, wsz)
    o(f"""  s_mul_i32 s{sBo1}, s22, {KT*64*1152}
  s_mul_i32 s{sT[0]}, s21, {NB*64}
  s_add_u32 s{sBo1}, s{sBo1}, s{sT[0]}
  s_mul_i32 s{sT[0]}, s{sWv}, {16*1152}
  s_add_u32 s{sBo1}, s{sBo1}, s{sT[0]}
  s_lshl_b32 s{sT[7]}, s{sWv}, 11
  s_lshl_b32 s24, s20, 2
  s_add_u32 s24, s24, s{sWv}
  s_mul_i32 s{sAo}, s24, {NKB*2048}
  s_mul_i32 s{sT[0]}, s22, {KT*4096}
  s_add_u32 s{sAo}, s{sAo}, s{sT[0]}
  s_add_u32 s{sAo}, s{sAo}, {Abase}
  s_lshl_b32 s{sT[6]}, s22, 6
  s_add_u32 s{sT[6]}, s{sT[6]}, s24
  s_mul_i32 s{sT[6]}, s{sT[6]}, 18
  s_mul_i32 s{sT[5]}, s21, {NB}
  s_add_u32 s{sT[6]}, s{sT[6]}, s{sT[5]}
  s_lshl_b32 s{sT[6]}, s{sT[6]}, 12
  s_add_u32 s{sT[6]}, s{sT[6]}, {part}""")
    def epi(j, vm):
        for nb in range(NB):
            o(f"  s_add_u32 s{sT[1]}, s{sT[6]}, {nb*4096}")
            for r4 in range(4):
                o(f"  buffer_store_dwordx4 {v(g.acc(0,nb)+4*r4,4)}, v0, {WS}, s{sT[1]} offen offset:{1024*r4} {stf}")
                vm.issue("S")
    g.run2(o, epi)

class Gemm3(Gemm):
    def __init__(self, NB, KT, swap, ldb, dual=False):
        super().__init__(1, NB, KT, swap, ldb, 0, 0, dual)
    def load_B(self, o):
        vm = Cnt(o, "vm", 63)
        for t in range(self.KT):
            for sub in range(self.NS):
                srdreg = sB2 if (self.dual and sub == 1) else sB1
                sbo = sBo2 if (self.dual and sub == 1) else sBo1
                colb = 0 if self.dual else sub*128
                for jj in range(2):
                    lds = t*self.NS*8192 + sub*8192 + jj*1024
                    o(f"  s_add_u32 m0, s{sT[7]}, {lds}")
                    o(f"  s_add_u32 s{sT[0]}, s{sbo}, {(64*t + 8*jj)*self.ldb + colb}")
                    o(f"  buffer_load_dwordx4 v{self.vD}, s[{srdreg}:{srdreg+3}], s{sT[0]} offen lds")
        o("  s_waitcnt vmcnt(0)\n  s_barrier")
    def compute(self, o, prefetch_next=None):
        NB, KT = self.NB, self.KT
        vm = Cnt(o, "vm", 63); lg = Cnt(o, "lgkm", 15)
        for t in range(KT):
            o(f"  s_add_u32 s{sT[0]}, s{sAo}, {4096*t}")
            for ks in range(4):
                o(f"  buffer_load_dwordx4 {a((t*4+ks)*4,4)}, v{self.vA}, s[{sWS}:{sWS+3}], s{sT[0]} offen offset:{1024*ks} {LDF}")
                vm.issue(f"A{t}_{ks}")
        def R_ops(t, ks, buf):
            kb, q = ks // 2, ks % 2
            ops = []
            for nb in range(NB):
                sub, par = nb // 2, nb % 2
                for z in range(2):
                    off = t*self.NS*8192 + sub*8192 + (32*kb + 8*q + 16*z)*128
                    b, imm = off // 65536, off % 65536
                    def f(nb=nb, z=z, b=b, imm=imm, par=par):
                        o(f"  ds_read_b64_tr_b16 {v(self.bfrag(buf,nb)+2*z,2)}, v{self.vT + 2*b + par} offset:{imm}")
                        lg.issue(f"R{t}_{ks}_{nb}")
                    ops.append(f)
            return ops
        for f in R_ops(0, 0, 0): f()
        step = 0
        for t in range(KT):
            for ks in range(4):
                buf = step % 2
                nt, nks = (t, ks+1) if ks < 3 else (t+1, 0)
                rops = R_ops(nt, nks, 1-buf) if nt < KT else []
                per = -(-len(rops) // NB)
                vm.wait(f"A{t}_{ks}")
                for nb in range(NB):
                    lg.wait(f"R{t}_{ks}_{nb}")
                    a_, b_ = a((t*4+ks)*4,4), v(self.bfrag(buf,nb),4)
                    c = v(self.acc(0,nb),16)
                    x, y = (b_, a_) if self.swap else (a_, b_)
                    cin = "0" if step == 0 else c
                    o(f"  v_mfma_f32_32x32x16_bf16 {c}, {x}, {y}, {cin}")
                    for f in rops[nb*per:(nb+1)*per]: f()
                step += 1
        nop(o, 12)

def role_loop(o, name, dep_cnt, dep_target, sig_cnt, CNT, NONE, body, spin, tim=None):
    o(f"  s_mov_b32 s32, 0\n{name}_g:")
    if dep_cnt is not None:
        lp = o.label("rd")
        o(f"""  s_cmp_eq_u32 s{sWv}, 0
  s_cbranch_scc0 {lp}_b
  s_lshl_b32 s25, s32, 7
  s_add_u32 s25, s25, {CNT + 128*dep_cnt}
  v_mov_b32 v250, s25
  s_mov_b32 s24, 0
{lp}:
  buffer_load_dword v251, v250, s[{sWS}:{sWS+3}], 0 offen sc1
  s_waitcnt vmcnt(0)
  v_readfirstlane_b32 s25, v251
  s_cmp_ge_u32 s25, {dep_target}
  s_cbranch_scc1 {lp}_b
  s_add_u32 s24, s24, 1
  s_cmp_lt_u32 s24, {spin}
  s_cbranch_scc1 {lp}
  s_endpgm
{lp}_b:
  s_barrier""")
    if tim is not None: o("  s_memrealtime s[36:37]")
    body()
    o("  s_waitcnt vmcnt(0) lgkmcnt(0)\n  s_barrier")
    lab = o.label("rs")
    o(f"  s_cmp_eq_u32 s{sWv}, 0\n  s_cbranch_scc0 {lab}")
    if sig_cnt is not None:
        o(f"""  s_lshl_b32 s25, s32, 7
  s_add_u32 s25, s25, {CNT + 128*sig_cnt}
  v_mov_b32 v250, s25
  v_mov_b32 v251, 1
  s_mov_b64 exec, 1
  buffer_atomic_add v251, v250, s[{sWS}:{sWS+3}], 0 offen
  s_mov_b64 exec, -1""")
    if tim is not None:
        o(f"""  s_memrealtime s[38:39]
  s_waitcnt lgkmcnt(0)
  v_mov_b32 v248, s36
  v_mov_b32 v249, s38
  s_lshl_b32 s25, s33, 4
  s_add_u32 s25, s25, s32
  s_lshl_b32 s25, s25, 3
  s_add_u32 s25, s25, {tim}
  v_mov_b32 v250, s25
  buffer_store_dwordx2 v[248:249], v250, s[{sWS}:{sWS+3}], 0 offen""")
    o(f"""{lab}:
  s_add_u32 s32, s32, 1
  s_cmp_lt_u32 s32, 16
  s_cbranch_scc1 {name}_g""")

def role_d(o, stf, loopf):
    WS = f"s[{sWS}:{sWS+3}]"
    g = Gemm3(4, 9, True, 9216, dual=True)
    g.setup(o)
    srd(o, sB1, P_W1, 5308416); srd(o, sB2, P_W3, 5308416)
    o(f"""  s_lshl_b32 s{sBo1}, s28, 7
  s_mul_i32 s{sT[0]}, s{sWv}, {16*9216}
  s_add_u32 s{sBo1}, s{sBo1}, s{sT[0]}
  s_mov_b32 s{sBo2}, s{sBo1}
  s_lshl_b32 s{sT[7]}, s{sWv}, 11""")
    g.load_B(o)
    Tm = g.vFree
    def body():
        o(f"""  s_lshl_b32 s29, s32, 2
  s_add_u32 s29, s29, s{sWv}
  s_mul_i32 s{sAo}, s29, {18*2048}
  s_add_u32 s{sAo}, s{sAo}, {HN}
  s_mul_i32 s{sT[6]}, s29, {144*2048}
  s_lshl_b32 s{sT[5]}, s28, 12
  s_add_u32 s{sT[6]}, s{sT[6]}, s{sT[5]}
  s_add_u32 s{sT[6]}, s{sT[6]}, {ACT}
  s_mov_b32 s{sT[2]}, 0xbfb8aa3b""")
        g.compute(o)
        for nb in range(2):
            G_, U_ = g.acc(0, nb), g.acc(0, nb+2)
            for r in range(16): o(f"  v_mul_f32 v{Tm+r}, s{sT[2]}, v{G_+r}")
            for r in range(16): o(f"  v_exp_f32 v{Tm+r}, v{Tm+r}")
            for r in range(16): o(f"  v_add_f32 v{Tm+r}, 1.0, v{Tm+r}")
            for r in range(16): o(f"  v_rcp_f32 v{Tm+r}, v{Tm+r}")
            for r in range(16): o(f"  v_mul_f32 v{G_+r}, v{G_+r}, v{U_+r}")
            for r in range(16): o(f"  v_mul_f32 v{G_+r}, v{G_+r}, v{Tm+r}")
            for q in range(2):
                d = Tm + 16 + 4*(2*nb+q)
                pack_piece(o, d, G_, q)
                o(f"  buffer_store_dwordx4 {v(d,4)}, v0, {WS}, s{sT[6]} offen offset:{nb*2048 + q*1024} {stf}")
    loopf(body)

def role_ce(o, which, NB, stf, loopf):
    WS = f"s[{sWS}:{sWS+3}]"
    if which == 'C': KT, NKB, Abase, PW, wsz, part = 8, 128, OBUF, P_WO, 4718592, PART
    else:            KT, NKB, Abase, PW, wsz, part = 9, 144, ACT, P_W2, 5308416, PART2
    g = Gemm3(NB, KT, True, 1152)
    g.setup(o)
    srd(o, sB1, PW, wsz)
    o(f"""  s_mul_i32 s{sBo1}, s23, {KT*64*1152}
  s_lshl_b32 s{sT[0]}, s28, 6
  s_add_u32 s{sBo1}, s{sBo1}, s{sT[0]}
  s_mul_i32 s{sT[0]}, s{sWv}, {16*1152}
  s_add_u32 s{sBo1}, s{sBo1}, s{sT[0]}
  s_lshl_b32 s{sT[7]}, s{sWv}, 11""")
    g.load_B(o)
    def body():
        o(f"""  s_lshl_b32 s29, s32, 2
  s_add_u32 s29, s29, s{sWv}
  s_mul_i32 s{sAo}, s29, {NKB*2048}
  s_mul_i32 s{sT[0]}, s23, {KT*4096}
  s_add_u32 s{sAo}, s{sAo}, s{sT[0]}
  s_add_u32 s{sAo}, s{sAo}, {Abase}
  s_lshl_b32 s{sT[6]}, s23, 6
  s_add_u32 s{sT[6]}, s{sT[6]}, s29
  s_mul_i32 s{sT[6]}, s{sT[6]}, 18
  s_add_u32 s{sT[6]}, s{sT[6]}, s28
  s_lshl_b32 s{sT[6]}, s{sT[6]}, 12
  s_add_u32 s{sT[6]}, s{sT[6]}, {part}""")
        g.compute(o)
        for nb in range(NB):
            o(f"  s_add_u32 s{sT[1]}, s{sT[6]}, {nb*4096}")
            for r4 in range(4):
                o(f"  buffer_store_dwordx4 {v(g.acc(0,nb)+4*r4,4)}, v0, {WS}, s{sT[1]} offen offset:{1024*r4} {stf}")
    loopf(body)
```

```python
import sys, json
from asmlib import *
import rgen, wgen
from wgen import *
NAME = "sequential_preLN__memory_aug_recurrent_mem_tr__glu_gated_swiglu__prompt"
KN = NAME + "_kernel"
wgen.LDF = "sc1"; rgen.KVF = "sc1"
STF = "sc1"
SPIN = 300000
CNT = FLAGS + 0x4000
C_L1, C_KV, C_Q, C_SI, C_B, C_C, C_L, C_D, C_E = 0, 16, 32, 48, 64, 80, 96, 112, 128
NONE = 0xFFFF
D_T0, D_T1, D_INIT, D_TB, D_WR, D_X, D_QH = 0, 1, 4, 5, 6, 8, 32
NQ = 7
ST_LN1, ST_S, ST_A, ST_B, ST_C, ST_LN2, ST_D, ST_E, ST_F, ST_C2, ST_D2, ST_E2, ST_A1 = range(13)
NST = 13
opts = dict(kv.split("=") for kv in sys.argv[2:])
FD, AD = int(opts.get("fd", 32)), int(opts.get("ad", 16))
TIM = int(opts.get("timing", 0))

def item(stage, p0=0, p1=0, p2=0, d1=None, d2=None, sig=NONE):
    enc = lambda d: (NONE << 16) if d is None else ((d[0] << 16) | d[1])
    return [stage | (p0 << 8) | (p1 << 16) | (p2 << 24), enc(d1), enc(d2), sig]

def build_items():
    GS = int(opts.get("gs", 14))
    g0 = []
    for rb in range(64): g0.append(item(ST_LN1, rb, sig=C_L1 + rb // 4))
    for i in range(64): g0.append(item(ST_S, i, sig=C_SI))
    lst = []
    TA = float(opts.get("TA", 30.0))
    n = 0
    NFAST = int(opts.get("nfast", 1))
    for rt in range(16):
        for mat in range(3):
            if rt < NFAST and mat < 2:
                for hd in range(32):
                    lst.append((-1000 + n, (mat*8 + hd//4) % NQ, item(ST_A1, rt, mat, hd, d1=(C_L1 + rt, 4), sig=C_KV + rt))); n += 0.25
                continue
            for hg in range(8):
                lst.append((-1000 + n, (mat*8 + hg) % NQ, item(ST_A, rt, mat, hg, d1=(C_L1 + rt, 4), sig=(4 << 16) | (C_KV + rt if mat < 2 else C_Q + rt)))); n += 1
    lst.sort(key=lambda x: x[0])
    qs = [[x[2] for x in lst if x[1] == q] for q in range(NQ)] + [g0]
    return qs
queues = build_items()
items = [x for q in queues for x in q]
qstart = [sum(len(q) for q in queues[:k]) for k in range(NQ+1)]
NITEMS = len(items)

o = Asm()
L = "K"
o(f".globl {KN}\n.p2align 8\n.type {KN},@function\n{KN}:")
o(f"""  s_cmp_ge_u32 s2, 256
  s_cbranch_scc1 {L}_end
  s_load_dwordx2 s[48:49], s[0:1], 8
  s_load_dwordx2 s[50:51], s[0:1], 16
  s_load_dwordx2 s[52:53], s[0:1], 24
  s_load_dwordx2 s[54:55], s[0:1], 32
  s_load_dwordx2 s[56:57], s[0:1], 40
  s_load_dwordx2 s[58:59], s[0:1], 104
  s_load_dwordx2 s[60:61], s[0:1], 96
  s_getreg_b32 s3, hwreg(HW_REG_XCC_ID)
  s_and_b32 s3, s3, 0xf
  v_lshrrev_b32 v1, 6, v0
  s_nop 1
  v_readfirstlane_b32 s13, v1
  v_and_b32 v0, 63, v0
  s_waitcnt lgkmcnt(0)
  s_mov_b32 s8, s58
  s_and_b32 s9, s59, 0xffff
  s_mov_b32 s10, {WS_USED}
  s_mov_b32 s11, 0x20000
  s_cmp_eq_u32 s13, 0
  s_cbranch_scc0 {L}_t1
  s_cmp_eq_u32 s3, 0
  s_cselect_b32 s25, {4*D_T0}, {4*D_T1}
  v_mov_b32 v1, s25
  v_mov_b32 v2, 1
  s_lshl_b32 s25, s3, 2
  s_add_u32 s25, s25, {4*D_X}
  v_mov_b32 v5, s25
  s_mov_b64 exec, 1
  global_atomic_add v8, v1, v2, s[60:61] sc0
  global_atomic_add v5, v2, s[60:61]
  s_waitcnt vmcnt(0)
  v_mov_b32 v6, 0
  ds_write_b32 v6, v8
  s_waitcnt lgkmcnt(0)
  s_mov_b64 exec, -1
{L}_t1:
  s_barrier
  v_mov_b32 v6, 0
  ds_read_b32 v8, v6
  s_waitcnt lgkmcnt(0)
  v_readfirstlane_b32 s12, v8
  s_barrier
  s_cmp_eq_u32 s2, 0
  s_cbranch_scc0 {L}_noinit
  s_cmp_eq_u32 s13, 0
  s_cbranch_scc0 {L}_noinit
  v_lshlrev_b32 v1, 4, v0
  v_mov_b32 v4, 0
  v_mov_b32 v5, 0
  v_mov_b32 v6, 0
  v_mov_b32 v7, 0""")
for i in range(20):
    o(f"  s_mov_b32 s25, {CNT + 1024*i}\n  buffer_store_dwordx4 v[4:7], v1, s[8:11], s25 offen sc1")
for i in range(4):
    o(f"  s_mov_b32 s25, {RFLAG + 1024*i}\n  buffer_store_dwordx4 v[4:7], v1, s[8:11], s25 offen sc1")
o(f"""  s_waitcnt vmcnt(0)
  v_mov_b32 v1, {4*D_INIT}
  v_mov_b32 v2, 1
  s_mov_b64 exec, 1
  global_atomic_add v1, v2, s[60:61]
  s_waitcnt vmcnt(0)
  s_mov_b64 exec, -1
{L}_noinit:
  s_cmp_eq_u32 s3, 0
  s_cbranch_scc0 {L}_worker
  s_cmp_lt_u32 s12, 32
  s_cbranch_scc0 {L}_worker
""")
def poll_ge(o, off_expr_sgpr_or_imm, target, base="ws", label="pg"):
    lp = o.label(label)
    o("  s_mov_b32 s24, 0")
    if base == "ws":
        o(f"  v_mov_b32 v76, {off_expr_sgpr_or_imm}\n{lp}:\n  buffer_load_dword v77, v76, s[8:11], 0 offen sc1")
    else:
        o(f"  v_mov_b32 v76, {off_expr_sgpr_or_imm}\n{lp}:\n  global_load_dword v77, v76, s[60:61] sc1")
    o(f"  s_waitcnt vmcnt(0)\n  v_readfirstlane_b32 s25, v77\n  s_cmp_ge_u32 s25, {target}\n  s_cbranch_scc1 {lp}_ok\n  s_sleep 4\n  s_add_u32 s24, s24, 1\n  s_cmp_lt_u32 s24, {SPIN}\n  s_cbranch_scc1 {lp}\n  s_endpgm\n{lp}_ok:")
rgen.emit_consts(o)
rgen.emit_init(o, "R")
rgen.emit_weights(o)
poll_ge(o, 4*D_INIT, 1, base="dbg")
poll_ge(o, CNT + 128*C_SI, 64)
poll_ge(o, CNT + 128*C_KV, 64)
o(f"""  s_barrier
  s_cmp_eq_u32 s13, 0
  s_cbranch_scc0 R_tb
  v_mov_b32 v62, {4*D_TB}
  v_mov_b32 v63, 1
  s_mov_b64 exec, 1
  global_atomic_add v62, v63, s[60:61]
  s_mov_b64 exec, -1""")
poll_ge(o, 4*D_TB, 32, base="dbg")
o("R_tb:\n  s_barrier")
rgen.KVCNT = CNT + 128*C_KV
rgen.emit_mem0(o)
rgen.emit_loop(o, "R", "", bool(TIM), FD, AD)
o(f"  s_branch {L}_end")
LQ = 163840 - 16
def sig_now(o):
    lab = o.label("sg")
    o(f"""  s_and_b32 s52, s50, 0xffff
  s_cmp_eq_u32 s52, {NONE}
  s_cbranch_scc1 {lab}
  s_cmp_eq_u32 s13, 0
  s_cbranch_scc0 {lab}
  s_lshl_b32 s52, s52, 7
  s_add_u32 s52, s56, s52
  s_addc_u32 s53, s57, 0
  s_lshr_b32 s54, s50, 16
  s_max_u32 s54, s54, 1
  s_atomic_add s54, s[52:53], 0
{lab}:
  s_mov_b32 s50, {NONE}""")
def flush(o):
    o("  s_waitcnt vmcnt(0) lgkmcnt(0)\n  s_barrier")
    sig_now(o)
wgen.HOOK = None
o(f"""{L}_worker:
  s_load_dwordx2 s[{P_X}:{P_X+1}], s[0:1], 0
  s_load_dwordx2 s[{P_WQ}:{P_WQ+1}], s[0:1], 16
  s_load_dwordx2 s[{P_WK}:{P_WK+1}], s[0:1], 24
  s_load_dwordx2 s[{P_WV}:{P_WV+1}], s[0:1], 32
  s_load_dwordx2 s[{P_WO}:{P_WO+1}], s[0:1], 40
  s_load_dwordx2 s[{P_W1}:{P_W1+1}], s[0:1], 64
  s_load_dwordx2 s[{P_W3}:{P_W3+1}], s[0:1], 72
  s_load_dwordx2 s[{P_W2}:{P_W2+1}], s[0:1], 80
  s_load_dwordx2 s[{P_OUT}:{P_OUT+1}], s[0:1], 88
  s_load_dwordx2 s[56:57], s[0:1], 104
  s_load_dwordx2 s[60:61], s[0:1], 96
  s_getpc_b64 s[40:41]
{L}_pc:
  s_add_u32 s40, s40, {L}_items-{L}_pc
  s_addc_u32 s41, s41, 0
  s_mov_b32 s42, 0
  s_mov_b32 s30, {NQ}
  s_mov_b32 s31, 0
  s_mov_b32 s50, {NONE}
  s_waitcnt lgkmcnt(0)
  s_add_u32 s56, s56, {CNT}
  s_addc_u32 s57, s57, 0
  s_cmp_eq_u32 s13, 0
  s_cbranch_scc0 {L}_wr1
  s_mov_b32 s54, 1
  s_atomic_add s54, s[60:61], {4*D_WR} glc
  s_waitcnt lgkmcnt(0)
  v_mov_b32 v4, {LQ}
  v_mov_b32 v2, s54
  s_mov_b64 exec, 1
  ds_write_b32 v4, v2
  s_waitcnt lgkmcnt(0)
  s_mov_b64 exec, -1
{L}_wr1:
  s_barrier
  v_mov_b32 v4, {LQ}
  ds_read_b32 v2, v4
  s_waitcnt lgkmcnt(0)
  v_readfirstlane_b32 s33, v2
  s_barrier
{L}_pop:
  s_lshl_b32 s25, s30, 3
  s_load_dwordx2 s[34:35], s[40:41], s25
  s_cmp_eq_u32 s13, 0
  s_cbranch_scc0 {L}_n1
  s_lshl_b32 s25, s30, 2
  s_add_u32 s52, s60, s25
  s_addc_u32 s53, s61, 0
  s_mov_b32 s54, 1
  s_atomic_add s54, s[52:53], {4*D_QH} glc
  s_waitcnt lgkmcnt(0)
  s_mov_b32 s43, s54
  s_mov_b32 s55, 0                      ; ready
  s_cmp_lt_u32 s43, s35
  s_cbranch_scc0 {L}_pw
  s_add_u32 s25, s43, s34
  s_lshl_b32 s25, s25, 4
  s_add_u32 s25, s25, 64
  s_load_dwordx4 s[44:47], s[40:41], s25
  s_cmp_eq_u32 s42, 1
  s_cbranch_scc1 {L}_pi
  s_load_dword s54, s[60:61], {4*D_INIT} glc
  s_waitcnt lgkmcnt(0)
  s_cmp_eq_u32 s54, 0
  s_cbranch_scc1 {L}_pw
{L}_pi:
  s_waitcnt lgkmcnt(0)""")
for w in (45, 46):
    lp = o.label("dq")
    o(f"""  s_lshr_b32 s26, s{w}, 16
  s_cmp_eq_u32 s26, {NONE}
  s_cbranch_scc1 {lp}
  s_lshl_b32 s26, s26, 7
  s_add_u32 s52, s56, s26
  s_addc_u32 s53, s57, 0
  s_load_dword s54, s[52:53], 0 glc
  s_and_b32 s27, s{w}, 0xffff
  s_waitcnt lgkmcnt(0)
  s_cmp_ge_u32 s54, s27
  s_cbranch_scc0 {L}_pw
{lp}:""")
o(f"""  s_mov_b32 s55, 1
{L}_pw:
  v_mov_b32 v4, {LQ}
  v_mov_b32 v2, s43
  v_mov_b32 v3, s55
  s_mov_b64 exec, 1
  ds_write_b64 v4, v[2:3]
  s_waitcnt lgkmcnt(0)
  s_mov_b64 exec, -1
{L}_n1:
  s_waitcnt vmcnt(0) lgkmcnt(0)
  s_barrier
  v_mov_b32 v4, {LQ}
  ds_read_b64 v[2:3], v4
  s_waitcnt lgkmcnt(0)
  v_readfirstlane_b32 s43, v2
  v_readfirstlane_b32 s55, v3
  s_barrier
  s_cmp_lt_u32 s43, s35
  s_cbranch_scc1 {L}_have""")
sig_now(o)
o(f"""  s_cmp_eq_u32 s30, {NQ}
  s_cbranch_scc0 {L}_steal
  s_mov_b32 s24, 0
  v_mbcnt_lo_u32_b32 v0, -1, 0
  v_mbcnt_hi_u32_b32 v0, -1, v0
  v_and_b32 v1, 15, v0
  v_lshlrev_b32 v1, 2, v1
  v_add_u32 v1, {4*D_X}, v1
{L}_rv:
  global_load_dword v2, v1, s[60:61] sc1
  s_waitcnt vmcnt(0)
  s_mov_b32 s26, 0
  s_mov_b32 s27, 1
""" + "".join(f"  v_readlane_b32 s25, v2, {x}\n  s_add_u32 s26, s26, s25\n" + (f"  s_cmp_eq_u32 s25, 0\n  s_cselect_b32 s27, 0, s27\n" if 1 <= x <= 7 else "") for x in range(16)) + f"""  s_cmp_ge_u32 s26, 256
  s_cbranch_scc1 {L}_rvok
  s_sleep 4
  s_add_u32 s24, s24, 1
  s_cmp_lt_u32 s24, {SPIN}
  s_cbranch_scc1 {L}_rv
  s_endpgm
{L}_rvok:
  s_mul_hi_u32 s25, s12, {(1 << 32) // 7 + 1}
  s_mul_i32 s25, s25, 7
  s_sub_u32 s25, s12, s25
  s_sub_u32 s26, s3, 1
  s_cmp_lt_u32 s26, 7
  s_cselect_b32 s28, 1, 0
  s_and_b32 s28, s28, s27
  s_cmp_eq_u32 s28, 1
  s_cselect_b32 s30, s26, s25
  s_branch {L}_pop
{L}_steal:
  s_add_u32 s31, s31, 1
  s_cmp_ge_u32 s31, {NQ}
  s_cbranch_scc1 {L}_roles
  s_add_u32 s30, s30, 1
  s_cmp_eq_u32 s30, {NQ}
  s_cselect_b32 s30, 0, s30
  s_branch {L}_pop
{L}_have:
  s_add_u32 s43, s43, s34
  s_lshl_b32 s25, s43, 4
  s_add_u32 s25, s25, 64
  s_load_dwordx4 s[44:47], s[40:41], s25
  s_waitcnt lgkmcnt(0)""")
sig_now(o)
o(f"""  s_cmp_eq_u32 s55, 1
  s_cbranch_scc1 {L}_go""")
o(f"""  s_cmp_eq_u32 s13, 0
  s_cbranch_scc0 {L}_d2
  s_cmp_eq_u32 s42, 1
  s_cbranch_scc1 {L}_d0""")
poll_ge(o, 4*D_INIT, 1, base="dbg")
o(f"{L}_d0:")
for w in (45, 46):
    lp = o.label("dep")
    o(f"""  s_lshr_b32 s26, s{w}, 16
  s_cmp_eq_u32 s26, {NONE}
  s_cbranch_scc1 {lp}_ok
  s_lshl_b32 s26, s26, 7
  s_add_u32 s26, s26, {CNT}
  s_and_b32 s27, s{w}, 0xffff
  v_mov_b32 v76, s26
  s_mov_b32 s24, 0
{lp}:
  buffer_load_dword v77, v76, s[8:11], 0 offen sc1
  s_waitcnt vmcnt(0)
  v_readfirstlane_b32 s25, v77
  s_cmp_ge_u32 s25, s27
  s_cbranch_scc1 {lp}_ok
  s_sleep 2
  s_add_u32 s24, s24, 1
  s_cmp_lt_u32 s24, {SPIN}
  s_cbranch_scc1 {lp}
  s_endpgm
{lp}_ok:""")
o(f"""{L}_d2:
  s_barrier
{L}_go:
  s_mov_b32 s42, 1
  v_mbcnt_lo_u32_b32 v0, -1, 0
  v_mbcnt_hi_u32_b32 v0, -1, v0
  s_bfe_u32 s20, s44, 0x80008
  s_bfe_u32 s21, s44, 0x80010
  s_lshr_b32 s22, s44, 24
  s_and_b32 s25, s44, 0xff""")
if TIM:
    o("  s_memrealtime s[36:37]")
for st in (ST_LN1, ST_S, ST_A, ST_A1):
    o(f"  s_cmp_eq_u32 s25, {st}\n  s_cbranch_scc1 {L}_st{st}")
o(f"  s_branch {L}_end")
def stage_wrap(st, body, pre_flush=False):
    o(f"{L}_st{st}:")
    body()
    o(f"  s_branch {L}_sig")
stage_wrap(ST_LN1, lambda: stage_ln(o, 'x', STF), True)
stage_wrap(ST_S, lambda: stage_s(o, STF), True)
stage_wrap(ST_A, lambda: stage_a2(o, STF, 4))
stage_wrap(ST_A1, lambda: stage_a2(o, STF, 1))
o(f"{L}_sig:")
if TIM:
    o(f"""  s_cmp_eq_u32 s13, 0
  s_cbranch_scc0 {L}_not
  s_memrealtime s[38:39]
  s_waitcnt lgkmcnt(0)
  v_mov_b32 v4, s36
  v_mov_b32 v5, s38
  s_lshl_b32 s25, s43, 3
  s_add_u32 s25, s25, {FLAGS + 0x40000}
  v_mov_b32 v6, s25
  buffer_store_dwordx2 v[4:5], v6, s[8:11], 0 offen
{L}_not:""")
o(f"""  s_mov_b32 s50, s47
  s_branch {L}_pop""")

TIMB = (FLAGS + 0x50000) if TIM else None
def lane(o): o("  v_mbcnt_lo_u32_b32 v0, -1, 0\n  v_mbcnt_hi_u32_b32 v0, -1, v0")
o(f"{L}_roles:")
o(f"""  s_cmp_eq_u32 s42, 1
  s_cbranch_scc1 {L}_ri""")
poll_ge(o, 4*D_INIT, 1, base="dbg")
o(f"""{L}_ri:
  s_cmp_lt_u32 s33, 32
  s_cbranch_scc1 {L}_rB
  s_cmp_lt_u32 s33, 64
  s_cbranch_scc1 {L}_rC4
  s_cmp_lt_u32 s33, 72
  s_cbranch_scc1 {L}_rC2
  s_cmp_lt_u32 s33, 88
  s_cbranch_scc1 {L}_rL
  s_cmp_lt_u32 s33, 160
  s_cbranch_scc1 {L}_rD
  s_cmp_lt_u32 s33, 192
  s_cbranch_scc1 {L}_rE4
  s_cmp_lt_u32 s33, 200
  s_cbranch_scc1 {L}_rE2
  s_cmp_lt_u32 s33, 216
  s_cbranch_scc1 {L}_rF
  s_branch {L}_end""")
def mkloop(name, dep, tgt, sig):
    return lambda body: role_loop(o, name, dep, tgt, sig, CNT, NONE, body, SPIN*4, TIMB)
o(f"{L}_rB:")
def b_body():
    lane(o)
    lp = o.label("bq")
    o(f"""  s_lshl_b32 s25, s32, 7
  s_add_u32 s25, s25, {CNT + 128*C_Q}
  v_mov_b32 v250, s25
  s_mov_b32 s24, 0
{lp}:
  buffer_load_dword v251, v250, s[8:11], 0 offen sc1
  s_waitcnt vmcnt(0)
  v_readfirstlane_b32 s25, v251
  s_cmp_ge_u32 s25, 32
  s_cbranch_scc1 {lp}_ok
  s_add_u32 s24, s24, 1
  s_cmp_lt_u32 s24, {SPIN*4}
  s_cbranch_scc1 {lp}
  s_endpgm
{lp}_ok:
  s_lshr_b32 s20, s33, 3
  s_lshl_b32 s25, s32, 2
  s_add_u32 s20, s20, s25              ; seg = 4g + r/8
  s_and_b32 s21, s33, 7
  s_lshl_b32 s21, s21, 2
  s_add_u32 s21, s21, s13              ; head""")
    stage_b(o, STF, wait_r=True)
mkloop("RB", C_KV, 64, C_B)(b_body)
o(f"  s_branch {L}_end")
for nm, which, base4, base2, dep, tgt, sig in (("C", 'C', 32, 64, C_B, 32, C_C), ("E", 'E', 160, 192, C_D, 72, C_E)):
    o(f"{L}_r{nm}4:")
    lane(o)
    o(f"  s_sub_u32 s25, s33, {base4}\n  s_lshr_b32 s28, s25, 3\n  s_lshl_b32 s28, s28, 2\n  s_and_b32 s23, s25, 7")
    role_ce(o, which, 4, STF, mkloop(f"R{nm}4", dep, tgt, sig))
    o(f"  s_branch {L}_end")
    o(f"{L}_r{nm}2:")
    lane(o)
    o(f"  s_mov_b32 s28, 16\n  s_sub_u32 s23, s33, {base2}")
    role_ce(o, which, 2, STF, mkloop(f"R{nm}2", dep, tgt, sig))
    o(f"  s_branch {L}_end")
for nm, base, dep, tgt, sig, fn in (("L", 72, C_C, 40, C_L, lambda: stage_ln2b(o, STF)), ("F", 200, C_E, 40, None, lambda: stage_fb(o))):
    o(f"{L}_r{nm}:")
    def body(base=base, fn=fn):
        lane(o)
        o(f"  s_sub_u32 s25, s33, {base}\n  s_lshr_b32 s20, s25, 2\n  s_lshl_b32 s26, s32, 2\n  s_add_u32 s20, s20, s26\n  s_and_b32 s21, s25, 3")
        fn()
    mkloop(f"R{nm}", dep, tgt, sig)(body)
    o(f"  s_branch {L}_end")
o(f"{L}_rD:")
lane(o)
o(f"  s_sub_u32 s28, s33, 88")
role_d(o, STF, mkloop("RD", C_L, 16, C_D))
o(f"""{L}_end:
  s_waitcnt vmcnt(0) lgkmcnt(0)
  s_endpgm
.p2align 6
{L}_items:""")
for k in range(NQ+1):
    o(f"  .long {qstart[k]}, {len(queues[k])}")
for x in items:
    o("  .long " + ", ".join(hex(w) for w in x))
kd = f"""
.section .rodata,"a"
.p2align 6
.amdhsa_kernel {KN}
  .amdhsa_next_free_vgpr 512
  .amdhsa_next_free_sgpr 102
  .amdhsa_accum_offset 256
  .amdhsa_group_segment_fixed_size 0
  .amdhsa_kernarg_size 112
  .amdhsa_user_sgpr_count 2
  .amdhsa_user_sgpr_kernarg_segment_ptr 1
  .amdhsa_system_sgpr_workgroup_id_x 1
.end_amdhsa_kernel
"""
hdr = open("cdna_kernels/" + NAME + ".s.ref").read().split("; Override launch")[0]
body = '\n'.join(l.split(';')[0].strip() for l in o.text().split('\n') if l.split(';')[0].strip()) + '\n'
txt = hdr + "; @launch grid=(256,1,1) block=(256,1,1) lds=163840\n" + '.amdgcn_target "amdgcn-amd-amdhsa--gfx950"\n.text\n' + body + kd
out = sys.argv[1] if len(sys.argv) > 1 else "fused.s"
open(out, "w").write(txt)
json.dump([(KN, 256, 163840)], open(out.replace(".s", ".json"), "w"))
json.dump(items, open("items.json", "w"))
print("items", NITEMS, "bytes", len(txt))
```

```python
from asmlib import *

L_MEM, L_XEX, L_MEX, L_OEX, L_W = 0, 9216, 13312, 14336, 16384

vA, vXw, vM, vOw, vR, vP, vIdx, vH1 = 0, 1, 2, 3, 4, 5, 6, 7
vSel, vSelR, vKx, vVx = 8, 10, 14, 22
sW = 4
sWS = 8
sH, sWv_, sStep = 12, 13, 14
sC = 15
sKoff, sKm, sH1st, sH1h, sH1ld, sH2pub, sH2pl = 16, 17, 18, 19, 20, 21, 22
sIsRed, sJ, sT0, sT1, sT2, sT3 = 23, 24, 25, 26, 27, 28
sPoll = 29
sH1rs, sH2rs = 30, 31
sFlagOff = 32
sX1, sX2, sX3 = 33, 34, 35
sW256 = 36
sMaskMw = 38
sPi0, sPih = 40, 41
sH1so, sH1ho, sW1024 = 42, 43, 37
sUnit = 45
sH2tch = 46
sTm = 44

def frag_q(tau, c): return ('a', (tau*9 + c)*8)
def frag_k(tau, c):
    f = tau*9 + c
    return ('a', 144 + 8*f) if f < 14 else ('v', 80 + 8*(f-14))
def frag_v(tau, c):
    return ('v', 112 + 72*tau + 8*c)
def frag_o(tl, kap):
    return ('lds', 4*tl + kap)

def lds_frag_addr(f):
    off = L_W + f*4096
    return off // 65536, off % 65536

def nop(o, n):
    while n > 0:
        k = min(n, 16)
        o(f"  s_nop {k-1}")
        n -= k

def emit_consts(o):
    o.c("---- R lane constants; v0 holds lane id on entry (0..63), s13 = wave")
    o(f"""
  v_mov_b32 v30, v0                 ; lane
  v_and_b32 v31, 15, v30            ; c
  v_lshrrev_b32 v32, 4, v30         ; g
  v_and_b32 v33, 7, v30             ; t
  v_bfe_u32 v34, v30, 3, 1          ; u
  v_lshlrev_b32 v{vA}, 4, v30
  s_lshl_b32 s{sT0}, s{sWv_}, 10
  v_add_u32 v{vXw}, s{sT0}, v{vA}
  v_and_b32 v35, 1, v32             ; g%2
  v_lshlrev_b32 v{vM}, 7, v35
  v_lshl_add_u32 v{vM}, v33, 4, v{vM}
  ; vOw = (w/2)*1024 + (g/2)*256 + (w%2)*128 + t*16 + (g%2)*8 ; u==0 only
  s_lshr_b32 s{sT0}, s{sWv_}, 1
  s_lshl_b32 s{sT0}, s{sT0}, 10
  s_and_b32 s{sT1}, s{sWv_}, 1
  s_lshl_b32 s{sT1}, s{sT1}, 7
  s_add_u32 s{sT0}, s{sT0}, s{sT1}
  s_add_u32 s{sT0}, s{sT0}, {L_OEX}
  v_lshrrev_b32 v36, 1, v32         ; g/2
  v_lshlrev_b32 v{vOw}, 8, v36
  v_lshl_add_u32 v{vOw}, v33, 4, v{vOw}
  v_lshl_add_u32 v{vOw}, v35, 3, v{vOw}
  v_add_u32 v{vOw}, s{sT0}, v{vOw}
  v_mov_b32 v37, 0x7ffffff0
  v_cmp_eq_u32 vcc, 0, v34
  s_nop 1
  v_cndmask_b32 v{vOw}, v37, v{vOw}, vcc
  v_mov_b32 v37, 0x80000000
  v_cndmask_b32 v{vH1}, v37, v{vA}, vcc
  ; idx
  v_mov_b32 v38, 0x44444444
  v_mov_b32 v39, 0xeeeeeeee
  v_cndmask_b32 v{vIdx}, v39, v38, vcc
  s_lshl_b32 s{sJ}, s{sH}, 1
  s_add_u32 s{sJ}, s{sJ}, s{sWv_}
  s_add_u32 s{sT0}, s{sH}, 64
  s_cmp_eq_u32 s{sWv_}, 2
  s_cselect_b32 s{sJ}, s{sT0}, s{sJ}
  s_cmp_lt_u32 s{sWv_}, 2
  s_cselect_b32 s{sIsRed}, 1, 0
  s_cmp_eq_u32 s{sWv_}, 2
  s_cselect_b32 s{sT0}, 1, 0
  s_cmp_lt_u32 s{sH}, 8
  s_cselect_b32 s{sT1}, 1, 0
  s_and_b32 s{sT0}, s{sT0}, s{sT1}
  s_or_b32 s{sIsRed}, s{sIsRed}, s{sT0}
  s_cmp_eq_u32 s{sIsRed}, 0
  s_cselect_b32 s{sJ}, 0, s{sJ}
  ; unit j=(pi=j/4, g4=j%4): H1 offset of its 128B segment
  s_lshr_b32 s{sT0}, s{sJ}, 2            ; pi
  s_and_b32 s{sT1}, s{sJ}, 3             ; g4
  s_cmp_gt_u32 s{sT0}, 13
  s_cselect_b32 s{sT2}, 2, 0
  s_cmp_gt_u32 s{sT0}, 4
  s_cselect_b32 s{sT3}, 1, 0
  s_cmp_gt_u32 s{sT0}, 13
  s_cselect_b32 s{sT3}, 2, s{sT3}
  s_sub_u32 s{sT2}, s{sT0}, s{sT3}
  s_lshr_b32 s{sT3}, s{sT2}, 1
  s_lshl_b32 s{sT3}, s{sT3}, 10          ; (q/2)*1024
  s_and_b32 s{sT2}, s{sT2}, 1
  s_lshl_b32 s{sT2}, s{sT2}, 7           ; (q%2)*128
  s_add_u32 s{sT3}, s{sT3}, s{sT2}
  s_cmp_eq_u32 s{sT0}, 4
  s_cselect_b32 s{sT3}, 8192, s{sT3}
  s_cmp_eq_u32 s{sT0}, 13
  s_cselect_b32 s{sT3}, 9216, s{sT3}
  s_lshl_b32 s{sT1}, s{sT1}, 8
  s_add_u32 s{sT0}, s{sT3}, s{sT1}       ; + g4*256
  s_lshr_b32 s{sT1}, s{sJ}, 2
  s_cmp_eq_u32 s{sT1}, 4
  s_cselect_b32 s{sT2}, 2, s{sIsRed}
  s_cmp_eq_u32 s{sT1}, 13
  s_cselect_b32 s{sT2}, 2, s{sT2}
  s_cmp_eq_u32 s{sIsRed}, 0
  s_cselect_b32 s{sIsRed}, 0, s{sT2}
  v_lshl_add_u32 v40, v34, 2, v32
  v_mul_u32_u24 v40, {H1_PROD}, v40
  v_lshl_add_u32 v40, v33, 4, v40
  v_add_u32 v{vR}, s{sT0}, v40
  s_cmp_eq_u32 s{sIsRed}, 0
  s_cselect_b32 s{sT1}, 0x80000000, 0
  s_cselect_b32 s{sUnit}, 0x80000000, s{sT0}
  v_lshlrev_b32 v40, 4, v33
  v_lshl_add_u32 v40, v32, 3, v40
  s_lshl_b32 s{sT0}, s{sJ}, 7
  v_add_u32 v40, s{sT0}, v40
  v_and_b32 v41, 40, v30
  v_cmp_eq_u32 vcc, 0, v41
  s_nop 1
  v_cndmask_b32 v{vP}, v37, v40, vcc
  v_or_b32 v{vP}, s{sT1}, v{vP}
  s_mov_b64 s[{sMaskMw}:{sMaskMw+1}], vcc     ; lanes u==0,g<2
  ; Sel: e = c - 4*(g%2)
  v_lshlrev_b32 v40, 2, v35
  v_sub_u32 v40, v31, v40
  v_mov_b32 v41, 0x3f80
  v_mov_b32 v42, 0x3f800000
  v_mov_b32 v{vSel}, 0
  v_mov_b32 v{vSel+1}, 0
  v_cmp_eq_u32 vcc, 0, v40
  s_nop 1
  v_cndmask_b32 v{vSel}, v{vSel}, v41, vcc
  v_cmp_eq_u32 vcc, 1, v40
  s_nop 1
  v_cndmask_b32 v{vSel}, v{vSel}, v42, vcc
  v_cmp_eq_u32 vcc, 2, v40
  s_nop 1
  v_cndmask_b32 v{vSel+1}, v{vSel+1}, v41, vcc
  v_cmp_eq_u32 vcc, 3, v40
  s_nop 1
  v_cndmask_b32 v{vSel+1}, v{vSel+1}, v42, vcc""")
    for r in range(4):
        o(f"""  v_mov_b32 v{vSelR+r}, 0
  v_cmp_eq_u32 vcc, {2*r}, v31
  s_nop 1
  v_cndmask_b32 v{vSelR+r}, v{vSelR+r}, v41, vcc
  v_cmp_eq_u32 vcc, {2*r+1}, v31
  s_nop 1
  v_cndmask_b32 v{vSelR+r}, v{vSelR+r}, v42, vcc""")
    o(f"""
  s_lshl_b32 s{sW1024}, s{sWv_}, 10
  s_lshl_b32 s{sH2tch}, s{sH}, 2
  s_add_u32 s{sH2tch}, s{sH2tch}, s{sWv_}
  s_lshl_b32 s{sH2tch}, s{sH2tch}, 6
  s_add_u32 s{sH2tch}, s{sH2tch}, {H2_SLOT}
  s_mov_b32 s{sC}, 0x3e0293ee        ; 128^-0.5 * log2(e) = 0.12751743
  s_add_u32 s{sT0}, s{sWv_}, 1
  s_and_b32 s{sT0}, s{sT0}, 3
  s_lshl_b32 s{sX1}, s{sT0}, 10
  s_add_u32 s{sX1}, s{sX1}, {L_XEX}
  s_add_u32 s{sT0}, s{sWv_}, 2
  s_and_b32 s{sT0}, s{sT0}, 3
  s_lshl_b32 s{sX2}, s{sT0}, 10
  s_add_u32 s{sX2}, s{sX2}, {L_XEX}
  s_add_u32 s{sT0}, s{sWv_}, 3
  s_and_b32 s{sT0}, s{sT0}, 3
  s_lshl_b32 s{sX3}, s{sT0}, 10
  s_add_u32 s{sX3}, s{sX3}, {L_XEX}
  s_lshl_b32 s{sW256}, s{sWv_}, 8
  s_add_u32 s{sW256}, s{sW256}, {L_MEX}
  s_mul_i32 s{sPi0}, s{sWv_}, 9
  s_add_u32 s{sPi0}, s{sPi0}, 1
  s_lshr_b32 s{sPi0}, s{sPi0}, 1
  s_lshr_b32 s{sPih}, s{sWv_}, 1
  s_mul_i32 s{sPih}, s{sPih}, 9
  s_add_u32 s{sPih}, s{sPih}, 4
""")

def emit_weights(o):
    o.c("---- weight prologue")
    vLdW, vLdO, vLdOh, vScr, vT, vT2, vT2h, vF1, vF2 = 30, 31, 32, 33, 34, 35, 36, 37, 38
    TMP = 40
    o(f"""
  v_lshrrev_b32 v46, 4, v{vA}        ; lane
  v_lshrrev_b32 v45, 2, v46          ; l/4
  v_and_b32 v44, 3, v46              ; l%4
  v_lshlrev_b32 v{vLdW}, 13, v45
  v_lshl_add_u32 v{vLdW}, v44, 4, v{vLdW}      ; (l/4)*8192 + (l%4)*16
  v_mul_u32_u24 v{vLdOh}, 1152, v45
  v_lshl_add_u32 v{vLdOh}, v44, 4, v{vLdOh}    ; (l/4)*1152 + (l%4)*16
  v_lshrrev_b32 v43, 3, v46          ; l/8
  v_and_b32 v42, 7, v46
  v_mul_u32_u24 v{vLdO}, 1152, v43
  v_lshl_add_u32 v{vLdO}, v42, 4, v{vLdO}      ; (l/8)*1152 + (l%8)*16
  s_lshl_b32 s{sT0}, s{sWv_}, 12
  v_add_u32 v{vScr}, s{sT0}, v{vA}             ; scratch + l*16
  ; tr lane decomposition: gb=l/16, r'=(l%16)/4, c'=l%4
  v_lshrrev_b32 v43, 4, v46          ; gb
  v_bfe_u32 v42, v46, 2, 2           ; r'
  ; row = 16*(gb/2) + 4*(gb%2) + 8*(r'/2) + r'%2
  v_lshrrev_b32 v41, 1, v43
  v_lshlrev_b32 v41, 4, v41
  v_and_b32 v40, 1, v43
  v_lshl_add_u32 v41, v40, 2, v41
  v_lshrrev_b32 v40, 1, v42
  v_lshl_add_u32 v41, v40, 3, v41
  v_and_b32 v40, 1, v42
  v_add_u32 v41, v41, v40
  v_lshlrev_b32 v{vT}, 6, v41
  v_lshl_add_u32 v{vT}, v44, 3, v{vT}
  v_add_u32 v{vT}, s{sT0}, v{vT}
  v_lshl_add_u32 v41, v43, 3, v42
  v_lshlrev_b32 v{vT2}, 7, v41
  v_lshl_add_u32 v{vT2}, v44, 4, v{vT2}
  v_add_u32 v{vT2}, s{sT0}, v{vT2}
  v_lshlrev_b32 v{vT2h}, 6, v41
  v_lshl_add_u32 v{vT2h}, v44, 4, v{vT2h}
  v_add_u32 v{vT2h}, s{sT0}, v{vT2h}
  s_and_b32 s{sT1}, s{sWv_}, 1
  s_lshl_b32 s{sT1}, s{sT1}, 3
  v_add_u32 v{vT2h}, s{sT1}, v{vT2h}
  v_add_u32 v{vF1}, 0x10000, v{vXw}
  v_add_u32 v{vF2}, 0x20000, v{vXw}
""")
    def ldsaddr(f):
        b, imm = lds_frag_addr(f)
        return (vXw, vF1, vF2)[b], imm
    chunks = []
    for c in range(9): chunks.append(('q', c))
    for c in range(9): chunks.append(('k', c))
    for kap in range(4):
        chunks += [('o', kap, 0), ('o', kap, 1), ('oh', kap)]
    for c in range(9): chunks.append(('v', c))
    def dests(ch):
        if ch[0] == 'q': return [frag_q(0, ch[1]), frag_q(1, ch[1])]
        if ch[0] == 'k': return [frag_k(0, ch[1]), frag_k(1, ch[1])]
        if ch[0] == 'v': return [frag_v(0, ch[1]), frag_v(1, ch[1])]
        if ch[0] == 'o': return [frag_o(4*ch[2]+i, ch[1]) for i in range(4)]
        return [frag_o(8, ch[1])]
    def dest_vregs(ch):
        n = 8 if ch[0] in 'qkv' else 4
        r = set()
        for d in dests(ch):
            if d[0] == 'v': r |= set(range(d[1], d[1]+n))
        return r
    bufs = [48, 64] + list(range(80, 256, 16))
    n = len(chunks)
    MAXIN = 10
    used_final = set()
    assign = {}
    inflight = []
    nxt = 0
    sched = []
    final_before = []
    acc = set()
    for m in range(n):
        final_before.append(set(acc))
        acc |= dest_vregs(chunks[m])
    proc = 0
    busy = {}
    while proc < n:
        while nxt < n and len(inflight) < MAXIN:
            cand = None
            for b in bufs:
                if b in busy: continue
                rs = set(range(b, b+16))
                if rs & final_before[nxt]: continue
                cand = b; break
            if cand is None: break
            busy[cand] = nxt; assign[nxt] = cand; inflight.append(nxt); sched.append(('issue', nxt)); nxt += 1
        sched.append(('proc', proc))
        del busy[assign[proc]]
        inflight.remove(proc)
        proc += 1
    def nloads(ch): return 2 if ch[0] == 'oh' else 4
    srd_cur = None
    ptr = {'q': 50, 'k': 52, 'v': 54, 'o': 56, 'oh': 56}
    srd = {'q': 64, 'k': 68, 'v': 72, 'o': 76, 'oh': 76}
    for k_, p in (('q', 50), ('k', 52), ('v', 54), ('o', 56)):
        o(f"""  s_mov_b32 s{srd[k_]}, s{p}
  s_and_b32 s{srd[k_]+1}, s{p+1}, 0xffff
  s_mov_b32 s{srd[k_]+2}, 4718592
  s_mov_b32 s{srd[k_]+3}, 0x20000""")
    o(f"""  s_lshl_b32 s80, s{sH}, 8
  s_lshl_b32 s81, s{sWv_}, 6
  s_add_u32 s80, s80, s81            ; h*256 + w*64
  s_mul_i32 s82, s{sH}, {128*1152}
  s_lshl_b32 s83, s{sPi0}, 6
  s_add_u32 s83, s83, s82
  s_lshl_b32 s84, s{sPih}, 6
  s_add_u32 s84, s84, s82""")
    outstanding = []
    for kind, m in sched:
        ch = chunks[m]; b = assign[m]
        if kind == 'issue':
            if ch[0] in 'qkv':
                for i in range(4):
                    o(f"  s_add_u32 s85, s80, {(64*ch[1] + 16*i)*8192}")
                    o(f"  buffer_load_dwordx4 {v(b+4*i,4)}, v{vLdW}, s[{srd[ch[0]]}:{srd[ch[0]]+3}], s85 offen")
            elif ch[0] == 'o':
                for i in range(4):
                    o(f"  s_add_u32 s85, s83, {(32*ch[1] + 8*i)*1152 + ch[2]*128}")
                    o(f"  buffer_load_dwordx4 {v(b+4*i,4)}, v{vLdO}, s[76:79], s85 offen")
            else:
                for i in range(2):
                    o(f"  s_add_u32 s85, s84, {(32*ch[1] + 16*i)*1152}")
                    o(f"  buffer_load_dwordx4 {v(b+4*i,4)}, v{vLdOh}, s[76:79], s85 offen")
            outstanding.append(m)
        else:
            idx = outstanding.index(m)
            later = sum(nloads(chunks[x]) for x in outstanding[idx+1:])
            o(f"  s_waitcnt vmcnt({min(later,63)})")
            outstanding = outstanding[idx+1:]
            for i in range(nloads(ch)):
                o(f"  ds_write_b128 v{vScr}, {v(b+4*i,4)} offset:{1024*i}")
            o("  s_waitcnt lgkmcnt(0)")
            post = []
            if ch[0] in 'qkv':
                for tau, d in enumerate(dests(ch)):
                    for r, off in ((0, 0), (2, 128), (4, 2048), (6, 2176)):
                        if d[0] == 'lds':
                            dst = v(TMP + r, 2)
                        else:
                            dst = reg((d[0], d[1]+r), 2)
                        o(f"  ds_read_b64_tr_b16 {dst}, v{vT} offset:{off + 32*tau}")
                    if d[0] == 'lds':
                        post.append((d[1], TMP)); post.append((d[1]+1, TMP+4))
            elif ch[0] == 'o':
                tmpi = 0
                for i, d in enumerate(dests(ch)):
                    pim, x = i // 2, i % 2
                    if d[0] == 'lds':
                        base = TMP + 4*(tmpi % 2)
                        dst0, dst1 = v(base, 2), v(base+2, 2)
                    else:
                        dst0, dst1 = reg((d[0], d[1]), 2), reg((d[0], d[1]+2), 2)
                    o(f"  ds_read_b64_tr_b16 {dst0}, v{vT2} offset:{64*pim + 8*x}")
                    o(f"  ds_read_b64_tr_b16 {dst1}, v{vT2} offset:{512 + 64*pim + 8*x}")
                    if d[0] == 'lds':
                        tmpi += 1
                        o("  s_waitcnt lgkmcnt(0)")
                        ar, imm = ldsaddr(d[1])
                        o(f"  ds_write_b128 v{ar}, {v(base,4)} offset:{imm}")
                        o("  s_waitcnt lgkmcnt(0)")
            else:
                d = dests(ch)[0]
                assert d[0] == 'lds' or d[0] == 'v'
                if d[0] == 'lds':
                    dst0, dst1 = v(TMP, 2), v(TMP+2, 2)
                else:
                    dst0, dst1 = reg((d[0], d[1]), 2), reg((d[0], d[1]+2), 2)
                o(f"  ds_read_b64_tr_b16 {dst0}, v{vT2h} offset:0")
                o(f"  ds_read_b64_tr_b16 {dst1}, v{vT2h} offset:256")
                if d[0] == 'lds':
                    post.append((d[1], TMP))
            o("  s_waitcnt lgkmcnt(0)")
            for f, t in post:
                ar, imm = ldsaddr(f)
                o(f"  ds_write_b128 v{ar}, {v(t,4)} offset:{imm}")
            if post: o("  s_waitcnt lgkmcnt(0)")


Q0, Q1, K0, K1, V0, V1 = 30, 34, 38, 42, 46, 50
W = [54, 58, 62]
T, U, QS = 66, 70, 74

class Cnt:
    def __init__(self, o, name, maxv):
        self.o, self.name, self.maxv, self.q = o, name, maxv, []
    def issue(self, tag):
        self.q.append(tag)
        assert len(self.q) <= self.maxv + 1, (self.name, self.q)
    def wait(self, tag):
        if tag not in self.q: return
        i = len(self.q) - 1 - self.q[::-1].index(tag)
        n = len(self.q) - 1 - i
        self.o(f"  s_waitcnt {self.name}cnt({n})")
        self.q = self.q[i+1:]
    def waitall(self):
        self.o(f"  s_waitcnt {self.name}cnt(0)")
        self.q = []

def smf(o, d, aop, b):
    o(f"  v_smfmac_f32_16x16x64_bf16 {v(d,4)}, {v(aop,4)}, {reg(b,8)}, v{vIdx}")


POLL_LIMIT = 1 << 20
PUBF = 'sc1'
PUBK = 'sc1'
PUBV = 'sc1'
KVF = ''
DUALF = True
DUALA = False
FSTAG = 16
ASTAG = 16
KVPOS = 'qk'
KVCNT = None
TOUCH = True
RESETW = False
vDummy = 79

def emit_loop(o, L, stf, timing=False, fdelay=0, adelay=0):
    WSr = f"s[{sWS}:{sWS+3}]"
    lg = Cnt(o, "lgkm", 15)
    def dsr(dst, ar, off, tag):
        o(f"  ds_read_b128 {v(dst,4)}, v{ar} offset:{off}")
        lg.issue(tag)
    def stamp(k):
        if timing:
            o(f"  s_memtime s[{86+2*k}:{87+2*k}]")
    T, U, QS, MW = 66, 70, 74, 78
    o(f"{L}_loop:")
    stamp(0)
    if KVCNT is not None:
        lp = o.label("kvok")
        o(f"  v_readfirstlane_b32 s{sT0}, v{vDummy}")
        o(f"  s_cmp_ge_u32 s{sT0}, 128")
        o(f"  s_cbranch_scc1 {lp}")
        o(f"  s_add_u32 s{sT0}, s{sStep}, 1\n  s_min_u32 s{sT0}, s{sT0}, 63\n  s_lshr_b32 s{sT0}, s{sT0}, 2\n  s_lshl_b32 s{sT0}, s{sT0}, 7\n  s_add_u32 s{sT0}, s{sT0}, {KVCNT}")
        o(f"  v_mov_b32 v72, s{sT0}")
        o(f"{lp}_p:\n  buffer_load_dword v73, v72, {WSr}, 0 offen sc1\n  s_waitcnt vmcnt(0)\n  v_readfirstlane_b32 s{sT0}, v73\n  s_add_u32 s{sPoll}, s{sPoll}, 1\n  s_cmp_gt_u32 s{sPoll}, {POLL_LIMIT}\n  s_cbranch_scc1 {L}_bail\n  s_cmp_ge_u32 s{sT0}, 128\n  s_cbranch_scc0 {lp}_p")
        o.put(lp)
    side = []
    if KVPOS == 'qk': side += [f"  s_add_u32 s{sT1}, s{sKoff}, {VBUF-KBUF}",
             f"  buffer_load_dwordx4 {v(vKx,4)}, v{vA}, {WSr}, s{sKoff} offen {KVF}", None,
             f"  buffer_load_dwordx4 {v(vKx+4,4)}, v{vA}, {WSr}, s{sKoff} offen offset:1024 {KVF}", None, None,
             f"  buffer_load_dwordx4 {v(vVx,4)}, v{vA}, {WSr}, s{sT1} offen {KVF}", None, None,
             f"  buffer_load_dwordx4 {v(vVx+4,4)}, v{vA}, {WSr}, s{sT1} offen offset:1024 {KVF}", None]
    side += [f"  v_bfe_u32 v72, v{vA}, 4, 5", f"  v_lshlrev_b32 v72, 6, v72", f"  v_lshrrev_b32 v73, 9, v{vA}", f"  v_lshl_add_u32 v72, v73, 24, v72",
             f"  s_add_u32 s{sKoff}, s{sKoff}, {32*8192}", f"  buffer_load_dword v{vDummy}, v72, {WSr}, s{sKoff} offen {KVF}"]
    side += [f"  v_bfe_u32 v73, v{vA}, 4, 5", f"  v_mul_u32_u24 v73, {H1_PROD}, v73", f"  v_lshrrev_b32 v72, 9, v{vA}", f"  v_lshl_add_u32 v73, v72, 6, v73", f"  v_add_u32 v73, s{sUnit}, v73",
             f"  s_add_u32 s{sT0}, s{sH1ld}, {H1_SLOT}", f"  buffer_load_dword v{vDummy}, v73, {WSr}, s{sT0} offen sc1",
             f"  s_add_u32 s{sT0}, s{sH2pub}, s{sH2tch}", f"  v_lshlrev_b32 v72, 9, v{vA}", f"  s_mov_b64 exec, 3\n  buffer_load_dword v{vDummy}, v72, {WSr}, s{sT0} offen sc1\n  s_mov_b64 exec, -1"]
    if KVCNT is not None:
        side += [f"  s_add_u32 s{sT0}, s{sStep}, 2\n  s_min_u32 s{sT0}, s{sT0}, 63\n  s_lshr_b32 s{sT0}, s{sT0}, 2\n  s_lshl_b32 s{sT0}, s{sT0}, 7",
                 f"  s_add_u32 s{sT0}, s{sT0}, {KVCNT}\n  v_mov_b32 v72, s{sT0}", f"  buffer_load_dword v{vDummy}, v72, {WSr}, 0 offen sc1"]
    side += [f"  v_mov_b32 v70, s{sStep}", f"  v_mov_b32 v71, s{sFlagOff}", f"  s_mov_b64 exec, 1\n  buffer_store_dword v70, v71, {WSr}, 0 offen {PUBF}\n  s_mov_b64 exec, -1"]
    side += [f"  v_add_u32 v{MW}, s{sW256}, v{vM}", f"  v_cndmask_b32 v{MW}, -16, v{MW}, s[{sMaskMw}:{sMaskMw+1}]"]
    NV_AFTER_KV = 4 + (1 if KVCNT is not None else 0)
    side_all = list(side)
    o.c("QK phase: own (register-resident) chunks first, the rest through LDS")
    for wv in range(4):
        if wv < 3:
            o(f"  s_cmp_eq_u32 s{sWv_}, {wv}\n  s_cbranch_scc0 {L}_qk{wv+1}")
        side = list(side_all)
        def pop(n):
            for _ in range(n):
                if side:
                    x = side.pop(0)
                    if x: o(x.replace("{LP}", f"{L}w{wv}"))
        lgq = Cnt(o, "lgkm", 15)
        def dsq(dst, off, tag):
            o(f"  ds_read_b128 {v(dst,4)}, v{vA} offset:{off}"); lgq.issue(tag)
        def qk(c, a_, np_=(1,1,1,1)):
            smf(o, Q0, a_, frag_q(0, c)); pop(np_[0])
            smf(o, Q1, a_, frag_q(1, c)); pop(np_[1])
            smf(o, K0, a_, frag_k(0, c)); pop(np_[2])
            smf(o, K1, a_, frag_k(1, c))
        own = [wv, wv+4] + ([8] if wv == 0 else [])
        rest = [c for c in range(9) if c not in own]
        qk(own[0], W[1])
        o("  s_waitcnt lgkmcnt(0)\n  s_barrier")
        dsq(W[0], L_MEM + 1024*rest[0], "r0"); dsq(W[1], L_MEM + 1024*rest[1], "r1")
        qk(own[1], W[2])
        dsq(W[2], L_MEM + 1024*rest[2], "r2")
        if wv == 0: qk(8, 66)
        for k, c in enumerate(rest):
            lgq.wait(f"r{k}")
            last = (k == len(rest)-1)
            qk(c, W[k % 3], (1, 2 if k >= len(rest)-3 else 1, 0 if last else 1, 0))
            if k + 3 < len(rest): dsq(W[k % 3], L_MEM + 1024*rest[k+3], f"r{k+3}")
            if not last: pop(1)
        while side: pop(1)
        free_order = [(len(rest)-3+i_) % 3 for i_ in range(3)]
        assert sorted(free_order) == [0, 1, 2]
        for sl in range(3):
            o(f"  ds_read_b128 {v(W[sl],4)}, v{vA} offset:{L_MEM + 1024*(6+sl)}")
        if wv < 3:
            o(f"  s_branch {L}_qkd")
            o(f"{L}_qk{wv+1}:")
    o(f"{L}_qkd:")
    lg.issue("V6"); lg.issue("V7"); lg.issue("V8")
    stamp(1)
    o.c("transpose q,k")
    def vpass(c, slot):
        smf(o, V0, W[slot], frag_v(0, c)); smf(o, V1, W[slot], frag_v(1, c))
    nop(o, 2)
    o(f"  v_cvt_pk_bf16_f32 v{T}, v{Q0}, v{Q0+1}")
    o(f"  v_cvt_pk_bf16_f32 v{T+1}, v{Q0+2}, v{Q0+3}")
    o(f"  v_cvt_pk_bf16_f32 v{T+2}, v{Q1}, v{Q1+1}")
    o(f"  v_cvt_pk_bf16_f32 v{T+3}, v{Q1+2}, v{Q1+3}")
    nop(o, 2)
    o(f"  v_cvt_pk_bf16_f32 v{U}, v{K0}, v{K0+1}")
    o(f"  v_mfma_f32_16x16x16_bf16 {v(Q0,4)}, {v(T,2)}, {v(vSel,2)}, 0")
    o(f"  v_cvt_pk_bf16_f32 v{U+1}, v{K0+2}, v{K0+3}")
    o(f"  v_cvt_pk_bf16_f32 v{U+2}, v{K1}, v{K1+1}")
    o(f"  v_mfma_f32_16x16x16_bf16 {v(Q1,4)}, {v(T+2,2)}, {v(vSel,2)}, 0")
    o(f"  v_cvt_pk_bf16_f32 v{U+3}, v{K1+2}, v{K1+3}")
    nop(o, 1)
    o(f"  v_mfma_f32_16x16x16_bf16 {v(K0,4)}, {v(U,2)}, {v(vSel,2)}, 0")
    o(f"  v_mfma_f32_16x16x16_bf16 {v(K1,4)}, {v(U+2,2)}, {v(vSel,2)}, 0")
    lg.wait("V6")
    smf(o, V0, W[0], frag_v(0, 6))
    nop(o, 3)
    o(f"  v_cvt_pk_bf16_f32 v{T}, v{Q0}, v{Q0+1}")
    o(f"  v_cvt_pk_bf16_f32 v{T+1}, v{Q0+2}, v{Q0+3}")
    o(f"  v_cvt_pk_bf16_f32 v{T+2}, v{Q1}, v{Q1+1}")
    o(f"  v_cvt_pk_bf16_f32 v{T+3}, v{Q1+2}, v{Q1+3}")
    smf(o, V1, W[0], frag_v(1, 6))
    dsr(W[0], vA, L_MEM, "B0")
    for i in range(4):
        o(f"  v_mov_b32_dpp v{QS+i}, v{T+i} row_ror:8 row_mask:0xf bank_mask:0xf")
    o(f"  s_waitcnt vmcnt({NV_AFTER_KV})")
    o(f"  v_mfma_f32_16x16x32_bf16 {v(Q0,4)}, {v(vKx,4)}, {v(T,4)}, 0")
    o(f"  v_cvt_pk_bf16_f32 v{U}, v{K0}, v{K0+1}")
    o(f"  v_cvt_pk_bf16_f32 v{U+1}, v{K0+2}, v{K0+3}")
    o(f"  v_mfma_f32_16x16x32_bf16 {v(Q0,4)}, {v(vKx+4,4)}, {v(QS,4)}, {v(Q0,4)}")
    o(f"  v_cvt_pk_bf16_f32 v{U+2}, v{K1}, v{K1+1}")
    o(f"  v_cvt_pk_bf16_f32 v{U+3}, v{K1+2}, v{K1+3}")
    nop(o, 2)
    o(f"  v_mfma_f32_16x16x32_bf16 {v(Q1,4)}, {v(U,4)}, {v(T,4)}, 0")
    lg.wait("V7")
    vpass(7, 1)
    dsr(W[1], vA, L_MEM + 1024, "B1")
    o(f"  ds_write_b128 v{vXw}, {v(Q0,4)} offset:{L_XEX}"); lg.issue("Xw")
    nop(o, 3)
    o(f"  ds_write_b128 v{MW}, {v(Q1,4)}"); lg.issue("Mw")
    o(f"  buffer_store_dwordx4 {v(U,4)}, v{vH1}, {WSr}, s{sKm} offen {PUBK}")
    lg.wait("V8")
    vpass(8, 2)
    dsr(W[2], vA, L_MEM + 2048, "B2")
    lg.wait("B0")
    vpass(0, 0)
    dsr(W[0], vA, L_MEM + 3072, "B3")
    lg.wait("Mw")
    o("  s_barrier")
    stamp(2)
    o.c("exchange reads")
    XP = [Q0, vKx, vKx+4, 74]
    MP = [Q1, 66, 42, 38]
    for k in range(4):
        dsr(XP[k], vA, L_XEX + 1024*k, f"XP{k}")
    for k in range(4):
        dsr(MP[k], vM, L_MEX + 256*k, f"MP{k}")
    lg.wait("B1")
    vpass(1, 1)
    dsr(W[1], vA, L_MEM + 4096, "B4")
    lg.wait("B2")
    vpass(2, 2)
    dsr(W[2], vA, L_MEM + 5120, "B5")
    lg.wait("B3")
    vpass(3, 0)
    lg.wait("XP3")
    for k in range(1, 4):
        o(f"  v_pk_add_f32 {v(Q0,2)}, {v(Q0,2)}, {v(XP[k],2)}")
        o(f"  v_pk_add_f32 {v(Q0+2,2)}, {v(Q0+2,2)}, {v(XP[k]+2,2)}")
    lg.wait("MP3")
    for k in range(1, 4):
        o(f"  v_pk_add_f32 {v(Q1,2)}, {v(Q1,2)}, {v(MP[k],2)}")
        o(f"  v_pk_add_f32 {v(Q1+2,2)}, {v(Q1+2,2)}, {v(MP[k]+2,2)}")
    WIN = [14, 18, 22, 26, 38, 42, 66, 70]
    lds_list = [(tl, kap, frag_o(tl, kap)[1]) for tl in range(9) for kap in range(4)]
    slot_of = {}
    st = dict(issued=0)
    BASE = (vXw, 78, 78)
    def issue_frag():
        n = st['issued']
        if n >= len(lds_list): return
        tl, kap, f = lds_list[n]
        sl = WIN[n % len(WIN)]
        b, imm = lds_frag_addr(f)
        if b == 2 and lds_frag_addr(f-1)[0] == 1:
            o(f"  v_add_u32 v78, 0x10000, v78")
        dsr(sl, BASE[b], imm, f"wo{n}")
        slot_of[(tl, kap)] = (sl, n)
        st['issued'] = n + 1
    o.c("softmax")
    MX, TM = 78, 42
    o(f"  v_max3_f32 v{MX}, v{Q0}, v{Q0+1}, v{Q0+2}")
    o(f"  v_max3_f32 v{TM}, v{Q0+3}, v{Q1}, v{Q1+1}")
    o(f"  v_max3_f32 v{MX}, v{MX}, v{Q1+2}, v{Q1+3}")
    o(f"  v_max_f32 v{MX}, v{MX}, v{TM}")
    lg.wait("B4")
    smf(o, V0, W[1], frag_v(0, 4))
    issue_frag()
    o(f"  v_max_f32_dpp v{MX}, v{MX}, v{MX} row_ror:8 row_mask:0xf bank_mask:0xf")
    smf(o, V1, W[1], frag_v(1, 4))
    o(f"  v_mov_b32 v{TM}, v{MX}")
    issue_frag()
    lg.wait("B5")
    smf(o, V0, W[2], frag_v(0, 5))
    o(f"  v_permlane16_swap_b32 v{MX}, v{TM}")
    o(f"  v_max_f32 v{MX}, v{MX}, v{TM}")
    o(f"  v_mov_b32 v{TM}, v{MX}")
    smf(o, V1, W[2], frag_v(1, 5))
    nop(o, 1)
    o(f"  v_permlane32_swap_b32 v{MX}, v{TM}")
    o(f"  v_max_f32 v{MX}, v{MX}, v{TM}")
    o(f"  v_mul_f32 v{MX}, s{sC}, v{MX}")
    for i in range(8):
        o(f"  v_fma_f32 v{Q0+i}, v{Q0+i}, s{sC}, -v{MX}")
    PX, PM, PXs, LA, LB, VP = 74, 76, 70, 72, 73, 66
    for i in range(8):
        o(f"  v_exp_f32 v{Q0+i}, v{Q0+i}")
    o(f"  v_cvt_pk_bf16_f32 v{VP}, v{V0}, v{V0+1}")
    o(f"  v_cvt_pk_bf16_f32 v{PX}, v{Q0}, v{Q0+1}")
    o(f"  v_cvt_pk_bf16_f32 v{PX+1}, v{Q0+2}, v{Q0+3}")
    o(f"  v_cvt_pk_bf16_f32 v{PM}, v{Q1}, v{Q1+1}")
    o(f"  v_cvt_pk_bf16_f32 v{PM+1}, v{Q1+2}, v{Q1+3}")
    o.c("PV (+ l-sum chain in its shadow)")
    D0, D1 = 38, 42
    o(f"  v_mfma_f32_16x16x16_bf16 {v(D0,4)}, {v(vVx,2)}, {v(PX,2)}, 0")
    o(f"  v_pk_add_f32 {v(LA,2)}, {v(Q0,2)}, {v(Q0+2,2)}")
    o(f"  v_pk_add_f32 {v(Q1,2)}, {v(Q1,2)}, {v(Q1+2,2)}")
    o(f"  v_mfma_f32_16x16x16_bf16 {v(D1,4)}, {v(vVx+4,2)}, {v(PX,2)}, 0")
    o(f"  v_mov_b32_dpp v{PXs}, v{PX} row_ror:8 row_mask:0xf bank_mask:0xf")
    o(f"  v_mov_b32_dpp v{PXs+1}, v{PX+1} row_ror:8 row_mask:0xf bank_mask:0xf")
    o(f"  v_add_f32 v{LA}, v{LA}, v{LB}")
    o(f"  v_add_f32 v{LB}, v{Q1}, v{Q1+1}")
    o(f"  v_cvt_pk_bf16_f32 v{VP+1}, v{V0+2}, v{V0+3}")
    o(f"  v_fmamk_f32 v{LA}, v{LB}, 0x3e800000, v{LA}")
    o(f"  v_mfma_f32_16x16x16_bf16 {v(D0,4)}, {v(vVx+2,2)}, {v(PXs,2)}, {v(D0,4)}")
    o(f"  v_cvt_pk_bf16_f32 v{VP+2}, v{V1}, v{V1+1}")
    o(f"  v_add_f32_dpp v{LA}, v{LA}, v{LA} row_ror:8 row_mask:0xf bank_mask:0xf")
    o(f"  v_mfma_f32_16x16x16_bf16 {v(D1,4)}, {v(vVx+6,2)}, {v(PXs,2)}, {v(D1,4)}")
    o(f"  v_cvt_pk_bf16_f32 v{VP+3}, v{V1+2}, v{V1+3}")
    o(f"  v_mov_b32 v{LB}, v{LA}")
    o(f"  v_mfma_f32_16x16x16_bf16 {v(D0,4)}, {v(VP,2)}, {v(PM,2)}, {v(D0,4)}")
    o(f"  s_add_u32 s{sT3}, s{sKm}, {VM-KM}")
    o(f"  v_permlane16_swap_b32 v{LA}, v{LB}")
    o(f"  v_mfma_f32_16x16x16_bf16 {v(D1,4)}, {v(VP+2,2)}, {v(PM,2)}, {v(D1,4)}")
    o(f"  v_add_f32 v{LA}, v{LA}, v{LB}")
    o(f"  s_cmp_eq_u32 s{sStep}, 63")
    o(f"  v_mov_b32 v{LB}, v{LA}")
    o(f"  s_cbranch_scc1 {L}_done")
    issue_frag()
    o(f"  v_permlane32_swap_b32 v{LA}, v{LB}")
    o(f"  v_add_f32 v{LA}, v{LA}, v{LB}")
    o(f"  v_rcp_f32 v78, v{LA}")
    issue_frag()
    O0 = 70
    nop(o, 2)
    for i in range(0, 8, 2):
        o(f"  v_pk_mul_f32 {v(D0+i,2)}, {v(D0+i,2)}, {v(78,2)} op_sel_hi:[1,0]")
    o(f"  v_cvt_pk_bf16_f32 v{O0}, v{D0}, v{D0+1}")
    o(f"  v_cvt_pk_bf16_f32 v{O0+1}, v{D0+2}, v{D0+3}")
    o(f"  ds_write_b64 v{vOw}, {v(O0,2)}"); lg.issue("Ow0")
    o(f"  v_cvt_pk_bf16_f32 v{O0+2}, v{D1}, v{D1+1}")
    o(f"  v_cvt_pk_bf16_f32 v{O0+3}, v{D1+2}, v{D1+3}")
    o(f"  ds_write_b64 v{vOw}, {v(O0+2,2)} offset:512"); lg.issue("Ow1")
    o(f"  v_add_u32 v78, 0x10000, v{vXw}")
    o(f"  buffer_store_dwordx4 {v(VP,4)}, v{vA}, {WSr}, s{sT3} offen {PUBV}")
    issue_frag(); issue_frag()
    lg.wait("Ow1")
    o("  s_barrier")
    stamp(3)
    o.c("E phase")
    B = [46, 50, 54, 58]
    for k in range(4):
        dsr(B[k], vA, L_OEX + (k//2)*1024 + (k%2)*128, f"ob{k}")
    issue_frag(); issue_frag()
    D = [30, 34]
    PK, PKB = 62, 74
    for tl in range(9):
        post = []
        d = D[tl % 2]
        pend = []
        if tl >= 1:
            prev = tl - 1
            dd = D[prev % 2]; x = prev % 2; p = prev // 2
            pk = PK if p % 2 == 0 else PKB
            pend = [f"  v_cvt_pk_bf16_f32 v{pk+2*x}, v{dd}, v{dd+1}", f"  v_cvt_pk_bf16_f32 v{pk+2*x+1}, v{dd+2}, v{dd+3}"]
            if x == 1 and p % 2 == 1:
                post = ["  s_nop 0"] + [f"  v_mov_b32_dpp v{PK+i}, v{PKB+i} row_ror:8 row_mask:0xf bank_mask:0xc" for i in range(4)]
                post.append(f"  buffer_store_dwordx4 {v(PK,4)}, v{vA}, {WSr}, s{sH1st} offen offset:{1024*(p//2)} {stf}")
            else:
                post = []
        if tl >= 1: lg.wait(f"wo{4*tl+3}")
        for n_ in range(4):
            kap = n_
            if tl == 0: lg.wait(f"ob{kap}")
            sl, n = slot_of[(tl, kap)]
            if tl == 0: lg.wait(f"wo{n}")
            cin = "0" if n_ == 0 else v(d, 4)
            o(f"  v_mfma_f32_16x16x32_bf16 {v(d,4)}, {v(sl,4)}, {v(B[kap],4)}, {cin}")
            issue_frag()
            if n_ == 2 and pend:
                for x_ in pend: o(x_)
                pend = []
            if n_ == 3 and post:
                for x_ in post: o(x_)
                post = []
    for r in range(38, 46): o(f"  v_mov_b32 v{r}, 0")
    d = D[0]
    o(f"  v_cvt_pk_bf16_f32 v{PK}, v{d}, v{d+1}")
    o(f"  v_cvt_pk_bf16_f32 v{PK+1}, v{d+2}, v{d+3}")
    o(f"  buffer_store_dwordx2 {v(PK,2)}, v{vH1}, {WSr}, s{sH1h} offen {stf}")
    assert not lg.q, lg.q
    stamp(4)
    for r in list(range(30, 38)) + list(range(46, 54)): o(f"  v_mov_b32 v{r}, 0")
    nop(o, fdelay)
    o.c("F: reducers")
    o(f"  s_cmp_eq_u32 s{sIsRed}, 0")
    o(f"  s_cbranch_scc1 {L}_cons")
    o(f"  s_add_u32 s{sT1}, s{sH1ld}, {8*H1_PROD}")
    o(f"  s_add_u32 s{sT2}, s{sH1ld}, {16*H1_PROD}")
    o(f"  s_add_u32 s{sT3}, s{sH1ld}, {24*H1_PROD}")
    def f_loads(base):
        for k, so in enumerate((sH1ld, sT1, sT2, sT3)):
            o(f"  buffer_load_dwordx4 {v(base+4*k,4)}, v{vR}, {WSr}, s{so} offen sc1")
    def f_check(base, younger):
        for k in range(4):
            o(f"  s_waitcnt vmcnt({younger+3-k})")
            if timing and k == 3: o("  s_memtime s[66:67]")
            o(f"  v_mfma_f32_16x16x32_bf16 {v(70,4)}, {v(vSelR,4)}, {v(base+4*k,4)}, {'0' if k == 0 else v(70,4)}")
        nop(o, 8)
        o(f"  v_cmp_u_f32 vcc, v70, v70")
    if timing: o("  s_add_u32 s80, s80, 1\n  s_memtime s[64:65]")
    if DUALF:
        f_loads(54)
        nop(o, FSTAG)
        f_loads(14)
        o(f"{L}_ra:")
        f_check(54, 4)
        o(f"  s_cbranch_vccz {L}_rok")
        f_loads(54)
        if timing: o("  s_add_u32 s80, s80, 1\n  s_memtime s[64:65]")
        o(f"  s_add_u32 s{sPoll}, s{sPoll}, 1")
        o(f"  s_cmp_gt_u32 s{sPoll}, {POLL_LIMIT}")
        o(f"  s_cbranch_scc1 {L}_bail")
        f_check(14, 4)
        o(f"  s_cbranch_vccz {L}_rok")
        f_loads(14)
        if timing: o("  s_add_u32 s80, s80, 1\n  s_memtime s[64:65]")
        o(f"  s_branch {L}_ra")
        o(f"{L}_rok:")
    else:
        o(f"{L}_rp:")
        f_loads(54)
        o(f"  s_add_u32 s{sPoll}, s{sPoll}, 1")
        o(f"  s_cmp_gt_u32 s{sPoll}, {POLL_LIMIT}")
        o(f"  s_cbranch_scc1 {L}_bail")
        f_check(54, 0)
        o(f"  s_cbranch_vccnz {L}_rp")
    for i in range(4):
        o(f"  v_add_f32_dpp v{70+i}, v{70+i}, v{70+i} row_ror:8 row_mask:0xf bank_mask:0xf")
    o(f"  v_cvt_pk_bf16_f32 v74, v70, v71")
    o(f"  v_cvt_pk_bf16_f32 v75, v72, v73")
    o(f"  buffer_store_dwordx2 {v(74,2)}, v{vP}, {WSr}, s{sH2pub} offen {stf}")
    o(f"{L}_cons:")
    o(f"  s_barrier")
    stamp(5)
    o.c("A: gather mem(s+1); per-step scalar updates double as the publish->visible delay")
    o(f"  s_add_u32 s{sH2pl}, s{sH2pub}, s{sW1024}")
    o(f"  s_add_u32 s{sT1}, s{sH2pl}, 4096")
    o(f"  s_add_u32 s{sT2}, s{sH2pub}, 8192")
    o(f"  s_add_u32 s{sStep}, s{sStep}, 1")
    for x in [f"  s_add_u32 s{sH1ld}, s{sH1ld}, {H1_SLOT}", f"  s_add_u32 s{sKm}, s{sKm}, {32*4096}",
             f"  s_add_u32 s{sH1st}, s{sH1ld}, s{sH1so}", f"  s_add_u32 s{sH1h}, s{sH1ld}, s{sH1ho}",
             f"  s_add_u32 s{sH2pub}, s{sH2pub}, {H2_SLOT}"]:
        o(x)
    nop(o, adelay)
    o(f"  s_cmp_eq_u32 s{sWv_}, 0")
    o(f"  s_cbranch_scc1 {L}_cp3")
    for n3, sfx in ((2, "cp"), (3, "cp3")):
        S1 = [58, 62, 66][:n3]; S2 = [14, 18, 22][:n3]
        offs = [sH2pl, sT1, sT2][:n3]
        def a_loads(S):
            for r_, so in zip(S, offs):
                o(f"  buffer_load_dwordx4 {v(r_,4)}, v{vA}, {WSr}, s{so} offen sc1")
        def a_check(S, younger):
            o(f"  s_waitcnt vmcnt({younger})")
            if timing: o("  s_memtime s[70:71]")
            o(f"  v_max3_u32 v78, v{S[0]}, v{S[0]+2}, v{S[1]}")
            if n3 == 3:
                o(f"  v_max3_u32 v78, v78, v{S[1]+2}, v{S[2]}")
                o(f"  v_max_u32 v78, v78, v{S[2]+2}")
            else:
                o(f"  v_max_u32 v78, v78, v{S[1]+2}")
            o(f"  v_cmp_eq_u32 vcc, -1, v78")
        def a_writes():
            o(f"  ds_write_b128 v{vXw}, {v(58,4)} offset:{L_MEM}")
            o(f"  ds_write_b128 v{vXw}, {v(62,4)} offset:{L_MEM+4096}")
            if n3 == 3: o(f"  ds_write_b128 v{vA}, {v(66,4)} offset:{L_MEM+8192}")
        o(f"{L}_{sfx}:")
        if timing: o("  s_add_u32 s81, s81, 1\n  s_memtime s[68:69]")
        if DUALA:
            a_loads(S1)
            nop(o, ASTAG)
            a_loads(S2)
            o(f"{L}_{sfx}a:")
            a_check(S1, n3)
            o(f"  s_cbranch_vccz {L}_{sfx}w")
            a_loads(S1)
            if timing: o("  s_add_u32 s81, s81, 1\n  s_memtime s[68:69]")
            o(f"  s_add_u32 s{sPoll}, s{sPoll}, 1")
            o(f"  s_cmp_gt_u32 s{sPoll}, {POLL_LIMIT}")
            o(f"  s_cbranch_scc1 {L}_bail")
            a_check(S2, n3)
            o(f"  s_cbranch_vccz {L}_{sfx}m")
            a_loads(S2)
            if timing: o("  s_add_u32 s81, s81, 1\n  s_memtime s[68:69]")
            o(f"  s_branch {L}_{sfx}a")
            o(f"{L}_{sfx}m:")
            o(f"  ds_write_b128 v{vXw}, {v(S2[0],4)} offset:{L_MEM}")
            o(f"  ds_write_b128 v{vXw}, {v(S2[1],4)} offset:{L_MEM+4096}")
            if n3 == 3: o(f"  ds_write_b128 v{vA}, {v(S2[2],4)} offset:{L_MEM+8192}")
            for r1, r2 in zip(S1, S2):
                for k in range(4): o(f"  v_mov_b32 v{r1+k}, v{r2+k}")
            o(f"  s_branch {L}_cj")
            o(f"{L}_{sfx}w:")
            a_writes()
        else:
            a_loads(S1)
            o(f"  s_add_u32 s{sPoll}, s{sPoll}, 1")
            o(f"  s_cmp_gt_u32 s{sPoll}, {POLL_LIMIT}")
            o(f"  s_cbranch_scc1 {L}_bail")
            a_check(S1, 0)
            o(f"  s_cbranch_vccnz {L}_{sfx}")
            a_writes()
        if n3 == 2: o(f"  s_branch {L}_cj")
    o(f"{L}_cj:")
    if timing: o("  s_memtime s[72:73]")
    if False:
        o(f"  s_add_u32 s{sT1}, s{sKoff}, {VBUF-KBUF}")
        o(f"  buffer_load_dwordx4 {v(vKx,4)}, v{vA}, {WSr}, s{sKoff} offen {KVF}")
        o(f"  buffer_load_dwordx4 {v(vKx+4,4)}, v{vA}, {WSr}, s{sKoff} offen offset:1024 {KVF}")
        o(f"  buffer_load_dwordx4 {v(vVx,4)}, v{vA}, {WSr}, s{sT1} offen {KVF}")
        o(f"  buffer_load_dwordx4 {v(vVx+4,4)}, v{vA}, {WSr}, s{sT1} offen offset:1024 {KVF}")
    if timing:
        lab2 = o.label("nort")
        o(f"  s_memrealtime s[82:83]\n  s_memtime s[98:99]\n  s_waitcnt lgkmcnt(0)")
        o(f"  s_lshl_b32 s{sT0}, s{sH}, 2\n  s_add_u32 s{sT0}, s{sT0}, s{sWv_}\n  s_cmp_eq_u32 s{sT0}, 0\n  s_cbranch_scc0 {lab2}")
        o(f"  s_lshl_b32 s{sT0}, s{sStep}, 3\n  s_add_u32 s{sT0}, s{sT0}, {FLAGS + 0x3000}\n  v_mov_b32 v74, s82\n  v_mov_b32 v75, s98\n  v_mov_b32 v76, s{sT0}\n  buffer_store_dwordx2 v[74:75], v76, {WSr}, 0 offen")
        o.put(lab2)
        lab = o.label("nost")
        o(f"  s_cmp_eq_u32 s{sStep}, 21")
        o(f"  s_cbranch_scc0 {lab}")
        for k, sr in enumerate([86,88,90,92,94,96,98,64,66,68,70,72]):
            o(f"  v_mov_b32 v74, s{sr}")
            o(f"  s_lshl_b32 s{sT0}, s{sH}, 2\n  s_add_u32 s{sT0}, s{sT0}, s{sWv_}\n  s_lshl_b32 s{sT0}, s{sT0}, 6\n  s_add_u32 s{sT0}, s{sT0}, {FLAGS + 4096 + 4*k}")
            o(f"  v_mov_b32 v75, s{sT0}")
            o(f"  buffer_store_dword v74, v75, {WSr}, 0 offen")
        o.put(lab)
    o(f"  s_branch {L}_loop")
    o(f"{L}_bail:")
    o(f"  s_endpgm")
    o(f"{L}_done:")
    o(f"  buffer_store_dwordx4 {v(66,4)}, v{vA}, {WSr}, s{sT3} offen sc1")
    o(f"  s_waitcnt vmcnt(0) lgkmcnt(0)")
    o(f"  s_barrier")
    o(f"  s_cmp_lg_u32 s{sWv_}, 0\n  s_cbranch_scc1 {L}_fin")
    o(f"  v_mov_b32 v78, 64")
    o(f"  v_mov_b32 v77, s{sFlagOff}")
    o(f"  s_mov_b64 exec, 1\n  buffer_store_dword v78, v77, {WSr}, 0 offen sc1\n  s_mov_b64 exec, -1")
    o(f"  s_waitcnt vmcnt(0)")
    o(f"{L}_fin:")

def emit_init(o, L):
    WSr = f"s[{sWS}:{sWS+3}]"
    lab = o.label("noh2")
    o(f"""  s_lshl_b32 s{sT0}, s{sH}, 2
  s_add_u32 s{sT0}, s{sT0}, s{sWv_}
  s_lshl_b32 s{sFlagOff}, s{sH}, 7
  s_add_u32 s{sFlagOff}, s{sFlagOff}, {RFLAG}
  s_cmp_lg_u32 s{sWv_}, 0
  s_cselect_b32 s{sFlagOff}, 0x80000000, s{sFlagOff}
{lab}:""")

def emit_mem0(o, mid=None):
    WSr = f"s[{sWS}:{sWS+3}]"
    o.c("mem0 -> LDS: piece (j=8c+2g+u, t) = mem0[t][8j..8j+8)")
    o(f"""  s_mov_b32 s64, s48
  s_and_b32 s65, s49, 0xffff
  s_mov_b32 s66, 9216
  s_mov_b32 s67, 0x20000
  v_lshrrev_b32 v62, 4, v{vA}         ; lane
  v_and_b32 v63, 7, v62               ; t
  v_lshrrev_b32 v64, 3, v62           ; 2g+u
  v_mul_u32_u24 v63, 1152, v63
  v_lshl_add_u32 v63, v64, 4, v63     ; t*1152 + (2g+u)*16
  s_lshl_b32 s{sT0}, s{sWv_}, 7
  s_add_u32 s{sT1}, s{sT0}, 512
  v_mov_b32 v53, v63
  buffer_load_dwordx4 {v(58,4)}, v53, s[64:67], s{sT0} offen
  buffer_load_dwordx4 {v(62,4)}, v53, s[64:67], s{sT1} offen
  buffer_load_dwordx4 {v(66,4)}, v53, s[64:67], 0 offen offset:1024""")
    if mid: mid()
    o(f"""  s_waitcnt vmcnt(0)
  s_barrier
  ds_write_b128 v{vXw}, {v(58,4)} offset:{L_MEM}
  ds_write_b128 v{vXw}, {v(62,4)} offset:{L_MEM+4096}
  ds_write_b128 v{vA}, {v(66,4)} offset:{L_MEM+8192}""")
    for r in range(30, 54):
        o(f"  v_mov_b32 v{r}, 0")
    o(f"""  s_mov_b32 s{sStep}, 0
  s_mov_b32 s{sPoll}, 0
  s_mov_b32 s80, 0
  s_mov_b32 s81, 0
  s_lshl_b32 s{sKoff}, s{sH}, 13
  s_lshl_b32 s{sT1}, s{sWv_}, 11
  s_add_u32 s{sKoff}, s{sKoff}, s{sT1}
  s_lshl_b32 s{sKm}, s{sH}, 12
  s_add_u32 s{sKm}, s{sKm}, s{sW1024}
  s_add_u32 s{sKm}, s{sKm}, {KM}
  s_mov_b32 s{sH1ld}, {H1}
  s_mul_i32 s{sT1}, s{sH}, {H1_PROD}
  s_lshl_b32 s{sT2}, s{sWv_}, 11
  s_add_u32 s{sH1so}, s{sT1}, s{sT2}
  s_lshr_b32 s{sT2}, s{sWv_}, 1
  s_lshl_b32 s{sT2}, s{sT2}, 10
  s_add_u32 s{sH1ho}, s{sT1}, s{sT2}
  s_add_u32 s{sH1ho}, s{sH1ho}, 8192
  s_and_b32 s{sT2}, s{sWv_}, 1
  s_lshl_b32 s{sT2}, s{sT2}, 3
  s_add_u32 s{sH1ho}, s{sH1ho}, s{sT2}
  s_add_u32 s{sH1st}, s{sH1ld}, s{sH1so}
  s_add_u32 s{sH1h}, s{sH1ld}, s{sH1ho}
  s_mov_b32 s{sH2pub}, {H2 + H2_SLOT}
  v_bfe_u32 v73, v{vA}, 4, 5
  v_mul_u32_u24 v73, {H1_PROD}, v73
  v_add_u32 v73, s{sUnit}, v73
  buffer_load_dword v{vDummy}, v73, {WSr}, s{sH1ld} offen sc1
  s_add_u32 s{sT0}, s{sH2pub}, s{sW1024}
  v_lshlrev_b32 v72, 3, v{vA}
  buffer_load_dword v{vDummy}, v72, {WSr}, s{sT0} offen sc1
  s_add_u32 s{sT1}, s{sKoff}, {VBUF-KBUF}
  buffer_load_dwordx4 {v(vKx,4)}, v{vA}, {WSr}, s{sKoff} offen
  buffer_load_dwordx4 {v(vKx+4,4)}, v{vA}, {WSr}, s{sKoff} offen offset:1024
  buffer_load_dwordx4 {v(vVx,4)}, v{vA}, {WSr}, s{sT1} offen
  buffer_load_dwordx4 {v(vVx+4,4)}, v{vA}, {WSr}, s{sT1} offen offset:1024
  s_waitcnt vmcnt(0) lgkmcnt(0)
  v_mov_b32 v{vDummy}, 128
  s_barrier""")
```

```python
import sys, json
from asmlib import *
import rgen, wgen
from wgen import *
NAME = "sequential_preLN__memory_aug_recurrent_mem_tr__glu_gated_swiglu__prompt"
KN = NAME + "_kernel"
wgen.LDF = "sc1"; rgen.KVF = "sc1"
STF = "sc1"
SPIN = 300000
CNT = FLAGS + 0x4000
C_L1, C_KV, C_Q, C_SI, C_B, C_C, C_L, C_D, C_E = 0, 16, 32, 48, 64, 80, 96, 112, 128
NONE = 0xFFFF
D_T0, D_INIT, D_TB, D_WR, D_QH = 0, 4, 5, 32, 48
NQ = 7
LQ = 163840 - 16
ST_LN1, ST_S, ST_A, ST_B, ST_C, ST_LN2, ST_D, ST_E, ST_F, ST_C2, ST_D2, ST_E2, ST_A1 = range(13)
NST = 13
opts = dict(kv.split("=") for kv in sys.argv[2:])
FD, AD = int(opts.get("fd", 32)), int(opts.get("ad", 16))
TIM = int(opts.get("timing", 0))
for k_, v_ in opts.items():
    if k_.startswith("R_"): setattr(rgen, k_[2:], {"True": True, "False": False, "none": ""}.get(v_, int(v_) if v_.isdigit() else v_))

def item(stage, p0=0, p1=0, p2=0, d1=None, d2=None, sig=NONE):
    enc = lambda d: (NONE << 16) if d is None else ((d[0] << 16) | d[1])
    return [stage | (p0 << 8) | (p1 << 16) | (p2 << 24), enc(d1), enc(d2), sig]

C_RW = 49
def build_items():
    lst = []
    NFAST = int(opts.get("nfast", 3)); NPRE = int(opts.get("npre", 2))
    for rt in range(16):
        gate = (C_RW, 32) if rt >= NPRE else None
        if rt >= 1:
            for i in range(4): lst.append(item(ST_S, 4*rt + i, d2=gate, sig=(16 << 16) | (C_KV + rt)))
        for mat in range(3):
            if rt < NFAST and mat < 2:
                for hd in range(32):
                    lst.append(item(ST_A1, rt, mat, hd, d1=(C_L1 + rt, 4), d2=gate, sig=C_KV + rt))
                continue
            for hg in range(8):
                lst.append(item(ST_A, rt, mat, hg, d1=(C_L1 + rt, 4), d2=(gate if rt >= 1 else None), sig=(4 << 16) | (C_KV + rt if mat < 2 else C_Q + rt)))
    return lst
items = build_items()
NITEMS = len(items)

o = Asm()
L = "K"
o(f".globl {KN}\n.p2align 8\n.type {KN},@function\n{KN}:")
o(f"""  s_cmp_ge_u32 s2, 256
  s_cbranch_scc1 {L}_end
""" + ("  s_memrealtime s[62:63]\n" if TIM else "") + f"""  s_load_dwordx2 s[48:49], s[0:1], 8
  s_load_dwordx2 s[50:51], s[0:1], 16
  s_load_dwordx2 s[52:53], s[0:1], 24
  s_load_dwordx2 s[54:55], s[0:1], 32
  s_load_dwordx2 s[56:57], s[0:1], 40
  s_load_dwordx2 s[58:59], s[0:1], 104
  s_load_dwordx2 s[60:61], s[0:1], 96
  s_getreg_b32 s3, hwreg(HW_REG_XCC_ID)
  s_and_b32 s3, s3, 0xf
  v_lshrrev_b32 v1, 6, v0
  s_nop 1
  v_readfirstlane_b32 s13, v1
  v_and_b32 v0, 63, v0
  s_waitcnt lgkmcnt(0)
  s_mov_b32 s8, s58
  s_and_b32 s9, s59, 0xffff
  s_mov_b32 s10, {WS_USED}
  s_mov_b32 s11, 0x20000
  ; ---- workgroup 0 zeroes the counters and the recurrence flags
  s_cmp_eq_u32 s2, 0
  s_cbranch_scc0 {L}_noinit
  s_cmp_eq_u32 s13, 0
  s_cbranch_scc0 {L}_noinit
  v_lshlrev_b32 v1, 4, v0
  v_mov_b32 v4, 0
  v_mov_b32 v5, 0
  v_mov_b32 v6, 0
  v_mov_b32 v7, 0""")
for i in range(20):
    o(f"  s_mov_b32 s25, {CNT + 1024*i}\n  buffer_store_dwordx4 v[4:7], v1, s[8:11], s25 offen sc1")
for i in range(4):
    o(f"  s_mov_b32 s25, {RFLAG + 1024*i}\n  buffer_store_dwordx4 v[4:7], v1, s[8:11], s25 offen sc1")
def bcast(o, sreg, lab):
    o(f"""  v_mov_b32 v4, {LQ}
  v_mov_b32 v2, s{sreg}
  s_mov_b64 exec, 1
  ds_write_b32 v4, v2
  s_waitcnt lgkmcnt(0)
  s_mov_b64 exec, -1
{lab}:
  s_barrier
  v_mov_b32 v4, {LQ}
  ds_read_b32 v2, v4
  s_waitcnt lgkmcnt(0)
  v_readfirstlane_b32 s{sreg}, v2
  s_barrier""")
o(f"""  s_waitcnt vmcnt(0)
  s_mov_b32 s26, 1
  s_atomic_add s26, s[60:61], {4*D_INIT}
  s_waitcnt lgkmcnt(0)
{L}_noinit:
  s_cmp_eq_u32 s3, 0
  s_cbranch_scc0 {L}_worker
  s_cmp_eq_u32 s13, 0
  s_cbranch_scc0 {L}_t1
  s_mov_b32 s12, 1
  s_atomic_add s12, s[60:61], {4*D_T0} glc
  s_waitcnt lgkmcnt(0)""")
bcast(o, 12, f"{L}_t1")
o(f"""  s_cmp_lt_u32 s12, 32
  s_cbranch_scc0 {L}_worker
{L}_R:
""")
if TIM: o(f"  s_memrealtime s[64:65]\n  s_waitcnt lgkmcnt(0)\n  v_mov_b32 v10, s62\n  v_mov_b32 v11, s64\n  s_lshl_b32 s25, s12, 3\n  s_add_u32 s25, s25, {FLAGS + 0x60000}\n  v_mov_b32 v12, s25\n  buffer_store_dwordx2 v[10:11], v12, s[8:11], 0 offen")
def poll_ge(o, off_expr_sgpr_or_imm, target, base="ws", label="pg"):
    lp = o.label(label)
    o("  s_mov_b32 s24, 0")
    if base == "ws":
        o(f"  v_mov_b32 v76, {off_expr_sgpr_or_imm}\n{lp}:\n  buffer_load_dword v77, v76, s[8:11], 0 offen sc1")
    else:
        o(f"  v_mov_b32 v76, {off_expr_sgpr_or_imm}\n{lp}:\n  global_load_dword v77, v76, s[60:61] sc1")
    o(f"  s_waitcnt vmcnt(0)\n  v_readfirstlane_b32 s25, v77\n  s_cmp_ge_u32 s25, {target}\n  s_cbranch_scc1 {lp}_ok\n  s_sleep 4\n  s_add_u32 s24, s24, 1\n  s_cmp_lt_u32 s24, {SPIN}\n  s_cbranch_scc1 {lp}\n  s_endpgm\n{lp}_ok:")
rgen.emit_consts(o)
rgen.emit_init(o, "R")
rgen.emit_weights(o)
if TIM: o(f"  s_memrealtime s[62:63]\n  s_waitcnt lgkmcnt(0)\n  v_mov_b32 v66, s62\n  s_lshl_b32 s25, s12, 2\n  s_add_u32 s25, s25, {FLAGS + 0x61000}\n  v_mov_b32 v67, s25\n  buffer_store_dword v66, v67, s[8:11], 0 offen")
def r_polls():
    o(f"""  s_mov_b32 s24, 0
R_pi:
  s_load_dword s25, s[60:61], {4*D_INIT} glc
  s_add_u32 s24, s24, 1
  s_cmp_gt_u32 s24, {SPIN*4}
  s_cbranch_scc1 R_bail
  s_waitcnt lgkmcnt(0)
  s_cmp_ge_u32 s25, 1
  s_cbranch_scc0 R_pi
  s_add_u32 s62, s58, {CNT}
  s_addc_u32 s63, s59, 0
  s_cmp_eq_u32 s13, 0
  s_cbranch_scc0 R_pk
  s_mov_b32 s25, 1
  s_atomic_add s25, s[62:63], {128*C_RW}
R_pk:
  s_load_dword s26, s[62:63], {128*C_KV} glc
  s_add_u32 s24, s24, 1
  s_cmp_gt_u32 s24, {SPIN*4}
  s_cbranch_scc1 R_bail
  s_waitcnt lgkmcnt(0)
  s_cmp_ge_u32 s26, 128
  s_cbranch_scc0 R_pk""")
rgen.KVCNT = CNT + 128*C_KV
rgen.emit_mem0(o, r_polls)
o(f"""  s_load_dword s25, s[60:61], {4*D_T0} glc
  s_waitcnt lgkmcnt(0)
  s_cmp_ge_u32 s25, 32
  s_cbranch_scc0 RS_entry""")
rgen.emit_loop(o, "R", "", bool(TIM), FD, AD)
o(f"  s_branch {L}_end")
o("RS_entry:")
rgen.emit_loop(o, "RS", "sc1", False, FD, AD)
o(f"  s_branch {L}_end")
def sig_now(o):
    lab = o.label("sg")
    o(f"""  s_and_b32 s52, s50, 0xffff
  s_cmp_eq_u32 s52, {NONE}
  s_cbranch_scc1 {lab}
  s_cmp_eq_u32 s13, 0
  s_cbranch_scc0 {lab}
  s_lshl_b32 s52, s52, 7
  s_add_u32 s52, s56, s52
  s_addc_u32 s53, s57, 0
  s_lshr_b32 s54, s50, 16
  s_max_u32 s54, s54, 1
  s_atomic_add s54, s[52:53], 0
{lab}:
  s_mov_b32 s50, {NONE}""")
def flush(o):
    o("  s_waitcnt vmcnt(0) lgkmcnt(0)\n  s_barrier")
    sig_now(o)
wgen.HOOK = None
o(f"""{L}_worker:
  s_load_dwordx2 s[{P_X}:{P_X+1}], s[0:1], 0
  s_load_dwordx2 s[{P_WQ}:{P_WQ+1}], s[0:1], 16
  s_load_dwordx2 s[{P_WK}:{P_WK+1}], s[0:1], 24
  s_load_dwordx2 s[{P_WV}:{P_WV+1}], s[0:1], 32
  s_load_dwordx2 s[{P_WO}:{P_WO+1}], s[0:1], 40
  s_load_dwordx2 s[{P_W1}:{P_W1+1}], s[0:1], 64
  s_load_dwordx2 s[{P_W3}:{P_W3+1}], s[0:1], 72
  s_load_dwordx2 s[{P_W2}:{P_W2+1}], s[0:1], 80
  s_load_dwordx2 s[{P_OUT}:{P_OUT+1}], s[0:1], 88
  s_load_dwordx2 s[56:57], s[0:1], 104
  s_getpc_b64 s[40:41]
{L}_pc:
  s_add_u32 s40, s40, {L}_items-{L}_pc
  s_addc_u32 s41, s41, 0
  s_mov_b32 s42, 0
  s_mov_b32 s50, {NONE}
  s_cmp_eq_u32 s13, 0
  s_cbranch_scc0 {L}_wr1
  s_mov_b32 s33, 1
  s_atomic_add s33, s[60:61], {4*D_WR} glc
  s_waitcnt lgkmcnt(0)""")
bcast(o, 33, f"{L}_wr1")
o(f"""  s_waitcnt lgkmcnt(0)
  s_add_u32 s56, s56, {CNT}
  s_addc_u32 s57, s57, 0
  ; more than 224 workers: XCC 0 did not receive 32 workgroups; the surplus completes the recurrence team
  s_cmp_lt_u32 s33, 224
  s_cbranch_scc1 {L}_w0
  s_mov_b32 s24, 0
{L}_an:
  s_load_dword s25, s[60:61], {4*D_T0} glc
  s_load_dword s26, s[60:61], {4*D_WR} glc
  s_waitcnt lgkmcnt(0)
  s_add_u32 s27, s25, s26
  s_cmp_ge_u32 s27, 256
  s_cbranch_scc1 {L}_an1
  s_sleep 4
  s_add_u32 s24, s24, 1
  s_cmp_lt_u32 s24, {SPIN}
  s_cbranch_scc1 {L}_an
  s_endpgm
{L}_an1:
  s_sub_u32 s12, s33, 224
  s_add_u32 s12, s12, s25
  v_mbcnt_lo_u32_b32 v0, -1, 0
  v_mbcnt_hi_u32_b32 v0, -1, v0
  s_load_dwordx2 s[48:49], s[0:1], 8
  s_load_dwordx2 s[50:51], s[0:1], 16
  s_load_dwordx2 s[52:53], s[0:1], 24
  s_load_dwordx2 s[54:55], s[0:1], 32
  s_load_dwordx2 s[56:57], s[0:1], 40
  s_waitcnt lgkmcnt(0)
  s_branch {L}_R
{L}_w0:
  ; first unit is static: rank < 64 -> LN1, < 128 -> sentinel fill
  v_mbcnt_lo_u32_b32 v0, -1, 0
  v_mbcnt_hi_u32_b32 v0, -1, v0
  s_add_u32 s43, s33, {NITEMS}
""" + ("  s_memrealtime s[36:37]\n" if TIM else "") + f"""  s_cmp_lt_u32 s33, 68
  s_cbranch_scc0 {L}_pop
  s_cmp_lt_u32 s33, 64
  s_cbranch_scc0 {L}_wS
  s_mov_b32 s20, s33
  s_lshr_b32 s47, s33, 2
  s_add_u32 s47, s47, {C_L1}
  s_branch {L}_st{ST_LN1}
{L}_wS:
  s_sub_u32 s20, s33, 64
  s_mov_b32 s47, {(16 << 16) | C_KV}
  s_branch {L}_st{ST_S}
{L}_pop:
  s_cmp_eq_u32 s13, 0
  s_cbranch_scc0 {L}_n1
  s_mov_b32 s43, 1
  s_atomic_add s43, s[60:61], {4*D_QH} glc
  s_waitcnt lgkmcnt(0)
  v_mov_b32 v4, {LQ}
  v_mov_b32 v2, s43
  s_mov_b64 exec, 1
  ds_write_b32 v4, v2
  s_waitcnt lgkmcnt(0)
  s_mov_b64 exec, -1
{L}_n1:
  s_waitcnt vmcnt(0) lgkmcnt(0)
  s_barrier
  v_mov_b32 v4, {LQ}
  ds_read_b32 v2, v4
  s_waitcnt lgkmcnt(0)
  v_readfirstlane_b32 s43, v2
  s_barrier
  ; the previous unit's stores are acknowledged in every wave: signal it (after init is known to be done)
  s_cmp_eq_u32 s42, 1
  s_cbranch_scc1 {L}_i1""")
poll_ge(o, 4*D_INIT, 1, base="dbg")
o(f"  s_mov_b32 s42, 1\n{L}_i1:")
sig_now(o)
o(f"""  s_cmp_lt_u32 s43, {NITEMS}
  s_cbranch_scc0 {L}_roles
  s_lshl_b32 s25, s43, 4
  s_load_dwordx4 s[44:47], s[40:41], s25
  s_waitcnt lgkmcnt(0)
  s_cmp_eq_u32 s13, 0
  s_cbranch_scc0 {L}_d2""")
for w in (45, 46):
    lp = o.label("dep")
    o(f"""  s_lshr_b32 s26, s{w}, 16
  s_cmp_eq_u32 s26, {NONE}
  s_cbranch_scc1 {lp}_ok
  s_lshl_b32 s26, s26, 7
  s_add_u32 s26, s26, {CNT}
  s_and_b32 s27, s{w}, 0xffff
  v_mov_b32 v76, s26
  s_mov_b32 s24, 0
{lp}:
  buffer_load_dword v77, v76, s[8:11], 0 offen sc1
  s_waitcnt vmcnt(0)
  v_readfirstlane_b32 s25, v77
  s_cmp_ge_u32 s25, s27
  s_cbranch_scc1 {lp}_ok
  s_sleep 4
  s_add_u32 s24, s24, 1
  s_cmp_lt_u32 s24, {SPIN}
  s_cbranch_scc1 {lp}
  s_endpgm
{lp}_ok:""")
o(f"""{L}_d2:
  s_barrier
  v_mbcnt_lo_u32_b32 v0, -1, 0
  v_mbcnt_hi_u32_b32 v0, -1, v0
  s_bfe_u32 s20, s44, 0x80008
  s_bfe_u32 s21, s44, 0x80010
  s_lshr_b32 s22, s44, 24
  s_and_b32 s25, s44, 0xff""")
if TIM:
    o("  s_memrealtime s[36:37]")
o(f"  s_cmp_eq_u32 s25, {ST_A}\n  s_cbranch_scc1 {L}_st{ST_A}\n  s_cmp_eq_u32 s25, {ST_S}\n  s_cbranch_scc1 {L}_st{ST_S}\n  s_branch {L}_st{ST_A1}")
def stage_wrap(st, body, pre_flush=False):
    o(f"{L}_st{st}:")
    body()
    o(f"  s_branch {L}_sig")
stage_wrap(ST_LN1, lambda: stage_ln(o, 'x', STF), True)
stage_wrap(ST_S, lambda: stage_s(o, STF), True)
stage_wrap(ST_A, lambda: stage_a2(o, STF, 4))
stage_wrap(ST_A1, lambda: stage_a2(o, STF, 1))
o(f"{L}_sig:")
if TIM:
    o(f"""  s_cmp_eq_u32 s13, 0
  s_cbranch_scc0 {L}_not
  s_memrealtime s[38:39]
  s_waitcnt lgkmcnt(0)
  v_mov_b32 v4, s36
  v_mov_b32 v5, s38
  s_lshl_b32 s25, s43, 3
  s_add_u32 s25, s25, {FLAGS + 0x40000}
  v_mov_b32 v6, s25
  buffer_store_dwordx2 v[4:5], v6, s[8:11], 0 offen
{L}_not:""")
o(f"""  s_mov_b32 s50, s47
  s_branch {L}_pop""")

TIMB = (FLAGS + 0x50000) if TIM else None
def lane(o): o("  v_mbcnt_lo_u32_b32 v0, -1, 0\n  v_mbcnt_hi_u32_b32 v0, -1, v0")
o(f"{L}_roles:")
o(f"""{L}_ri:
  s_cmp_lt_u32 s33, 32
  s_cbranch_scc1 {L}_rB
  s_cmp_lt_u32 s33, 64
  s_cbranch_scc1 {L}_rC4
  s_cmp_lt_u32 s33, 72
  s_cbranch_scc1 {L}_rC2
  s_cmp_lt_u32 s33, 88
  s_cbranch_scc1 {L}_rL
  s_cmp_lt_u32 s33, 160
  s_cbranch_scc1 {L}_rD
  s_cmp_lt_u32 s33, 192
  s_cbranch_scc1 {L}_rE4
  s_cmp_lt_u32 s33, 200
  s_cbranch_scc1 {L}_rE2
  s_cmp_lt_u32 s33, 216
  s_cbranch_scc1 {L}_rF
  s_branch {L}_end""")
def mkloop(name, dep, tgt, sig):
    return lambda body: role_loop(o, name, dep, tgt, sig, CNT, NONE, body, SPIN*4, TIMB)
o(f"{L}_rB:")
def b_body():
    lane(o)
    lp = o.label("bq")
    o(f"""  s_lshl_b32 s25, s32, 7
  s_add_u32 s25, s25, {CNT + 128*C_Q}
  v_mov_b32 v250, s25
  s_mov_b32 s24, 0
{lp}:
  buffer_load_dword v251, v250, s[8:11], 0 offen sc1
  s_waitcnt vmcnt(0)
  v_readfirstlane_b32 s25, v251
  s_cmp_ge_u32 s25, 32
  s_cbranch_scc1 {lp}_ok
  s_add_u32 s24, s24, 1
  s_cmp_lt_u32 s24, {SPIN*4}
  s_cbranch_scc1 {lp}
  s_endpgm
{lp}_ok:
  s_lshr_b32 s20, s33, 3
  s_lshl_b32 s25, s32, 2
  s_add_u32 s20, s20, s25              ; seg = 4g + r/8
  s_and_b32 s21, s33, 7
  s_lshl_b32 s21, s21, 2
  s_add_u32 s21, s21, s13              ; head""")
    stage_b(o, STF, wait_r=True)
mkloop("RB", C_KV, 128, C_B)(b_body)
o(f"  s_branch {L}_end")
for nm, which, base4, base2, dep, tgt, sig in (("C", 'C', 32, 64, C_B, 32, C_C), ("E", 'E', 160, 192, C_D, 72, C_E)):
    o(f"{L}_r{nm}4:")
    lane(o)
    o(f"  s_sub_u32 s25, s33, {base4}\n  s_lshr_b32 s28, s25, 3\n  s_lshl_b32 s28, s28, 2\n  s_and_b32 s23, s25, 7")
    role_ce(o, which, 4, STF, mkloop(f"R{nm}4", dep, tgt, sig))
    o(f"  s_branch {L}_end")
    o(f"{L}_r{nm}2:")
    lane(o)
    o(f"  s_mov_b32 s28, 16\n  s_sub_u32 s23, s33, {base2}")
    role_ce(o, which, 2, STF, mkloop(f"R{nm}2", dep, tgt, sig))
    o(f"  s_branch {L}_end")
for nm, base, dep, tgt, sig, fn in (("L", 72, C_C, 40, C_L, lambda: stage_ln2b(o, STF)), ("F", 200, C_E, 40, None, lambda: stage_fb(o))):
    o(f"{L}_r{nm}:")
    def body(base=base, fn=fn):
        lane(o)
        o(f"  s_sub_u32 s25, s33, {base}\n  s_lshr_b32 s20, s25, 2\n  s_lshl_b32 s26, s32, 2\n  s_add_u32 s20, s20, s26\n  s_and_b32 s21, s25, 3")
        fn()
    mkloop(f"R{nm}", dep, tgt, sig)(body)
    o(f"  s_branch {L}_end")
o(f"{L}_rD:")
lane(o)
o(f"  s_sub_u32 s28, s33, 88")
role_d(o, STF, mkloop("RD", C_L, 16, C_D))
o(f"""{L}_end:
  s_waitcnt vmcnt(0) lgkmcnt(0)
  s_endpgm
.p2align 6
{L}_items:""")
for x in items:
    o("  .long " + ", ".join(hex(w) for w in x))
kd = f"""
.section .rodata,"a"
.p2align 6
.amdhsa_kernel {KN}
  .amdhsa_next_free_vgpr 512
  .amdhsa_next_free_sgpr 102
  .amdhsa_accum_offset 256
  .amdhsa_group_segment_fixed_size 0
  .amdhsa_kernarg_size 112
  .amdhsa_user_sgpr_count 2
  .amdhsa_user_sgpr_kernarg_segment_ptr 1
  .amdhsa_system_sgpr_workgroup_id_x 1
.end_amdhsa_kernel
"""
hdr = open("cdna_kernels/" + NAME + ".s.ref").read().split("; Override launch")[0]
body = '\n'.join(l.split(';')[0].strip() for l in o.text().split('\n') if l.split(';')[0].strip()) + '\n'
txt = hdr + "; @launch grid=(256,1,1) block=(256,1,1) lds=163840\n" + '.amdgcn_target "amdgcn-amd-amdhsa--gfx950"\n.text\n' + body + kd
out = sys.argv[1] if len(sys.argv) > 1 else "fused.s"
open(out, "w").write(txt)
json.dump([(KN, 256, 163840)], open(out.replace(".s", ".json"), "w"))
json.dump(items + [item(ST_LN1, r) if r < 64 else item(ST_S, r-64) for r in range(68)], open("items.json", "w"))
print("items", NITEMS, "bytes", len(txt))
```

```python
import sys, json
from asmlib import *
import rgen, wgen
from wgen import *
NAME = "sequential_preLN__memory_aug_recurrent_mem_tr__glu_gated_swiglu__prompt"
KN = NAME + "_kernel"
wgen.LDF = "sc1"; rgen.KVF = "sc1"
STF = "sc1"
SPIN = 300000
CNT = FLAGS + 0x4000
C_L1, C_KV, C_Q, C_SI, C_B, C_C, C_L, C_D, C_E = 0, 16, 32, 48, 64, 80, 96, 112, 128
NONE = 0xFFFF
D_T0, D_INIT, D_TB, D_WR, D_QH = 0, 4, 5, 32, 48
NQ = 7
LQ = 163840 - 16
ST_LN1, ST_S, ST_A, ST_B, ST_C, ST_LN2, ST_D, ST_E, ST_F, ST_C2, ST_D2, ST_E2, ST_A1 = range(13)
NST = 13
opts = dict(kv.split("=") for kv in sys.argv[2:])
FD, AD = int(opts.get("fd", 32)), int(opts.get("ad", 16))
TIM = int(opts.get("timing", 0))
for k_, v_ in opts.items():
    if k_.startswith("R_"): setattr(rgen, k_[2:], {"True": True, "False": False, "none": ""}.get(v_, int(v_) if v_.isdigit() else v_))

def item(stage, p0=0, p1=0, p2=0, d1=None, d2=None, sig=NONE):
    enc = lambda d: (NONE << 16) if d is None else ((d[0] << 16) | d[1])
    return [stage | (p0 << 8) | (p1 << 16) | (p2 << 24), enc(d1), enc(d2), sig]

C_RW = 49
def build_items():
    qs = [[] for _ in range(NQ)]
    NFAST = int(opts.get("nfast", 4)); NPRE = int(opts.get("npre", 2))
    rr = 0
    for rt in range(16):
        gate = (C_RW, 32) if rt >= NPRE else None
        if rt >= 1:
            for i in range(4):
                qs[rr % NQ].append(item(ST_S, 4*rt + i, d2=gate, sig=(16 << 16) | (C_KV + rt))); rr += 1
        for mat in range(3):
            if rt < NFAST and mat < 2:
                for hd in range(32):
                    qs[(mat*8 + hd//4) % NQ].append(item(ST_A1, rt, mat, hd, d1=(C_L1 + rt, 4), d2=gate, sig=C_KV + rt))
                continue
            for hg in range(8):
                qs[(mat*8 + hg) % NQ].append(item(ST_A, rt, mat, hg, d1=(C_L1 + rt, 4), d2=(gate if rt >= 1 else None), sig=(4 << 16) | (C_KV + rt if mat < 2 else C_Q + rt)))
    return qs
queues = build_items()
if int(opts.get("oneq", 0)):
    allq = sorted([x for q in queues for x in q], key=lambda x: ((x[0] >> 8) & 0xff if (x[0] & 0xff) != ST_S else ((x[0] >> 8) & 0xff) // 4))
    queues = [allq] + [[] for _ in range(NQ-1)]
items = [x for q in queues for x in q]
qstart = [sum(len(q) for q in queues[:k]) for k in range(NQ)]
NITEMS = len(items)

o = Asm()
L = "K"
o(f".globl {KN}\n.p2align 8\n.type {KN},@function\n{KN}:")
o(f"""  s_cmp_ge_u32 s2, 256
  s_cbranch_scc1 {L}_end
""" + ("  s_memrealtime s[62:63]\n" if TIM else "") + f"""  s_load_dwordx2 s[48:49], s[0:1], 8
  s_load_dwordx2 s[50:51], s[0:1], 16
  s_load_dwordx2 s[52:53], s[0:1], 24
  s_load_dwordx2 s[54:55], s[0:1], 32
  s_load_dwordx2 s[56:57], s[0:1], 40
  s_load_dwordx2 s[58:59], s[0:1], 104
  s_load_dwordx2 s[60:61], s[0:1], 96
  s_getreg_b32 s3, hwreg(HW_REG_XCC_ID)
  s_and_b32 s3, s3, 0xf
  v_lshrrev_b32 v1, 6, v0
  s_nop 1
  v_readfirstlane_b32 s13, v1
  v_and_b32 v0, 63, v0
  s_waitcnt lgkmcnt(0)
  s_mov_b32 s8, s58
  s_and_b32 s9, s59, 0xffff
  s_mov_b32 s10, {WS_USED}
  s_mov_b32 s11, 0x20000
  ; ---- workgroup 0 zeroes the counters and the recurrence flags
  s_cmp_eq_u32 s2, 0
  s_cbranch_scc0 {L}_noinit
  s_cmp_eq_u32 s13, 0
  s_cbranch_scc0 {L}_noinit
  v_lshlrev_b32 v1, 4, v0
  v_mov_b32 v4, 0
  v_mov_b32 v5, 0
  v_mov_b32 v6, 0
  v_mov_b32 v7, 0""")
for i in range(20):
    o(f"  s_mov_b32 s25, {CNT + 1024*i}\n  buffer_store_dwordx4 v[4:7], v1, s[8:11], s25 offen sc1")
for i in range(4):
    o(f"  s_mov_b32 s25, {RFLAG + 1024*i}\n  buffer_store_dwordx4 v[4:7], v1, s[8:11], s25 offen sc1")
def bcast(o, sreg, lab):
    o(f"""  v_mov_b32 v4, {LQ}
  v_mov_b32 v2, s{sreg}
  s_mov_b64 exec, 1
  ds_write_b32 v4, v2
  s_waitcnt lgkmcnt(0)
  s_mov_b64 exec, -1
{lab}:
  s_barrier
  v_mov_b32 v4, {LQ}
  ds_read_b32 v2, v4
  s_waitcnt lgkmcnt(0)
  v_readfirstlane_b32 s{sreg}, v2
  s_barrier""")
o(f"""  s_waitcnt vmcnt(0)
  s_mov_b32 s26, 1
  s_atomic_add s26, s[60:61], {4*D_INIT}
  s_waitcnt lgkmcnt(0)
{L}_noinit:
  s_cmp_eq_u32 s3, 0
  s_cbranch_scc0 {L}_worker
  s_cmp_eq_u32 s13, 0
  s_cbranch_scc0 {L}_t1
  s_mov_b32 s12, 1
  s_atomic_add s12, s[60:61], {4*D_T0} glc
  s_waitcnt lgkmcnt(0)""")
bcast(o, 12, f"{L}_t1")
o(f"""  s_cmp_lt_u32 s12, 32
  s_cbranch_scc0 {L}_worker
{L}_R:
""")
if TIM: o(f"  s_memrealtime s[64:65]\n  s_waitcnt lgkmcnt(0)\n  v_mov_b32 v10, s62\n  v_mov_b32 v11, s64\n  s_lshl_b32 s25, s12, 3\n  s_add_u32 s25, s25, {FLAGS + 0x60000}\n  v_mov_b32 v12, s25\n  buffer_store_dwordx2 v[10:11], v12, s[8:11], 0 offen")
def poll_ge(o, off_expr_sgpr_or_imm, target, base="ws", label="pg"):
    lp = o.label(label)
    o("  s_mov_b32 s24, 0")
    if base == "ws":
        o(f"  v_mov_b32 v76, {off_expr_sgpr_or_imm}\n{lp}:\n  buffer_load_dword v77, v76, s[8:11], 0 offen sc1")
    else:
        o(f"  v_mov_b32 v76, {off_expr_sgpr_or_imm}\n{lp}:\n  global_load_dword v77, v76, s[60:61] sc1")
    o(f"  s_waitcnt vmcnt(0)\n  v_readfirstlane_b32 s25, v77\n  s_cmp_ge_u32 s25, {target}\n  s_cbranch_scc1 {lp}_ok\n  s_sleep 4\n  s_add_u32 s24, s24, 1\n  s_cmp_lt_u32 s24, {SPIN}\n  s_cbranch_scc1 {lp}\n  s_endpgm\n{lp}_ok:")
rgen.emit_consts(o)
rgen.emit_init(o, "R")
rgen.emit_weights(o)
if TIM: o(f"  s_memrealtime s[62:63]\n  s_waitcnt lgkmcnt(0)\n  v_mov_b32 v66, s62\n  s_lshl_b32 s25, s12, 2\n  s_add_u32 s25, s25, {FLAGS + 0x61000}\n  v_mov_b32 v67, s25\n  buffer_store_dword v66, v67, s[8:11], 0 offen")
def r_polls():
    o(f"""  s_mov_b32 s24, 0
R_pi:
  s_load_dword s25, s[60:61], {4*D_INIT} glc
  s_add_u32 s24, s24, 1
  s_cmp_gt_u32 s24, {SPIN*4}
  s_cbranch_scc1 R_bail
  s_waitcnt lgkmcnt(0)
  s_cmp_ge_u32 s25, 1
  s_cbranch_scc0 R_pi
  s_add_u32 s62, s58, {CNT}
  s_addc_u32 s63, s59, 0
  s_cmp_eq_u32 s13, 0
  s_cbranch_scc0 R_pk
  s_mov_b32 s25, 1
  s_atomic_add s25, s[62:63], {128*C_RW}
R_pk:
  s_load_dword s26, s[62:63], {128*C_KV} glc
  s_add_u32 s24, s24, 1
  s_cmp_gt_u32 s24, {SPIN*4}
  s_cbranch_scc1 R_bail
  s_waitcnt lgkmcnt(0)
  s_cmp_ge_u32 s26, 128
  s_cbranch_scc0 R_pk""")
rgen.KVCNT = CNT + 128*C_KV
rgen.emit_mem0(o, r_polls)
o(f"""  s_load_dword s25, s[60:61], {4*D_T0} glc
  s_waitcnt lgkmcnt(0)
  s_cmp_ge_u32 s25, 32
  s_cbranch_scc0 RS_entry""")
rgen.emit_loop(o, "R", "", bool(TIM), FD, AD)
o(f"  s_branch {L}_end")
o("RS_entry:")
rgen.emit_loop(o, "RS", "sc1", False, FD, AD)
o(f"  s_branch {L}_end")
def sig_now(o):
    lab = o.label("sg")
    o(f"""  s_and_b32 s52, s50, 0xffff
  s_cmp_eq_u32 s52, {NONE}
  s_cbranch_scc1 {lab}
  s_cmp_eq_u32 s13, 0
  s_cbranch_scc0 {lab}
  s_lshl_b32 s52, s52, 7
  s_add_u32 s52, s56, s52
  s_addc_u32 s53, s57, 0
  s_lshr_b32 s54, s50, 16
  s_max_u32 s54, s54, 1
  s_atomic_add s54, s[52:53], 0
{lab}:
  s_mov_b32 s50, {NONE}""")
def flush(o):
    o("  s_waitcnt vmcnt(0) lgkmcnt(0)\n  s_barrier")
    sig_now(o)
wgen.HOOK = None
o(f"""{L}_worker:
  s_load_dwordx2 s[{P_X}:{P_X+1}], s[0:1], 0
  s_load_dwordx2 s[{P_WQ}:{P_WQ+1}], s[0:1], 16
  s_load_dwordx2 s[{P_WK}:{P_WK+1}], s[0:1], 24
  s_load_dwordx2 s[{P_WV}:{P_WV+1}], s[0:1], 32
  s_load_dwordx2 s[{P_WO}:{P_WO+1}], s[0:1], 40
  s_load_dwordx2 s[{P_W1}:{P_W1+1}], s[0:1], 64
  s_load_dwordx2 s[{P_W3}:{P_W3+1}], s[0:1], 72
  s_load_dwordx2 s[{P_W2}:{P_W2+1}], s[0:1], 80
  s_load_dwordx2 s[{P_OUT}:{P_OUT+1}], s[0:1], 88
  s_load_dwordx2 s[56:57], s[0:1], 104
  s_getpc_b64 s[40:41]
{L}_pc:
  s_add_u32 s40, s40, {L}_items-{L}_pc
  s_addc_u32 s41, s41, 0
  s_mov_b32 s42, 0
  s_mov_b32 s50, {NONE}
  s_cmp_eq_u32 s13, 0
  s_cbranch_scc0 {L}_wr1
  s_mov_b32 s33, 1
  s_atomic_add s33, s[60:61], {4*D_WR} glc
  s_waitcnt lgkmcnt(0)""")
bcast(o, 33, f"{L}_wr1")
o(f"""  s_waitcnt lgkmcnt(0)
  s_add_u32 s56, s56, {CNT}
  s_addc_u32 s57, s57, 0
  ; more than 224 workers: XCC 0 did not receive 32 workgroups; the surplus completes the recurrence team
  s_cmp_lt_u32 s33, 224
  s_cbranch_scc1 {L}_w0
  s_mov_b32 s24, 0
{L}_an:
  s_load_dword s25, s[60:61], {4*D_T0} glc
  s_load_dword s26, s[60:61], {4*D_WR} glc
  s_waitcnt lgkmcnt(0)
  s_add_u32 s27, s25, s26
  s_cmp_ge_u32 s27, 256
  s_cbranch_scc1 {L}_an1
  s_sleep 4
  s_add_u32 s24, s24, 1
  s_cmp_lt_u32 s24, {SPIN}
  s_cbranch_scc1 {L}_an
  s_endpgm
{L}_an1:
  s_sub_u32 s12, s33, 224
  s_add_u32 s12, s12, s25
  v_mbcnt_lo_u32_b32 v0, -1, 0
  v_mbcnt_hi_u32_b32 v0, -1, v0
  s_load_dwordx2 s[48:49], s[0:1], 8
  s_load_dwordx2 s[50:51], s[0:1], 16
  s_load_dwordx2 s[52:53], s[0:1], 24
  s_load_dwordx2 s[54:55], s[0:1], 32
  s_load_dwordx2 s[56:57], s[0:1], 40
  s_waitcnt lgkmcnt(0)
  s_branch {L}_R
{L}_w0:
  ; home queue: XCC 1..7 -> 0..6, otherwise rank mod 7 (speed only; stealing drains every queue)
  s_mul_hi_u32 s25, s33, {(1 << 32) // 7 + 1}
  s_mul_i32 s25, s25, 7
  s_sub_u32 s25, s33, s25
  s_sub_u32 s26, s3, 1
  s_cmp_lt_u32 s26, 7
  s_cselect_b32 s30, s26, s25
  s_mov_b32 s31, 0
  ; first unit is static: rank < 64 -> LN1, < 128 -> sentinel fill
  v_mbcnt_lo_u32_b32 v0, -1, 0
  v_mbcnt_hi_u32_b32 v0, -1, v0
  s_add_u32 s43, s33, {NITEMS}
""" + ("  s_memrealtime s[36:37]\n" if TIM else "") + f"""  s_cmp_lt_u32 s33, 68
  s_cbranch_scc0 {L}_pop
  s_cmp_lt_u32 s33, 64
  s_cbranch_scc0 {L}_wS
  s_mov_b32 s20, s33
  s_lshr_b32 s47, s33, 2
  s_add_u32 s47, s47, {C_L1}
  s_branch {L}_st{ST_LN1}
{L}_wS:
  s_sub_u32 s20, s33, 64
  s_mov_b32 s47, {(16 << 16) | C_KV}
  s_branch {L}_st{ST_S}
{L}_pop:
  s_lshl_b32 s25, s30, 3
  s_load_dwordx2 s[34:35], s[40:41], s25        ; queue (start, count)
  s_cmp_eq_u32 s13, 0
  s_cbranch_scc0 {L}_n1
  s_lshl_b32 s25, s30, 2
  s_add_u32 s52, s60, s25
  s_addc_u32 s53, s61, 0
  s_mov_b32 s43, 1
  s_atomic_add s43, s[52:53], {4*D_QH} glc
  s_waitcnt lgkmcnt(0)
  v_mov_b32 v4, {LQ}
  v_mov_b32 v2, s43
  s_mov_b64 exec, 1
  ds_write_b32 v4, v2
  s_waitcnt lgkmcnt(0)
  s_mov_b64 exec, -1
{L}_n1:
  s_waitcnt vmcnt(0) lgkmcnt(0)
  s_barrier
  v_mov_b32 v4, {LQ}
  ds_read_b32 v2, v4
  s_waitcnt lgkmcnt(0)
  v_readfirstlane_b32 s43, v2
  s_barrier
  ; the previous unit's stores are acknowledged in every wave: signal it (after init is known to be done)
  s_cmp_eq_u32 s42, 1
  s_cbranch_scc1 {L}_i1""")
poll_ge(o, 4*D_INIT, 1, base="dbg")
o(f"  s_mov_b32 s42, 1\n{L}_i1:")
sig_now(o)
o(f"""  s_cmp_lt_u32 s43, s35
  s_cbranch_scc1 {L}_have
  s_add_u32 s31, s31, 1
  s_cmp_ge_u32 s31, {NQ}
  s_cbranch_scc1 {L}_roles
  s_add_u32 s30, s30, 1
  s_cmp_eq_u32 s30, {NQ}
  s_cselect_b32 s30, 0, s30
  s_branch {L}_pop
{L}_have:
  s_add_u32 s43, s43, s34
  s_lshl_b32 s25, s43, 4
  s_add_u32 s25, s25, 64
  s_load_dwordx4 s[44:47], s[40:41], s25
  s_waitcnt lgkmcnt(0)
  s_cmp_eq_u32 s13, 0
  s_cbranch_scc0 {L}_d2""")
for w in (45, 46):
    lp = o.label("dep")
    o(f"""  s_lshr_b32 s26, s{w}, 16
  s_cmp_eq_u32 s26, {NONE}
  s_cbranch_scc1 {lp}_ok
  s_lshl_b32 s26, s26, 7
  s_add_u32 s26, s26, {CNT}
  s_and_b32 s27, s{w}, 0xffff
  v_mov_b32 v76, s26
  s_mov_b32 s24, 0
{lp}:
  buffer_load_dword v77, v76, s[8:11], 0 offen sc1
  s_waitcnt vmcnt(0)
  v_readfirstlane_b32 s25, v77
  s_cmp_ge_u32 s25, s27
  s_cbranch_scc1 {lp}_ok
  s_sleep 4
  s_add_u32 s24, s24, 1
  s_cmp_lt_u32 s24, {SPIN}
  s_cbranch_scc1 {lp}
  s_endpgm
{lp}_ok:""")
o(f"""{L}_d2:
  s_barrier
  v_mbcnt_lo_u32_b32 v0, -1, 0
  v_mbcnt_hi_u32_b32 v0, -1, v0
  s_bfe_u32 s20, s44, 0x80008
  s_bfe_u32 s21, s44, 0x80010
  s_lshr_b32 s22, s44, 24
  s_and_b32 s25, s44, 0xff""")
if TIM:
    o("  s_memrealtime s[36:37]")
o(f"  s_cmp_eq_u32 s25, {ST_A}\n  s_cbranch_scc1 {L}_st{ST_A}\n  s_cmp_eq_u32 s25, {ST_S}\n  s_cbranch_scc1 {L}_st{ST_S}\n  s_branch {L}_st{ST_A1}")
def stage_wrap(st, body, pre_flush=False):
    o(f"{L}_st{st}:")
    body()
    o(f"  s_branch {L}_sig")
stage_wrap(ST_LN1, lambda: stage_ln(o, 'x', STF), True)
stage_wrap(ST_S, lambda: stage_s(o, STF), True)
stage_wrap(ST_A, lambda: stage_a2(o, STF, 4))
stage_wrap(ST_A1, lambda: stage_a2(o, STF, 1))
o(f"{L}_sig:")
if TIM:
    o(f"""  s_cmp_eq_u32 s13, 0
  s_cbranch_scc0 {L}_not
  s_memrealtime s[38:39]
  s_waitcnt lgkmcnt(0)
  v_mov_b32 v4, s36
  v_mov_b32 v5, s38
  s_lshl_b32 s25, s43, 3
  s_add_u32 s25, s25, {FLAGS + 0x40000}
  v_mov_b32 v6, s25
  buffer_store_dwordx2 v[4:5], v6, s[8:11], 0 offen
{L}_not:""")
o(f"""  s_mov_b32 s50, s47
  s_branch {L}_pop""")

TIMB = (FLAGS + 0x50000) if TIM else None
def lane(o): o("  v_mbcnt_lo_u32_b32 v0, -1, 0\n  v_mbcnt_hi_u32_b32 v0, -1, v0")
o(f"{L}_roles:")
o(f"""{L}_ri:
  s_cmp_lt_u32 s33, 32
  s_cbranch_scc1 {L}_rB
  s_cmp_lt_u32 s33, 64
  s_cbranch_scc1 {L}_rC4
  s_cmp_lt_u32 s33, 72
  s_cbranch_scc1 {L}_rC2
  s_cmp_lt_u32 s33, 88
  s_cbranch_scc1 {L}_rL
  s_cmp_lt_u32 s33, 160
  s_cbranch_scc1 {L}_rD
  s_cmp_lt_u32 s33, 192
  s_cbranch_scc1 {L}_rE4
  s_cmp_lt_u32 s33, 200
  s_cbranch_scc1 {L}_rE2
  s_cmp_lt_u32 s33, 216
  s_cbranch_scc1 {L}_rF
  s_branch {L}_end""")
def mkloop(name, dep, tgt, sig):
    return lambda body: role_loop(o, name, dep, tgt, sig, CNT, NONE, body, SPIN*4, TIMB)
o(f"{L}_rB:")
def b_body():
    lane(o)
    lp = o.label("bq")
    o(f"""  s_lshl_b32 s25, s32, 7
  s_add_u32 s25, s25, {CNT + 128*C_Q}
  v_mov_b32 v250, s25
  s_mov_b32 s24, 0
{lp}:
  buffer_load_dword v251, v250, s[8:11], 0 offen sc1
  s_waitcnt vmcnt(0)
  v_readfirstlane_b32 s25, v251
  s_cmp_ge_u32 s25, 32
  s_cbranch_scc1 {lp}_ok
  s_add_u32 s24, s24, 1
  s_cmp_lt_u32 s24, {SPIN*4}
  s_cbranch_scc1 {lp}
  s_endpgm
{lp}_ok:
  s_lshr_b32 s20, s33, 3
  s_lshl_b32 s25, s32, 2
  s_add_u32 s20, s20, s25              ; seg = 4g + r/8
  s_and_b32 s21, s33, 7
  s_lshl_b32 s21, s21, 2
  s_add_u32 s21, s21, s13              ; head""")
    stage_b(o, STF, wait_r=True)
mkloop("RB", C_KV, 128, C_B)(b_body)
o(f"  s_branch {L}_end")
for nm, which, base4, base2, dep, tgt, sig in (("C", 'C', 32, 64, C_B, 32, C_C), ("E", 'E', 160, 192, C_D, 72, C_E)):
    o(f"{L}_r{nm}4:")
    lane(o)
    o(f"  s_sub_u32 s25, s33, {base4}\n  s_lshr_b32 s28, s25, 3\n  s_lshl_b32 s28, s28, 2\n  s_and_b32 s23, s25, 7")
    role_ce(o, which, 4, STF, mkloop(f"R{nm}4", dep, tgt, sig))
    o(f"  s_branch {L}_end")
    o(f"{L}_r{nm}2:")
    lane(o)
    o(f"  s_mov_b32 s28, 16\n  s_sub_u32 s23, s33, {base2}")
    role_ce(o, which, 2, STF, mkloop(f"R{nm}2", dep, tgt, sig))
    o(f"  s_branch {L}_end")
for nm, base, dep, tgt, sig, fn in (("L", 72, C_C, 40, C_L, lambda: stage_ln2b(o, STF)), ("F", 200, C_E, 40, None, lambda: stage_fb(o))):
    o(f"{L}_r{nm}:")
    def body(base=base, fn=fn):
        lane(o)
        o(f"  s_sub_u32 s25, s33, {base}\n  s_lshr_b32 s20, s25, 2\n  s_lshl_b32 s26, s32, 2\n  s_add_u32 s20, s20, s26\n  s_and_b32 s21, s25, 3")
        fn()
    mkloop(f"R{nm}", dep, tgt, sig)(body)
    o(f"  s_branch {L}_end")
o(f"{L}_rD:")
lane(o)
o(f"  s_sub_u32 s28, s33, 88")
role_d(o, STF, mkloop("RD", C_L, 16, C_D))
o(f"""{L}_end:
  s_waitcnt vmcnt(0) lgkmcnt(0)
  s_endpgm
.p2align 6
{L}_items:""")
for k in range(8):
    o(f"  .long {qstart[k] if k < NQ else 0}, {len(queues[k]) if k < NQ else 0}")
for x in items:
    o("  .long " + ", ".join(hex(w) for w in x))
kd = f"""
.section .rodata,"a"
.p2align 6
.amdhsa_kernel {KN}
  .amdhsa_next_free_vgpr 512
  .amdhsa_next_free_sgpr 102
  .amdhsa_accum_offset 256
  .amdhsa_group_segment_fixed_size 0
  .amdhsa_kernarg_size 112
  .amdhsa_user_sgpr_count 2
  .amdhsa_user_sgpr_kernarg_segment_ptr 1
  .amdhsa_system_sgpr_workgroup_id_x 1
.end_amdhsa_kernel
"""
hdr = open("cdna_kernels/" + NAME + ".s.ref").read().split("; Override launch")[0]
body = '\n'.join(l.split(';')[0].strip() for l in o.text().split('\n') if l.split(';')[0].strip()) + '\n'
txt = hdr + "; @launch grid=(256,1,1) block=(256,1,1) lds=163840\n" + '.amdgcn_target "amdgcn-amd-amdhsa--gfx950"\n.text\n' + body + kd
out = sys.argv[1] if len(sys.argv) > 1 else "fused.s"
open(out, "w").write(txt)
json.dump([(KN, 256, 163840)], open(out.replace(".s", ".json"), "w"))
json.dump(items + [item(ST_LN1, r) if r < 64 else item(ST_S, r-64) for r in range(68)], open("items.json", "w"))
print("items", NITEMS, "bytes", len(txt))
```

```python
from asmlib import *

L_MEM, L_XEX, L_MEX, L_OEX, L_W = 0, 9216, 13312, 14336, 16384

vA, vXw, vM, vOw, vR, vP, vIdx, vH1 = 0, 1, 2, 3, 4, 5, 6, 7
vSel, vSelR, vKx, vVx = 8, 10, 14, 22
sW = 4
sWS = 8
sH, sWv_, sStep = 12, 13, 14
sC = 15
sKoff, sKm, sH1st, sH1h, sH1ld, sH2pub, sH2pl = 16, 17, 18, 19, 20, 21, 22
sIsRed, sJ, sT0, sT1, sT2, sT3 = 23, 24, 25, 26, 27, 28
sPoll = 29
sH1rs, sH2rs = 30, 31
sFlagOff = 32
sX1, sX2, sX3 = 33, 34, 35
sW256 = 36
sMaskMw = 38
sPi0, sPih = 40, 41
sH1so, sH1ho, sW1024 = 42, 43, 37
sUnit = 45
sH2tch = 46
sTm = 44

def frag_q(tau, c): return ('a', (tau*9 + c)*8)
def frag_k(tau, c):
    f = tau*9 + c
    return ('a', 144 + 8*f) if f < 14 else ('v', 80 + 8*(f-14))
def frag_v(tau, c):
    return ('v', 112 + 72*tau + 8*c)
def frag_o(tl, kap):
    return ('lds', 4*tl + kap)

def lds_frag_addr(f):
    off = L_W + f*4096
    return off // 65536, off % 65536

def nop(o, n):
    while n > 0:
        k = min(n, 16)
        o(f"  s_nop {k-1}")
        n -= k

def emit_consts(o):
    o.c("---- R lane constants; v0 holds lane id on entry (0..63), s13 = wave")
    o(f"""
  v_mov_b32 v30, v0                 ; lane
  v_and_b32 v31, 15, v30            ; c
  v_lshrrev_b32 v32, 4, v30         ; g
  v_and_b32 v33, 7, v30             ; t
  v_bfe_u32 v34, v30, 3, 1          ; u
  v_lshlrev_b32 v{vA}, 4, v30
  s_lshl_b32 s{sT0}, s{sWv_}, 10
  v_add_u32 v{vXw}, s{sT0}, v{vA}
  v_and_b32 v35, 1, v32             ; g%2
  v_lshlrev_b32 v{vM}, 7, v35
  v_lshl_add_u32 v{vM}, v33, 4, v{vM}
  ; vOw = (w/2)*1024 + (g/2)*256 + (w%2)*128 + t*16 + (g%2)*8 ; u==0 only
  s_lshr_b32 s{sT0}, s{sWv_}, 1
  s_lshl_b32 s{sT0}, s{sT0}, 10
  s_and_b32 s{sT1}, s{sWv_}, 1
  s_lshl_b32 s{sT1}, s{sT1}, 7
  s_add_u32 s{sT0}, s{sT0}, s{sT1}
  s_add_u32 s{sT0}, s{sT0}, {L_OEX}
  v_lshrrev_b32 v36, 1, v32         ; g/2
  v_lshlrev_b32 v{vOw}, 8, v36
  v_lshl_add_u32 v{vOw}, v33, 4, v{vOw}
  v_lshl_add_u32 v{vOw}, v35, 3, v{vOw}
  v_add_u32 v{vOw}, s{sT0}, v{vOw}
  v_mov_b32 v37, 0x7ffffff0
  v_cmp_eq_u32 vcc, 0, v34
  s_nop 1
  v_cndmask_b32 v{vOw}, v37, v{vOw}, vcc
  v_mov_b32 v37, 0x80000000
  v_cndmask_b32 v{vH1}, v37, v{vA}, vcc
  ; idx
  v_mov_b32 v38, 0x44444444
  v_mov_b32 v39, 0xeeeeeeee
  v_cndmask_b32 v{vIdx}, v39, v38, vcc
  s_lshl_b32 s{sJ}, s{sH}, 1
  s_add_u32 s{sJ}, s{sJ}, s{sWv_}
  s_add_u32 s{sT0}, s{sH}, 64
  s_cmp_eq_u32 s{sWv_}, 2
  s_cselect_b32 s{sJ}, s{sT0}, s{sJ}
  s_cmp_lt_u32 s{sWv_}, 2
  s_cselect_b32 s{sIsRed}, 1, 0
  s_cmp_eq_u32 s{sWv_}, 2
  s_cselect_b32 s{sT0}, 1, 0
  s_cmp_lt_u32 s{sH}, 8
  s_cselect_b32 s{sT1}, 1, 0
  s_and_b32 s{sT0}, s{sT0}, s{sT1}
  s_or_b32 s{sIsRed}, s{sIsRed}, s{sT0}
  s_cmp_eq_u32 s{sIsRed}, 0
  s_cselect_b32 s{sJ}, 0, s{sJ}
  ; unit j=(pi=j/4, g4=j%4): H1 offset of its 128B segment
  s_lshr_b32 s{sT0}, s{sJ}, 2            ; pi
  s_and_b32 s{sT1}, s{sJ}, 3             ; g4
  s_cmp_gt_u32 s{sT0}, 13
  s_cselect_b32 s{sT2}, 2, 0
  s_cmp_gt_u32 s{sT0}, 4
  s_cselect_b32 s{sT3}, 1, 0
  s_cmp_gt_u32 s{sT0}, 13
  s_cselect_b32 s{sT3}, 2, s{sT3}
  s_sub_u32 s{sT2}, s{sT0}, s{sT3}
  s_lshr_b32 s{sT3}, s{sT2}, 1
  s_lshl_b32 s{sT3}, s{sT3}, 10          ; (q/2)*1024
  s_and_b32 s{sT2}, s{sT2}, 1
  s_lshl_b32 s{sT2}, s{sT2}, 7           ; (q%2)*128
  s_add_u32 s{sT3}, s{sT3}, s{sT2}
  s_cmp_eq_u32 s{sT0}, 4
  s_cselect_b32 s{sT3}, 8192, s{sT3}
  s_cmp_eq_u32 s{sT0}, 13
  s_cselect_b32 s{sT3}, 9216, s{sT3}
  s_lshl_b32 s{sT1}, s{sT1}, 8
  s_add_u32 s{sT0}, s{sT3}, s{sT1}       ; + g4*256
  s_lshr_b32 s{sT1}, s{sJ}, 2
  s_cmp_eq_u32 s{sT1}, 4
  s_cselect_b32 s{sT2}, 2, s{sIsRed}
  s_cmp_eq_u32 s{sT1}, 13
  s_cselect_b32 s{sT2}, 2, s{sT2}
  s_cmp_eq_u32 s{sIsRed}, 0
  s_cselect_b32 s{sIsRed}, 0, s{sT2}
  v_lshl_add_u32 v40, v34, 2, v32
  v_mul_u32_u24 v40, {H1_PROD}, v40
  v_lshl_add_u32 v40, v33, 4, v40
  v_add_u32 v{vR}, s{sT0}, v40
  s_cmp_eq_u32 s{sIsRed}, 0
  s_cselect_b32 s{sT1}, 0x80000000, 0
  s_cselect_b32 s{sUnit}, 0x80000000, s{sT0}
  v_lshlrev_b32 v40, 4, v33
  v_lshl_add_u32 v40, v32, 3, v40
  s_lshl_b32 s{sT0}, s{sJ}, 7
  v_add_u32 v40, s{sT0}, v40
  v_and_b32 v41, 40, v30
  v_cmp_eq_u32 vcc, 0, v41
  s_nop 1
  v_cndmask_b32 v{vP}, v37, v40, vcc
  v_or_b32 v{vP}, s{sT1}, v{vP}
  s_mov_b64 s[{sMaskMw}:{sMaskMw+1}], vcc     ; lanes u==0,g<2
  ; Sel: e = c - 4*(g%2)
  v_lshlrev_b32 v40, 2, v35
  v_sub_u32 v40, v31, v40
  v_mov_b32 v41, 0x3f80
  v_mov_b32 v42, 0x3f800000
  v_mov_b32 v{vSel}, 0
  v_mov_b32 v{vSel+1}, 0
  v_cmp_eq_u32 vcc, 0, v40
  s_nop 1
  v_cndmask_b32 v{vSel}, v{vSel}, v41, vcc
  v_cmp_eq_u32 vcc, 1, v40
  s_nop 1
  v_cndmask_b32 v{vSel}, v{vSel}, v42, vcc
  v_cmp_eq_u32 vcc, 2, v40
  s_nop 1
  v_cndmask_b32 v{vSel+1}, v{vSel+1}, v41, vcc
  v_cmp_eq_u32 vcc, 3, v40
  s_nop 1
  v_cndmask_b32 v{vSel+1}, v{vSel+1}, v42, vcc""")
    for r in range(4):
        o(f"""  v_mov_b32 v{vSelR+r}, 0
  v_cmp_eq_u32 vcc, {2*r}, v31
  s_nop 1
  v_cndmask_b32 v{vSelR+r}, v{vSelR+r}, v41, vcc
  v_cmp_eq_u32 vcc, {2*r+1}, v31
  s_nop 1
  v_cndmask_b32 v{vSelR+r}, v{vSelR+r}, v42, vcc""")
    o(f"""
  s_lshl_b32 s{sW1024}, s{sWv_}, 10
  s_lshl_b32 s{sH2tch}, s{sH}, 2
  s_add_u32 s{sH2tch}, s{sH2tch}, s{sWv_}
  s_lshl_b32 s{sH2tch}, s{sH2tch}, 6
  s_add_u32 s{sH2tch}, s{sH2tch}, {H2_SLOT}
  s_mov_b32 s{sC}, 0x3e0293ee        ; 128^-0.5 * log2(e) = 0.12751743
  s_add_u32 s{sT0}, s{sWv_}, 1
  s_and_b32 s{sT0}, s{sT0}, 3
  s_lshl_b32 s{sX1}, s{sT0}, 10
  s_add_u32 s{sX1}, s{sX1}, {L_XEX}
  s_add_u32 s{sT0}, s{sWv_}, 2
  s_and_b32 s{sT0}, s{sT0}, 3
  s_lshl_b32 s{sX2}, s{sT0}, 10
  s_add_u32 s{sX2}, s{sX2}, {L_XEX}
  s_add_u32 s{sT0}, s{sWv_}, 3
  s_and_b32 s{sT0}, s{sT0}, 3
  s_lshl_b32 s{sX3}, s{sT0}, 10
  s_add_u32 s{sX3}, s{sX3}, {L_XEX}
  s_lshl_b32 s{sW256}, s{sWv_}, 8
  s_add_u32 s{sW256}, s{sW256}, {L_MEX}
  s_mul_i32 s{sPi0}, s{sWv_}, 9
  s_add_u32 s{sPi0}, s{sPi0}, 1
  s_lshr_b32 s{sPi0}, s{sPi0}, 1
  s_lshr_b32 s{sPih}, s{sWv_}, 1
  s_mul_i32 s{sPih}, s{sPih}, 9
  s_add_u32 s{sPih}, s{sPih}, 4
""")

def emit_weights(o, hook=None, hook_at=28):
    o.c("---- weight prologue")
    vLdW, vLdO, vLdOh, vScr, vT, vT2, vT2h, vF1, vF2 = 30, 31, 32, 33, 34, 35, 36, 37, 38
    TMP = 40
    o(f"""
  v_lshrrev_b32 v46, 4, v{vA}        ; lane
  v_lshrrev_b32 v45, 2, v46          ; l/4
  v_and_b32 v44, 3, v46              ; l%4
  v_lshlrev_b32 v{vLdW}, 13, v45
  v_lshl_add_u32 v{vLdW}, v44, 4, v{vLdW}      ; (l/4)*8192 + (l%4)*16
  v_mul_u32_u24 v{vLdOh}, 1152, v45
  v_lshl_add_u32 v{vLdOh}, v44, 4, v{vLdOh}    ; (l/4)*1152 + (l%4)*16
  v_lshrrev_b32 v43, 3, v46          ; l/8
  v_and_b32 v42, 7, v46
  v_mul_u32_u24 v{vLdO}, 1152, v43
  v_lshl_add_u32 v{vLdO}, v42, 4, v{vLdO}      ; (l/8)*1152 + (l%8)*16
  s_lshl_b32 s{sT0}, s{sWv_}, 12
  v_add_u32 v{vScr}, s{sT0}, v{vA}             ; scratch + l*16
  ; tr lane decomposition: gb=l/16, r'=(l%16)/4, c'=l%4
  v_lshrrev_b32 v43, 4, v46          ; gb
  v_bfe_u32 v42, v46, 2, 2           ; r'
  ; row = 16*(gb/2) + 4*(gb%2) + 8*(r'/2) + r'%2
  v_lshrrev_b32 v41, 1, v43
  v_lshlrev_b32 v41, 4, v41
  v_and_b32 v40, 1, v43
  v_lshl_add_u32 v41, v40, 2, v41
  v_lshrrev_b32 v40, 1, v42
  v_lshl_add_u32 v41, v40, 3, v41
  v_and_b32 v40, 1, v42
  v_add_u32 v41, v41, v40
  v_lshlrev_b32 v{vT}, 6, v41
  v_lshl_add_u32 v{vT}, v44, 3, v{vT}
  v_add_u32 v{vT}, s{sT0}, v{vT}
  v_lshl_add_u32 v41, v43, 3, v42
  v_lshlrev_b32 v{vT2}, 7, v41
  v_lshl_add_u32 v{vT2}, v44, 4, v{vT2}
  v_add_u32 v{vT2}, s{sT0}, v{vT2}
  v_lshlrev_b32 v{vT2h}, 6, v41
  v_lshl_add_u32 v{vT2h}, v44, 4, v{vT2h}
  v_add_u32 v{vT2h}, s{sT0}, v{vT2h}
  s_and_b32 s{sT1}, s{sWv_}, 1
  s_lshl_b32 s{sT1}, s{sT1}, 3
  v_add_u32 v{vT2h}, s{sT1}, v{vT2h}
  v_add_u32 v{vF1}, 0x10000, v{vXw}
  v_add_u32 v{vF2}, 0x20000, v{vXw}
""")
    def ldsaddr(f):
        b, imm = lds_frag_addr(f)
        return (vXw, vF1, vF2)[b], imm
    chunks = []
    for c in range(9): chunks.append(('q', c))
    for c in range(9): chunks.append(('k', c))
    for kap in range(4):
        chunks += [('o', kap, 0), ('o', kap, 1), ('oh', kap)]
    for c in range(9): chunks.append(('v', c))
    def dests(ch):
        if ch[0] == 'q': return [frag_q(0, ch[1]), frag_q(1, ch[1])]
        if ch[0] == 'k': return [frag_k(0, ch[1]), frag_k(1, ch[1])]
        if ch[0] == 'v': return [frag_v(0, ch[1]), frag_v(1, ch[1])]
        if ch[0] == 'o': return [frag_o(4*ch[2]+i, ch[1]) for i in range(4)]
        return [frag_o(8, ch[1])]
    def dest_vregs(ch):
        n = 8 if ch[0] in 'qkv' else 4
        r = set()
        for d in dests(ch):
            if d[0] == 'v': r |= set(range(d[1], d[1]+n))
        return r
    bufs = [48, 64] + list(range(80, 256, 16))
    n = len(chunks)
    MAXIN = 10
    used_final = set()
    assign = {}
    inflight = []
    nxt = 0
    sched = []
    final_before = []
    acc = set()
    for m in range(n):
        final_before.append(set(acc))
        acc |= dest_vregs(chunks[m])
    proc = 0
    busy = {}
    while proc < n:
        while nxt < n and len(inflight) < MAXIN:
            cand = None
            for b in bufs:
                if b in busy: continue
                rs = set(range(b, b+16))
                if rs & final_before[nxt]: continue
                cand = b; break
            if cand is None: break
            busy[cand] = nxt; assign[nxt] = cand; inflight.append(nxt); sched.append(('issue', nxt)); nxt += 1
        sched.append(('proc', proc))
        if proc >= 1: del busy[assign[proc-1]]
        inflight.remove(proc)
        proc += 1
    def nloads(ch): return 2 if ch[0] == 'oh' else 4
    srd_cur = None
    ptr = {'q': 50, 'k': 52, 'v': 54, 'o': 56, 'oh': 56}
    srd = {'q': 64, 'k': 68, 'v': 72, 'o': 76, 'oh': 76}
    for k_, p in (('q', 50), ('k', 52), ('v', 54), ('o', 56)):
        o(f"""  s_mov_b32 s{srd[k_]}, s{p}
  s_and_b32 s{srd[k_]+1}, s{p+1}, 0xffff
  s_mov_b32 s{srd[k_]+2}, 4718592
  s_mov_b32 s{srd[k_]+3}, 0x20000""")
    o(f"""  s_lshl_b32 s80, s{sH}, 8
  s_lshl_b32 s81, s{sWv_}, 6
  s_add_u32 s80, s80, s81            ; h*256 + w*64
  s_mul_i32 s82, s{sH}, {128*1152}
  s_lshl_b32 s83, s{sPi0}, 6
  s_add_u32 s83, s83, s82
  s_lshl_b32 s84, s{sPih}, 6
  s_add_u32 s84, s84, s82""")
    outstanding = []
    for kind, m in sched:
        ch = chunks[m]; b = assign[m]
        if kind == 'issue':
            if ch[0] in 'qkv':
                for i in range(4):
                    o(f"  s_add_u32 s85, s80, {(64*ch[1] + 16*i)*8192}")
                    o(f"  buffer_load_dwordx4 {v(b+4*i,4)}, v{vLdW}, s[{srd[ch[0]]}:{srd[ch[0]]+3}], s85 offen")
            elif ch[0] == 'o':
                for i in range(4):
                    o(f"  s_add_u32 s85, s83, {(32*ch[1] + 8*i)*1152 + ch[2]*128}")
                    o(f"  buffer_load_dwordx4 {v(b+4*i,4)}, v{vLdO}, s[76:79], s85 offen")
            else:
                for i in range(2):
                    o(f"  s_add_u32 s85, s84, {(32*ch[1] + 16*i)*1152}")
                    o(f"  buffer_load_dwordx4 {v(b+4*i,4)}, v{vLdOh}, s[76:79], s85 offen")
            outstanding.append(m)
        else:
            if hook and m == hook_at: hook()
            idx = outstanding.index(m)
            later = sum(nloads(chunks[x]) for x in outstanding[idx+1:])
            o(f"  s_waitcnt vmcnt({min(later,63)})")
            outstanding = outstanding[idx+1:]
            o("  s_waitcnt lgkmcnt(0)")
            for i in range(nloads(ch)):
                o(f"  ds_write_b128 v{vScr}, {v(b+4*i,4)} offset:{1024*i}")
            if ch[0] in 'qkv':
                for tau, d in enumerate(dests(ch)):
                    assert d[0] != 'lds'
                    for r_, off in ((0, 0), (2, 128), (4, 2048), (6, 2176)):
                        o(f"  ds_read_b64_tr_b16 {reg((d[0], d[1]+r_), 2)}, v{vT} offset:{off + 32*tau}")
            elif ch[0] == 'o':
                for i, d in enumerate(dests(ch)):
                    pim, x = i // 2, i % 2
                    o(f"  ds_read_b64_tr_b16 {v(b+4*i,2)}, v{vT2} offset:{64*pim + 8*x}")
                    o(f"  ds_read_b64_tr_b16 {v(b+4*i+2,2)}, v{vT2} offset:{512 + 64*pim + 8*x}")
                o("  s_waitcnt lgkmcnt(0)")
                for i, d in enumerate(dests(ch)):
                    ar, imm = ldsaddr(d[1])
                    o(f"  ds_write_b128 v{ar}, {v(b+4*i,4)} offset:{imm}")
            else:
                d = dests(ch)[0]
                o(f"  ds_read_b64_tr_b16 {v(b,2)}, v{vT2h} offset:0")
                o(f"  ds_read_b64_tr_b16 {v(b+2,2)}, v{vT2h} offset:256")
                o("  s_waitcnt lgkmcnt(0)")
                ar, imm = ldsaddr(d[1])
                o(f"  ds_write_b128 v{ar}, {v(b,4)} offset:{imm}")
    o("  s_waitcnt lgkmcnt(0)")


Q0, Q1, K0, K1, V0, V1 = 30, 34, 38, 42, 46, 50
W = [54, 58, 62]
T, U, QS = 66, 70, 74

class Cnt:
    def __init__(self, o, name, maxv):
        self.o, self.name, self.maxv, self.q = o, name, maxv, []
    def issue(self, tag):
        self.q.append(tag)
        assert len(self.q) <= self.maxv + 1, (self.name, self.q)
    def wait(self, tag):
        if tag not in self.q: return
        i = len(self.q) - 1 - self.q[::-1].index(tag)
        n = len(self.q) - 1 - i
        self.o(f"  s_waitcnt {self.name}cnt({n})")
        self.q = self.q[i+1:]
    def waitall(self):
        self.o(f"  s_waitcnt {self.name}cnt(0)")
        self.q = []

def smf(o, d, aop, b):
    o(f"  v_smfmac_f32_16x16x64_bf16 {v(d,4)}, {v(aop,4)}, {reg(b,8)}, v{vIdx}")


POLL_LIMIT = 1 << 20
PUBF = 'sc1'
PUBK = 'sc1'
PUBV = 'sc1'
KVF = ''
DUALF = True
DUALA = False
FSTAG = 16
ASTAG = 16
KVPOS = 'qk'
KVCNT = None
TOUCH = True
RESETW = False
vDummy = 79

def emit_loop(o, L, stf, timing=False, fdelay=0, adelay=0):
    WSr = f"s[{sWS}:{sWS+3}]"
    lg = Cnt(o, "lgkm", 15)
    def dsr(dst, ar, off, tag):
        o(f"  ds_read_b128 {v(dst,4)}, v{ar} offset:{off}")
        lg.issue(tag)
    def stamp(k):
        if timing:
            o(f"  s_memtime s[{86+2*k}:{87+2*k}]")
    T, U, QS, MW = 66, 70, 74, 78
    o(f"{L}_loop:")
    stamp(0)
    if KVCNT is not None:
        lp = o.label("kvok")
        o(f"  v_readfirstlane_b32 s{sT0}, v{vDummy}")
        o(f"  s_cmp_ge_u32 s{sT0}, 128")
        o(f"  s_cbranch_scc1 {lp}")
        o(f"  s_add_u32 s{sT0}, s{sStep}, 1\n  s_min_u32 s{sT0}, s{sT0}, 63\n  s_lshr_b32 s{sT0}, s{sT0}, 2\n  s_lshl_b32 s{sT0}, s{sT0}, 7\n  s_add_u32 s{sT0}, s{sT0}, {KVCNT}")
        o(f"  v_mov_b32 v72, s{sT0}")
        o(f"{lp}_p:\n  buffer_load_dword v73, v72, {WSr}, 0 offen sc1\n  s_waitcnt vmcnt(0)\n  v_readfirstlane_b32 s{sT0}, v73\n  s_add_u32 s{sPoll}, s{sPoll}, 1\n  s_cmp_gt_u32 s{sPoll}, {POLL_LIMIT}\n  s_cbranch_scc1 {L}_bail\n  s_cmp_ge_u32 s{sT0}, 128\n  s_cbranch_scc0 {lp}_p")
        o.put(lp)
    side = []
    if KVPOS == 'qk': side += [f"  s_add_u32 s{sT1}, s{sKoff}, {VBUF-KBUF}",
             f"  buffer_load_dwordx4 {v(vKx,4)}, v{vA}, {WSr}, s{sKoff} offen {KVF}", None,
             f"  buffer_load_dwordx4 {v(vKx+4,4)}, v{vA}, {WSr}, s{sKoff} offen offset:1024 {KVF}", None, None,
             f"  buffer_load_dwordx4 {v(vVx,4)}, v{vA}, {WSr}, s{sT1} offen {KVF}", None, None,
             f"  buffer_load_dwordx4 {v(vVx+4,4)}, v{vA}, {WSr}, s{sT1} offen offset:1024 {KVF}", None]
    side += [f"  v_bfe_u32 v72, v{vA}, 4, 5", f"  v_lshlrev_b32 v72, 6, v72", f"  v_lshrrev_b32 v73, 9, v{vA}", f"  v_lshl_add_u32 v72, v73, 24, v72",
             f"  s_add_u32 s{sKoff}, s{sKoff}, {32*8192}", f"  buffer_load_dword v{vDummy}, v72, {WSr}, s{sKoff} offen {KVF}"]
    side += [f"  v_bfe_u32 v73, v{vA}, 4, 5", f"  v_mul_u32_u24 v73, {H1_PROD}, v73", f"  v_lshrrev_b32 v72, 9, v{vA}", f"  v_lshl_add_u32 v73, v72, 6, v73", f"  v_add_u32 v73, s{sUnit}, v73",
             f"  s_add_u32 s{sT0}, s{sH1ld}, {H1_SLOT}", f"  buffer_load_dword v{vDummy}, v73, {WSr}, s{sT0} offen sc1",
             f"  s_add_u32 s{sT0}, s{sH2pub}, s{sH2tch}", f"  v_lshlrev_b32 v72, 9, v{vA}", f"  s_mov_b64 exec, 3\n  buffer_load_dword v{vDummy}, v72, {WSr}, s{sT0} offen sc1\n  s_mov_b64 exec, -1"]
    if KVCNT is not None:
        side += [f"  s_add_u32 s{sT0}, s{sStep}, 2\n  s_min_u32 s{sT0}, s{sT0}, 63\n  s_lshr_b32 s{sT0}, s{sT0}, 2\n  s_lshl_b32 s{sT0}, s{sT0}, 7",
                 f"  s_add_u32 s{sT0}, s{sT0}, {KVCNT}\n  v_mov_b32 v72, s{sT0}", f"  buffer_load_dword v{vDummy}, v72, {WSr}, 0 offen sc1"]
    side += [f"  v_mov_b32 v70, s{sStep}", f"  v_mov_b32 v71, s{sFlagOff}", f"  s_mov_b64 exec, 1\n  buffer_store_dword v70, v71, {WSr}, 0 offen {PUBF}\n  s_mov_b64 exec, -1"]
    side += [f"  v_add_u32 v{MW}, s{sW256}, v{vM}", f"  v_cndmask_b32 v{MW}, -16, v{MW}, s[{sMaskMw}:{sMaskMw+1}]"]
    NV_AFTER_KV = 4 + (1 if KVCNT is not None else 0)
    side_all = list(side)
    o.c("QK phase: own (register-resident) chunks first, the rest through LDS")
    for wv in range(4):
        if wv < 3:
            o(f"  s_cmp_eq_u32 s{sWv_}, {wv}\n  s_cbranch_scc0 {L}_qk{wv+1}")
        side = list(side_all)
        def pop(n):
            for _ in range(n):
                if side:
                    x = side.pop(0)
                    if x: o(x.replace("{LP}", f"{L}w{wv}"))
        lgq = Cnt(o, "lgkm", 15)
        def dsq(dst, off, tag):
            o(f"  ds_read_b128 {v(dst,4)}, v{vA} offset:{off}"); lgq.issue(tag)
        def qk(c, a_, np_=(1,1,1,1)):
            smf(o, Q0, a_, frag_q(0, c)); pop(np_[0])
            smf(o, Q1, a_, frag_q(1, c)); pop(np_[1])
            smf(o, K0, a_, frag_k(0, c)); pop(np_[2])
            smf(o, K1, a_, frag_k(1, c))
        own = [wv, wv+4] + ([8] if wv == 0 else [])
        rest = [c for c in range(9) if c not in own]
        qk(own[0], W[1])
        o("  s_waitcnt lgkmcnt(0)\n  s_barrier")
        dsq(W[0], L_MEM + 1024*rest[0], "r0"); dsq(W[1], L_MEM + 1024*rest[1], "r1")
        qk(own[1], W[2])
        dsq(W[2], L_MEM + 1024*rest[2], "r2")
        if wv == 0: qk(8, 66)
        for k, c in enumerate(rest):
            lgq.wait(f"r{k}")
            last = (k == len(rest)-1)
            qk(c, W[k % 3], (1, 2 if k >= len(rest)-3 else 1, 0 if last else 1, 0))
            if k + 3 < len(rest): dsq(W[k % 3], L_MEM + 1024*rest[k+3], f"r{k+3}")
            if not last: pop(1)
        while side: pop(1)
        free_order = [(len(rest)-3+i_) % 3 for i_ in range(3)]
        assert sorted(free_order) == [0, 1, 2]
        for sl in range(3):
            o(f"  ds_read_b128 {v(W[sl],4)}, v{vA} offset:{L_MEM + 1024*(6+sl)}")
        if wv < 3:
            o(f"  s_branch {L}_qkd")
            o(f"{L}_qk{wv+1}:")
    o(f"{L}_qkd:")
    lg.issue("V6"); lg.issue("V7"); lg.issue("V8")
    stamp(1)
    o.c("transpose q,k")
    def vpass(c, slot):
        smf(o, V0, W[slot], frag_v(0, c)); smf(o, V1, W[slot], frag_v(1, c))
    nop(o, 2)
    o(f"  v_cvt_pk_bf16_f32 v{T}, v{Q0}, v{Q0+1}")
    o(f"  v_cvt_pk_bf16_f32 v{T+1}, v{Q0+2}, v{Q0+3}")
    o(f"  v_cvt_pk_bf16_f32 v{T+2}, v{Q1}, v{Q1+1}")
    o(f"  v_cvt_pk_bf16_f32 v{T+3}, v{Q1+2}, v{Q1+3}")
    nop(o, 2)
    o(f"  v_cvt_pk_bf16_f32 v{U}, v{K0}, v{K0+1}")
    o(f"  v_mfma_f32_16x16x16_bf16 {v(Q0,4)}, {v(T,2)}, {v(vSel,2)}, 0")
    o(f"  v_cvt_pk_bf16_f32 v{U+1}, v{K0+2}, v{K0+3}")
    o(f"  v_cvt_pk_bf16_f32 v{U+2}, v{K1}, v{K1+1}")
    o(f"  v_mfma_f32_16x16x16_bf16 {v(Q1,4)}, {v(T+2,2)}, {v(vSel,2)}, 0")
    o(f"  v_cvt_pk_bf16_f32 v{U+3}, v{K1+2}, v{K1+3}")
    nop(o, 1)
    o(f"  v_mfma_f32_16x16x16_bf16 {v(K0,4)}, {v(U,2)}, {v(vSel,2)}, 0")
    o(f"  v_mfma_f32_16x16x16_bf16 {v(K1,4)}, {v(U+2,2)}, {v(vSel,2)}, 0")
    lg.wait("V6")
    smf(o, V0, W[0], frag_v(0, 6))
    nop(o, 3)
    o(f"  v_cvt_pk_bf16_f32 v{T}, v{Q0}, v{Q0+1}")
    o(f"  v_cvt_pk_bf16_f32 v{T+1}, v{Q0+2}, v{Q0+3}")
    o(f"  v_cvt_pk_bf16_f32 v{T+2}, v{Q1}, v{Q1+1}")
    o(f"  v_cvt_pk_bf16_f32 v{T+3}, v{Q1+2}, v{Q1+3}")
    smf(o, V1, W[0], frag_v(1, 6))
    dsr(W[0], vA, L_MEM, "B0")
    for i in range(4):
        o(f"  v_mov_b32_dpp v{QS+i}, v{T+i} row_ror:8 row_mask:0xf bank_mask:0xf")
    o(f"  s_waitcnt vmcnt({NV_AFTER_KV})")
    o(f"  v_mfma_f32_16x16x32_bf16 {v(Q0,4)}, {v(vKx,4)}, {v(T,4)}, 0")
    o(f"  v_cvt_pk_bf16_f32 v{U}, v{K0}, v{K0+1}")
    o(f"  v_cvt_pk_bf16_f32 v{U+1}, v{K0+2}, v{K0+3}")
    o(f"  v_mfma_f32_16x16x32_bf16 {v(Q0,4)}, {v(vKx+4,4)}, {v(QS,4)}, {v(Q0,4)}")
    o(f"  v_cvt_pk_bf16_f32 v{U+2}, v{K1}, v{K1+1}")
    o(f"  v_cvt_pk_bf16_f32 v{U+3}, v{K1+2}, v{K1+3}")
    nop(o, 2)
    o(f"  v_mfma_f32_16x16x32_bf16 {v(Q1,4)}, {v(U,4)}, {v(T,4)}, 0")
    lg.wait("V7")
    vpass(7, 1)
    dsr(W[1], vA, L_MEM + 1024, "B1")
    o(f"  ds_write_b128 v{vXw}, {v(Q0,4)} offset:{L_XEX}"); lg.issue("Xw")
    nop(o, 3)
    o(f"  ds_write_b128 v{MW}, {v(Q1,4)}"); lg.issue("Mw")
    o(f"  buffer_store_dwordx4 {v(U,4)}, v{vH1}, {WSr}, s{sKm} offen {PUBK}")
    lg.wait("V8")
    vpass(8, 2)
    dsr(W[2], vA, L_MEM + 2048, "B2")
    lg.wait("B0")
    vpass(0, 0)
    dsr(W[0], vA, L_MEM + 3072, "B3")
    lg.wait("Mw")
    o("  s_barrier")
    stamp(2)
    o.c("exchange reads")
    XP = [Q0, vKx, vKx+4, 74]
    MP = [Q1, 66, 42, 38]
    for k in range(4):
        dsr(XP[k], vA, L_XEX + 1024*k, f"XP{k}")
    for k in range(4):
        dsr(MP[k], vM, L_MEX + 256*k, f"MP{k}")
    lg.wait("B1")
    vpass(1, 1)
    dsr(W[1], vA, L_MEM + 4096, "B4")
    lg.wait("B2")
    vpass(2, 2)
    dsr(W[2], vA, L_MEM + 5120, "B5")
    lg.wait("B3")
    vpass(3, 0)
    lg.wait("XP3")
    for k in range(1, 4):
        o(f"  v_pk_add_f32 {v(Q0,2)}, {v(Q0,2)}, {v(XP[k],2)}")
        o(f"  v_pk_add_f32 {v(Q0+2,2)}, {v(Q0+2,2)}, {v(XP[k]+2,2)}")
    lg.wait("MP3")
    for k in range(1, 4):
        o(f"  v_pk_add_f32 {v(Q1,2)}, {v(Q1,2)}, {v(MP[k],2)}")
        o(f"  v_pk_add_f32 {v(Q1+2,2)}, {v(Q1+2,2)}, {v(MP[k]+2,2)}")
    WIN = [14, 18, 22, 26, 38, 42, 66, 70]
    lds_list = [(tl, kap, frag_o(tl, kap)[1]) for tl in range(9) for kap in range(4)]
    slot_of = {}
    st = dict(issued=0)
    BASE = (vXw, 78, 78)
    def issue_frag():
        n = st['issued']
        if n >= len(lds_list): return
        tl, kap, f = lds_list[n]
        sl = WIN[n % len(WIN)]
        b, imm = lds_frag_addr(f)
        if b == 2 and lds_frag_addr(f-1)[0] == 1:
            o(f"  v_add_u32 v78, 0x10000, v78")
        dsr(sl, BASE[b], imm, f"wo{n}")
        slot_of[(tl, kap)] = (sl, n)
        st['issued'] = n + 1
    o.c("softmax")
    MX, TM = 78, 42
    o(f"  v_max3_f32 v{MX}, v{Q0}, v{Q0+1}, v{Q0+2}")
    o(f"  v_max3_f32 v{TM}, v{Q0+3}, v{Q1}, v{Q1+1}")
    o(f"  v_max3_f32 v{MX}, v{MX}, v{Q1+2}, v{Q1+3}")
    o(f"  v_max_f32 v{MX}, v{MX}, v{TM}")
    lg.wait("B4")
    smf(o, V0, W[1], frag_v(0, 4))
    issue_frag()
    o(f"  v_max_f32_dpp v{MX}, v{MX}, v{MX} row_ror:8 row_mask:0xf bank_mask:0xf")
    smf(o, V1, W[1], frag_v(1, 4))
    o(f"  v_mov_b32 v{TM}, v{MX}")
    issue_frag()
    lg.wait("B5")
    smf(o, V0, W[2], frag_v(0, 5))
    o(f"  v_permlane16_swap_b32 v{MX}, v{TM}")
    o(f"  v_max_f32 v{MX}, v{MX}, v{TM}")
    o(f"  v_mov_b32 v{TM}, v{MX}")
    smf(o, V1, W[2], frag_v(1, 5))
    nop(o, 1)
    o(f"  v_permlane32_swap_b32 v{MX}, v{TM}")
    o(f"  v_max_f32 v{MX}, v{MX}, v{TM}")
    o(f"  v_mul_f32 v{MX}, s{sC}, v{MX}")
    for i in range(8):
        o(f"  v_fma_f32 v{Q0+i}, v{Q0+i}, s{sC}, -v{MX}")
    PX, PXs, PM, LA, LB, VP = 74, 76, 70, 72, 73, 66
    for i in range(8):
        o(f"  v_exp_f32 v{Q0+i}, v{Q0+i}")
    D0, D1 = 38, 42
    O0 = 70
    o.c("PV with the l-sum chain interleaved")
    o(f"  v_cvt_pk_bf16_f32 v{PX}, v{Q0}, v{Q0+1}")
    o(f"  v_cvt_pk_bf16_f32 v{PX+1}, v{Q0+2}, v{Q0+3}")
    o(f"  v_cvt_pk_bf16_f32 v{PM}, v{Q1}, v{Q1+1}")
    o(f"  v_cvt_pk_bf16_f32 v{PM+1}, v{Q1+2}, v{Q1+3}")
    o(f"  v_pk_add_f32 {v(LA,2)}, {v(Q0,2)}, {v(Q0+2,2)}")
    o(f"  v_pk_add_f32 {v(Q1,2)}, {v(Q1,2)}, {v(Q1+2,2)}")
    o(f"  v_mov_b32_dpp v{PXs}, v{PX} row_ror:8 row_mask:0xf bank_mask:0xf")
    o(f"  v_mov_b32_dpp v{PXs+1}, v{PX+1} row_ror:8 row_mask:0xf bank_mask:0xf")
    o(f"  v_add_f32 v{LA}, v{LA}, v{LB}")
    o(f"  v_add_f32 v{LB}, v{Q1}, v{Q1+1}")
    o(f"  v_mfma_f32_16x16x32_bf16 {v(D0,4)}, {v(vVx,4)}, {v(PX,4)}, 0")
    o(f"  v_fmamk_f32 v{LA}, v{LB}, 0x3e800000, v{LA}")
    o(f"  v_cvt_pk_bf16_f32 v{VP}, v{V0}, v{V0+1}")
    o(f"  v_mfma_f32_16x16x32_bf16 {v(D1,4)}, {v(vVx+4,4)}, {v(PX,4)}, 0")
    o(f"  v_cvt_pk_bf16_f32 v{VP+1}, v{V0+2}, v{V0+3}")
    o(f"  v_add_f32_dpp v{LA}, v{LA}, v{LA} row_ror:8 row_mask:0xf bank_mask:0xf")
    o(f"  v_mov_b32 v{LB}, v{LA}")
    o(f"  v_cvt_pk_bf16_f32 v{VP+2}, v{V1}, v{V1+1}")
    o(f"  v_mfma_f32_16x16x16_bf16 {v(D0,4)}, {v(VP,2)}, {v(PM,2)}, {v(D0,4)}")
    o(f"  v_cvt_pk_bf16_f32 v{VP+3}, v{V1+2}, v{V1+3}")
    o(f"  v_permlane16_swap_b32 v{LA}, v{LB}")
    o(f"  v_add_f32 v{LA}, v{LA}, v{LB}")
    o(f"  v_mov_b32 v{LB}, v{LA}")
    o(f"  v_mfma_f32_16x16x16_bf16 {v(D1,4)}, {v(VP+2,2)}, {v(PM,2)}, {v(D1,4)}")
    o(f"  s_add_u32 s{sT3}, s{sKm}, {VM-KM}")
    o(f"  s_cmp_eq_u32 s{sStep}, 63")
    o(f"  s_cbranch_scc1 {L}_done")
    o(f"  v_permlane32_swap_b32 v{LA}, v{LB}")
    o(f"  v_add_f32 v{LA}, v{LA}, v{LB}")
    o(f"  v_rcp_f32 v78, v{LA}")
    issue_frag()
    issue_frag()
    for i in range(0, 8, 2):
        o(f"  v_pk_mul_f32 {v(D0+i,2)}, {v(D0+i,2)}, {v(78,2)} op_sel_hi:[1,0]")
    o(f"  v_cvt_pk_bf16_f32 v{O0}, v{D0}, v{D0+1}")
    o(f"  v_cvt_pk_bf16_f32 v{O0+1}, v{D0+2}, v{D0+3}")
    o(f"  ds_write_b64 v{vOw}, {v(O0,2)}"); lg.issue("Ow0")
    o(f"  v_cvt_pk_bf16_f32 v{O0+2}, v{D1}, v{D1+1}")
    o(f"  v_cvt_pk_bf16_f32 v{O0+3}, v{D1+2}, v{D1+3}")
    o(f"  ds_write_b64 v{vOw}, {v(O0+2,2)} offset:512"); lg.issue("Ow1")
    o(f"  v_add_u32 v78, 0x10000, v{vXw}")
    o(f"  buffer_store_dwordx4 {v(VP,4)}, v{vA}, {WSr}, s{sT3} offen {PUBV}")
    issue_frag(); issue_frag()
    lg.wait("Ow1")
    o("  s_barrier")
    stamp(3)
    o.c("E phase")
    B = [46, 50, 54, 58]
    for k in range(4):
        dsr(B[k], vA, L_OEX + (k//2)*1024 + (k%2)*128, f"ob{k}")
    issue_frag(); issue_frag()
    D = [30, 34]
    PK, PKB = 62, 74
    for tl in range(9):
        post = []
        d = D[tl % 2]
        pend = []
        if tl >= 1:
            prev = tl - 1
            dd = D[prev % 2]; x = prev % 2; p = prev // 2
            pk = PK if p % 2 == 0 else PKB
            pend = [f"  v_cvt_pk_bf16_f32 v{pk+2*x}, v{dd}, v{dd+1}", f"  v_cvt_pk_bf16_f32 v{pk+2*x+1}, v{dd+2}, v{dd+3}"]
            if x == 1 and p % 2 == 1:
                post = ["  s_nop 0"] + [f"  v_mov_b32_dpp v{PK+i}, v{PKB+i} row_ror:8 row_mask:0xf bank_mask:0xc" for i in range(4)]
                post.append(f"  buffer_store_dwordx4 {v(PK,4)}, v{vA}, {WSr}, s{sH1st} offen offset:{1024*(p//2)} {stf}")
            else:
                post = []
        if tl >= 1: lg.wait(f"wo{4*tl+3}")
        for n_ in range(4):
            kap = n_
            if tl == 0: lg.wait(f"ob{kap}")
            sl, n = slot_of[(tl, kap)]
            if tl == 0: lg.wait(f"wo{n}")
            cin = "0" if n_ == 0 else v(d, 4)
            o(f"  v_mfma_f32_16x16x32_bf16 {v(d,4)}, {v(sl,4)}, {v(B[kap],4)}, {cin}")
            issue_frag()
            if n_ == 2 and pend:
                for x_ in pend: o(x_)
                pend = []
            if n_ == 3 and post:
                for x_ in post: o(x_)
                post = []
    for r in range(38, 46): o(f"  v_mov_b32 v{r}, 0")
    d = D[0]
    o(f"  v_cvt_pk_bf16_f32 v{PK}, v{d}, v{d+1}")
    o(f"  v_cvt_pk_bf16_f32 v{PK+1}, v{d+2}, v{d+3}")
    o(f"  buffer_store_dwordx2 {v(PK,2)}, v{vH1}, {WSr}, s{sH1h} offen {stf}")
    assert not lg.q, lg.q
    stamp(4)
    for r in list(range(30, 38)) + list(range(46, 54)): o(f"  v_mov_b32 v{r}, 0")
    nop(o, fdelay)
    o.c("F: reducers")
    o(f"  s_cmp_eq_u32 s{sIsRed}, 0")
    o(f"  s_cbranch_scc1 {L}_cons")
    o(f"  s_add_u32 s{sT1}, s{sH1ld}, {8*H1_PROD}")
    o(f"  s_add_u32 s{sT2}, s{sH1ld}, {16*H1_PROD}")
    o(f"  s_add_u32 s{sT3}, s{sH1ld}, {24*H1_PROD}")
    def f_loads(base):
        for k, so in enumerate((sH1ld, sT1, sT2, sT3)):
            o(f"  buffer_load_dwordx4 {v(base+4*k,4)}, v{vR}, {WSr}, s{so} offen sc1")
    def f_check(base, younger):
        for k in range(4):
            o(f"  s_waitcnt vmcnt({younger+3-k})")
            if timing and k == 3: o("  s_memtime s[66:67]")
            o(f"  v_mfma_f32_16x16x32_bf16 {v(70,4)}, {v(vSelR,4)}, {v(base+4*k,4)}, {'0' if k == 0 else v(70,4)}")
        nop(o, 8)
        o(f"  v_cmp_u_f32 vcc, v70, v70")
    if timing: o("  s_add_u32 s80, s80, 1\n  s_memtime s[64:65]")
    if DUALF:
        f_loads(54)
        nop(o, FSTAG)
        f_loads(14)
        o(f"{L}_ra:")
        f_check(54, 4)
        o(f"  s_cbranch_vccz {L}_rok")
        f_loads(54)
        if timing: o("  s_add_u32 s80, s80, 1\n  s_memtime s[64:65]")
        o(f"  s_add_u32 s{sPoll}, s{sPoll}, 1")
        o(f"  s_cmp_gt_u32 s{sPoll}, {POLL_LIMIT}")
        o(f"  s_cbranch_scc1 {L}_bail")
        f_check(14, 4)
        o(f"  s_cbranch_vccz {L}_rok")
        f_loads(14)
        if timing: o("  s_add_u32 s80, s80, 1\n  s_memtime s[64:65]")
        o(f"  s_branch {L}_ra")
        o(f"{L}_rok:")
    else:
        o(f"{L}_rp:")
        f_loads(54)
        o(f"  s_add_u32 s{sPoll}, s{sPoll}, 1")
        o(f"  s_cmp_gt_u32 s{sPoll}, {POLL_LIMIT}")
        o(f"  s_cbranch_scc1 {L}_bail")
        f_check(54, 0)
        o(f"  s_cbranch_vccnz {L}_rp")
    for i in range(4):
        o(f"  v_add_f32_dpp v{70+i}, v{70+i}, v{70+i} row_ror:8 row_mask:0xf bank_mask:0xf")
    o(f"  v_cvt_pk_bf16_f32 v74, v70, v71")
    o(f"  v_cvt_pk_bf16_f32 v75, v72, v73")
    o(f"  buffer_store_dwordx2 {v(74,2)}, v{vP}, {WSr}, s{sH2pub} offen {stf}")
    o(f"{L}_cons:")
    o(f"  s_barrier")
    stamp(5)
    o.c("A: gather mem(s+1); per-step scalar updates double as the publish->visible delay")
    o(f"  s_add_u32 s{sH2pl}, s{sH2pub}, s{sW1024}")
    o(f"  s_add_u32 s{sT1}, s{sH2pl}, 4096")
    o(f"  s_add_u32 s{sT2}, s{sH2pub}, 8192")
    o(f"  s_add_u32 s{sStep}, s{sStep}, 1")
    for x in [f"  s_add_u32 s{sH1ld}, s{sH1ld}, {H1_SLOT}", f"  s_add_u32 s{sKm}, s{sKm}, {32*4096}",
             f"  s_add_u32 s{sH1st}, s{sH1ld}, s{sH1so}", f"  s_add_u32 s{sH1h}, s{sH1ld}, s{sH1ho}",
             f"  s_add_u32 s{sH2pub}, s{sH2pub}, {H2_SLOT}"]:
        o(x)
    nop(o, adelay)
    o(f"  s_cmp_eq_u32 s{sWv_}, 0")
    o(f"  s_cbranch_scc1 {L}_cp3")
    for n3, sfx in ((2, "cp"), (3, "cp3")):
        S1 = [58, 62, 66][:n3]; S2 = [14, 18, 22][:n3]
        offs = [sH2pl, sT1, sT2][:n3]
        def a_loads(S):
            for r_, so in zip(S, offs):
                o(f"  buffer_load_dwordx4 {v(r_,4)}, v{vA}, {WSr}, s{so} offen sc1")
        def a_check(S, younger):
            o(f"  s_waitcnt vmcnt({younger})")
            if timing: o("  s_memtime s[70:71]")
            o(f"  v_max3_u32 v78, v{S[0]}, v{S[0]+2}, v{S[1]}")
            if n3 == 3:
                o(f"  v_max3_u32 v78, v78, v{S[1]+2}, v{S[2]}")
                o(f"  v_max_u32 v78, v78, v{S[2]+2}")
            else:
                o(f"  v_max_u32 v78, v78, v{S[1]+2}")
            o(f"  v_cmp_eq_u32 vcc, -1, v78")
        def a_writes():
            o(f"  ds_write_b128 v{vXw}, {v(58,4)} offset:{L_MEM}")
            o(f"  ds_write_b128 v{vXw}, {v(62,4)} offset:{L_MEM+4096}")
            if n3 == 3: o(f"  ds_write_b128 v{vA}, {v(66,4)} offset:{L_MEM+8192}")
        o(f"{L}_{sfx}:")
        if timing: o("  s_add_u32 s81, s81, 1\n  s_memtime s[68:69]")
        if DUALA:
            a_loads(S1)
            nop(o, ASTAG)
            a_loads(S2)
            o(f"{L}_{sfx}a:")
            a_check(S1, n3)
            o(f"  s_cbranch_vccz {L}_{sfx}w")
            a_loads(S1)
            if timing: o("  s_add_u32 s81, s81, 1\n  s_memtime s[68:69]")
            o(f"  s_add_u32 s{sPoll}, s{sPoll}, 1")
            o(f"  s_cmp_gt_u32 s{sPoll}, {POLL_LIMIT}")
            o(f"  s_cbranch_scc1 {L}_bail")
            a_check(S2, n3)
            o(f"  s_cbranch_vccz {L}_{sfx}m")
            a_loads(S2)
            if timing: o("  s_add_u32 s81, s81, 1\n  s_memtime s[68:69]")
            o(f"  s_branch {L}_{sfx}a")
            o(f"{L}_{sfx}m:")
            o(f"  ds_write_b128 v{vXw}, {v(S2[0],4)} offset:{L_MEM}")
            o(f"  ds_write_b128 v{vXw}, {v(S2[1],4)} offset:{L_MEM+4096}")
            if n3 == 3: o(f"  ds_write_b128 v{vA}, {v(S2[2],4)} offset:{L_MEM+8192}")
            for r1, r2 in zip(S1, S2):
                for k in range(4): o(f"  v_mov_b32 v{r1+k}, v{r2+k}")
            o(f"  s_branch {L}_cj")
            o(f"{L}_{sfx}w:")
            a_writes()
        else:
            a_loads(S1)
            o(f"  s_add_u32 s{sPoll}, s{sPoll}, 1")
            o(f"  s_cmp_gt_u32 s{sPoll}, {POLL_LIMIT}")
            o(f"  s_cbranch_scc1 {L}_bail")
            a_check(S1, 0)
            o(f"  s_cbranch_vccnz {L}_{sfx}")
            a_writes()
        if n3 == 2: o(f"  s_branch {L}_cj")
    o(f"{L}_cj:")
    if timing: o("  s_memtime s[72:73]")
    if False:
        o(f"  s_add_u32 s{sT1}, s{sKoff}, {VBUF-KBUF}")
        o(f"  buffer_load_dwordx4 {v(vKx,4)}, v{vA}, {WSr}, s{sKoff} offen {KVF}")
        o(f"  buffer_load_dwordx4 {v(vKx+4,4)}, v{vA}, {WSr}, s{sKoff} offen offset:1024 {KVF}")
        o(f"  buffer_load_dwordx4 {v(vVx,4)}, v{vA}, {WSr}, s{sT1} offen {KVF}")
        o(f"  buffer_load_dwordx4 {v(vVx+4,4)}, v{vA}, {WSr}, s{sT1} offen offset:1024 {KVF}")
    if timing:
        lab2 = o.label("nort")
        o(f"  s_memrealtime s[82:83]\n  s_memtime s[98:99]\n  s_waitcnt lgkmcnt(0)")
        o(f"  s_lshl_b32 s{sT0}, s{sH}, 2\n  s_add_u32 s{sT0}, s{sT0}, s{sWv_}\n  s_cmp_eq_u32 s{sT0}, 0\n  s_cbranch_scc0 {lab2}")
        o(f"  s_lshl_b32 s{sT0}, s{sStep}, 3\n  s_add_u32 s{sT0}, s{sT0}, {FLAGS + 0x3000}\n  v_mov_b32 v74, s82\n  v_mov_b32 v75, s98\n  v_mov_b32 v76, s{sT0}\n  buffer_store_dwordx2 v[74:75], v76, {WSr}, 0 offen")
        o.put(lab2)
        lab = o.label("nost")
        o(f"  s_cmp_eq_u32 s{sStep}, 21")
        o(f"  s_cbranch_scc0 {lab}")
        for k, sr in enumerate([86,88,90,92,94,96,98,64,66,68,70,72]):
            o(f"  v_mov_b32 v74, s{sr}")
            o(f"  s_lshl_b32 s{sT0}, s{sH}, 2\n  s_add_u32 s{sT0}, s{sT0}, s{sWv_}\n  s_lshl_b32 s{sT0}, s{sT0}, 6\n  s_add_u32 s{sT0}, s{sT0}, {FLAGS + 4096 + 4*k}")
            o(f"  v_mov_b32 v75, s{sT0}")
            o(f"  buffer_store_dword v74, v75, {WSr}, 0 offen")
        o.put(lab)
    o(f"  s_branch {L}_loop")
    o(f"{L}_bail:")
    o(f"  s_endpgm")
    o(f"{L}_done:")
    o(f"  buffer_store_dwordx4 {v(66,4)}, v{vA}, {WSr}, s{sT3} offen sc1")
    o(f"  s_waitcnt vmcnt(0) lgkmcnt(0)")
    o(f"  s_barrier")
    o(f"  s_cmp_lg_u32 s{sWv_}, 0\n  s_cbranch_scc1 {L}_fin")
    o(f"  v_mov_b32 v78, 64")
    o(f"  v_mov_b32 v77, s{sFlagOff}")
    o(f"  s_mov_b64 exec, 1\n  buffer_store_dword v78, v77, {WSr}, 0 offen sc1\n  s_mov_b64 exec, -1")
    o(f"  s_waitcnt vmcnt(0)")
    o(f"{L}_fin:")

def emit_init(o, L):
    WSr = f"s[{sWS}:{sWS+3}]"
    lab = o.label("noh2")
    o(f"""  s_lshl_b32 s{sT0}, s{sH}, 2
  s_add_u32 s{sT0}, s{sT0}, s{sWv_}
  s_lshl_b32 s{sFlagOff}, s{sH}, 7
  s_add_u32 s{sFlagOff}, s{sFlagOff}, {RFLAG}
  s_cmp_lg_u32 s{sWv_}, 0
  s_cselect_b32 s{sFlagOff}, 0x80000000, s{sFlagOff}
{lab}:""")

def emit_early(o):
    WSr = f"s[{sWS}:{sWS+3}]"
    o(f"""  ; scalar state for step 0
  s_lshl_b32 s{sKoff}, s{sH}, 13
  s_lshl_b32 s{sT1}, s{sWv_}, 11
  s_add_u32 s{sKoff}, s{sKoff}, s{sT1}
  s_lshl_b32 s{sKm}, s{sH}, 12
  s_add_u32 s{sKm}, s{sKm}, s{sW1024}
  s_add_u32 s{sKm}, s{sKm}, {KM}
  s_mov_b32 s{sH1ld}, {H1}
  s_mul_i32 s{sT1}, s{sH}, {H1_PROD}
  s_lshl_b32 s{sT2}, s{sWv_}, 11
  s_add_u32 s{sH1so}, s{sT1}, s{sT2}
  s_lshr_b32 s{sT2}, s{sWv_}, 1
  s_lshl_b32 s{sT2}, s{sT2}, 10
  s_add_u32 s{sH1ho}, s{sT1}, s{sT2}
  s_add_u32 s{sH1ho}, s{sH1ho}, 8192
  s_and_b32 s{sT2}, s{sWv_}, 1
  s_lshl_b32 s{sT2}, s{sT2}, 3
  s_add_u32 s{sH1ho}, s{sH1ho}, s{sT2}
  s_add_u32 s{sH1st}, s{sH1ld}, s{sH1so}
  s_add_u32 s{sH1h}, s{sH1ld}, s{sH1ho}
  s_mov_b32 s{sH2pub}, {H2 + H2_SLOT}
  v_bfe_u32 v47, v{vA}, 4, 5
  v_mul_u32_u24 v47, {H1_PROD}, v47
  v_add_u32 v47, s{sUnit}, v47
  buffer_load_dword v14, v47, {WSr}, s{sH1ld} offen sc1
  s_add_u32 s{sT0}, s{sH2pub}, s{sW1024}
  v_lshlrev_b32 v46, 3, v{vA}
  buffer_load_dword v14, v46, {WSr}, s{sT0} offen sc1
  s_add_u32 s{sT1}, s{sKoff}, {VBUF-KBUF}
  buffer_load_dwordx4 {v(vKx,4)}, v{vA}, {WSr}, s{sKoff} offen
  buffer_load_dwordx4 {v(vKx+4,4)}, v{vA}, {WSr}, s{sKoff} offen offset:1024
  buffer_load_dwordx4 {v(vVx,4)}, v{vA}, {WSr}, s{sT1} offen
  buffer_load_dwordx4 {v(vVx+4,4)}, v{vA}, {WSr}, s{sT1} offen offset:1024
""")

def emit_mem0(o, mid=None):
    WSr = f"s[{sWS}:{sWS+3}]"
    o.c("mem0 -> LDS: piece (j=8c+2g+u, t) = mem0[t][8j..8j+8)")
    o(f"""  s_mov_b32 s64, s48
  s_and_b32 s65, s49, 0xffff
  s_mov_b32 s66, 9216
  s_mov_b32 s67, 0x20000
  v_lshrrev_b32 v62, 4, v{vA}         ; lane
  v_and_b32 v63, 7, v62               ; t
  v_lshrrev_b32 v64, 3, v62           ; 2g+u
  v_mul_u32_u24 v63, 1152, v63
  v_lshl_add_u32 v63, v64, 4, v63     ; t*1152 + (2g+u)*16
  s_lshl_b32 s{sT0}, s{sWv_}, 7
  s_add_u32 s{sT1}, s{sT0}, 512
  v_mov_b32 v53, v63
  buffer_load_dwordx4 {v(58,4)}, v53, s[64:67], s{sT0} offen
  buffer_load_dwordx4 {v(62,4)}, v53, s[64:67], s{sT1} offen
  buffer_load_dwordx4 {v(66,4)}, v53, s[64:67], 0 offen offset:1024""")
    if mid: mid()
    o(f"""  s_waitcnt vmcnt(0)
  s_barrier
  ds_write_b128 v{vXw}, {v(58,4)} offset:{L_MEM}
  ds_write_b128 v{vXw}, {v(62,4)} offset:{L_MEM+4096}
  ds_write_b128 v{vA}, {v(66,4)} offset:{L_MEM+8192}""")
    for r in range(30, 54):
        o(f"  v_mov_b32 v{r}, 0")
    o(f"""  s_mov_b32 s{sStep}, 0
  s_mov_b32 s{sPoll}, 0
  s_mov_b32 s80, 0
  s_mov_b32 s81, 0
  s_waitcnt vmcnt(0) lgkmcnt(0)
  v_mov_b32 v{vDummy}, 128
  s_barrier""")
```

```python
import sys, json
from asmlib import *
import rgen, wgen
from wgen import *
NAME = "sequential_preLN__memory_aug_recurrent_mem_tr__glu_gated_swiglu__prompt"
KN = NAME + "_kernel"
wgen.LDF = "sc1"; rgen.KVF = "sc1"
STF = "sc1"
SPIN = 300000
CNT = FLAGS + 0x4000
C_L1, C_KV, C_Q, C_SI, C_B, C_C, C_L, C_D, C_E = 0, 16, 32, 48, 64, 80, 96, 112, 128
NONE = 0xFFFF
D_T0, D_INIT, D_TB, D_WR, D_QH = 0, 4, 5, 32, 48
NQ = 7
LQ = 163840 - 16
ST_LN1, ST_S, ST_A, ST_B, ST_C, ST_LN2, ST_D, ST_E, ST_F, ST_C2, ST_D2, ST_E2, ST_A1 = range(13)
NST = 13
opts = dict(kv.split("=") for kv in sys.argv[2:])
FD, AD = int(opts.get("fd", 32)), int(opts.get("ad", 8))
TIM = int(opts.get("timing", 0))
for k_, v_ in opts.items():
    if k_.startswith("W_"): setattr(wgen, k_[2:], int(v_) if v_.isdigit() else v_)
    if k_.startswith("R_"): setattr(rgen, k_[2:], {"True": True, "False": False, "none": ""}.get(v_, int(v_) if v_.isdigit() else v_))

def item(stage, p0=0, p1=0, p2=0, d1=None, d2=None, sig=NONE):
    enc = lambda d: (NONE << 16) if d is None else ((d[0] << 16) | d[1])
    return [stage | (p0 << 8) | (p1 << 16) | (p2 << 24), enc(d1), enc(d2), sig]

C_RW = 49
def build_items():
    qs = [[] for _ in range(NQ)]
    NFAST = int(opts.get("nfast", 4)); NPRE = int(opts.get("npre", 1))
    rr = 0
    for rt in range(16):
        gate = (C_RW, 32) if rt >= NPRE else None
        if rt >= 1:
            for i in range(4):
                qs[rr % NQ].append(item(ST_S, 4*rt + i, d2=gate, sig=(16 << 16) | (C_KV + rt))); rr += 1
        for mat in range(3):
            if rt < NFAST and mat < 2:
                for hd in range(32):
                    qs[(mat*8 + hd//4) % NQ].append(item(ST_A1, rt, mat, hd, d1=(C_L1 + rt, 4), d2=gate, sig=C_KV + rt))
                continue
            for hg in range(8):
                qs[(mat*8 + hg) % NQ].append(item(ST_A, rt, mat, hg, d1=(C_L1 + rt, 4), d2=(gate if rt >= 1 else None), sig=(4 << 16) | (C_KV + rt if mat < 2 else C_Q + rt)))
    return qs
queues = build_items()
if int(opts.get("oneq", 0)):
    allq = sorted([x for q in queues for x in q], key=lambda x: ((x[0] >> 8) & 0xff if (x[0] & 0xff) != ST_S else ((x[0] >> 8) & 0xff) // 4))
    queues = [allq] + [[] for _ in range(NQ-1)]
items = [x for q in queues for x in q]
qstart = [sum(len(q) for q in queues[:k]) for k in range(NQ)]
NITEMS = len(items)

o = Asm()
L = "K"
o(f".globl {KN}\n.p2align 8\n.type {KN},@function\n{KN}:")
o(f"""  s_cmp_ge_u32 s2, 256
  s_cbranch_scc1 {L}_end
""" + ("  s_memrealtime s[62:63]\n" if TIM else "") + f"""  s_load_dwordx2 s[48:49], s[0:1], 8
  s_load_dwordx2 s[50:51], s[0:1], 16
  s_load_dwordx2 s[52:53], s[0:1], 24
  s_load_dwordx2 s[54:55], s[0:1], 32
  s_load_dwordx2 s[56:57], s[0:1], 40
  s_load_dwordx2 s[58:59], s[0:1], 104
  s_load_dwordx2 s[60:61], s[0:1], 96
  s_getreg_b32 s3, hwreg(HW_REG_XCC_ID)
  s_and_b32 s3, s3, 0xf
  v_lshrrev_b32 v1, 6, v0
  s_nop 1
  v_readfirstlane_b32 s13, v1
  v_and_b32 v0, 63, v0
  s_waitcnt lgkmcnt(0)
  s_mov_b32 s8, s58
  s_and_b32 s9, s59, 0xffff
  s_mov_b32 s10, {WS_USED}
  s_mov_b32 s11, 0x20000
  ; ---- workgroup 0 zeroes the counters and the recurrence flags
  s_cmp_eq_u32 s2, 0
  s_cbranch_scc0 {L}_noinit
  s_cmp_eq_u32 s13, 0
  s_cbranch_scc0 {L}_noinit
  v_lshlrev_b32 v1, 4, v0
  v_mov_b32 v4, 0
  v_mov_b32 v5, 0
  v_mov_b32 v6, 0
  v_mov_b32 v7, 0""")
for i in range(20):
    o(f"  s_mov_b32 s25, {CNT + 1024*i}\n  buffer_store_dwordx4 v[4:7], v1, s[8:11], s25 offen sc1")
for i in range(4):
    o(f"  s_mov_b32 s25, {RFLAG + 1024*i}\n  buffer_store_dwordx4 v[4:7], v1, s[8:11], s25 offen sc1")
def bcast(o, sreg, lab):
    o(f"""  v_mov_b32 v4, {LQ}
  v_mov_b32 v2, s{sreg}
  s_mov_b64 exec, 1
  ds_write_b32 v4, v2
  s_waitcnt lgkmcnt(0)
  s_mov_b64 exec, -1
{lab}:
  s_barrier
  v_mov_b32 v4, {LQ}
  ds_read_b32 v2, v4
  s_waitcnt lgkmcnt(0)
  v_readfirstlane_b32 s{sreg}, v2
  s_barrier""")
o(f"""  s_waitcnt vmcnt(0)
  s_mov_b32 s26, 1
  s_atomic_add s26, s[60:61], {4*D_INIT}
  s_waitcnt lgkmcnt(0)
{L}_noinit:
  s_cmp_eq_u32 s3, 0
  s_cbranch_scc0 {L}_worker
  ; ---- XCC 0: ticket for the recurrence team
  s_cmp_eq_u32 s13, 0
  s_cbranch_scc0 {L}_t1
""" + (f"""  s_mov_b32 s12, 1
  s_atomic_add s12, s[60:61], {4*D_TB} glc
  s_waitcnt lgkmcnt(0)
  s_cmp_lt_u32 s12, {int(opts.get('simslow', 0))}
  s_mov_b32 s12, 1000
  s_cbranch_scc0 {L}_sim
""" if 'simslow' in opts else "") + f"""  s_mov_b32 s12, 1
  s_atomic_add s12, s[60:61], {4*D_T0} glc
  s_waitcnt lgkmcnt(0)
{L}_sim:""")
bcast(o, 12, f"{L}_t1")
o(f"""  s_cmp_lt_u32 s12, 32
  s_cbranch_scc0 {L}_worker
{L}_R:
""")
if TIM: o(f"  s_memrealtime s[64:65]\n  s_waitcnt lgkmcnt(0)\n  v_mov_b32 v10, s62\n  v_mov_b32 v11, s64\n  s_lshl_b32 s25, s12, 3\n  s_add_u32 s25, s25, {FLAGS + 0x60000}\n  v_mov_b32 v12, s25\n  buffer_store_dwordx2 v[10:11], v12, s[8:11], 0 offen")
def poll_ge(o, off_expr_sgpr_or_imm, target, base="ws", label="pg"):
    lp = o.label(label)
    o("  s_mov_b32 s24, 0")
    if base == "ws":
        o(f"  v_mov_b32 v76, {off_expr_sgpr_or_imm}\n{lp}:\n  buffer_load_dword v77, v76, s[8:11], 0 offen sc1")
    else:
        o(f"  v_mov_b32 v76, {off_expr_sgpr_or_imm}\n{lp}:\n  global_load_dword v77, v76, s[60:61] sc1")
    o(f"  s_waitcnt vmcnt(0)\n  v_readfirstlane_b32 s25, v77\n  s_cmp_ge_u32 s25, {target}\n  s_cbranch_scc1 {lp}_ok\n  s_sleep 4\n  s_add_u32 s24, s24, 1\n  s_cmp_lt_u32 s24, {SPIN}\n  s_cbranch_scc1 {lp}\n  s_endpgm\n{lp}_ok:")
def r_polls():
    o(f"""  s_mov_b32 s24, 0
R_pi:
  s_load_dword s25, s[60:61], {4*D_INIT} glc
  s_add_u32 s24, s24, 1
  s_cmp_gt_u32 s24, {SPIN*4}
  s_cbranch_scc1 R_bail
  s_waitcnt lgkmcnt(0)
  s_cmp_ge_u32 s25, 1
  s_cbranch_scc0 R_pi
  s_add_u32 s62, s58, {CNT}
  s_addc_u32 s63, s59, 0
R_pk:
  s_load_dword s26, s[62:63], {128*C_KV} glc
  s_add_u32 s24, s24, 1
  s_cmp_gt_u32 s24, {SPIN*4}
  s_cbranch_scc1 R_bail
  s_waitcnt lgkmcnt(0)
  s_cmp_ge_u32 s26, 128
  s_cbranch_scc0 R_pk""")
def r_sig():
    o(f"""  s_cmp_eq_u32 s13, 0
  s_cbranch_scc0 R_sg
  s_mov_b32 s25, 1
  s_atomic_add s25, s[62:63], {128*C_RW}
R_sg:""")
rgen.emit_consts(o)
rgen.emit_init(o, "R")
rgen.emit_weights(o, lambda: (r_polls(), rgen.emit_early(o)))
if TIM: o(f"  s_memrealtime s[100:101]\n  s_waitcnt lgkmcnt(0)\n  v_mov_b32 v66, s100\n  s_lshl_b32 s25, s12, 2\n  s_add_u32 s25, s25, {FLAGS + 0x61000}\n  v_mov_b32 v67, s25\n  buffer_store_dword v66, v67, s[8:11], 0 offen")
rgen.KVCNT = CNT + 128*C_KV
r_sig()
rgen.emit_mem0(o)
o(f"""  s_load_dword s25, s[60:61], {4*D_T0} glc
  s_waitcnt lgkmcnt(0)
  s_cmp_ge_u32 s25, 32
  s_cbranch_scc0 RS_entry""")
rgen.emit_loop(o, "R", "", bool(TIM), FD, AD)
if int(opts.get("wb", 1)):
    o(f"  s_cmp_eq_u32 s13, 0\n  s_cbranch_scc0 {L}_end\n  s_cmp_eq_u32 s12, 0\n  s_cbranch_scc0 {L}_end\n  buffer_wbl2 sc1\n  s_waitcnt vmcnt(0)")
o(f"  s_branch {L}_end")
o("RS_entry:")
rgen.emit_loop(o, "RS", "sc1", False, FD, AD)
o(f"  s_branch {L}_end")
def sig_now(o):
    lab = o.label("sg")
    o(f"""  s_and_b32 s52, s50, 0xffff
  s_cmp_eq_u32 s52, {NONE}
  s_cbranch_scc1 {lab}
  s_cmp_eq_u32 s13, 0
  s_cbranch_scc0 {lab}
  s_lshl_b32 s52, s52, 7
  s_add_u32 s52, s56, s52
  s_addc_u32 s53, s57, 0
  s_lshr_b32 s54, s50, 16
  s_max_u32 s54, s54, 1
  s_atomic_add s54, s[52:53], 0
{lab}:
  s_mov_b32 s50, {NONE}""")
def flush(o):
    o("  s_waitcnt vmcnt(0) lgkmcnt(0)\n  s_barrier")
    sig_now(o)
wgen.HOOK = None
o(f"""{L}_worker:
  s_load_dwordx2 s[{P_X}:{P_X+1}], s[0:1], 0
  s_load_dwordx2 s[{P_WQ}:{P_WQ+1}], s[0:1], 16
  s_load_dwordx2 s[{P_WK}:{P_WK+1}], s[0:1], 24
  s_load_dwordx2 s[{P_WV}:{P_WV+1}], s[0:1], 32
  s_load_dwordx2 s[{P_WO}:{P_WO+1}], s[0:1], 40
  s_load_dwordx2 s[{P_W1}:{P_W1+1}], s[0:1], 64
  s_load_dwordx2 s[{P_W3}:{P_W3+1}], s[0:1], 72
  s_load_dwordx2 s[{P_W2}:{P_W2+1}], s[0:1], 80
  s_load_dwordx2 s[{P_OUT}:{P_OUT+1}], s[0:1], 88
  s_load_dwordx2 s[56:57], s[0:1], 104
  s_getpc_b64 s[40:41]
{L}_pc:
  s_add_u32 s40, s40, {L}_items-{L}_pc
  s_addc_u32 s41, s41, 0
  s_mov_b32 s42, 0
  s_mov_b32 s50, {NONE}
  s_cmp_eq_u32 s13, 0
  s_cbranch_scc0 {L}_wr1
  s_mov_b32 s33, 1
  s_atomic_add s33, s[60:61], {4*D_WR} glc
  s_waitcnt lgkmcnt(0)""")
bcast(o, 33, f"{L}_wr1")
o(f"""  s_waitcnt lgkmcnt(0)
  s_add_u32 s56, s56, {CNT}
  s_addc_u32 s57, s57, 0
  ; more than 224 workers: XCC 0 did not receive 32 workgroups; the surplus completes the recurrence team
  s_cmp_lt_u32 s33, 224
  s_cbranch_scc1 {L}_w0
  s_mov_b32 s24, 0
{L}_an:
  s_load_dword s25, s[60:61], {4*D_T0} glc
  s_load_dword s26, s[60:61], {4*D_WR} glc
  s_waitcnt lgkmcnt(0)
  s_add_u32 s27, s25, s26
  s_cmp_ge_u32 s27, 256
  s_cbranch_scc1 {L}_an1
  s_sleep 4
  s_add_u32 s24, s24, 1
  s_cmp_lt_u32 s24, {SPIN}
  s_cbranch_scc1 {L}_an
  s_endpgm
{L}_an1:
  s_sub_u32 s12, s33, 224
  s_add_u32 s12, s12, s25
  v_mbcnt_lo_u32_b32 v0, -1, 0
  v_mbcnt_hi_u32_b32 v0, -1, v0
  s_load_dwordx2 s[48:49], s[0:1], 8
  s_load_dwordx2 s[50:51], s[0:1], 16
  s_load_dwordx2 s[52:53], s[0:1], 24
  s_load_dwordx2 s[54:55], s[0:1], 32
  s_load_dwordx2 s[56:57], s[0:1], 40
  s_waitcnt lgkmcnt(0)
  s_branch {L}_R
{L}_w0:
  ; home queue: XCC 1..7 -> 0..6, otherwise rank mod 7 (speed only; stealing drains every queue)
  s_mul_hi_u32 s25, s33, {(1 << 32) // 7 + 1}
  s_mul_i32 s25, s25, 7
  s_sub_u32 s25, s33, s25
  s_sub_u32 s26, s3, 1
  s_cmp_lt_u32 s26, 7
  s_cselect_b32 s30, s26, s25
  s_mov_b32 s31, 0
  ; first unit is static: rank < 64 -> LN1, < 128 -> sentinel fill
  v_mbcnt_lo_u32_b32 v0, -1, 0
  v_mbcnt_hi_u32_b32 v0, -1, v0
  s_add_u32 s43, s33, {NITEMS}
""" + ("  s_memrealtime s[36:37]\n" if TIM else "") + f"""  s_cmp_lt_u32 s33, 68
  s_cbranch_scc0 {L}_warm
  s_cmp_lt_u32 s33, 64
  s_cbranch_scc0 {L}_wS
  s_mov_b32 s20, s33
  s_lshr_b32 s47, s33, 2
  s_add_u32 s47, s47, {C_L1}
  s_branch {L}_st{ST_LN1}
{L}_wS:
  s_sub_u32 s20, s33, 64
  s_mov_b32 s47, {(16 << 16) | C_KV}
  s_branch {L}_st{ST_S}
{L}_pop:
  s_lshl_b32 s25, s30, 3
  s_load_dwordx2 s[34:35], s[40:41], s25        ; queue (start, count)
  s_cmp_eq_u32 s13, 0
  s_cbranch_scc0 {L}_n1
  s_lshl_b32 s25, s30, 2
  s_add_u32 s52, s60, s25
  s_addc_u32 s53, s61, 0
  s_mov_b32 s43, 1
  s_atomic_add s43, s[52:53], {4*D_QH} glc
  s_waitcnt lgkmcnt(0)
  v_mov_b32 v4, {LQ}
  v_mov_b32 v2, s43
  s_mov_b64 exec, 1
  ds_write_b32 v4, v2
  s_waitcnt lgkmcnt(0)
  s_mov_b64 exec, -1
{L}_n1:
  s_waitcnt vmcnt(0) lgkmcnt(0)
  s_barrier
  v_mov_b32 v4, {LQ}
  ds_read_b32 v2, v4
  s_waitcnt lgkmcnt(0)
  v_readfirstlane_b32 s43, v2
  s_barrier
  ; the previous unit's stores are acknowledged in every wave: signal it (after init is known to be done)
  s_cmp_eq_u32 s42, 1
  s_cbranch_scc1 {L}_i1""")
poll_ge(o, 4*D_INIT, 1, base="dbg")
o(f"  s_mov_b32 s42, 1\n{L}_i1:")
sig_now(o)
o(f"""  s_cmp_lt_u32 s43, s35
  s_cbranch_scc1 {L}_have
  s_add_u32 s31, s31, 1
  s_cmp_ge_u32 s31, {NQ}
  s_cbranch_scc1 {L}_roles
  s_add_u32 s30, s30, 1
  s_cmp_eq_u32 s30, {NQ}
  s_cselect_b32 s30, 0, s30
  s_branch {L}_pop
{L}_have:
  s_add_u32 s43, s43, s34
  s_lshl_b32 s25, s43, 4
  s_add_u32 s25, s25, 64
  s_load_dwordx4 s[44:47], s[40:41], s25
  s_waitcnt lgkmcnt(0)
  s_cmp_eq_u32 s13, 0
  s_cbranch_scc0 {L}_d2""")
for w in (45, 46):
    lp = o.label("dep")
    o(f"""  s_lshr_b32 s26, s{w}, 16
  s_cmp_eq_u32 s26, {NONE}
  s_cbranch_scc1 {lp}_ok
  s_lshl_b32 s26, s26, 7
  s_add_u32 s26, s26, {CNT}
  s_and_b32 s27, s{w}, 0xffff
  v_mov_b32 v76, s26
  s_mov_b32 s24, 0
{lp}:
  buffer_load_dword v77, v76, s[8:11], 0 offen sc1
  s_waitcnt vmcnt(0)
  v_readfirstlane_b32 s25, v77
  s_cmp_ge_u32 s25, s27
  s_cbranch_scc1 {lp}_ok
  s_sleep 4
  s_add_u32 s24, s24, 1
  s_cmp_lt_u32 s24, {SPIN}
  s_cbranch_scc1 {lp}
  s_endpgm
{lp}_ok:""")
o(f"""{L}_d2:
  s_barrier
  v_mbcnt_lo_u32_b32 v0, -1, 0
  v_mbcnt_hi_u32_b32 v0, -1, v0
  s_bfe_u32 s20, s44, 0x80008
  s_bfe_u32 s21, s44, 0x80010
  s_lshr_b32 s22, s44, 24
  s_and_b32 s25, s44, 0xff""")
if TIM:
    o("  s_memrealtime s[36:37]")
o(f"  s_cmp_eq_u32 s25, {ST_A}\n  s_cbranch_scc1 {L}_st{ST_A}\n  s_cmp_eq_u32 s25, {ST_S}\n  s_cbranch_scc1 {L}_st{ST_S}\n  s_branch {L}_st{ST_A1}")
def stage_wrap(st, body, pre_flush=False):
    o(f"{L}_st{st}:")
    body()
    o(f"  s_branch {L}_sig")
stage_wrap(ST_LN1, lambda: stage_ln(o, 'x', STF), True)
stage_wrap(ST_S, lambda: stage_s(o, STF), True)
stage_wrap(ST_A, lambda: stage_a2(o, STF, 4))
stage_wrap(ST_A1, lambda: stage_a2(o, STF, 1))

o(f"{L}_warm:")
if int(opts.get("warm", 1)):
    o(f"""  s_sub_u32 s25, s33, 68
  s_mul_i32 s25, s25, {30*1024}
  s_lshl_b32 s26, s13, 10
  s_add_u32 s25, s25, s26
  v_lshlrev_b32 v1, 4, v0""")
    for P in (P_WQ, P_WK, P_WO, P_WV):
        srd(o, 64, P, 4718592)
        for i in range(8):
            o(f"  s_add_u32 s26, s25, {i*4096}\n  buffer_load_dwordx4 v[{16+4*i}:{19+4*i}], v1, s[64:67], s26 offen")
o(f"  s_branch {L}_pop")
o(f"{L}_sig:")
if TIM:
    o(f"""  s_cmp_eq_u32 s13, 0
  s_cbranch_scc0 {L}_not
  s_memrealtime s[38:39]
  s_waitcnt lgkmcnt(0)
  v_mov_b32 v4, s36
  v_mov_b32 v5, s38
  s_lshl_b32 s25, s43, 3
  s_add_u32 s25, s25, {FLAGS + 0x40000}
  v_mov_b32 v6, s25
  buffer_store_dwordx2 v[4:5], v6, s[8:11], 0 offen
{L}_not:""")
o(f"""  s_mov_b32 s50, s47
  s_branch {L}_pop""")

TIMB = (FLAGS + 0x50000) if TIM else None
def lane(o): o("  v_mbcnt_lo_u32_b32 v0, -1, 0\n  v_mbcnt_hi_u32_b32 v0, -1, v0")
o(f"{L}_roles:")
o(f"""{L}_ri:
  s_cmp_lt_u32 s33, 32
  s_cbranch_scc1 {L}_rB
  s_cmp_lt_u32 s33, 64
  s_cbranch_scc1 {L}_rC4
  s_cmp_lt_u32 s33, 72
  s_cbranch_scc1 {L}_rC2
  s_cmp_lt_u32 s33, 88
  s_cbranch_scc1 {L}_rL
  s_cmp_lt_u32 s33, 160
  s_cbranch_scc1 {L}_rD
  s_cmp_lt_u32 s33, 192
  s_cbranch_scc1 {L}_rE4
  s_cmp_lt_u32 s33, 200
  s_cbranch_scc1 {L}_rE2
  s_cmp_lt_u32 s33, 216
  s_cbranch_scc1 {L}_rF
  s_branch {L}_end""")
def mkloop(name, dep, tgt, sig):
    return lambda body: role_loop(o, name, dep, tgt, sig, CNT, NONE, body, SPIN*4, TIMB)
o(f"{L}_rB:")
def b_body():
    lane(o)
    lp = o.label("bq")
    o(f"""  s_lshl_b32 s25, s32, 7
  s_add_u32 s25, s25, {CNT + 128*C_Q}
  v_mov_b32 v250, s25
  s_mov_b32 s24, 0
{lp}:
  buffer_load_dword v251, v250, s[8:11], 0 offen sc1
  s_waitcnt vmcnt(0)
  v_readfirstlane_b32 s25, v251
  s_cmp_ge_u32 s25, 32
  s_cbranch_scc1 {lp}_ok
  s_add_u32 s24, s24, 1
  s_cmp_lt_u32 s24, {SPIN*4}
  s_cbranch_scc1 {lp}
  s_endpgm
{lp}_ok:
  s_lshr_b32 s20, s33, 3
  s_lshl_b32 s25, s32, 2
  s_add_u32 s20, s20, s25              ; seg = 4g + r/8
  s_and_b32 s21, s33, 7
  s_lshl_b32 s21, s21, 2
  s_add_u32 s21, s21, s13              ; head""")
    stage_b(o, STF, wait_r=True)
mkloop("RB", C_KV, 128, C_B)(b_body)
o(f"  s_branch {L}_end")
for nm, which, base4, base2, dep, tgt, sig in (("C", 'C', 32, 64, C_B, 32, C_C), ("E", 'E', 160, 192, C_D, 72, C_E)):
    o(f"{L}_r{nm}4:")
    lane(o)
    o(f"  s_sub_u32 s25, s33, {base4}\n  s_lshr_b32 s28, s25, 3\n  s_lshl_b32 s28, s28, 2\n  s_and_b32 s23, s25, 7")
    role_ce(o, which, 4, STF, mkloop(f"R{nm}4", dep, tgt, sig))
    o(f"  s_branch {L}_end")
    o(f"{L}_r{nm}2:")
    lane(o)
    o(f"  s_mov_b32 s28, 16\n  s_sub_u32 s23, s33, {base2}")
    role_ce(o, which, 2, STF, mkloop(f"R{nm}2", dep, tgt, sig))
    o(f"  s_branch {L}_end")
for nm, base, dep, tgt, sig, fn in (("L", 72, C_C, 40, C_L, lambda: stage_ln2b(o, STF)), ("F", 200, C_E, 40, None, lambda: stage_fb(o))):
    o(f"{L}_r{nm}:")
    def body(base=base, fn=fn):
        lane(o)
        o(f"  s_sub_u32 s25, s33, {base}\n  s_lshr_b32 s20, s25, 2\n  s_lshl_b32 s26, s32, 2\n  s_add_u32 s20, s20, s26\n  s_and_b32 s21, s25, 3")
        fn()
    mkloop(f"R{nm}", dep, tgt, sig)(body)
    o(f"  s_branch {L}_end")
o(f"{L}_rD:")
lane(o)
o(f"  s_sub_u32 s28, s33, 88")
role_d(o, STF, mkloop("RD", C_L, 16, C_D))
o(f"""{L}_end:
  s_waitcnt vmcnt(0) lgkmcnt(0)
  s_endpgm
.p2align 6
{L}_items:""")
for k in range(8):
    o(f"  .long {qstart[k] if k < NQ else 0}, {len(queues[k]) if k < NQ else 0}")
for x in items:
    o("  .long " + ", ".join(hex(w) for w in x))
kd = f"""
.section .rodata,"a"
.p2align 6
.amdhsa_kernel {KN}
  .amdhsa_next_free_vgpr 512
  .amdhsa_next_free_sgpr 102
  .amdhsa_accum_offset 256
  .amdhsa_group_segment_fixed_size 0
  .amdhsa_kernarg_size 112
  .amdhsa_user_sgpr_count 2
  .amdhsa_user_sgpr_kernarg_segment_ptr 1
  .amdhsa_system_sgpr_workgroup_id_x 1
.end_amdhsa_kernel
"""
hdr = open("cdna_kernels/" + NAME + ".s.ref").read().split("; Override launch")[0]
body = '\n'.join(l.split(';')[0].strip() for l in o.text().split('\n') if l.split(';')[0].strip()) + '\n'
txt = hdr + "; @launch grid=(256,1,1) block=(256,1,1) lds=163840\n" + '.amdgcn_target "amdgcn-amd-amdhsa--gfx950"\n.text\n' + body + kd
out = sys.argv[1] if len(sys.argv) > 1 else "fused.s"
open(out, "w").write(txt)
json.dump([(KN, 256, 163840)], open(out.replace(".s", ".json"), "w"))
json.dump(items + [item(ST_LN1, r) if r < 64 else item(ST_S, r-64) for r in range(68)], open("items.json", "w"))
print("items", NITEMS, "bytes", len(txt))
```

```python
from asmlib import *

L_MEM, L_XEX, L_MEX, L_OEX, L_W = 0, 9216, 13312, 14336, 16384

vA, vXw, vM, vOw, vR, vP, vIdx, vH1 = 0, 1, 2, 3, 4, 5, 6, 7
vSel, vSelR, vKx, vVx = 8, 10, 14, 22
sW = 4
sWS = 8
sH, sWv_, sStep = 12, 13, 14
sC = 15
sKoff, sKm, sH1st, sH1h, sH1ld, sH2pub, sH2pl = 16, 17, 18, 19, 20, 21, 22
sIsRed, sJ, sT0, sT1, sT2, sT3 = 23, 24, 25, 26, 27, 28
sPoll = 29
sH1rs, sH2rs = 30, 31
sFlagOff = 32
sX1, sX2, sX3 = 33, 34, 35
sW256 = 36
sMaskMw = 38
sPi0, sPih = 40, 41
sH1so, sH1ho, sW1024 = 42, 43, 37
sUnit = 45
sH2tch = 46
sTm = 44

def frag_q(tau, c): return ('a', (tau*9 + c)*8)
def frag_k(tau, c):
    f = tau*9 + c
    return ('a', 144 + 8*f) if f < 14 else ('v', 80 + 8*(f-14))
def frag_v(tau, c):
    return ('v', 112 + 72*tau + 8*c)
def frag_o(tl, kap):
    return ('lds', 4*tl + kap)

def lds_frag_addr(f):
    off = L_W + f*4096
    return off // 65536, off % 65536

def nop(o, n):
    while n > 0:
        k = min(n, 16)
        o(f"  s_nop {k-1}")
        n -= k

def emit_consts(o):
    o.c("---- R lane constants; v0 holds lane id on entry (0..63), s13 = wave")
    o(f"""
  v_mov_b32 v30, v0                 ; lane
  v_and_b32 v31, 15, v30            ; c
  v_lshrrev_b32 v32, 4, v30         ; g
  v_and_b32 v33, 7, v30             ; t
  v_bfe_u32 v34, v30, 3, 1          ; u
  v_lshlrev_b32 v{vA}, 4, v30
  s_lshl_b32 s{sT0}, s{sWv_}, 10
  v_add_u32 v{vXw}, s{sT0}, v{vA}
  v_and_b32 v35, 1, v32             ; g%2
  v_lshlrev_b32 v{vM}, 7, v35
  v_lshl_add_u32 v{vM}, v33, 4, v{vM}
  ; vOw = (w/2)*1024 + (g/2)*256 + (w%2)*128 + t*16 + (g%2)*8 ; u==0 only
  s_lshr_b32 s{sT0}, s{sWv_}, 1
  s_lshl_b32 s{sT0}, s{sT0}, 10
  s_and_b32 s{sT1}, s{sWv_}, 1
  s_lshl_b32 s{sT1}, s{sT1}, 7
  s_add_u32 s{sT0}, s{sT0}, s{sT1}
  s_add_u32 s{sT0}, s{sT0}, {L_OEX}
  v_lshrrev_b32 v36, 1, v32         ; g/2
  v_lshlrev_b32 v{vOw}, 8, v36
  v_lshl_add_u32 v{vOw}, v33, 4, v{vOw}
  v_lshl_add_u32 v{vOw}, v35, 3, v{vOw}
  v_add_u32 v{vOw}, s{sT0}, v{vOw}
  v_mov_b32 v37, 0x7ffffff0
  v_cmp_eq_u32 vcc, 0, v34
  s_nop 1
  v_cndmask_b32 v{vOw}, v37, v{vOw}, vcc
  v_mov_b32 v37, 0x80000000
  v_cndmask_b32 v{vH1}, v37, v{vA}, vcc
  ; idx
  v_mov_b32 v38, 0x44444444
  v_mov_b32 v39, 0xeeeeeeee
  v_cndmask_b32 v{vIdx}, v39, v38, vcc
  s_lshl_b32 s{sJ}, s{sH}, 1
  s_add_u32 s{sJ}, s{sJ}, s{sWv_}
  s_add_u32 s{sT0}, s{sH}, 64
  s_cmp_eq_u32 s{sWv_}, 2
  s_cselect_b32 s{sJ}, s{sT0}, s{sJ}
  s_cmp_lt_u32 s{sWv_}, 2
  s_cselect_b32 s{sIsRed}, 1, 0
  s_cmp_eq_u32 s{sWv_}, 2
  s_cselect_b32 s{sT0}, 1, 0
  s_cmp_lt_u32 s{sH}, 8
  s_cselect_b32 s{sT1}, 1, 0
  s_and_b32 s{sT0}, s{sT0}, s{sT1}
  s_or_b32 s{sIsRed}, s{sIsRed}, s{sT0}
  s_cmp_eq_u32 s{sIsRed}, 0
  s_cselect_b32 s{sJ}, 0, s{sJ}
  ; unit j=(pi=j/4, g4=j%4): H1 offset of its 128B segment
  s_lshr_b32 s{sT0}, s{sJ}, 2            ; pi
  s_and_b32 s{sT1}, s{sJ}, 3             ; g4
  s_cmp_gt_u32 s{sT0}, 13
  s_cselect_b32 s{sT2}, 2, 0
  s_cmp_gt_u32 s{sT0}, 4
  s_cselect_b32 s{sT3}, 1, 0
  s_cmp_gt_u32 s{sT0}, 13
  s_cselect_b32 s{sT3}, 2, s{sT3}
  s_sub_u32 s{sT2}, s{sT0}, s{sT3}
  s_lshr_b32 s{sT3}, s{sT2}, 1
  s_lshl_b32 s{sT3}, s{sT3}, 10          ; (q/2)*1024
  s_and_b32 s{sT2}, s{sT2}, 1
  s_lshl_b32 s{sT2}, s{sT2}, 7           ; (q%2)*128
  s_add_u32 s{sT3}, s{sT3}, s{sT2}
  s_cmp_eq_u32 s{sT0}, 4
  s_cselect_b32 s{sT3}, 8192, s{sT3}
  s_cmp_eq_u32 s{sT0}, 13
  s_cselect_b32 s{sT3}, 9216, s{sT3}
  s_lshl_b32 s{sT1}, s{sT1}, 8
  s_add_u32 s{sT0}, s{sT3}, s{sT1}       ; + g4*256
  s_lshr_b32 s{sT1}, s{sJ}, 2
  s_cmp_eq_u32 s{sT1}, 4
  s_cselect_b32 s{sT2}, 2, s{sIsRed}
  s_cmp_eq_u32 s{sT1}, 13
  s_cselect_b32 s{sT2}, 2, s{sT2}
  s_cmp_eq_u32 s{sIsRed}, 0
  s_cselect_b32 s{sIsRed}, 0, s{sT2}
  v_lshl_add_u32 v40, v34, 2, v32
  v_mul_u32_u24 v40, {H1_PROD}, v40
  v_lshl_add_u32 v40, v33, 4, v40
  v_add_u32 v{vR}, s{sT0}, v40
  s_cmp_eq_u32 s{sIsRed}, 0
  s_cselect_b32 s{sT1}, 0x80000000, 0
  s_cselect_b32 s{sUnit}, 0x80000000, s{sT0}
  v_lshlrev_b32 v40, 4, v33
  v_lshl_add_u32 v40, v32, 3, v40
  s_lshl_b32 s{sT0}, s{sJ}, 7
  v_add_u32 v40, s{sT0}, v40
  v_and_b32 v41, 40, v30
  v_cmp_eq_u32 vcc, 0, v41
  s_nop 1
  v_cndmask_b32 v{vP}, v37, v40, vcc
  v_or_b32 v{vP}, s{sT1}, v{vP}
  s_mov_b64 s[{sMaskMw}:{sMaskMw+1}], vcc     ; lanes u==0,g<2
  ; Sel: e = c - 4*(g%2)
  v_lshlrev_b32 v40, 2, v35
  v_sub_u32 v40, v31, v40
  v_mov_b32 v41, 0x3f80
  v_mov_b32 v42, 0x3f800000
  v_mov_b32 v{vSel}, 0
  v_mov_b32 v{vSel+1}, 0
  v_cmp_eq_u32 vcc, 0, v40
  s_nop 1
  v_cndmask_b32 v{vSel}, v{vSel}, v41, vcc
  v_cmp_eq_u32 vcc, 1, v40
  s_nop 1
  v_cndmask_b32 v{vSel}, v{vSel}, v42, vcc
  v_cmp_eq_u32 vcc, 2, v40
  s_nop 1
  v_cndmask_b32 v{vSel+1}, v{vSel+1}, v41, vcc
  v_cmp_eq_u32 vcc, 3, v40
  s_nop 1
  v_cndmask_b32 v{vSel+1}, v{vSel+1}, v42, vcc""")
    for r in range(4):
        o(f"""  v_mov_b32 v{vSelR+r}, 0
  v_cmp_eq_u32 vcc, {2*r}, v31
  s_nop 1
  v_cndmask_b32 v{vSelR+r}, v{vSelR+r}, v41, vcc
  v_cmp_eq_u32 vcc, {2*r+1}, v31
  s_nop 1
  v_cndmask_b32 v{vSelR+r}, v{vSelR+r}, v42, vcc""")
    o(f"""
  s_lshl_b32 s{sW1024}, s{sWv_}, 10
  s_lshl_b32 s{sH2tch}, s{sH}, 2
  s_add_u32 s{sH2tch}, s{sH2tch}, s{sWv_}
  s_lshl_b32 s{sH2tch}, s{sH2tch}, 6
  s_add_u32 s{sH2tch}, s{sH2tch}, {H2_SLOT}
  s_mov_b32 s{sC}, 0x3e0293ee        ; 128^-0.5 * log2(e) = 0.12751743
  s_add_u32 s{sT0}, s{sWv_}, 1
  s_and_b32 s{sT0}, s{sT0}, 3
  s_lshl_b32 s{sX1}, s{sT0}, 10
  s_add_u32 s{sX1}, s{sX1}, {L_XEX}
  s_add_u32 s{sT0}, s{sWv_}, 2
  s_and_b32 s{sT0}, s{sT0}, 3
  s_lshl_b32 s{sX2}, s{sT0}, 10
  s_add_u32 s{sX2}, s{sX2}, {L_XEX}
  s_add_u32 s{sT0}, s{sWv_}, 3
  s_and_b32 s{sT0}, s{sT0}, 3
  s_lshl_b32 s{sX3}, s{sT0}, 10
  s_add_u32 s{sX3}, s{sX3}, {L_XEX}
  s_lshl_b32 s{sW256}, s{sWv_}, 8
  s_add_u32 s{sW256}, s{sW256}, {L_MEX}
  s_mul_i32 s{sPi0}, s{sWv_}, 9
  s_add_u32 s{sPi0}, s{sPi0}, 1
  s_lshr_b32 s{sPi0}, s{sPi0}, 1
  s_lshr_b32 s{sPih}, s{sWv_}, 1
  s_mul_i32 s{sPih}, s{sPih}, 9
  s_add_u32 s{sPih}, s{sPih}, 4
""")

def emit_weights(o, hook=None, hook_at=28):
    o.c("---- weight prologue")
    vLdW, vLdO, vLdOh, vScr, vT, vT2, vT2h, vF1, vF2 = 30, 31, 32, 33, 34, 35, 36, 37, 38
    TMP = 40
    o(f"""
  v_lshrrev_b32 v46, 4, v{vA}        ; lane
  v_lshrrev_b32 v45, 2, v46          ; l/4
  v_and_b32 v44, 3, v46              ; l%4
  v_lshlrev_b32 v{vLdW}, 13, v45
  v_lshl_add_u32 v{vLdW}, v44, 4, v{vLdW}      ; (l/4)*8192 + (l%4)*16
  v_mul_u32_u24 v{vLdOh}, 1152, v45
  v_lshl_add_u32 v{vLdOh}, v44, 4, v{vLdOh}    ; (l/4)*1152 + (l%4)*16
  v_lshrrev_b32 v43, 3, v46          ; l/8
  v_and_b32 v42, 7, v46
  v_mul_u32_u24 v{vLdO}, 1152, v43
  v_lshl_add_u32 v{vLdO}, v42, 4, v{vLdO}      ; (l/8)*1152 + (l%8)*16
  s_lshl_b32 s{sT0}, s{sWv_}, 12
  v_add_u32 v{vScr}, s{sT0}, v{vA}             ; scratch + l*16
  ; tr lane decomposition: gb=l/16, r'=(l%16)/4, c'=l%4
  v_lshrrev_b32 v43, 4, v46          ; gb
  v_bfe_u32 v42, v46, 2, 2           ; r'
  ; row = 16*(gb/2) + 4*(gb%2) + 8*(r'/2) + r'%2
  v_lshrrev_b32 v41, 1, v43
  v_lshlrev_b32 v41, 4, v41
  v_and_b32 v40, 1, v43
  v_lshl_add_u32 v41, v40, 2, v41
  v_lshrrev_b32 v40, 1, v42
  v_lshl_add_u32 v41, v40, 3, v41
  v_and_b32 v40, 1, v42
  v_add_u32 v41, v41, v40
  v_lshlrev_b32 v{vT}, 6, v41
  v_lshl_add_u32 v{vT}, v44, 3, v{vT}
  v_add_u32 v{vT}, s{sT0}, v{vT}
  v_lshl_add_u32 v41, v43, 3, v42
  v_lshlrev_b32 v{vT2}, 7, v41
  v_lshl_add_u32 v{vT2}, v44, 4, v{vT2}
  v_add_u32 v{vT2}, s{sT0}, v{vT2}
  v_lshlrev_b32 v{vT2h}, 6, v41
  v_lshl_add_u32 v{vT2h}, v44, 4, v{vT2h}
  v_add_u32 v{vT2h}, s{sT0}, v{vT2h}
  s_and_b32 s{sT1}, s{sWv_}, 1
  s_lshl_b32 s{sT1}, s{sT1}, 3
  v_add_u32 v{vT2h}, s{sT1}, v{vT2h}
  v_add_u32 v{vF1}, 0x10000, v{vXw}
  v_add_u32 v{vF2}, 0x20000, v{vXw}
""")
    def ldsaddr(f):
        b, imm = lds_frag_addr(f)
        return (vXw, vF1, vF2)[b], imm
    chunks = []
    for c in range(9): chunks.append(('q', c))
    for c in range(9): chunks.append(('k', c))
    for kap in range(4):
        chunks += [('o', kap, 0), ('o', kap, 1), ('oh', kap)]
    for c in range(9): chunks.append(('v', c))
    def dests(ch):
        if ch[0] == 'q': return [frag_q(0, ch[1]), frag_q(1, ch[1])]
        if ch[0] == 'k': return [frag_k(0, ch[1]), frag_k(1, ch[1])]
        if ch[0] == 'v': return [frag_v(0, ch[1]), frag_v(1, ch[1])]
        if ch[0] == 'o': return [frag_o(4*ch[2]+i, ch[1]) for i in range(4)]
        return [frag_o(8, ch[1])]
    def dest_vregs(ch):
        n = 8 if ch[0] in 'qkv' else 4
        r = set()
        for d in dests(ch):
            if d[0] == 'v': r |= set(range(d[1], d[1]+n))
        return r
    bufs = [48, 64] + list(range(80, 256, 16))
    n = len(chunks)
    MAXIN = 10
    used_final = set()
    assign = {}
    inflight = []
    nxt = 0
    sched = []
    final_before = []
    acc = set()
    for m in range(n):
        final_before.append(set(acc))
        acc |= dest_vregs(chunks[m])
    proc = 0
    busy = {}
    while proc < n:
        while nxt < n and len(inflight) < MAXIN:
            cand = None
            for b in bufs:
                if b in busy: continue
                rs = set(range(b, b+16))
                if rs & final_before[nxt]: continue
                cand = b; break
            if cand is None: break
            busy[cand] = nxt; assign[nxt] = cand; inflight.append(nxt); sched.append(('issue', nxt)); nxt += 1
        sched.append(('proc', proc))
        if proc >= 1: del busy[assign[proc-1]]
        inflight.remove(proc)
        proc += 1
    def nloads(ch): return 2 if ch[0] == 'oh' else 4
    srd_cur = None
    ptr = {'q': 50, 'k': 52, 'v': 54, 'o': 56, 'oh': 56}
    srd = {'q': 64, 'k': 68, 'v': 72, 'o': 76, 'oh': 76}
    for k_, p in (('q', 50), ('k', 52), ('v', 54), ('o', 56)):
        o(f"""  s_mov_b32 s{srd[k_]}, s{p}
  s_and_b32 s{srd[k_]+1}, s{p+1}, 0xffff
  s_mov_b32 s{srd[k_]+2}, 4718592
  s_mov_b32 s{srd[k_]+3}, 0x20000""")
    o(f"""  s_lshl_b32 s80, s{sH}, 8
  s_lshl_b32 s81, s{sWv_}, 6
  s_add_u32 s80, s80, s81            ; h*256 + w*64
  s_mul_i32 s82, s{sH}, {128*1152}
  s_lshl_b32 s83, s{sPi0}, 6
  s_add_u32 s83, s83, s82
  s_lshl_b32 s84, s{sPih}, 6
  s_add_u32 s84, s84, s82""")
    outstanding = []
    for kind, m in sched:
        ch = chunks[m]; b = assign[m]
        if kind == 'issue':
            if ch[0] in 'qkv':
                for i in range(4):
                    o(f"  s_add_u32 s85, s80, {(64*ch[1] + 16*i)*8192}")
                    o(f"  buffer_load_dwordx4 {v(b+4*i,4)}, v{vLdW}, s[{srd[ch[0]]}:{srd[ch[0]]+3}], s85 offen")
            elif ch[0] == 'o':
                for i in range(4):
                    o(f"  s_add_u32 s85, s83, {(32*ch[1] + 8*i)*1152 + ch[2]*128}")
                    o(f"  buffer_load_dwordx4 {v(b+4*i,4)}, v{vLdO}, s[76:79], s85 offen")
            else:
                for i in range(2):
                    o(f"  s_add_u32 s85, s84, {(32*ch[1] + 16*i)*1152}")
                    o(f"  buffer_load_dwordx4 {v(b+4*i,4)}, v{vLdOh}, s[76:79], s85 offen")
            outstanding.append(m)
        else:
            if hook and m == hook_at: hook()
            idx = outstanding.index(m)
            later = sum(nloads(chunks[x]) for x in outstanding[idx+1:])
            o(f"  s_waitcnt vmcnt({min(later,63)})")
            outstanding = outstanding[idx+1:]
            o("  s_waitcnt lgkmcnt(0)")
            for i in range(nloads(ch)):
                o(f"  ds_write_b128 v{vScr}, {v(b+4*i,4)} offset:{1024*i}")
            if ch[0] in 'qkv':
                for tau, d in enumerate(dests(ch)):
                    assert d[0] != 'lds'
                    for r_, off in ((0, 0), (2, 128), (4, 2048), (6, 2176)):
                        o(f"  ds_read_b64_tr_b16 {reg((d[0], d[1]+r_), 2)}, v{vT} offset:{off + 32*tau}")
            elif ch[0] == 'o':
                for i, d in enumerate(dests(ch)):
                    pim, x = i // 2, i % 2
                    o(f"  ds_read_b64_tr_b16 {v(b+4*i,2)}, v{vT2} offset:{64*pim + 8*x}")
                    o(f"  ds_read_b64_tr_b16 {v(b+4*i+2,2)}, v{vT2} offset:{512 + 64*pim + 8*x}")
                o("  s_waitcnt lgkmcnt(0)")
                for i, d in enumerate(dests(ch)):
                    ar, imm = ldsaddr(d[1])
                    o(f"  ds_write_b128 v{ar}, {v(b+4*i,4)} offset:{imm}")
            else:
                d = dests(ch)[0]
                o(f"  ds_read_b64_tr_b16 {v(b,2)}, v{vT2h} offset:0")
                o(f"  ds_read_b64_tr_b16 {v(b+2,2)}, v{vT2h} offset:256")
                o("  s_waitcnt lgkmcnt(0)")
                ar, imm = ldsaddr(d[1])
                o(f"  ds_write_b128 v{ar}, {v(b,4)} offset:{imm}")
    o("  s_waitcnt lgkmcnt(0)")


Q0, Q1, K0, K1, V0, V1 = 30, 34, 38, 42, 46, 50
W = [54, 58, 62]
T, U, QS = 66, 70, 74

class Cnt:
    def __init__(self, o, name, maxv):
        self.o, self.name, self.maxv, self.q = o, name, maxv, []
    def issue(self, tag):
        self.q.append(tag)
        assert len(self.q) <= self.maxv + 1, (self.name, self.q)
    def wait(self, tag):
        if tag not in self.q: return
        i = len(self.q) - 1 - self.q[::-1].index(tag)
        n = len(self.q) - 1 - i
        self.o(f"  s_waitcnt {self.name}cnt({n})")
        self.q = self.q[i+1:]
    def waitall(self):
        self.o(f"  s_waitcnt {self.name}cnt(0)")
        self.q = []

def smf(o, d, aop, b):
    o(f"  v_smfmac_f32_16x16x64_bf16 {v(d,4)}, {v(aop,4)}, {reg(b,8)}, v{vIdx}")


POLL_LIMIT = 1 << 20
PUBF = 'sc1'
PUBK = 'sc1'
PUBV = 'sc1'
KVF = ''
DUALF = True
DUALA = False
FSTAG = 16
ASTAG = 16
KVPOS = 'qk'
KVCNT = None
TOUCH = True
RESETW = False
vDummy = 79

def emit_loop(o, L, stf, timing=False, fdelay=0, adelay=0):
    WSr = f"s[{sWS}:{sWS+3}]"
    lg = Cnt(o, "lgkm", 15)
    def dsr(dst, ar, off, tag):
        o(f"  ds_read_b128 {v(dst,4)}, v{ar} offset:{off}")
        lg.issue(tag)
    def stamp(k):
        if timing:
            o(f"  s_memtime s[{86+2*k}:{87+2*k}]")
    T, U, QS, MW = 66, 70, 74, 78
    o(f"{L}_loop:")
    for wv in range(3):
        o(f"  s_cmp_eq_u32 s{sWv_}, {wv}\n  s_cbranch_scc1 {L}_qv{wv}")
    o(f"  s_branch {L}_qv3")
    side = []
    if KVPOS == 'qk': side += [f"  s_add_u32 s{sT1}, s{sKoff}, {VBUF-KBUF}",
             f"  buffer_load_dwordx4 {v(vKx,4)}, v{vA}, {WSr}, s{sKoff} offen {KVF}", None,
             f"  buffer_load_dwordx4 {v(vKx+4,4)}, v{vA}, {WSr}, s{sKoff} offen offset:1024 {KVF}", None, None,
             f"  buffer_load_dwordx4 {v(vVx,4)}, v{vA}, {WSr}, s{sT1} offen {KVF}", None, None,
             f"  buffer_load_dwordx4 {v(vVx+4,4)}, v{vA}, {WSr}, s{sT1} offen offset:1024 {KVF}", None]
    if KVCNT is not None:
        side += [f"  v_readfirstlane_b32 s{sT0}, v{vDummy}",
                 f"  s_cmp_ge_u32 s{sT0}, 128\n  s_cbranch_scc1 {{LP}}_kv\n"
                 f"  s_add_u32 s{sT0}, s{sStep}, 1\n  s_min_u32 s{sT0}, s{sT0}, 63\n  s_lshr_b32 s{sT0}, s{sT0}, 2\n  s_lshl_b32 s{sT0}, s{sT0}, 7\n  s_add_u32 s{sT0}, s{sT0}, {KVCNT}\n"
                 f"  v_mov_b32 v72, s{sT0}\n{{LP}}_kvp:\n  buffer_load_dword v73, v72, {WSr}, 0 offen sc1\n  s_waitcnt vmcnt(0)\n  v_readfirstlane_b32 s{sT0}, v73\n  s_add_u32 s{sPoll}, s{sPoll}, 1\n  s_cmp_gt_u32 s{sPoll}, {POLL_LIMIT}\n  s_cbranch_scc1 {L}_bail\n  s_cmp_ge_u32 s{sT0}, 128\n  s_cbranch_scc0 {{LP}}_kvp\n{{LP}}_kv:"]
    side += [f"  v_bfe_u32 v72, v{vA}, 4, 5", f"  v_lshlrev_b32 v72, 6, v72", f"  v_lshrrev_b32 v73, 9, v{vA}", f"  v_lshl_add_u32 v72, v73, 24, v72",
             f"  s_add_u32 s{sKoff}, s{sKoff}, {32*8192}", f"  buffer_load_dword v{vDummy}, v72, {WSr}, s{sKoff} offen {KVF}"]
    side += [f"  v_bfe_u32 v73, v{vA}, 4, 5", f"  v_mul_u32_u24 v73, {H1_PROD}, v73", f"  v_lshrrev_b32 v72, 9, v{vA}", f"  v_lshl_add_u32 v73, v72, 6, v73", f"  v_add_u32 v73, s{sUnit}, v73",
             f"  s_add_u32 s{sT0}, s{sH1ld}, {H1_SLOT}", f"  buffer_load_dword v{vDummy}, v73, {WSr}, s{sT0} offen sc1",
             f"  s_add_u32 s{sT0}, s{sH2pub}, s{sH2tch}", f"  v_lshlrev_b32 v72, 9, v{vA}", f"  s_mov_b64 exec, 3\n  buffer_load_dword v{vDummy}, v72, {WSr}, s{sT0} offen sc1\n  s_mov_b64 exec, -1"]
    if KVCNT is not None:
        side += [f"  s_add_u32 s{sT0}, s{sStep}, 2\n  s_min_u32 s{sT0}, s{sT0}, 63\n  s_lshr_b32 s{sT0}, s{sT0}, 2\n  s_lshl_b32 s{sT0}, s{sT0}, 7",
                 f"  s_add_u32 s{sT0}, s{sT0}, {KVCNT}\n  v_mov_b32 v72, s{sT0}", f"  buffer_load_dword v{vDummy}, v72, {WSr}, 0 offen sc1"]
    side += [f"  v_mov_b32 v70, s{sStep}", f"  v_mov_b32 v71, s{sFlagOff}", f"  s_mov_b64 exec, 1\n  buffer_store_dword v70, v71, {WSr}, 0 offen {PUBF}\n  s_mov_b64 exec, -1"]
    side += [f"  v_add_u32 v{MW}, s{sW256}, v{vM}", f"  v_cndmask_b32 v{MW}, -16, v{MW}, s[{sMaskMw}:{sMaskMw+1}]"]
    NV_AFTER_KV = 4 + (1 if KVCNT is not None else 0)
    side_all = list(side)
    o.c("QK phase: own (register-resident) chunks first, the rest through LDS")
    for wv in range(4):
        o(f"{L}_av{wv}:")
        S1 = [58, 62, 66][:(3 if wv == 0 else 2)]
        offs = [sH2pl, sT1, sT2]
        if timing: o("  s_add_u32 s81, s81, 1\n  s_memtime s[68:69]")
        for r_, so in zip(S1, offs):
            o(f"  buffer_load_dwordx4 {v(r_,4)}, v{vA}, {WSr}, s{so} offen sc1")
        o(f"  s_add_u32 s{sPoll}, s{sPoll}, 1")
        o(f"  s_cmp_gt_u32 s{sPoll}, {POLL_LIMIT}")
        o(f"  s_cbranch_scc1 {L}_bail")
        o(f"  s_waitcnt vmcnt(0)")
        if timing: o("  s_memtime s[70:71]")
        o(f"  v_max3_u32 v78, v58, v60, v62")
        if wv == 0:
            o(f"  v_max3_u32 v78, v78, v64, v66\n  v_max_u32 v78, v78, v68")
        else:
            o(f"  v_max_u32 v78, v78, v64")
        o(f"  v_cmp_eq_u32 vcc, -1, v78")
        o(f"  s_cbranch_vccnz {L}_av{wv}")
        o(f"  ds_write_b128 v{vXw}, {v(58,4)} offset:{L_MEM}")
        o(f"  ds_write_b128 v{vXw}, {v(62,4)} offset:{L_MEM+4096}")
        if wv == 0: o(f"  ds_write_b128 v{vA}, {v(66,4)} offset:{L_MEM+8192}")
        o(f"{L}_qv{wv}:")
        if timing: o("  s_memtime s[72:73]")
        stamp(0)
        side = list(side_all)
        def pop(n):
            for _ in range(n):
                if side:
                    x = side.pop(0)
                    if x: o(x.replace("{LP}", f"{L}w{wv}"))
        lgq = Cnt(o, "lgkm", 15)
        def dsq(dst, off, tag):
            o(f"  ds_read_b128 {v(dst,4)}, v{vA} offset:{off}"); lgq.issue(tag)
        def qk(c, a_, np_=(1,1,1,1)):
            smf(o, Q0, a_, frag_q(0, c)); pop(np_[0])
            smf(o, Q1, a_, frag_q(1, c)); pop(np_[1])
            smf(o, K0, a_, frag_k(0, c)); pop(np_[2])
            smf(o, K1, a_, frag_k(1, c))
        own = [wv, wv+4] + ([8] if wv == 0 else [])
        rest = [c for c in range(9) if c not in own]
        qk(own[0], W[1])
        o("  s_waitcnt lgkmcnt(0)\n  s_barrier")
        dsq(W[0], L_MEM + 1024*rest[0], "r0"); dsq(W[1], L_MEM + 1024*rest[1], "r1")
        qk(own[1], W[2])
        dsq(W[2], L_MEM + 1024*rest[2], "r2")
        if wv == 0: qk(8, 66)
        for k, c in enumerate(rest):
            lgq.wait(f"r{k}")
            last = (k == len(rest)-1)
            qk(c, W[k % 3], (1, 2 if k >= len(rest)-3 else 1, 0 if last else 1, 0))
            if k + 3 < len(rest): dsq(W[k % 3], L_MEM + 1024*rest[k+3], f"r{k+3}")
            if not last: pop(1)
        while side: pop(1)
        free_order = [(len(rest)-3+i_) % 3 for i_ in range(3)]
        assert sorted(free_order) == [0, 1, 2]
        for sl in range(3):
            o(f"  ds_read_b128 {v(W[sl],4)}, v{vA} offset:{L_MEM + 1024*(6+sl)}")
        if wv < 3:
            o(f"  s_branch {L}_qkd")
    o(f"{L}_qkd:")
    lg.issue("V6"); lg.issue("V7"); lg.issue("V8")
    stamp(1)
    o.c("transpose q,k")
    def vpass(c, slot):
        smf(o, V0, W[slot], frag_v(0, c)); smf(o, V1, W[slot], frag_v(1, c))
    o(f"  v_cvt_pk_bf16_f32 v{T}, v{Q0}, v{Q0+1}")
    o(f"  v_cvt_pk_bf16_f32 v{T+1}, v{Q0+2}, v{Q0+3}")
    o(f"  v_cvt_pk_bf16_f32 v{T+2}, v{Q1}, v{Q1+1}")
    o(f"  v_cvt_pk_bf16_f32 v{T+3}, v{Q1+2}, v{Q1+3}")
    nop(o, 2)
    o(f"  v_cvt_pk_bf16_f32 v{U}, v{K0}, v{K0+1}")
    o(f"  v_mfma_f32_16x16x16_bf16 {v(Q0,4)}, {v(T,2)}, {v(vSel,2)}, 0")
    o(f"  v_cvt_pk_bf16_f32 v{U+1}, v{K0+2}, v{K0+3}")
    o(f"  v_cvt_pk_bf16_f32 v{U+2}, v{K1}, v{K1+1}")
    o(f"  v_mfma_f32_16x16x16_bf16 {v(Q1,4)}, {v(T+2,2)}, {v(vSel,2)}, 0")
    o(f"  v_cvt_pk_bf16_f32 v{U+3}, v{K1+2}, v{K1+3}")
    nop(o, 1)
    o(f"  v_mfma_f32_16x16x16_bf16 {v(K0,4)}, {v(U,2)}, {v(vSel,2)}, 0")
    o(f"  v_mfma_f32_16x16x16_bf16 {v(K1,4)}, {v(U+2,2)}, {v(vSel,2)}, 0")
    lg.wait("V6")
    smf(o, V0, W[0], frag_v(0, 6))
    o(f"  v_cvt_pk_bf16_f32 v{T}, v{Q0}, v{Q0+1}")
    o(f"  v_cvt_pk_bf16_f32 v{T+1}, v{Q0+2}, v{Q0+3}")
    o(f"  v_cvt_pk_bf16_f32 v{T+2}, v{Q1}, v{Q1+1}")
    o(f"  v_cvt_pk_bf16_f32 v{T+3}, v{Q1+2}, v{Q1+3}")
    smf(o, V1, W[0], frag_v(1, 6))
    dsr(W[0], vA, L_MEM, "B0")
    for i in range(4):
        o(f"  v_mov_b32_dpp v{QS+i}, v{T+i} row_ror:8 row_mask:0xf bank_mask:0xf")
    o(f"  s_waitcnt vmcnt({NV_AFTER_KV})")
    o(f"  v_mfma_f32_16x16x32_bf16 {v(Q0,4)}, {v(vKx,4)}, {v(T,4)}, 0")
    o(f"  v_cvt_pk_bf16_f32 v{U}, v{K0}, v{K0+1}")
    o(f"  v_cvt_pk_bf16_f32 v{U+1}, v{K0+2}, v{K0+3}")
    o(f"  v_mfma_f32_16x16x32_bf16 {v(Q0,4)}, {v(vKx+4,4)}, {v(QS,4)}, {v(Q0,4)}")
    o(f"  v_cvt_pk_bf16_f32 v{U+2}, v{K1}, v{K1+1}")
    o(f"  v_cvt_pk_bf16_f32 v{U+3}, v{K1+2}, v{K1+3}")
    nop(o, 2)
    o(f"  v_mfma_f32_16x16x32_bf16 {v(Q1,4)}, {v(U,4)}, {v(T,4)}, 0")
    lg.wait("V7")
    vpass(7, 1)
    dsr(W[1], vA, L_MEM + 1024, "B1")
    o(f"  ds_write_b128 v{vXw}, {v(Q0,4)} offset:{L_XEX}"); lg.issue("Xw")
    o(f"  ds_write_b128 v{MW}, {v(Q1,4)}"); lg.issue("Mw")
    o(f"  buffer_store_dwordx4 {v(U,4)}, v{vH1}, {WSr}, s{sKm} offen {PUBK}")
    lg.wait("V8")
    vpass(8, 2)
    dsr(W[2], vA, L_MEM + 2048, "B2")
    lg.wait("B0")
    vpass(0, 0)
    dsr(W[0], vA, L_MEM + 3072, "B3")
    lg.wait("Mw")
    o("  s_barrier")
    stamp(2)
    o.c("exchange reads")
    XP = [Q0, vKx, vKx+4, 74]
    MP = [Q1, 66, 42, 38]
    for k in range(4):
        dsr(XP[k], vA, L_XEX + 1024*k, f"XP{k}")
    for k in range(4):
        dsr(MP[k], vM, L_MEX + 256*k, f"MP{k}")
    lg.wait("B1")
    vpass(1, 1)
    dsr(W[1], vA, L_MEM + 4096, "B4")
    lg.wait("B2")
    vpass(2, 2)
    dsr(W[2], vA, L_MEM + 5120, "B5")
    lg.wait("B3")
    vpass(3, 0)
    lg.wait("XP3")
    for k in range(1, 4):
        o(f"  v_pk_add_f32 {v(Q0,2)}, {v(Q0,2)}, {v(XP[k],2)}")
        o(f"  v_pk_add_f32 {v(Q0+2,2)}, {v(Q0+2,2)}, {v(XP[k]+2,2)}")
    lg.wait("MP3")
    for k in range(1, 4):
        o(f"  v_pk_add_f32 {v(Q1,2)}, {v(Q1,2)}, {v(MP[k],2)}")
        o(f"  v_pk_add_f32 {v(Q1+2,2)}, {v(Q1+2,2)}, {v(MP[k]+2,2)}")
    WIN = [14, 18, 22, 26, 38, 42, 66, 70]
    lds_list = [(tl, kap, frag_o(tl, kap)[1]) for tl in range(9) for kap in range(4)]
    slot_of = {}
    st = dict(issued=0)
    BASE = (vXw, 78, 78)
    def issue_frag():
        n = st['issued']
        if n >= len(lds_list): return
        tl, kap, f = lds_list[n]
        sl = WIN[n % len(WIN)]
        b, imm = lds_frag_addr(f)
        if b == 2 and lds_frag_addr(f-1)[0] == 1:
            o(f"  v_add_u32 v78, 0x10000, v78")
        dsr(sl, BASE[b], imm, f"wo{n}")
        slot_of[(tl, kap)] = (sl, n)
        st['issued'] = n + 1
    o.c("softmax")
    MX, TM = 78, 42
    o(f"  v_max3_f32 v{MX}, v{Q0}, v{Q0+1}, v{Q0+2}")
    o(f"  v_max3_f32 v{TM}, v{Q0+3}, v{Q1}, v{Q1+1}")
    o(f"  v_max3_f32 v{MX}, v{MX}, v{Q1+2}, v{Q1+3}")
    o(f"  v_max_f32 v{MX}, v{MX}, v{TM}")
    lg.wait("B4")
    smf(o, V0, W[1], frag_v(0, 4))
    issue_frag()
    o(f"  v_max_f32_dpp v{MX}, v{MX}, v{MX} row_ror:8 row_mask:0xf bank_mask:0xf")
    smf(o, V1, W[1], frag_v(1, 4))
    o(f"  v_mov_b32 v{TM}, v{MX}")
    issue_frag()
    lg.wait("B5")
    smf(o, V0, W[2], frag_v(0, 5))
    o(f"  v_permlane16_swap_b32 v{MX}, v{TM}")
    o(f"  v_max_f32 v{MX}, v{MX}, v{TM}")
    o(f"  v_mov_b32 v{TM}, v{MX}")
    smf(o, V1, W[2], frag_v(1, 5))
    nop(o, 1)
    o(f"  v_permlane32_swap_b32 v{MX}, v{TM}")
    o(f"  v_max_f32 v{MX}, v{MX}, v{TM}")
    o(f"  v_mul_f32 v{MX}, s{sC}, v{MX}")
    for i in range(8):
        o(f"  v_fma_f32 v{Q0+i}, v{Q0+i}, s{sC}, -v{MX}")
    PX, PXs, PM, LA, LB, VP = 74, 76, 70, 72, 73, 66
    for i in range(8):
        o(f"  v_exp_f32 v{Q0+i}, v{Q0+i}")
    D0, D1 = 38, 42
    O0 = 70
    o.c("PV with the l-sum chain interleaved")
    o(f"  v_cvt_pk_bf16_f32 v{PX}, v{Q0}, v{Q0+1}")
    o(f"  v_cvt_pk_bf16_f32 v{PX+1}, v{Q0+2}, v{Q0+3}")
    o(f"  v_cvt_pk_bf16_f32 v{PM}, v{Q1}, v{Q1+1}")
    o(f"  v_cvt_pk_bf16_f32 v{PM+1}, v{Q1+2}, v{Q1+3}")
    o(f"  v_pk_add_f32 {v(LA,2)}, {v(Q0,2)}, {v(Q0+2,2)}")
    o(f"  v_pk_add_f32 {v(Q1,2)}, {v(Q1,2)}, {v(Q1+2,2)}")
    o(f"  v_mov_b32_dpp v{PXs}, v{PX} row_ror:8 row_mask:0xf bank_mask:0xf")
    o(f"  v_mov_b32_dpp v{PXs+1}, v{PX+1} row_ror:8 row_mask:0xf bank_mask:0xf")
    o(f"  v_add_f32 v{LA}, v{LA}, v{LB}")
    o(f"  v_add_f32 v{LB}, v{Q1}, v{Q1+1}")
    o(f"  v_mfma_f32_16x16x32_bf16 {v(D0,4)}, {v(vVx,4)}, {v(PX,4)}, 0")
    o(f"  v_fmamk_f32 v{LA}, v{LB}, 0x3e800000, v{LA}")
    o(f"  v_cvt_pk_bf16_f32 v{VP}, v{V0}, v{V0+1}")
    o(f"  v_mfma_f32_16x16x32_bf16 {v(D1,4)}, {v(vVx+4,4)}, {v(PX,4)}, 0")
    o(f"  v_cvt_pk_bf16_f32 v{VP+1}, v{V0+2}, v{V0+3}")
    o(f"  v_add_f32_dpp v{LA}, v{LA}, v{LA} row_ror:8 row_mask:0xf bank_mask:0xf")
    o(f"  v_mov_b32 v{LB}, v{LA}")
    o(f"  v_cvt_pk_bf16_f32 v{VP+2}, v{V1}, v{V1+1}")
    o(f"  v_mfma_f32_16x16x16_bf16 {v(D0,4)}, {v(VP,2)}, {v(PM,2)}, {v(D0,4)}")
    o(f"  v_cvt_pk_bf16_f32 v{VP+3}, v{V1+2}, v{V1+3}")
    o(f"  v_permlane16_swap_b32 v{LA}, v{LB}")
    o(f"  v_add_f32 v{LA}, v{LA}, v{LB}")
    o(f"  v_mov_b32 v{LB}, v{LA}")
    o(f"  v_mfma_f32_16x16x16_bf16 {v(D1,4)}, {v(VP+2,2)}, {v(PM,2)}, {v(D1,4)}")
    o(f"  s_add_u32 s{sT3}, s{sKm}, {VM-KM}")
    o(f"  s_cmp_eq_u32 s{sStep}, 63")
    o(f"  s_cbranch_scc1 {L}_done")
    o(f"  v_permlane32_swap_b32 v{LA}, v{LB}")
    o(f"  v_add_f32 v{LA}, v{LA}, v{LB}")
    o(f"  v_rcp_f32 v78, v{LA}")
    issue_frag()
    issue_frag()
    for i in range(0, 8, 2):
        o(f"  v_pk_mul_f32 {v(D0+i,2)}, {v(D0+i,2)}, {v(78,2)} op_sel_hi:[1,0]")
    o(f"  v_cvt_pk_bf16_f32 v{O0}, v{D0}, v{D0+1}")
    o(f"  v_cvt_pk_bf16_f32 v{O0+1}, v{D0+2}, v{D0+3}")
    o(f"  ds_write_b64 v{vOw}, {v(O0,2)}"); lg.issue("Ow0")
    o(f"  v_cvt_pk_bf16_f32 v{O0+2}, v{D1}, v{D1+1}")
    o(f"  v_cvt_pk_bf16_f32 v{O0+3}, v{D1+2}, v{D1+3}")
    o(f"  ds_write_b64 v{vOw}, {v(O0+2,2)} offset:512"); lg.issue("Ow1")
    o(f"  v_add_u32 v78, 0x10000, v{vXw}")
    o(f"  buffer_store_dwordx4 {v(VP,4)}, v{vA}, {WSr}, s{sT3} offen {PUBV}")
    issue_frag(); issue_frag()
    lg.wait("Ow1")
    o("  s_barrier")
    stamp(3)
    o.c("E phase")
    B = [46, 50, 54, 58]
    for k in range(4):
        dsr(B[k], vA, L_OEX + (k//2)*1024 + (k%2)*128, f"ob{k}")
    issue_frag(); issue_frag()
    D = [30, 34]
    PK, PKB = 62, 74
    for tl in range(9):
        post = []
        d = D[tl % 2]
        pend = []
        if tl >= 1:
            prev = tl - 1
            dd = D[prev % 2]; x = prev % 2; p = prev // 2
            pk = PK if p % 2 == 0 else PKB
            pend = [f"  v_cvt_pk_bf16_f32 v{pk+2*x}, v{dd}, v{dd+1}", f"  v_cvt_pk_bf16_f32 v{pk+2*x+1}, v{dd+2}, v{dd+3}"]
            if x == 1 and p % 2 == 1:
                post = [f"  v_mov_b32_dpp v{PK+i}, v{PKB+i} row_ror:8 row_mask:0xf bank_mask:0xc" for i in range(4)]
                post.append(f"  buffer_store_dwordx4 {v(PK,4)}, v{vA}, {WSr}, s{sH1st} offen offset:{1024*(p//2)} {stf}")
            else:
                post = []
        if tl >= 1: lg.wait(f"wo{4*tl+3}")
        for n_ in range(4):
            kap = n_
            if tl == 0: lg.wait(f"ob{kap}")
            sl, n = slot_of[(tl, kap)]
            if tl == 0: lg.wait(f"wo{n}")
            cin = "0" if n_ == 0 else v(d, 4)
            o(f"  v_mfma_f32_16x16x32_bf16 {v(d,4)}, {v(sl,4)}, {v(B[kap],4)}, {cin}")
            issue_frag()
            if n_ == 2 and pend:
                for x_ in pend: o(x_)
                pend = []
            if n_ == 3 and post:
                for x_ in post: o(x_)
                post = []
    for r in range(38, 46): o(f"  v_mov_b32 v{r}, 0")
    d = D[0]
    o(f"  v_cvt_pk_bf16_f32 v{PK}, v{d}, v{d+1}")
    o(f"  v_cvt_pk_bf16_f32 v{PK+1}, v{d+2}, v{d+3}")
    o(f"  buffer_store_dwordx2 {v(PK,2)}, v{vH1}, {WSr}, s{sH1h} offen {stf}")
    assert not lg.q, lg.q
    stamp(4)
    for r in list(range(30, 38)) + list(range(46, 54)): o(f"  v_mov_b32 v{r}, 0")
    nop(o, fdelay)
    o.c("F: reducers")
    o(f"  s_cmp_eq_u32 s{sIsRed}, 0")
    o(f"  s_cbranch_scc1 {L}_cons")
    o(f"  s_add_u32 s{sT1}, s{sH1ld}, {8*H1_PROD}")
    o(f"  s_add_u32 s{sT2}, s{sH1ld}, {16*H1_PROD}")
    o(f"  s_add_u32 s{sT3}, s{sH1ld}, {24*H1_PROD}")
    def f_loads(base):
        for k, so in enumerate((sH1ld, sT1, sT2, sT3)):
            o(f"  buffer_load_dwordx4 {v(base+4*k,4)}, v{vR}, {WSr}, s{so} offen sc1")
    def f_check(base, younger):
        for k in range(4):
            o(f"  s_waitcnt vmcnt({younger+3-k})")
            if timing and k == 3: o("  s_memtime s[66:67]")
            o(f"  v_mfma_f32_16x16x32_bf16 {v(70,4)}, {v(vSelR,4)}, {v(base+4*k,4)}, {'0' if k == 0 else v(70,4)}")
        nop(o, 8)
        o(f"  v_cmp_u_f32 vcc, v70, v70")
        for i_ in range(4):
            o(f"  v_add_f32_dpp v{70+i_}, v{70+i_}, v{70+i_} row_ror:8 row_mask:0xf bank_mask:0xf")
        o(f"  v_cvt_pk_bf16_f32 v74, v70, v71")
        o(f"  v_cvt_pk_bf16_f32 v75, v72, v73")
    if timing: o("  s_add_u32 s80, s80, 1\n  s_memtime s[64:65]")
    if DUALF:
        f_loads(54)
        nop(o, FSTAG)
        f_loads(14)
        o(f"{L}_ra:")
        f_check(54, 4)
        o(f"  s_cbranch_vccz {L}_rok")
        f_loads(54)
        if timing: o("  s_add_u32 s80, s80, 1\n  s_memtime s[64:65]")
        o(f"  s_add_u32 s{sPoll}, s{sPoll}, 1")
        o(f"  s_cmp_gt_u32 s{sPoll}, {POLL_LIMIT}")
        o(f"  s_cbranch_scc1 {L}_bail")
        f_check(14, 4)
        o(f"  s_cbranch_vccz {L}_rok")
        f_loads(14)
        if timing: o("  s_add_u32 s80, s80, 1\n  s_memtime s[64:65]")
        o(f"  s_branch {L}_ra")
        o(f"{L}_rok:")
    else:
        o(f"{L}_rp:")
        f_loads(54)
        o(f"  s_add_u32 s{sPoll}, s{sPoll}, 1")
        o(f"  s_cmp_gt_u32 s{sPoll}, {POLL_LIMIT}")
        o(f"  s_cbranch_scc1 {L}_bail")
        f_check(54, 0)
        o(f"  s_cbranch_vccnz {L}_rp")
    o(f"  buffer_store_dwordx2 {v(74,2)}, v{vP}, {WSr}, s{sH2pub} offen {stf}")
    o(f"{L}_cons:")
    o(f"  s_barrier")
    stamp(5)
    o.c("A: gather mem(s+1); per-step scalar updates double as the publish->visible delay")
    o(f"  s_add_u32 s{sH2pl}, s{sH2pub}, s{sW1024}")
    o(f"  s_add_u32 s{sT1}, s{sH2pl}, 4096")
    o(f"  s_add_u32 s{sT2}, s{sH2pub}, 8192")
    o(f"  s_add_u32 s{sStep}, s{sStep}, 1")
    for x in [f"  s_add_u32 s{sH1ld}, s{sH1ld}, {H1_SLOT}", f"  s_add_u32 s{sKm}, s{sKm}, {32*4096}",
             f"  s_add_u32 s{sH1st}, s{sH1ld}, s{sH1so}", f"  s_add_u32 s{sH1h}, s{sH1ld}, s{sH1ho}",
             f"  s_add_u32 s{sH2pub}, s{sH2pub}, {H2_SLOT}"]:
        o(x)
    nop(o, adelay)
    if timing:
        lab2 = o.label("nort")
        o(f"  s_memrealtime s[82:83]\n  s_memtime s[98:99]\n  s_waitcnt lgkmcnt(0)")
        o(f"  s_lshl_b32 s{sT0}, s{sH}, 2\n  s_add_u32 s{sT0}, s{sT0}, s{sWv_}\n  s_cmp_eq_u32 s{sT0}, 0\n  s_cbranch_scc0 {lab2}")
        o(f"  s_lshl_b32 s{sT0}, s{sStep}, 3\n  s_add_u32 s{sT0}, s{sT0}, {FLAGS + 0x3000}\n  v_mov_b32 v74, s82\n  v_mov_b32 v75, s98\n  v_mov_b32 v76, s{sT0}\n  buffer_store_dwordx2 v[74:75], v76, {WSr}, 0 offen")
        o.put(lab2)
        lab = o.label("nost")
        o(f"  s_cmp_eq_u32 s{sStep}, 21")
        o(f"  s_cbranch_scc0 {lab}")
        for k, sr in enumerate([86,88,90,92,94,96,98,64,66,68,70,72]):
            o(f"  v_mov_b32 v74, s{sr}")
            o(f"  s_lshl_b32 s{sT0}, s{sH}, 2\n  s_add_u32 s{sT0}, s{sT0}, s{sWv_}\n  s_lshl_b32 s{sT0}, s{sT0}, 6\n  s_add_u32 s{sT0}, s{sT0}, {FLAGS + 4096 + 4*k}")
            o(f"  v_mov_b32 v75, s{sT0}")
            o(f"  buffer_store_dword v74, v75, {WSr}, 0 offen")
        o.put(lab)
    for wv in range(3):
        o(f"  s_cmp_eq_u32 s{sWv_}, {wv}\n  s_cbranch_scc1 {L}_av{wv}")
    o(f"  s_branch {L}_av3")
    o(f"{L}_bail:")
    o(f"  s_endpgm")
    o(f"{L}_done:")
    o(f"  buffer_store_dwordx4 {v(66,4)}, v{vA}, {WSr}, s{sT3} offen sc1")
    o(f"  s_waitcnt vmcnt(0) lgkmcnt(0)")
    o(f"  s_barrier")
    o(f"  s_cmp_lg_u32 s{sWv_}, 0\n  s_cbranch_scc1 {L}_fin")
    o(f"  v_mov_b32 v78, 64")
    o(f"  v_mov_b32 v77, s{sFlagOff}")
    o(f"  s_mov_b64 exec, 1\n  buffer_store_dword v78, v77, {WSr}, 0 offen sc1\n  s_mov_b64 exec, -1")
    o(f"  s_waitcnt vmcnt(0)")
    o(f"{L}_fin:")

def emit_init(o, L):
    WSr = f"s[{sWS}:{sWS+3}]"
    lab = o.label("noh2")
    o(f"""  s_lshl_b32 s{sT0}, s{sH}, 2
  s_add_u32 s{sT0}, s{sT0}, s{sWv_}
  s_lshl_b32 s{sFlagOff}, s{sH}, 7
  s_add_u32 s{sFlagOff}, s{sFlagOff}, {RFLAG}
  s_cmp_lg_u32 s{sWv_}, 0
  s_cselect_b32 s{sFlagOff}, 0x80000000, s{sFlagOff}
{lab}:""")

def emit_early(o):
    WSr = f"s[{sWS}:{sWS+3}]"
    o(f"""  ; scalar state for step 0
  s_lshl_b32 s{sKoff}, s{sH}, 13
  s_lshl_b32 s{sT1}, s{sWv_}, 11
  s_add_u32 s{sKoff}, s{sKoff}, s{sT1}
  s_lshl_b32 s{sKm}, s{sH}, 12
  s_add_u32 s{sKm}, s{sKm}, s{sW1024}
  s_add_u32 s{sKm}, s{sKm}, {KM}
  s_mov_b32 s{sH1ld}, {H1}
  s_mul_i32 s{sT1}, s{sH}, {H1_PROD}
  s_lshl_b32 s{sT2}, s{sWv_}, 11
  s_add_u32 s{sH1so}, s{sT1}, s{sT2}
  s_lshr_b32 s{sT2}, s{sWv_}, 1
  s_lshl_b32 s{sT2}, s{sT2}, 10
  s_add_u32 s{sH1ho}, s{sT1}, s{sT2}
  s_add_u32 s{sH1ho}, s{sH1ho}, 8192
  s_and_b32 s{sT2}, s{sWv_}, 1
  s_lshl_b32 s{sT2}, s{sT2}, 3
  s_add_u32 s{sH1ho}, s{sH1ho}, s{sT2}
  s_add_u32 s{sH1st}, s{sH1ld}, s{sH1so}
  s_add_u32 s{sH1h}, s{sH1ld}, s{sH1ho}
  s_mov_b32 s{sH2pub}, {H2 + H2_SLOT}
  v_bfe_u32 v47, v{vA}, 4, 5
  v_mul_u32_u24 v47, {H1_PROD}, v47
  v_add_u32 v47, s{sUnit}, v47
  buffer_load_dword v14, v47, {WSr}, s{sH1ld} offen sc1
  s_add_u32 s{sT0}, s{sH2pub}, s{sW1024}
  v_lshlrev_b32 v46, 3, v{vA}
  buffer_load_dword v14, v46, {WSr}, s{sT0} offen sc1
  s_add_u32 s{sT1}, s{sKoff}, {VBUF-KBUF}
  buffer_load_dwordx4 {v(vKx,4)}, v{vA}, {WSr}, s{sKoff} offen
  buffer_load_dwordx4 {v(vKx+4,4)}, v{vA}, {WSr}, s{sKoff} offen offset:1024
  buffer_load_dwordx4 {v(vVx,4)}, v{vA}, {WSr}, s{sT1} offen
  buffer_load_dwordx4 {v(vVx+4,4)}, v{vA}, {WSr}, s{sT1} offen offset:1024
""")

def emit_mem0(o, mid=None):
    WSr = f"s[{sWS}:{sWS+3}]"
    o.c("mem0 -> LDS: piece (j=8c+2g+u, t) = mem0[t][8j..8j+8)")
    o(f"""  s_mov_b32 s64, s48
  s_and_b32 s65, s49, 0xffff
  s_mov_b32 s66, 9216
  s_mov_b32 s67, 0x20000
  v_lshrrev_b32 v62, 4, v{vA}         ; lane
  v_and_b32 v63, 7, v62               ; t
  v_lshrrev_b32 v64, 3, v62           ; 2g+u
  v_mul_u32_u24 v63, 1152, v63
  v_lshl_add_u32 v63, v64, 4, v63     ; t*1152 + (2g+u)*16
  s_lshl_b32 s{sT0}, s{sWv_}, 7
  s_add_u32 s{sT1}, s{sT0}, 512
  v_mov_b32 v53, v63
  buffer_load_dwordx4 {v(58,4)}, v53, s[64:67], s{sT0} offen
  buffer_load_dwordx4 {v(62,4)}, v53, s[64:67], s{sT1} offen
  buffer_load_dwordx4 {v(66,4)}, v53, s[64:67], 0 offen offset:1024""")
    if mid: mid()
    o(f"""  s_waitcnt vmcnt(0)
  s_barrier
  ds_write_b128 v{vXw}, {v(58,4)} offset:{L_MEM}
  ds_write_b128 v{vXw}, {v(62,4)} offset:{L_MEM+4096}
  ds_write_b128 v{vA}, {v(66,4)} offset:{L_MEM+8192}""")
    for r in range(30, 54):
        o(f"  v_mov_b32 v{r}, 0")
    o(f"""  s_mov_b32 s{sStep}, 0
  s_mov_b32 s{sPoll}, 0
  s_mov_b32 s80, 0
  s_mov_b32 s81, 0
  s_waitcnt vmcnt(0) lgkmcnt(0)
  v_mov_b32 v{vDummy}, 128
  s_barrier""")
```

```python
from asmlib import *
from rgen import Cnt, nop

sWS = 8
sWv = 13
sB1, sB2 = 64, 68
sAo = 72
sBo1, sBo2 = 73, 74
sT = [76, 77, 78, 79, 80, 81, 82, 83]
P_X, P_WQ, P_WK, P_WV, P_WO, P_W1, P_W3, P_W2, P_OUT = 84, 86, 88, 90, 92, 94, 96, 98, 100

def srd(o, dst, ptr, size):
    o(f"  s_mov_b32 s{dst}, s{ptr}\n  s_and_b32 s{dst+1}, s{ptr+1}, 0xffff\n  s_mov_b32 s{dst+2}, {size}\n  s_mov_b32 s{dst+3}, 0x20000")

TIMING = False
LDF = ''
class Gemm:
    def __init__(self, MB, NB, KT, swap, ldb, nrb_stride, PA=2, dual=False):
        self.MB, self.NB, self.KT, self.swap, self.ldb, self.PA, self.dual = MB, NB, KT, swap, ldb, PA, dual
        self.rbs = nrb_stride
        self.NS = NB // 2
        self.vA, self.vD = 0, 1
        self.vT = 2
        self.vBf = 8
        self.vAcc = self.vBf + 2*NB*4
        self.vFree = self.vAcc + MB*NB*16
    def acc(self, mb, nb): return self.vAcc + (mb*self.NB + nb)*16
    def setup(self, o):
        o(f"""
  v_lshrrev_b32 v10, 3, v0           ; l/8
  v_and_b32 v11, 7, v0               ; l%8
  v_bfe_u32 v12, v0, 4, 1            ; (l/16)%2
  v_lshlrev_b32 v12, 2, v12
  v_xor_b32 v11, v11, v12
  s_mov_b32 s{sT[0]}, {self.ldb}
  v_mul_lo_u32 v{self.vD}, v10, s{sT[0]}
  v_lshl_add_u32 v{self.vD}, v11, 4, v{self.vD}
  ; tr address: row=(4hi + r'), ch=(l/16)%2, c'=l%4
  v_lshrrev_b32 v10, 5, v0           ; hi
  v_bfe_u32 v11, v0, 2, 2            ; r'
  v_lshl_add_u32 v10, v10, 2, v11    ; 4hi + r'
  v_lshlrev_b32 v10, 7, v10          ; *128
  v_bfe_u32 v12, v0, 4, 1            ; ch
  v_lshl_add_u32 v10, v12, 5, v10
  v_and_b32 v12, 3, v0
  v_lshl_add_u32 v10, v12, 3, v10
  v_lshrrev_b32 v11, 1, v11          ; s = (r'/2)
  v_lshlrev_b32 v11, 6, v11          ; s*64
  v_add_u32 v{self.vT}, v10, v11
  v_xor_b32 v11, 64, v11
  v_add_u32 v{self.vT+1}, v10, v11
  v_add_u32 v{self.vT+2}, 0x10000, v{self.vT}
  v_add_u32 v{self.vT+3}, 0x10000, v{self.vT+1}
  v_add_u32 v{self.vT+4}, 0x20000, v{self.vT}
  v_add_u32 v{self.vT+5}, 0x20000, v{self.vT+1}
  v_lshlrev_b32 v0, 4, v0
""")
    def areg(self, t, mb, ks): return ((t % (self.PA+1))*self.MB + mb)*16 + ks*4
    def issue_tile(self, o, vm, t):
        for sub in range(self.NS):
            srdreg = sB2 if (self.dual and sub == 1) else sB1
            sbo = sBo2 if (self.dual and sub == 1) else sBo1
            colb = 0 if self.dual else sub*128
            for j in range(2):
                lds = t*self.NS*8192 + sub*8192 + j*1024
                o(f"  s_add_u32 m0, s{sT[7]}, {lds}")
                o(f"  s_add_u32 s{sT[0]}, s{sbo}, {(64*t + 8*j)*self.ldb + colb}")
                o(f"  buffer_load_dwordx4 v{self.vD}, s[{srdreg}:{srdreg+3}], s{sT[0]} offen lds")
                vm.issue(f"B{t}")
        for mb in range(self.MB):
            o(f"  s_add_u32 s{sT[0]}, s{sAo}, {mb*self.rbs + 4096*t}")
            for ks in range(4):
                o(f"  buffer_load_dwordx4 {a(self.areg(t,mb,ks),4)}, v{self.vA}, s[{sWS}:{sWS+3}], s{sT[0]} offen offset:{1024*ks} {LDF}")
                vm.issue(f"A{t}")
    def bfrag(self, buf, nb): return self.vBf + (buf*self.NB + nb)*4
    def read_b(self, o, lg, t, ks, buf):
        kb, q = ks // 2, ks % 2
        for nb in range(self.NB):
            sub, par = nb // 2, nb % 2
            for z in range(2):
                off = t*self.NS*8192 + sub*8192 + (32*kb + 8*q + 16*z)*128
                b, imm = off // 65536, off % 65536
                o(f"  ds_read_b64_tr_b16 {v(self.bfrag(buf,nb)+2*z,2)}, v{self.vT + 2*b + par} offset:{imm}")
                lg.issue(f"R{t}_{ks}")
    def run(self, o, pre_issue=None):
        MB, NB, KT, PA = self.MB, self.NB, self.KT, self.PA
        vm = Cnt(o, "vm", 63); lg = Cnt(o, "lgkm", 15)
        if TIMING: o("  s_memtime s[26:27]")
        for t in range(min(PA+1, KT)):
            self.issue_tile(o, vm, t)
        vm.wait("B0"); vm.wait("A0") if "A0" in vm.q else None
        o("  s_barrier")
        if TIMING: o("  s_memtime s[28:29]")
        self.read_b(o, lg, 0, 0, 0)
        step = 0
        for t in range(KT):
            for ks in range(4):
                buf = step % 2
                nt, nks = (t, ks+1) if ks < 3 else (t+1, 0)
                if ks == 3 and t+1 < KT:
                    vm.wait(f"B{t+1}"); vm.wait(f"A{t+1}")
                    o("  s_barrier")
                lg.wait(f"R{t}_{ks}")
                if nt < KT:
                    self.read_b(o, lg, nt, nks, 1-buf)
                for mb in range(MB):
                    for nb in range(NB):
                        a_, b_ = a(self.areg(t,mb,ks),4), v(self.bfrag(buf,nb),4)
                        c = v(self.acc(mb,nb),16)
                        x, y = (b_, a_) if self.swap else (a_, b_)
                        cin = "0" if step == 0 else c
                        o(f"  v_mfma_f32_32x32x16_bf16 {c}, {x}, {y}, {cin}")
                if ks == 3 and t+PA+1 < KT:
                    self.issue_tile(o, vm, t+PA+1)
                step += 1
        nop(o, 12)
        if TIMING: o("  s_memtime s[30:31]")


def lane_setup(o):
    o(f"""  v_lshrrev_b32 v1, 6, v0
  s_nop 1
  v_readfirstlane_b32 s{sWv}, v1
  v_and_b32 v0, 63, v0""")

def kv_store_off(o, vdst, vlane16):
    o(f"""  v_bfe_u32 v{vdst}, v{vlane16}, 8, 1          ; (l/16)%2
  v_lshlrev_b32 v{vdst}, 10, v{vdst}
  v_lshrrev_b32 v{vdst+1}, 9, v{vlane16}       ; l/32
  v_lshl_add_u32 v{vdst}, v{vdst+1}, 8, v{vdst}
  v_and_b32 v{vdst+1}, 0xf0, v{vlane16}        ; (l%16)*16
  v_add_u32 v{vdst}, v{vdst}, v{vdst+1}""")

def pack_piece(o, dst, acc, q):
    o(f"  v_cvt_pk_bf16_f32 v{dst}, v{acc+4*q}, v{acc+4*q+1}")
    o(f"  v_cvt_pk_bf16_f32 v{dst+1}, v{acc+4*q+2}, v{acc+4*q+3}")
    o(f"  v_cvt_pk_bf16_f32 v{dst+2}, v{acc+4*q+8}, v{acc+4*q+9}")
    o(f"  v_cvt_pk_bf16_f32 v{dst+3}, v{acc+4*q+10}, v{acc+4*q+11}")

def stage_ln(o, src_kind, stf):
    WS = f"s[{sWS}:{sWS+3}]"
    srd(o, sB1, P_X, 2048*576*2)
    o(f"""
  v_and_b32 v1, 31, v0                ; token
  v_lshrrev_b32 v2, 5, v0             ; hi
  v_mul_u32_u24 v3, 1152, v1
  v_lshl_add_u32 v3, v2, 4, v3
  s_mul_i32 s{sT[0]}, s20, {32*1152}
  s_lshl_b32 s{sT[1]}, s{sWv}, 6
  s_add_u32 s{sT[0]}, s{sT[0]}, s{sT[1]}
  v_lshlrev_b32 v0, 4, v0
  v_mov_b32 v4, 0x80000000
  s_cmp_lt_u32 s{sWv}, 2
  s_cselect_b32 s{sT[2]}, 0, 0x80000000
  v_or_b32 v5, s{sT[2]}, v3""")
    for i in range(5):
        vo = 3 if i < 4 else 5
        for j in range(2):
            o(f"  buffer_load_dwordx4 {v(16+8*i+4*j,4)}, v{vo}, s[{sB1}:{sB1+3}], s{sT[0]} offen offset:{256*i+32*j}")
    o("  s_waitcnt vmcnt(0)")
    for i in range(5):
        A_, B_ = 16+8*i, 20+8*i
        for r in (A_, B_):
            o(f"  v_permlane32_swap_b32 v{r}, v{r+2}")
            o(f"  v_permlane32_swap_b32 v{r+1}, v{r+3}")
    for i in range(5):
        A_, B_ = 16+8*i, 20+8*i
        for k in range(2):
            o(f"  v_swap_b32 v{A_+2+k}, v{B_+k}")
    o(f"""  s_mul_i32 s{sT[3]}, s20, {18*2048}
  s_lshl_b32 s{sT[4]}, s{sWv}, 11
  s_add_u32 s{sT[3]}, s{sT[3]}, s{sT[4]}      ; rb*18*2048 + w*2048
  v_or_b32 v6, s{sT[2]}, v0""")
    for i in range(5):
        vo = 0 if i < 4 else 6
        o(f"  s_add_u32 s{sT[4]}, s{sT[3]}, {XF + i*4*2048}")
        o(f"  buffer_store_dwordx4 {v(16+8*i,4)}, v{vo}, {WS}, s{sT[4]} offen {stf}")
        o(f"  buffer_store_dwordx4 {v(20+8*i,4)}, v{vo}, {WS}, s{sT[4]} offen offset:1024 {stf}")
    ln_core(o, 16, 40, XN, sT[3], 0, 6, stf)

def ln_core(o, R0, NR, dstbase, sOff, vo_full, vo_last, stf):
    WS = f"s[{sWS}:{sWS+3}]"
    F = 64
    for r in range(NR):
        o(f"  v_lshlrev_b32 v{F+2*r}, 16, v{R0+r}")
        o(f"  v_and_b32 v{F+2*r+1}, 0xffff0000, v{R0+r}")
    o("  v_mov_b32 v8, 0\n  v_mov_b32 v9, 0")
    for r in range(2*NR):
        o(f"  v_add_f32 v8, v8, v{F+r}")
    def xreduce(reg, slot):
        o(f"  v_mov_b32 v10, v{reg}\n  s_nop 1\n  v_permlane32_swap_b32 v{reg}, v10\n  v_add_f32 v{reg}, v{reg}, v10")
        o(f"  v_and_b32 v11, 0x1f0, v0\n  v_lshrrev_b32 v11, 2, v11          ; token*4")
        o(f"  s_lshl_b32 s{sT[5]}, s{sWv}, 7\n  v_add_u32 v12, s{sT[5]}, v11")
        o(f"  ds_write_b32 v12, v{reg} offset:{slot*512}\n  s_waitcnt lgkmcnt(0)\n  s_barrier")
        for w in range(4):
            o(f"  ds_read_b32 v{12+w}, v11 offset:{slot*512 + w*128}")
        o(f"  s_waitcnt lgkmcnt(0)\n  v_add_f32 v12, v12, v13\n  v_add_f32 v14, v14, v15\n  v_add_f32 v{reg}, v12, v14")
    xreduce(8, 0)
    o("  v_mul_f32 v8, 0x3ae38e39, v8")
    for r in range(2*NR):
        o(f"  v_sub_f32 v{F+r}, v{F+r}, v8")
    o(f"  s_cmp_lt_u32 s{sWv}, 2\n  s_cselect_b32 s{sT[6]}, 1.0, 0")
    for r in range(2*NR - 16, 2*NR):
        o(f"  v_mul_f32 v{F+r}, s{sT[6]}, v{F+r}")
    for r in range(2*NR):
        o(f"  v_fmac_f32 v9, v{F+r}, v{F+r}")
    xreduce(9, 1)
    o("""  v_mov_b32 v10, 0x3727c5ac          ; 1e-5
  v_fmac_f32 v10, 0x3ae38e39, v9
  v_rsq_f32 v9, v10
  s_nop 0""")
    for r in range(NR):
        o(f"  v_mul_f32 v{F+2*r}, v9, v{F+2*r}\n  v_mul_f32 v{F+2*r+1}, v9, v{F+2*r+1}")
        o(f"  v_cvt_pk_bf16_f32 v{R0+r}, v{F+2*r}, v{F+2*r+1}")
    for i in range(NR // 8):
        vo = vo_full if i < NR//8 - 1 else vo_last
        o(f"  s_add_u32 s{sT[4]}, s{sOff}, {dstbase + i*4*2048}")
        o(f"  buffer_store_dwordx4 {v(R0+8*i,4)}, v{vo}, {WS}, s{sT[4]} offen {stf}")
        o(f"  buffer_store_dwordx4 {v(R0+8*i+4,4)}, v{vo}, {WS}, s{sT[4]} offen offset:1024 {stf}")

def stage_a(o, stf):
    WS = f"s[{sWS}:{sWS+3}]"
    for swap, name in ((True, "qk"), (False, "v")):
        pass
    lab_v, lab_e = o.label("a_v"), o.label("a_e")
    g = Gemm(2, 4, 9, True, 8192, 18*2048)
    g.setup(o)
    o(f"""  s_lshr_b32 s22, s21, 5
  s_and_b32 s23, s21, 31
  s_cmp_eq_u32 s22, 0
  s_cselect_b32 s{sT[0]}, s{P_WK}, s{P_WQ}
  s_cselect_b32 s{sT[1]}, s{P_WK+1}, s{P_WQ+1}
  s_cmp_eq_u32 s22, 1
  s_cselect_b32 s{sT[0]}, s{P_WV}, s{sT[0]}
  s_cselect_b32 s{sT[1]}, s{P_WV+1}, s{sT[1]}""")
    srd(o, sB1, sT[0], 4718592)
    o(f"""  s_lshl_b32 s{sBo1}, s23, 8              ; head*256
  s_mul_i32 s{sT[0]}, s{sWv}, {16*8192}
  s_add_u32 s{sBo1}, s{sBo1}, s{sT[0]}
  s_lshl_b32 s{sT[7]}, s{sWv}, 11
  s_lshl_b32 s{sAo}, s20, 3
  s_lshl_b32 s{sT[0]}, s{sWv}, 1
  s_add_u32 s{sAo}, s{sAo}, s{sT[0]}
  s_mov_b32 s24, s{sAo}
  s_mul_i32 s{sAo}, s{sAo}, {18*2048}
  s_add_u32 s{sAo}, s{sAo}, {XN}
  s_cmp_eq_u32 s22, 1
  s_cbranch_scc1 {lab_v}""")
    g.run(o)
    o(f"  s_branch {lab_e}")
    o.put(lab_v)
    g2 = Gemm(2, 4, 9, False, 8192, 18*2048)
    g2.run(o)
    o.put(lab_e)
    vo = g.vFree
    kv_store_off(o, vo, 0)
    o(f"""  s_cmp_eq_u32 s22, 0
  s_cselect_b32 s{sT[0]}, {KBUF}, {QBUF}
  s_cmp_eq_u32 s22, 1
  s_cselect_b32 s{sT[0]}, {VBUF}, s{sT[0]}
  s_lshl_b32 s{sT[1]}, s24, 5
  s_add_u32 s{sT[1]}, s{sT[1]}, s23
  s_lshl_b32 s{sT[1]}, s{sT[1]}, 13
  s_add_u32 s{sT[0]}, s{sT[0]}, s{sT[1]}""")
    P = vo + 2
    n = 0
    for mb in range(2):
        for nb in range(4):
            o(f"  s_add_u32 s{sT[1]}, s{sT[0]}, {mb*32*8192 + nb*2048}")
            for q in range(2):
                d = P + 4*(n % 4); n += 1
                pack_piece(o, d, g.acc(mb, nb), q)
                o(f"  buffer_store_dwordx4 {v(d,4)}, v{vo}, {WS}, s{sT[1]} offen offset:{512*q} {stf}")

def stage_b(o, stf, wait_r=False):
    WS = f"s[{sWS}:{sWS+3}]"
    Q, K, KMr, V, VMr, SX, SM, OA = 16, 48, 80, 112, 144, 160, 176, 192
    o("  v_lshlrev_b32 v0, 4, v0")
    kv_store_off(o, 1, 0)
    o(f"""  v_lshrrev_b32 v3, 9, v0              ; hi
  v_bfe_u32 v4, v0, 4, 5                ; l%32 (token / key / e_local)
  v_lshlrev_b32 v5, 8, v3
  v_lshl_add_u32 v5, v4, 4, v5
  v_mov_b32 v6, 0x80000000
  v_cmp_gt_u32 vcc, 8, v4
  s_nop 1
  v_cndmask_b32 v5, v6, v5, vcc
  ; vm offset: hi*256 + (l%16)*16 + ((l%32)/16)*8
  v_lshlrev_b32 v6, 8, v3
  v_and_b32 v7, 0xf0, v0
  v_add_u32 v6, v6, v7
  v_bfe_u32 v7, v0, 8, 1
  v_lshl_add_u32 v6, v7, 3, v6
  v_lshlrev_b32 v7, 2, v3
  v_sub_u32 v7, v4, v7
  s_lshl_b32 s{sT[0]}, s20, 5
  s_add_u32 s{sT[0]}, s{sT[0]}, s21          ; seg*32+head
  s_lshl_b32 s{sT[1]}, s{sT[0]}, 13          ; *8192
  s_lshl_b32 s{sT[2]}, s{sT[0]}, 12          ; *4096
  s_add_u32 s{sT[3]}, s{sT[1]}, {QBUF}
  s_add_u32 s{sT[4]}, s{sT[1]}, {VBUF}
  s_add_u32 s{sT[5]}, s{sT[2]}, {KM}
  s_add_u32 s{sT[6]}, s{sT[2]}, {VM}""")
    for b in range(4):
        for q in range(2):
            ks = 2*b + q
            off = b*2048 + q*512
            so, imm = (off // 4096)*4096, off % 4096
            if so:
                o(f"  s_add_u32 s22, s{sT[3]}, {so}\n  s_add_u32 s23, s{sT[1]}, {so}\n  s_add_u32 s25, s{sT[4]}, {so}")
            else:
                o(f"  s_mov_b32 s22, s{sT[3]}\n  s_mov_b32 s23, s{sT[1]}\n  s_mov_b32 s25, s{sT[4]}")
            o(f"  buffer_load_dwordx4 {v(Q+4*ks,4)}, v1, {WS}, s22 offen offset:{imm} {LDF}")
            o(f"  buffer_load_dwordx4 {v(K+4*ks,4)}, v1, {WS}, s23 offen offset:{imm} {LDF}")
            o(f"  buffer_load_dwordx4 {v(V+8*b+4*q,4)}, v1, {WS}, s25 offen offset:{imm} {LDF}")
    if HOOK:
        o("  s_waitcnt vmcnt(24)\n  s_barrier"); HOOK(o)
    if wait_r:
        lp = o.label("rw")
        o(f"""  s_lshl_b32 s22, s21, 7
  s_add_u32 s22, s22, {RFLAG}
  v_mov_b32 v8, s22
  s_mov_b32 s24, 0
{lp}:
  buffer_load_dword v9, v8, {WS}, 0 offen sc1
  s_waitcnt vmcnt(0)
  v_readfirstlane_b32 s23, v9
  s_cmp_gt_u32 s23, s20
  s_cbranch_scc1 {lp}_ok
  s_sleep {BSLEEP}
  s_add_u32 s24, s24, 1
  s_cmp_lt_u32 s24, 1000000
  s_cbranch_scc1 {lp}
  s_endpgm
{lp}_ok:""")
    for b in range(4):
        for q in range(2):
            ks = 2*b + q
            o(f"  buffer_load_dwordx4 {v(KMr+4*ks,4)}, v5, {WS}, s{sT[5]} offen offset:{b*1024 + q*512} sc1")
            o(f"  buffer_load_dwordx2 {v(VMr+4*b+2*q,2)}, v6, {WS}, s{sT[6]} offen offset:{b*1024 + q*512} sc1")
    o("  s_waitcnt vmcnt(16)")
    for ks in range(8):
        o(f"  v_mfma_f32_32x32x16_bf16 {v(SX,16)}, {v(K+4*ks,4)}, {v(Q+4*ks,4)}, {'0' if ks == 0 else v(SX,16)}")
    o("  s_waitcnt vmcnt(0)")
    for ks in range(8):
        o(f"  v_mfma_f32_32x32x16_bf16 {v(SM,16)}, {v(KMr+4*ks,4)}, {v(Q+4*ks,4)}, {'0' if ks == 0 else v(SM,16)}")
    nop(o, 16)
    o("  v_mov_b32 v8, 0xff7fffff")
    for r in range(16):
        key = 8*(r//4) + r % 4
        o(f"  v_cmp_gt_i32 vcc, {key}, v7\n  s_nop 1\n  v_cndmask_b32 v{SX+r}, v{SX+r}, v8, vcc")
    o(f"  v_max3_f32 v9, v{SX}, v{SX+1}, v{SX+2}")
    for r in range(3, 15, 2):
        o(f"  v_max3_f32 v9, v9, v{SX+r}, v{SX+r+1}")
    o(f"  v_max3_f32 v9, v9, v{SX+15}, v{SM}")
    o(f"  v_max3_f32 v9, v9, v{SM+1}, v{SM+2}")
    o(f"  v_max_f32 v9, v9, v{SM+3}")
    o("  v_mov_b32 v10, v9\n  s_nop 1\n  v_permlane32_swap_b32 v9, v10\n  v_max_f32 v9, v9, v10")
    o("  s_mov_b32 s22, 0x3e0293ee\n  v_mul_f32 v9, s22, v9")
    regs = [SX+r for r in range(16)] + [SM+r for r in range(4)]
    for r in regs: o(f"  v_fma_f32 v{r}, v{r}, s22, -v9")
    for r in regs: o(f"  v_exp_f32 v{r}, v{r}")
    o(f"  s_nop 0\n  v_add_f32 v10, v{regs[0]}, v{regs[1]}")
    for r in regs[2:]: o(f"  v_add_f32 v10, v10, v{r}")
    o("  v_mov_b32 v11, v10\n  s_nop 1\n  v_permlane32_swap_b32 v10, v11\n  v_add_f32 v10, v10, v11\n  v_rcp_f32 v10, v10")
    PX, PM = Q, Q+8
    pack_piece(o, PX, SX, 0); pack_piece(o, PX+4, SX, 1)
    o(f"  v_cvt_pk_bf16_f32 v{PM}, v{SM}, v{SM+1}\n  v_cvt_pk_bf16_f32 v{PM+1}, v{SM+2}, v{SM+3}")
    o("  s_waitcnt vmcnt(0)\n  s_nop 1")
    for half in range(2):
        for b in range(4):
            o(f"  v_mfma_f32_32x32x8_bf16 {v(OA+16*b,16)}, {v(VMr+4*b+2*half,2)}, {v(PM,2)}, {'0' if half == 0 else v(OA+16*b,16)}")
    nop(o, 8)
    for q in range(2):
        for b in range(4):
            o(f"  v_mfma_f32_32x32x16_bf16 {v(OA+16*b,16)}, {v(V+8*b+4*q,4)}, {v(PX+4*q,4)}, {v(OA+16*b,16)}")
    nop(o, 16)
    o(f"""  s_mul_i32 s22, s20, {128*2048}
  s_lshl_b32 s23, s21, 13                   ; head*4*2048
  s_add_u32 s22, s22, s23
  s_add_u32 s22, s22, {OBUF}""")
    n = 0
    for b in range(4):
        for r in range(16): o(f"  v_mul_f32 v{OA+16*b+r}, v10, v{OA+16*b+r}")
        o(f"  s_add_u32 s23, s22, {b*2048}")
        for q in range(2):
            d = K + 4*(n % 8); n += 1
            pack_piece(o, d, OA+16*b, q)
            o(f"  buffer_store_dwordx4 {v(d,4)}, v0, {WS}, s23 offen offset:{1024*q} {stf}")

def stage_ce(o, which, stf):
    WS = f"s[{sWS}:{sWS+3}]"
    if which == 'C': KT, NKB, Abase, PW, wsz, part = 8, 128, OBUF, P_WO, 4718592, PART
    else:            KT, NKB, Abase, PW, wsz, part = 9, 144, ACT, P_W2, 5308416, PART2
    g = Gemm(1, 2, KT, True, 1152, NKB*2048)
    g.setup(o)
    srd(o, sB1, PW, wsz)
    o(f"""  s_mul_i32 s{sBo1}, s22, {KT*64*1152}
  s_lshl_b32 s{sT[0]}, s21, 7
  s_add_u32 s{sBo1}, s{sBo1}, s{sT[0]}
  s_mul_i32 s{sT[0]}, s{sWv}, {16*1152}
  s_add_u32 s{sBo1}, s{sBo1}, s{sT[0]}
  s_lshl_b32 s{sT[7]}, s{sWv}, 11
  s_lshl_b32 s24, s20, 2
  s_add_u32 s24, s24, s{sWv}
  s_mul_i32 s{sAo}, s24, {NKB*2048}
  s_mul_i32 s{sT[0]}, s22, {KT*4096}
  s_add_u32 s{sAo}, s{sAo}, s{sT[0]}
  s_add_u32 s{sAo}, s{sAo}, {Abase}""")
    g.run(o)
    o(f"""  s_lshl_b32 s{sT[0]}, s22, 6
  s_add_u32 s{sT[0]}, s{sT[0]}, s24
  s_mul_i32 s{sT[0]}, s{sT[0]}, 18
  s_lshl_b32 s{sT[1]}, s21, 1
  s_add_u32 s{sT[0]}, s{sT[0]}, s{sT[1]}
  s_lshl_b32 s{sT[0]}, s{sT[0]}, 12
  s_add_u32 s{sT[0]}, s{sT[0]}, {part}""")
    for nb in range(2):
        o(f"  s_add_u32 s{sT[1]}, s{sT[0]}, {nb*4096}")
        for r4 in range(4):
            o(f"  buffer_store_dwordx4 {v(g.acc(0,nb)+4*r4,4)}, v0, {WS}, s{sT[1]} offen offset:{1024*r4} {stf}")

def reduce_parts(o, part, resbase, ldf):
    WS = f"s[{sWS}:{sWS+3}]"
    F, Tm, RES = 64, 160, 16
    o(f"""  s_mul_i32 s{sT[3]}, s20, {18*2048}
  s_lshl_b32 s{sT[4]}, s{sWv}, 11
  s_add_u32 s{sT[3]}, s{sT[3]}, s{sT[4]}
  s_cmp_lt_u32 s{sWv}, 2
  s_cselect_b32 s{sT[2]}, 0, 0x80000000
  v_or_b32 v6, s{sT[2]}, v0""")
    for i in range(5):
        vo = 0 if i < 4 else 6
        o(f"  s_add_u32 s{sT[4]}, s{sT[3]}, {resbase + i*4*2048}")
        o(f"  buffer_load_dwordx4 {v(RES+8*i,4)}, v{vo}, {WS}, s{sT[4]} offen {ldf}")
        o(f"  buffer_load_dwordx4 {v(RES+8*i+4,4)}, v{vo}, {WS}, s{sT[4]} offen offset:1024 {ldf}")
    o(f"""  s_mul_i32 s{sT[5]}, s20, {18*4096}
  s_lshl_b32 s{sT[4]}, s{sWv}, 12
  s_add_u32 s{sT[5]}, s{sT[5]}, s{sT[4]}
  s_add_u32 s{sT[5]}, s{sT[5]}, {part}""")
    for i in range(5):
        vo = 0 if i < 4 else 6
        for sp in range(8):
            o(f"  s_add_u32 s{sT[4]}, s{sT[5]}, {sp*64*18*4096 + i*4*4096}")
            dst = F + 16*i if sp == 0 else Tm + 16*((sp-1) % 4)
            for r4 in range(4):
                o(f"  buffer_load_dwordx4 {v(dst+4*r4,4)}, v{vo}, {WS}, s{sT[4]} offen offset:{1024*r4} {ldf}")
            if sp == 4 or sp == 7:
                o("  s_waitcnt vmcnt(0)")
                lo = 1 if sp == 4 else 5
                for s2 in range(lo, sp+1):
                    src = Tm + 16*((s2-1) % 4)
                    for r in range(0, 16, 2):
                        o(f"  v_pk_add_f32 {v(F+16*i+r,2)}, {v(F+16*i+r,2)}, {v(src+r,2)}")
    for i in range(5):
        for q in range(2):
            for half in range(2):
                for k in range(2):
                    src = RES + 8*i + 4*q + 2*half + k
                    d = F + 16*i + 4*(q + 2*half) + 2*k
                    o(f"  v_lshlrev_b32 v8, 16, v{src}\n  v_and_b32 v9, 0xffff0000, v{src}")
                    o(f"  v_add_f32 v{d}, v{d}, v8\n  v_add_f32 v{d+1}, v{d+1}, v9")

def stage_ln2(o, stf, ldf):
    WS = f"s[{sWS}:{sWS+3}]"
    o("  v_lshlrev_b32 v0, 4, v0")
    reduce_parts(o, PART, XF, ldf)
    R0 = 16
    for i in range(5):
        pack_piece(o, R0+8*i, 64+16*i, 0); pack_piece(o, R0+8*i+4, 64+16*i, 1)
    for i in range(5):
        vo = 0 if i < 4 else 6
        o(f"  s_add_u32 s{sT[4]}, s{sT[3]}, {HBUF + i*4*2048}")
        o(f"  buffer_store_dwordx4 {v(R0+8*i,4)}, v{vo}, {WS}, s{sT[4]} offen {stf}")
        o(f"  buffer_store_dwordx4 {v(R0+8*i+4,4)}, v{vo}, {WS}, s{sT[4]} offen offset:1024 {stf}")
    o("  s_nop 1")
    ln_core(o, R0, 40, HN, sT[3], 0, 6, stf)

def stage_f(o, ldf):
    o("  v_lshlrev_b32 v0, 4, v0")
    reduce_parts(o, PART2, HBUF, ldf)
    srd(o, sB1, P_OUT, 2048*576*2)
    o(f"""  v_bfe_u32 v1, v0, 4, 5              ; token
  v_lshrrev_b32 v2, 9, v0             ; hi
  v_mul_u32_u24 v3, 1152, v1
  v_lshl_add_u32 v3, v2, 4, v3
  v_or_b32 v4, s{sT[2]}, v3
  s_mul_i32 s{sT[0]}, s20, {32*1152}
  s_lshl_b32 s{sT[1]}, s{sWv}, 6
  s_add_u32 s{sT[0]}, s{sT[0]}, s{sT[1]}""")
    for i in range(5):
        F = 64 + 16*i
        D = 16 + 8*i
        for q in range(4):
            o(f"  v_cvt_pk_bf16_f32 v{D+2*q}, v{F+4*q}, v{F+4*q+1}\n  v_cvt_pk_bf16_f32 v{D+2*q+1}, v{F+4*q+2}, v{F+4*q+3}")
        o("  s_nop 1")
        for j in range(2):
            o(f"  v_permlane32_swap_b32 v{D+4*j}, v{D+4*j+2}\n  v_permlane32_swap_b32 v{D+4*j+1}, v{D+4*j+3}")
        vo = 3 if i < 4 else 4
        for j in range(2):
            o(f"  buffer_store_dwordx4 {v(D+4*j,4)}, v{vo}, s[{sB1}:{sB1+3}], s{sT[0]} offen offset:{256*i + 32*j}")

def stage_d(o, stf):
    WS = f"s[{sWS}:{sWS+3}]"
    g = Gemm(1, 4, 9, True, 9216, 18*2048, dual=True)
    g.setup(o)
    srd(o, sB1, P_W1, 5308416)
    srd(o, sB2, P_W3, 5308416)
    o(f"""  s_lshl_b32 s{sBo1}, s21, 7
  s_mul_i32 s{sT[0]}, s{sWv}, {16*9216}
  s_add_u32 s{sBo1}, s{sBo1}, s{sT[0]}
  s_mov_b32 s{sBo2}, s{sBo1}
  s_lshl_b32 s{sT[7]}, s{sWv}, 11
  s_lshl_b32 s24, s20, 2
  s_add_u32 s24, s24, s{sWv}
  s_mul_i32 s{sAo}, s24, {18*2048}
  s_add_u32 s{sAo}, s{sAo}, {HN}""")
    g.run(o)
    o(f"""  s_mul_i32 s{sT[0]}, s24, {144*2048}
  s_lshl_b32 s{sT[1]}, s21, 12
  s_add_u32 s{sT[0]}, s{sT[0]}, s{sT[1]}
  s_add_u32 s{sT[0]}, s{sT[0]}, {ACT}
  s_mov_b32 s{sT[2]}, 0xbfb8aa3b           ; -log2(e)""")
    Tm = g.vFree
    for nb in range(2):
        G_, U_ = g.acc(0, nb), g.acc(0, nb+2)
        for r in range(16):
            o(f"  v_mul_f32 v{Tm+r}, s{sT[2]}, v{G_+r}")
        for r in range(16):
            o(f"  v_exp_f32 v{Tm+r}, v{Tm+r}")
        for r in range(16):
            o(f"  v_add_f32 v{Tm+r}, 1.0, v{Tm+r}")
        for r in range(16):
            o(f"  v_rcp_f32 v{Tm+r}, v{Tm+r}")
        for r in range(16):
            o(f"  v_mul_f32 v{G_+r}, v{G_+r}, v{U_+r}")
        for r in range(16):
            o(f"  v_mul_f32 v{G_+r}, v{G_+r}, v{Tm+r}")
        for q in range(2):
            d = Tm + 16 + 4*q
            pack_piece(o, d, G_, q)
            o(f"  buffer_store_dwordx4 {v(d,4)}, v0, {WS}, s{sT[0]} offen offset:{nb*2048 + q*1024} {stf}")


def stage_s(o, stf):
    WS = f"s[{sWS}:{sWS+3}]"
    o("  v_lshlrev_b32 v0, 4, v0")
    for r in range(4): o(f"  v_mov_b32 v{4+r}, -1")
    o(f"""  s_mul_i32 s{sT[0]}, s20, {H1_SLOT}
  s_lshl_b32 s{sT[1]}, s{sWv}, 10
  s_add_u32 s{sT[0]}, s{sT[0]}, s{sT[1]}
  s_add_u32 s{sT[0]}, s{sT[0]}, {H1}
  s_mov_b32 s{sT[2]}, 0""")
    lp = o.label("sf")
    nblk = H1_SLOT // 1024
    assert H1_SLOT % 4096 == 0
    o(f"""{lp}:
  buffer_store_dwordx4 v[4:7], v0, {WS}, s{sT[0]} offen {stf}
  s_add_u32 s{sT[0]}, s{sT[0]}, 4096
  s_add_u32 s{sT[2]}, s{sT[2]}, 1
  s_cmp_lt_u32 s{sT[2]}, {nblk // 4}
  s_cbranch_scc1 {lp}""")
    o(f"""  s_add_u32 s{sT[0]}, s20, 1
  s_mul_i32 s{sT[0]}, s{sT[0]}, {H2_SLOT}
  s_lshl_b32 s{sT[1]}, s{sWv}, 10
  s_add_u32 s{sT[0]}, s{sT[0]}, s{sT[1]}
  s_add_u32 s{sT[0]}, s{sT[0]}, {H2}
  buffer_store_dwordx4 v[4:7], v0, {WS}, s{sT[0]} offen {stf}
  s_add_u32 s{sT[0]}, s{sT[0]}, 4096
  buffer_store_dwordx4 v[4:7], v0, {WS}, s{sT[0]} offen {stf}
  s_mul_i32 s{sT[0]}, s20, {H2_SLOT}
  s_add_u32 s{sT[0]}, s{sT[0]}, {H2 + H2_SLOT + 8192}
  buffer_store_dwordx4 v[4:7], v0, {WS}, s{sT[0]} offen {stf}""")

def reduce8(o, part, resbase):
    WS = f"s[{sWS}:{sWS+3}]"
    F, T0 = 16, 40
    o(f"""  v_and_b32 v1, 7, v0                 ; token8
  v_bfe_u32 v2, v0, 3, 1              ; hi
  v_lshrrev_b32 v3, 4, v0             ; r4
  s_lshl_b32 s{sT[0]}, s21, 3
  v_add_u32 v4, s{sT[0]}, v1
  v_lshl_add_u32 v4, v2, 5, v4
  v_lshlrev_b32 v5, 4, v4             ; *16
  v_lshl_add_u32 v6, v3, 10, v5
  v_and_b32 v7, 1, v3
  v_lshl_add_u32 v7, v7, 10, v5
  v_lshrrev_b32 v8, 1, v3
  v_lshl_add_u32 v7, v8, 3, v7
  s_cmp_lt_u32 s{sWv}, 2
  s_cselect_b32 s{sT[2]}, 0, 0x80000000
  v_or_b32 v9, s{sT[2]}, v6
  v_or_b32 v10, s{sT[2]}, v7
  s_mul_i32 s{sT[3]}, s20, {18*2048}
  s_lshl_b32 s{sT[4]}, s{sWv}, 11
  s_add_u32 s{sT[3]}, s{sT[3]}, s{sT[4]}
  s_mul_i32 s{sT[5]}, s20, {18*4096}
  s_lshl_b32 s{sT[4]}, s{sWv}, 12
  s_add_u32 s{sT[5]}, s{sT[5]}, s{sT[4]}
  s_add_u32 s{sT[5]}, s{sT[5]}, {part}""")
    for i in range(5):
        o(f"  s_add_u32 s{sT[4]}, s{sT[3]}, {resbase + i*4*2048}")
        o(f"  buffer_load_dwordx2 {v(200+2*i,2)}, v{7 if i < 4 else 10}, {WS}, s{sT[4]} offen sc1")
    for i in range(5):
        for sp in range(8):
            o(f"  s_add_u32 s{sT[4]}, s{sT[5]}, {sp*64*18*4096 + i*4*4096}")
            o(f"  buffer_load_dwordx4 {v(T0+(8*i+sp)*4,4)}, v{6 if i < 4 else 9}, {WS}, s{sT[4]} offen sc1")
    for i in range(5):
        o(f"  s_waitcnt vmcnt({8*(4-i)})")
        if i == 0 and HOOK:
            o("  s_barrier"); HOOK(o)
        b = T0 + 32*i
        for k in range(2):
            o(f"  v_pk_add_f32 {v(b+2*k,2)}, {v(b+2*k,2)}, {v(b+4+2*k,2)}")
            o(f"  v_pk_add_f32 {v(b+8+2*k,2)}, {v(b+8+2*k,2)}, {v(b+12+2*k,2)}")
            o(f"  v_pk_add_f32 {v(b+16+2*k,2)}, {v(b+16+2*k,2)}, {v(b+20+2*k,2)}")
            o(f"  v_pk_add_f32 {v(b+24+2*k,2)}, {v(b+24+2*k,2)}, {v(b+28+2*k,2)}")
            o(f"  v_pk_add_f32 {v(b+2*k,2)}, {v(b+2*k,2)}, {v(b+8+2*k,2)}")
            o(f"  v_pk_add_f32 {v(b+16+2*k,2)}, {v(b+16+2*k,2)}, {v(b+24+2*k,2)}")
            o(f"  v_pk_add_f32 {v(b+2*k,2)}, {v(b+2*k,2)}, {v(b+16+2*k,2)}")
        for k in range(2):
            src = 200 + 2*i + k
            o(f"  v_lshlrev_b32 v12, 16, v{src}\n  v_and_b32 v13, 0xffff0000, v{src}")
            o(f"  v_add_f32 v{F+4*i+2*k}, v{b+2*k}, v12\n  v_add_f32 v{F+4*i+2*k+1}, v{b+2*k+1}, v13")

def xred8(o, reg, slot):
    o(f"  s_nop 1\n  v_add_f32_dpp v{reg}, v{reg}, v{reg} row_ror:8 row_mask:0xf bank_mask:0xf")
    o(f"  v_mov_b32 v12, v{reg}\n  s_nop 1\n  v_permlane16_swap_b32 v{reg}, v12\n  v_add_f32 v{reg}, v{reg}, v12")
    o(f"  v_mov_b32 v12, v{reg}\n  s_nop 1\n  v_permlane32_swap_b32 v{reg}, v12\n  v_add_f32 v{reg}, v{reg}, v12")
    o(f"  v_lshlrev_b32 v12, 2, v1\n  s_lshl_b32 s{sT[6]}, s{sWv}, 5\n  v_add_u32 v13, s{sT[6]}, v12")
    o(f"  ds_write_b32 v13, v{reg} offset:{slot*128}\n  s_waitcnt lgkmcnt(0)\n  s_barrier")
    for w in range(4): o(f"  ds_read_b32 v{36+w}, v12 offset:{slot*128 + w*32}")
    o(f"  s_waitcnt lgkmcnt(0)\n  v_add_f32 v36, v36, v37\n  v_add_f32 v38, v38, v39\n  v_add_f32 v{reg}, v36, v38")

def stage_ln2b(o, stf):
    WS = f"s[{sWS}:{sWS+3}]"
    F = 16
    reduce8(o, PART, XF)
    H = 200
    for i in range(5):
        o(f"  v_cvt_pk_bf16_f32 v{H+2*i}, v{F+4*i}, v{F+4*i+1}\n  v_cvt_pk_bf16_f32 v{H+2*i+1}, v{F+4*i+2}, v{F+4*i+3}")
    for i in range(5):
        o(f"  s_add_u32 s{sT[4]}, s{sT[3]}, {HBUF + i*4*2048}")
        o(f"  buffer_store_dwordx2 {v(H+2*i,2)}, v{7 if i < 4 else 10}, {WS}, s{sT[4]} offen {stf}")
    for i in range(5):
        for k in range(2):
            o(f"  v_lshlrev_b32 v{F+4*i+2*k}, 16, v{H+2*i+k}\n  v_and_b32 v{F+4*i+2*k+1}, 0xffff0000, v{H+2*i+k}")
    o(f"  v_add_f32 v14, v{F}, v{F+1}")
    for r in range(2, 20): o(f"  v_add_f32 v14, v14, v{F+r}")
    xred8(o, 14, 0)
    o("  v_mul_f32 v14, 0x3ae38e39, v14")
    for r in range(20): o(f"  v_sub_f32 v{F+r}, v{F+r}, v14")
    o(f"  s_cmp_lt_u32 s{sWv}, 2\n  s_cselect_b32 s{sT[6]}, 1.0, 0")
    for r in range(16, 20): o(f"  v_mul_f32 v{F+r}, s{sT[6]}, v{F+r}")
    o(f"  v_mul_f32 v15, v{F}, v{F}")
    for r in range(1, 20): o(f"  v_fmac_f32 v15, v{F+r}, v{F+r}")
    xred8(o, 15, 1)
    o("  v_mov_b32 v12, 0x3727c5ac\n  v_fmac_f32 v12, 0x3ae38e39, v15\n  v_rsq_f32 v15, v12\n  s_nop 0")
    for r in range(20): o(f"  v_mul_f32 v{F+r}, v15, v{F+r}")
    H2_ = 210
    for i in range(5):
        o(f"  v_cvt_pk_bf16_f32 v{H2_+2*i}, v{F+4*i}, v{F+4*i+1}\n  v_cvt_pk_bf16_f32 v{H2_+2*i+1}, v{F+4*i+2}, v{F+4*i+3}")
    for i in range(5):
        o(f"  s_add_u32 s{sT[4]}, s{sT[3]}, {HN + i*4*2048}")
        o(f"  buffer_store_dwordx2 {v(H2_+2*i,2)}, v{7 if i < 4 else 10}, {WS}, s{sT[4]} offen {stf}")

def stage_fb(o):
    F = 16
    reduce8(o, PART2, HBUF)
    srd(o, sB1, P_OUT, 2048*576*2)
    o(f"""  s_lshl_b32 s{sT[0]}, s20, 5
  s_lshl_b32 s{sT[1]}, s21, 3
  s_add_u32 s{sT[0]}, s{sT[0]}, s{sT[1]}
  s_mul_i32 s{sT[0]}, s{sT[0]}, 1152
  s_lshl_b32 s{sT[1]}, s{sWv}, 6
  s_add_u32 s{sT[0]}, s{sT[0]}, s{sT[1]}
  v_mul_u32_u24 v11, 1152, v1
  v_lshl_add_u32 v11, v3, 4, v11
  v_lshl_add_u32 v11, v2, 3, v11
  v_or_b32 v12, s{sT[2]}, v11""")
    H = 200
    for i in range(5):
        o(f"  v_cvt_pk_bf16_f32 v{H+2*i}, v{F+4*i}, v{F+4*i+1}\n  v_cvt_pk_bf16_f32 v{H+2*i+1}, v{F+4*i+2}, v{F+4*i+3}")
    for i in range(5):
        o(f"  buffer_store_dwordx2 {v(H+2*i,2)}, v{11 if i < 4 else 12}, s[{sB1}:{sB1+3}], s{sT[0]} offen offset:{256*i} {OUTF}")

NODMA = False
RSLEEP = 8
RSLG = 14
OUTF = "nt"
BSLEEP = 8
HOOK = None
class Gemm2(Gemm):
    def __init__(self, NB, KT, NC, NSLOT, swap, ldb, colstep, dual=False, resident=True, PA=3):
        super().__init__(1, NB, KT, swap, ldb, 0, PA, dual)
        self.NC, self.NSLOT, self.colstep, self.resident = NC, NSLOT, colstep, resident
    def areg2(self, t, ks):
        return (t*4 + ks)*4 if self.resident else ((t % (self.PA+1))*4 + ks)*4
    def issueB(self, o, vm, n):
        j, t = divmod(n, self.KT)
        slot = n % self.NSLOT
        for sub in range(self.NS):
            srdreg = sB2 if (self.dual and sub == 1) else sB1
            sbo = sBo2 if (self.dual and sub == 1) else sBo1
            colb = 0 if self.dual else sub*128
            for jj in range(2):
                lds = slot*self.NS*8192 + sub*8192 + jj*1024
                o(f"  s_add_u32 m0, s{sT[7]}, {lds}")
                o(f"  s_add_u32 s{sT[0]}, s{sbo}, {(64*t + 8*jj)*self.ldb + colb + j*self.colstep}")
                o(f"  buffer_load_dwordx4 v{self.vD}, s[{srdreg}:{srdreg+3}], s{sT[0]} offen lds")
                vm.issue(f"B{n}")
    def issueA(self, o, vm, t):
        o(f"  s_add_u32 s{sT[0]}, s{sAo}, {4096*t}")
        for ks in range(4):
            o(f"  buffer_load_dwordx4 {a(self.areg2(t,ks),4)}, v{self.vA}, s[{sWS}:{sWS+3}], s{sT[0]} offen offset:{1024*ks} {LDF}")
            vm.issue(f"A{t}")
    def readB(self, o, lg, n, ks, buf):
        kb, q = ks // 2, ks % 2
        slot = n % self.NSLOT
        for nb in range(self.NB):
            sub, par = nb // 2, nb % 2
            for z in range(2):
                off = slot*self.NS*8192 + sub*8192 + (32*kb + 8*q + 16*z)*128
                b, imm = off // 65536, off % 65536
                o(f"  ds_read_b64_tr_b16 {v(self.bfrag(buf,nb)+2*z,2)}, v{self.vT + 2*b + par} offset:{imm}")
                lg.issue(f"R{n}_{ks}")
    def run2(self, o, epilogue):
        NB, KT, NC, NS_ = self.NB, self.KT, self.NC, self.NSLOT
        NE = NC*KT
        vm = Cnt(o, "vm", 63); lg = Cnt(o, "lgkm", 15)
        nb_per = self.NS*2
        st = dict(nB=0, nA=0)
        def B_ops(n):
            j_, t = divmod(n, KT); slot = n % NS_
            ops = []
            for sub in range(self.NS):
                srdreg = sB2 if (self.dual and sub == 1) else sB1
                sbo = sBo2 if (self.dual and sub == 1) else sBo1
                colb = 0 if self.dual else sub*128
                for jj in range(2):
                    lds = slot*self.NS*8192 + sub*8192 + jj*1024
                    def f(lds=lds, sbo=sbo, srdreg=srdreg, off=(64*t + 8*jj)*self.ldb + colb + j_*self.colstep, n=n):
                        o(f"  s_add_u32 m0, s{sT[7]}, {lds}")
                        o(f"  s_add_u32 s{sT[0]}, s{sbo}, {off}")
                        if not (NODMA and n >= 4): o(f"  buffer_load_dwordx4 v{self.vD}, s[{srdreg}:{srdreg+3}], s{sT[0]} offen lds")
                        else: o("  buffer_load_dword v250, v0, s[8:11], 0 offen")
                        vm.issue(f"B{n}")
                    ops.append(f)
            return ops
        def A_ops(t):
            ops = []
            for ks in range(4):
                def f(t=t, ks=ks):
                    o(f"  s_add_u32 s{sT[0]}, s{sAo}, {4096*t}")
                    o(f"  buffer_load_dwordx4 {a(self.areg2(t,ks),4)}, v{self.vA}, s[{sWS}:{sWS+3}], s{sT[0]} offen offset:{1024*ks} {LDF}")
                    vm.issue(f"A{t}")
                ops.append(f)
            return ops
        def R_ops(n, ks, buf):
            kb, q = ks // 2, ks % 2; slot = n % NS_
            ops = []
            for nb in range(NB):
                sub, par = nb // 2, nb % 2
                for z in range(2):
                    off = slot*self.NS*8192 + sub*8192 + (32*kb + 8*q + 16*z)*128
                    b, imm = off // 65536, off % 65536
                    def f(nb=nb, z=z, b=b, imm=imm, par=par):
                        o(f"  ds_read_b64_tr_b16 {v(self.bfrag(buf,nb)+2*z,2)}, v{self.vT + 2*b + par} offset:{imm}")
                        lg.issue(f"R{n}_{ks}_{nb}")
                    ops.append(f)
            return ops
        init = min(4, KT)
        for i in range(init):
            for f in B_ops(st['nB']): f()
            st['nB'] += 1
            for f in A_ops(st['nA']): f()
            st['nA'] += 1
        vm.wait("A0")
        o("  s_barrier")
        if HOOK: HOOK(o)
        for f in R_ops(0, 0, 0): f()
        step = 0
        memq = []
        for n in range(NE):
            j, t = divmod(n, KT)
            for ks in range(4):
                buf = step % 2
                nn, nks = (n, ks+1) if ks < 3 else (n+1, 0)
                if ks == 3 and n+1 < NE:
                    need = {f"B{n+1}"} | ({f"A{t+1}"} if (j == 0 and t+1 < KT) else set())
                    while any(tg in need for tg, _ in memq): memq.pop(0)[1]()
                    vm.wait(f"B{n+1}")
                    if j == 0 and t+1 < KT: vm.wait(f"A{t+1}")
                    o("  s_barrier")
                rops = R_ops(nn, nks, 1-buf) if nn < NE else []
                per = -(-len(rops) // NB)
                for nb in range(NB):
                    lg.wait(f"R{n}_{ks}_{nb}")
                    a_, b_ = a(self.areg2(t,ks),4), v(self.bfrag(buf,nb),4)
                    c = v(self.acc(0,nb),16)
                    x, y = (b_, a_) if self.swap else (a_, b_)
                    cin = "0" if (t == 0 and ks == 0) else c
                    o(f"  v_mfma_f32_32x32x16_bf16 {c}, {x}, {y}, {cin}")
                    for f in rops[nb*per:(nb+1)*per]: f()
                    if nb == NB-1 or nb == NB//2 - 1:
                        if memq: memq.pop(0)[1]()
                if ks == 3 and n+1 < NE:
                    assert not memq or True
                    k = 0
                    pend = len(memq)
                    while st['nA'] < KT and k < 2 and len(vm.q) + pend + 4 <= 58 and (self.resident or st['nA'] <= t + self.PA + 1):
                        memq += [(f"A{st['nA']}", f) for f in A_ops(st['nA'])]; st['nA'] += 1; k += 1; pend += 4
                    k = 0
                    while st['nB'] < NE and st['nB'] <= n - 1 + NS_ and k < 2 and len(vm.q) + pend + nb_per <= 58:
                        memq += [(f"B{st['nB']}", f) for f in B_ops(st['nB'])]; st['nB'] += 1; k += 1; pend += nb_per
                step += 1
            if t == KT-1:
                nop(o, 12)
                epilogue(j, vm)
        assert not memq
        assert st['nB'] >= NE

def stage_a2(o, stf, NC=4):
    WS = f"s[{sWS}:{sWS+3}]"
    lab_v, lab_e = o.label("a2v"), o.label("a2e")
    g = Gemm2(4, 9, NC, 9, True, 8192, 256)
    g.setup(o)
    o(f"""  s_cmp_eq_u32 s21, 0
  s_cselect_b32 s{sT[0]}, s{P_WK}, s{P_WQ}
  s_cselect_b32 s{sT[1]}, s{P_WK+1}, s{P_WQ+1}
  s_cmp_eq_u32 s21, 1
  s_cselect_b32 s{sT[0]}, s{P_WV}, s{sT[0]}
  s_cselect_b32 s{sT[1]}, s{P_WV+1}, s{sT[1]}""")
    srd(o, sB1, sT[0], 4718592)
    o(f"""  s_mul_i32 s23, s22, {NC}
  s_lshl_b32 s{sBo1}, s23, 8
  s_mul_i32 s{sT[0]}, s{sWv}, {16*8192}
  s_add_u32 s{sBo1}, s{sBo1}, s{sT[0]}
  s_lshl_b32 s{sT[7]}, s{sWv}, 11
  s_lshl_b32 s24, s20, 2
  s_add_u32 s24, s24, s{sWv}
  s_mul_i32 s{sAo}, s24, {18*2048}
  s_add_u32 s{sAo}, s{sAo}, {XN}
  s_cmp_eq_u32 s21, 0
  s_cselect_b32 s{sT[6]}, {KBUF}, {QBUF}
  s_cmp_eq_u32 s21, 1
  s_cselect_b32 s{sT[6]}, {VBUF}, s{sT[6]}
  s_lshl_b32 s{sT[5]}, s24, 5
  s_add_u32 s{sT[5]}, s{sT[5]}, s23
  s_lshl_b32 s{sT[5]}, s{sT[5]}, 13
  s_add_u32 s{sT[6]}, s{sT[6]}, s{sT[5]}""")
    vo = g.vFree
    kv_store_off(o, vo, 0)
    P = vo + 2
    def epi(gg):
        def f(j, vm):
            n = 0
            for nb in range(4):
                o(f"  s_add_u32 s{sT[1]}, s{sT[6]}, {j*8192 + nb*2048}")
                for q in range(2):
                    d = P + 4*(n % 4); n += 1
                    pack_piece(o, d, gg.acc(0, nb), q)
                    o(f"  buffer_store_dwordx4 {v(d,4)}, v{vo}, {WS}, s{sT[1]} offen offset:{512*q} {stf}")
                    vm.issue("S")
        return f
    o(f"  s_cmp_eq_u32 s21, 1\n  s_cbranch_scc1 {lab_v}")
    g.run2(o, epi(g))
    o(f"  s_branch {lab_e}")
    o.put(lab_v)
    g2 = Gemm2(4, 9, NC, 9, False, 8192, 256)
    g2.run2(o, epi(g2))
    o.put(lab_e)

def stage_d2(o, stf, NC=3):
    WS = f"s[{sWS}:{sWS+3}]"
    g = Gemm2(4, 9, NC, 9, True, 9216, 128, dual=True)
    g.setup(o)
    srd(o, sB1, P_W1, 5308416)
    srd(o, sB2, P_W3, 5308416)
    o(f"""  s_mul_i32 s23, s21, {NC}
  s_lshl_b32 s{sBo1}, s23, 7
  s_mul_i32 s{sT[0]}, s{sWv}, {16*9216}
  s_add_u32 s{sBo1}, s{sBo1}, s{sT[0]}
  s_mov_b32 s{sBo2}, s{sBo1}
  s_lshl_b32 s{sT[7]}, s{sWv}, 11
  s_lshl_b32 s24, s20, 2
  s_add_u32 s24, s24, s{sWv}
  s_mul_i32 s{sAo}, s24, {18*2048}
  s_add_u32 s{sAo}, s{sAo}, {HN}
  s_mul_i32 s{sT[6]}, s24, {144*2048}
  s_lshl_b32 s{sT[5]}, s23, 12
  s_add_u32 s{sT[6]}, s{sT[6]}, s{sT[5]}
  s_add_u32 s{sT[6]}, s{sT[6]}, {ACT}
  s_mov_b32 s{sT[2]}, 0xbfb8aa3b           ; -log2(e)""")
    Tm = g.vFree
    def epi(j, vm):
        o(f"  s_add_u32 s{sT[1]}, s{sT[6]}, {j*4096}")
        for nb in range(2):
            G_, U_ = g.acc(0, nb), g.acc(0, nb+2)
            for r in range(16): o(f"  v_mul_f32 v{Tm+r}, s{sT[2]}, v{G_+r}")
            for r in range(16): o(f"  v_exp_f32 v{Tm+r}, v{Tm+r}")
            for r in range(16): o(f"  v_add_f32 v{Tm+r}, 1.0, v{Tm+r}")
            for r in range(16): o(f"  v_rcp_f32 v{Tm+r}, v{Tm+r}")
            for r in range(16): o(f"  v_mul_f32 v{G_+r}, v{G_+r}, v{U_+r}")
            for r in range(16): o(f"  v_mul_f32 v{G_+r}, v{G_+r}, v{Tm+r}")
            for q in range(2):
                d = Tm + 16 + 4*(2*nb+q)
                pack_piece(o, d, G_, q)
                o(f"  buffer_store_dwordx4 {v(d,4)}, v0, {WS}, s{sT[1]} offen offset:{nb*2048 + q*1024} {stf}")
                vm.issue("S")
    g.run2(o, epi)

def stage_ce2(o, which, stf, NB=6):
    WS = f"s[{sWS}:{sWS+3}]"
    if which == 'C': KT, NKB, Abase, PW, wsz, part = 8, 128, OBUF, P_WO, 4718592, PART
    else:            KT, NKB, Abase, PW, wsz, part = 9, 144, ACT, P_W2, 5308416, PART2
    g = Gemm2(NB, KT, 1, 6 if NB == 6 else KT, True, 1152, 0, resident=True)
    g.setup(o)
    srd(o, sB1, PW, wsz)
    o(f"""  s_mul_i32 s{sBo1}, s22, {KT*64*1152}
  s_mul_i32 s{sT[0]}, s21, {NB*64}
  s_add_u32 s{sBo1}, s{sBo1}, s{sT[0]}
  s_mul_i32 s{sT[0]}, s{sWv}, {16*1152}
  s_add_u32 s{sBo1}, s{sBo1}, s{sT[0]}
  s_lshl_b32 s{sT[7]}, s{sWv}, 11
  s_lshl_b32 s24, s20, 2
  s_add_u32 s24, s24, s{sWv}
  s_mul_i32 s{sAo}, s24, {NKB*2048}
  s_mul_i32 s{sT[0]}, s22, {KT*4096}
  s_add_u32 s{sAo}, s{sAo}, s{sT[0]}
  s_add_u32 s{sAo}, s{sAo}, {Abase}
  s_lshl_b32 s{sT[6]}, s22, 6
  s_add_u32 s{sT[6]}, s{sT[6]}, s24
  s_mul_i32 s{sT[6]}, s{sT[6]}, 18
  s_mul_i32 s{sT[5]}, s21, {NB}
  s_add_u32 s{sT[6]}, s{sT[6]}, s{sT[5]}
  s_lshl_b32 s{sT[6]}, s{sT[6]}, 12
  s_add_u32 s{sT[6]}, s{sT[6]}, {part}""")
    def epi(j, vm):
        for nb in range(NB):
            o(f"  s_add_u32 s{sT[1]}, s{sT[6]}, {nb*4096}")
            for r4 in range(4):
                o(f"  buffer_store_dwordx4 {v(g.acc(0,nb)+4*r4,4)}, v0, {WS}, s{sT[1]} offen offset:{1024*r4} {stf}")
                vm.issue("S")
    g.run2(o, epi)

class Gemm3(Gemm):
    def __init__(self, NB, KT, swap, ldb, dual=False):
        super().__init__(1, NB, KT, swap, ldb, 0, 0, dual)
    def load_B(self, o):
        vm = Cnt(o, "vm", 63)
        for t in range(self.KT):
            for sub in range(self.NS):
                srdreg = sB2 if (self.dual and sub == 1) else sB1
                sbo = sBo2 if (self.dual and sub == 1) else sBo1
                colb = 0 if self.dual else sub*128
                for jj in range(2):
                    lds = t*self.NS*8192 + sub*8192 + jj*1024
                    o(f"  s_add_u32 m0, s{sT[7]}, {lds}")
                    o(f"  s_add_u32 s{sT[0]}, s{sbo}, {(64*t + 8*jj)*self.ldb + colb}")
                    o(f"  buffer_load_dwordx4 v{self.vD}, s[{srdreg}:{srdreg+3}], s{sT[0]} offen lds")
        o("  s_waitcnt vmcnt(0)\n  s_barrier")
    def compute(self, o, prefetch_next=None):
        NB, KT = self.NB, self.KT
        vm = Cnt(o, "vm", 63); lg = Cnt(o, "lgkm", 15)
        for t in range(KT):
            o(f"  s_add_u32 s{sT[0]}, s{sAo}, {4096*t}")
            for ks in range(4):
                o(f"  buffer_load_dwordx4 {a((t*4+ks)*4,4)}, v{self.vA}, s[{sWS}:{sWS+3}], s{sT[0]} offen offset:{1024*ks} {LDF}")
                vm.issue(f"A{t}_{ks}")
        def R_ops(t, ks, buf):
            kb, q = ks // 2, ks % 2
            ops = []
            for nb in range(NB):
                sub, par = nb // 2, nb % 2
                for z in range(2):
                    off = t*self.NS*8192 + sub*8192 + (32*kb + 8*q + 16*z)*128
                    b, imm = off // 65536, off % 65536
                    def f(nb=nb, z=z, b=b, imm=imm, par=par):
                        o(f"  ds_read_b64_tr_b16 {v(self.bfrag(buf,nb)+2*z,2)}, v{self.vT + 2*b + par} offset:{imm}")
                        lg.issue(f"R{t}_{ks}_{nb}")
                    ops.append(f)
            return ops
        for f in R_ops(0, 0, 0): f()
        step = 0
        for t in range(KT):
            for ks in range(4):
                buf = step % 2
                nt, nks = (t, ks+1) if ks < 3 else (t+1, 0)
                rops = R_ops(nt, nks, 1-buf) if nt < KT else []
                per = -(-len(rops) // NB)
                vm.wait(f"A{t}_{ks}")
                for nb in range(NB):
                    lg.wait(f"R{t}_{ks}_{nb}")
                    a_, b_ = a((t*4+ks)*4,4), v(self.bfrag(buf,nb),4)
                    c = v(self.acc(0,nb),16)
                    x, y = (b_, a_) if self.swap else (a_, b_)
                    cin = "0" if step == 0 else c
                    o(f"  v_mfma_f32_32x32x16_bf16 {c}, {x}, {y}, {cin}")
                    for f in rops[nb*per:(nb+1)*per]: f()
                step += 1
        nop(o, 12)

def role_loop(o, name, dep_cnt, dep_target, sig_cnt, CNT, NONE, body, spin, tim=None):
    o(f"  s_mov_b32 s32, 0\n{name}_g:")
    if dep_cnt is not None:
        lp = o.label("rd")
        o(f"""  s_cmp_eq_u32 s{sWv}, 0
  s_cbranch_scc0 {lp}_b
  s_lshl_b32 s25, s32, 7
  s_add_u32 s25, s25, {CNT + 128*dep_cnt}
  v_mov_b32 v250, s25
  s_mov_b32 s24, 0
{lp}:
  buffer_load_dword v251, v250, s[{sWS}:{sWS+3}], 0 offen sc1
  s_waitcnt vmcnt(0)
  v_readfirstlane_b32 s25, v251
  s_cmp_ge_u32 s25, {dep_target}
  s_cbranch_scc1 {lp}_b
""" + (f"  s_cmp_lt_u32 s32, {RSLG}\n  s_cbranch_scc0 {lp}_ns\n  s_sleep {RSLEEP}\n{lp}_ns:\n" if RSLEEP else "") + f"""  s_add_u32 s24, s24, 1
  s_cmp_lt_u32 s24, {spin}
  s_cbranch_scc1 {lp}
  s_endpgm
{lp}_b:
  s_barrier""")
    if tim is not None: o("  s_memrealtime s[36:37]")
    body()
    o("  s_waitcnt vmcnt(0) lgkmcnt(0)\n  s_barrier")
    lab = o.label("rs")
    o(f"  s_cmp_eq_u32 s{sWv}, 0\n  s_cbranch_scc0 {lab}")
    if sig_cnt is not None:
        o(f"""  s_lshl_b32 s25, s32, 7
  s_add_u32 s25, s25, {CNT + 128*sig_cnt}
  v_mov_b32 v250, s25
  v_mov_b32 v251, 1
  s_mov_b64 exec, 1
  buffer_atomic_add v251, v250, s[{sWS}:{sWS+3}], 0 offen
  s_mov_b64 exec, -1""")
    if tim is not None:
        o(f"""  s_memrealtime s[38:39]
  s_waitcnt lgkmcnt(0)
  v_mov_b32 v248, s36
  v_mov_b32 v249, s38
  s_lshl_b32 s25, s33, 4
  s_add_u32 s25, s25, s32
  s_lshl_b32 s25, s25, 3
  s_add_u32 s25, s25, {tim}
  v_mov_b32 v250, s25
  buffer_store_dwordx2 v[248:249], v250, s[{sWS}:{sWS+3}], 0 offen""")
    o(f"""{lab}:
  s_add_u32 s32, s32, 1
  s_cmp_lt_u32 s32, 16
  s_cbranch_scc1 {name}_g""")

def role_d(o, stf, loopf):
    WS = f"s[{sWS}:{sWS+3}]"
    g = Gemm3(4, 9, True, 9216, dual=True)
    g.setup(o)
    srd(o, sB1, P_W1, 5308416); srd(o, sB2, P_W3, 5308416)
    o(f"""  s_lshl_b32 s{sBo1}, s28, 7
  s_mul_i32 s{sT[0]}, s{sWv}, {16*9216}
  s_add_u32 s{sBo1}, s{sBo1}, s{sT[0]}
  s_mov_b32 s{sBo2}, s{sBo1}
  s_lshl_b32 s{sT[7]}, s{sWv}, 11""")
    g.load_B(o)
    Tm = g.vFree
    def body():
        o(f"""  s_lshl_b32 s29, s32, 2
  s_add_u32 s29, s29, s{sWv}
  s_mul_i32 s{sAo}, s29, {18*2048}
  s_add_u32 s{sAo}, s{sAo}, {HN}
  s_mul_i32 s{sT[6]}, s29, {144*2048}
  s_lshl_b32 s{sT[5]}, s28, 12
  s_add_u32 s{sT[6]}, s{sT[6]}, s{sT[5]}
  s_add_u32 s{sT[6]}, s{sT[6]}, {ACT}
  s_mov_b32 s{sT[2]}, 0xbfb8aa3b""")
        g.compute(o)
        for nb in range(2):
            G_, U_ = g.acc(0, nb), g.acc(0, nb+2)
            for r in range(16): o(f"  v_mul_f32 v{Tm+r}, s{sT[2]}, v{G_+r}")
            for r in range(16): o(f"  v_exp_f32 v{Tm+r}, v{Tm+r}")
            for r in range(16): o(f"  v_add_f32 v{Tm+r}, 1.0, v{Tm+r}")
            for r in range(16): o(f"  v_rcp_f32 v{Tm+r}, v{Tm+r}")
            for r in range(16): o(f"  v_mul_f32 v{G_+r}, v{G_+r}, v{U_+r}")
            for r in range(16): o(f"  v_mul_f32 v{G_+r}, v{G_+r}, v{Tm+r}")
            for q in range(2):
                d = Tm + 16 + 4*(2*nb+q)
                pack_piece(o, d, G_, q)
                o(f"  buffer_store_dwordx4 {v(d,4)}, v0, {WS}, s{sT[6]} offen offset:{nb*2048 + q*1024} {stf}")
    loopf(body)

def role_ce(o, which, NB, stf, loopf):
    WS = f"s[{sWS}:{sWS+3}]"
    if which == 'C': KT, NKB, Abase, PW, wsz, part = 8, 128, OBUF, P_WO, 4718592, PART
    else:            KT, NKB, Abase, PW, wsz, part = 9, 144, ACT, P_W2, 5308416, PART2
    g = Gemm3(NB, KT, True, 1152)
    g.setup(o)
    srd(o, sB1, PW, wsz)
    o(f"""  s_mul_i32 s{sBo1}, s23, {KT*64*1152}
  s_lshl_b32 s{sT[0]}, s28, 6
  s_add_u32 s{sBo1}, s{sBo1}, s{sT[0]}
  s_mul_i32 s{sT[0]}, s{sWv}, {16*1152}
  s_add_u32 s{sBo1}, s{sBo1}, s{sT[0]}
  s_lshl_b32 s{sT[7]}, s{sWv}, 11""")
    g.load_B(o)
    def body():
        o(f"""  s_lshl_b32 s29, s32, 2
  s_add_u32 s29, s29, s{sWv}
  s_mul_i32 s{sAo}, s29, {NKB*2048}
  s_mul_i32 s{sT[0]}, s23, {KT*4096}
  s_add_u32 s{sAo}, s{sAo}, s{sT[0]}
  s_add_u32 s{sAo}, s{sAo}, {Abase}
  s_lshl_b32 s{sT[6]}, s23, 6
  s_add_u32 s{sT[6]}, s{sT[6]}, s29
  s_mul_i32 s{sT[6]}, s{sT[6]}, 18
  s_add_u32 s{sT[6]}, s{sT[6]}, s28
  s_lshl_b32 s{sT[6]}, s{sT[6]}, 12
  s_add_u32 s{sT[6]}, s{sT[6]}, {part}""")
        g.compute(o)
        for nb in range(NB):
            o(f"  s_add_u32 s{sT[1]}, s{sT[6]}, {nb*4096}")
            for r4 in range(4):
                o(f"  buffer_store_dwordx4 {v(g.acc(0,nb)+4*r4,4)}, v0, {WS}, s{sT[1]} offen offset:{1024*r4} {stf}")
    loopf(body)
```

```python
from asmlib import *

L_MEM, L_XEX, L_MEX, L_OEX, L_W = 0, 9216, 13312, 14336, 16384

vA, vXw, vM, vOw, vR, vP, vIdx, vH1 = 0, 1, 2, 3, 4, 5, 6, 7
vSel, vSelR, vKx, vVx = 8, 10, 14, 22
sW = 4
sWS = 8
sH, sWv_, sStep = 12, 13, 14
sC = 15
sKoff, sKm, sH1st, sH1h, sH1ld, sH2pub, sH2pl = 16, 17, 18, 19, 20, 21, 22
sIsRed, sJ, sT0, sT1, sT2, sT3 = 23, 24, 25, 26, 27, 28
sPoll = 29
sH1rs, sH2rs = 30, 31
sFlagOff = 32
sX1, sX2, sX3 = 33, 34, 35
sW256 = 36
sMaskMw = 38
sPi0, sPih = 40, 41
sH1so, sH1ho, sW1024 = 42, 43, 37
sUnit = 45
sVm = 47
sH2tch = 46
sTm = 44

def frag_q(tau, c): return ('a', (tau*9 + c)*8)
def frag_k(tau, c):
    f = tau*9 + c
    return ('a', 144 + 8*f) if f < 14 else ('v', 80 + 8*(f-14))
def frag_v(tau, c):
    return ('v', 112 + 72*tau + 8*c)
def frag_o(tl, kap):
    return ('lds', 4*tl + kap)

def lds_frag_addr(f):
    off = L_W + f*4096
    return off // 65536, off % 65536

def nop(o, n):
    while n > 0:
        k = min(n, 16)
        o(f"  s_nop {k-1}")
        n -= k

def emit_consts(o):
    o.c("---- R lane constants; v0 holds lane id on entry (0..63), s13 = wave")
    o(f"""
  v_mov_b32 v30, v0                 ; lane
  v_and_b32 v31, 15, v30            ; c
  v_lshrrev_b32 v32, 4, v30         ; g
  v_and_b32 v33, 7, v30             ; t
  v_bfe_u32 v34, v30, 3, 1          ; u
  v_lshlrev_b32 v{vA}, 4, v30
  s_lshl_b32 s{sT0}, s{sWv_}, 10
  v_add_u32 v{vXw}, s{sT0}, v{vA}
  v_and_b32 v35, 1, v32             ; g%2
  v_lshlrev_b32 v{vM}, 7, v35
  v_lshl_add_u32 v{vM}, v33, 4, v{vM}
  ; vOw = (w/2)*1024 + (g/2)*256 + (w%2)*128 + t*16 + (g%2)*8 ; u==0 only
  s_lshr_b32 s{sT0}, s{sWv_}, 1
  s_lshl_b32 s{sT0}, s{sT0}, 10
  s_and_b32 s{sT1}, s{sWv_}, 1
  s_lshl_b32 s{sT1}, s{sT1}, 7
  s_add_u32 s{sT0}, s{sT0}, s{sT1}
  s_add_u32 s{sT0}, s{sT0}, {L_OEX}
  v_lshrrev_b32 v36, 1, v32         ; g/2
  v_lshlrev_b32 v{vOw}, 8, v36
  v_lshl_add_u32 v{vOw}, v33, 4, v{vOw}
  v_lshl_add_u32 v{vOw}, v35, 3, v{vOw}
  v_add_u32 v{vOw}, s{sT0}, v{vOw}
  v_mov_b32 v37, 0x7ffffff0
  v_cmp_eq_u32 vcc, 0, v34
  s_nop 1
  v_cndmask_b32 v{vOw}, v37, v{vOw}, vcc
  v_mov_b32 v37, 0x80000000
  v_cndmask_b32 v{vH1}, v37, v{vA}, vcc
  ; idx
  v_mov_b32 v38, 0x44444444
  v_mov_b32 v39, 0xeeeeeeee
  v_cndmask_b32 v{vIdx}, v39, v38, vcc
  s_lshl_b32 s{sJ}, s{sH}, 1
  s_add_u32 s{sJ}, s{sJ}, s{sWv_}
  s_add_u32 s{sT0}, s{sH}, 64
  s_cmp_eq_u32 s{sWv_}, 2
  s_cselect_b32 s{sJ}, s{sT0}, s{sJ}
  s_cmp_lt_u32 s{sWv_}, 2
  s_cselect_b32 s{sIsRed}, 1, 0
  s_cmp_eq_u32 s{sWv_}, 2
  s_cselect_b32 s{sT0}, 1, 0
  s_cmp_lt_u32 s{sH}, 8
  s_cselect_b32 s{sT1}, 1, 0
  s_and_b32 s{sT0}, s{sT0}, s{sT1}
  s_or_b32 s{sIsRed}, s{sIsRed}, s{sT0}
  s_cmp_eq_u32 s{sIsRed}, 0
  s_cselect_b32 s{sJ}, 0, s{sJ}
  ; unit j=(pi=j/4, g4=j%4): H1 offset of its 128B segment
  s_lshr_b32 s{sT0}, s{sJ}, 2            ; pi
  s_and_b32 s{sT1}, s{sJ}, 3             ; g4
  s_cmp_gt_u32 s{sT0}, 13
  s_cselect_b32 s{sT2}, 2, 0
  s_cmp_gt_u32 s{sT0}, 4
  s_cselect_b32 s{sT3}, 1, 0
  s_cmp_gt_u32 s{sT0}, 13
  s_cselect_b32 s{sT3}, 2, s{sT3}
  s_sub_u32 s{sT2}, s{sT0}, s{sT3}
  s_lshr_b32 s{sT3}, s{sT2}, 1
  s_lshl_b32 s{sT3}, s{sT3}, 10          ; (q/2)*1024
  s_and_b32 s{sT2}, s{sT2}, 1
  s_lshl_b32 s{sT2}, s{sT2}, 7           ; (q%2)*128
  s_add_u32 s{sT3}, s{sT3}, s{sT2}
  s_cmp_eq_u32 s{sT0}, 4
  s_cselect_b32 s{sT3}, 8192, s{sT3}
  s_cmp_eq_u32 s{sT0}, 13
  s_cselect_b32 s{sT3}, 9216, s{sT3}
  s_lshl_b32 s{sT1}, s{sT1}, 8
  s_add_u32 s{sT0}, s{sT3}, s{sT1}       ; + g4*256
  s_lshr_b32 s{sT1}, s{sJ}, 2
  s_cmp_eq_u32 s{sT1}, 4
  s_cselect_b32 s{sT2}, 2, s{sIsRed}
  s_cmp_eq_u32 s{sT1}, 13
  s_cselect_b32 s{sT2}, 2, s{sT2}
  s_cmp_eq_u32 s{sIsRed}, 0
  s_cselect_b32 s{sIsRed}, 0, s{sT2}
  v_lshl_add_u32 v40, v34, 2, v32
  v_mul_u32_u24 v40, {H1_PROD}, v40
  v_lshl_add_u32 v40, v33, 4, v40
  v_add_u32 v{vR}, s{sT0}, v40
  s_cmp_eq_u32 s{sIsRed}, 0
  s_cselect_b32 s{sT1}, 0x80000000, 0
  s_cselect_b32 s{sUnit}, 0x80000000, s{sT0}
  v_lshlrev_b32 v40, 4, v33
  v_lshl_add_u32 v40, v32, 3, v40
  s_lshl_b32 s{sT0}, s{sJ}, 7
  v_add_u32 v40, s{sT0}, v40
  v_and_b32 v41, 40, v30
  v_cmp_eq_u32 vcc, 0, v41
  s_nop 1
  v_cndmask_b32 v{vP}, v37, v40, vcc
  v_or_b32 v{vP}, s{sT1}, v{vP}
  s_mov_b64 s[{sMaskMw}:{sMaskMw+1}], vcc     ; lanes u==0,g<2
  ; Sel: e = c - 4*(g%2)
  v_lshlrev_b32 v40, 2, v35
  v_sub_u32 v40, v31, v40
  v_mov_b32 v41, 0x3f80
  v_mov_b32 v42, 0x3f800000
  v_mov_b32 v{vSel}, 0
  v_mov_b32 v{vSel+1}, 0
  v_cmp_eq_u32 vcc, 0, v40
  s_nop 1
  v_cndmask_b32 v{vSel}, v{vSel}, v41, vcc
  v_cmp_eq_u32 vcc, 1, v40
  s_nop 1
  v_cndmask_b32 v{vSel}, v{vSel}, v42, vcc
  v_cmp_eq_u32 vcc, 2, v40
  s_nop 1
  v_cndmask_b32 v{vSel+1}, v{vSel+1}, v41, vcc
  v_cmp_eq_u32 vcc, 3, v40
  s_nop 1
  v_cndmask_b32 v{vSel+1}, v{vSel+1}, v42, vcc""")
    for r in range(4):
        o(f"""  v_mov_b32 v{vSelR+r}, 0
  v_cmp_eq_u32 vcc, {2*r}, v31
  s_nop 1
  v_cndmask_b32 v{vSelR+r}, v{vSelR+r}, v41, vcc
  v_cmp_eq_u32 vcc, {2*r+1}, v31
  s_nop 1
  v_cndmask_b32 v{vSelR+r}, v{vSelR+r}, v42, vcc""")
    o(f"""
  s_lshl_b32 s{sW1024}, s{sWv_}, 10
  s_lshl_b32 s{sH2tch}, s{sH}, 2
  s_add_u32 s{sH2tch}, s{sH2tch}, s{sWv_}
  s_lshl_b32 s{sH2tch}, s{sH2tch}, 6
  s_add_u32 s{sH2tch}, s{sH2tch}, {H2_SLOT}
  s_mov_b32 s{sC}, 0x3e0293ee        ; 128^-0.5 * log2(e) = 0.12751743
  s_add_u32 s{sT0}, s{sWv_}, 1
  s_and_b32 s{sT0}, s{sT0}, 3
  s_lshl_b32 s{sX1}, s{sT0}, 10
  s_add_u32 s{sX1}, s{sX1}, {L_XEX}
  s_add_u32 s{sT0}, s{sWv_}, 2
  s_and_b32 s{sT0}, s{sT0}, 3
  s_lshl_b32 s{sX2}, s{sT0}, 10
  s_add_u32 s{sX2}, s{sX2}, {L_XEX}
  s_add_u32 s{sT0}, s{sWv_}, 3
  s_and_b32 s{sT0}, s{sT0}, 3
  s_lshl_b32 s{sX3}, s{sT0}, 10
  s_add_u32 s{sX3}, s{sX3}, {L_XEX}
  s_lshl_b32 s{sW256}, s{sWv_}, 8
  s_add_u32 s{sW256}, s{sW256}, {L_MEX}
  s_mul_i32 s{sPi0}, s{sWv_}, 9
  s_add_u32 s{sPi0}, s{sPi0}, 1
  s_lshr_b32 s{sPi0}, s{sPi0}, 1
  s_lshr_b32 s{sPih}, s{sWv_}, 1
  s_mul_i32 s{sPih}, s{sPih}, 9
  s_add_u32 s{sPih}, s{sPih}, 4
""")

def emit_weights(o, hook=None, hook_at=28):
    o.c("---- weight prologue")
    vLdW, vLdO, vLdOh, vScr, vT, vT2, vT2h, vF1, vF2 = 30, 31, 32, 33, 34, 35, 36, 37, 38
    TMP = 40
    o(f"""
  v_lshrrev_b32 v46, 4, v{vA}        ; lane
  v_lshrrev_b32 v45, 2, v46          ; l/4
  v_and_b32 v44, 3, v46              ; l%4
  v_lshlrev_b32 v{vLdW}, 13, v45
  v_lshl_add_u32 v{vLdW}, v44, 4, v{vLdW}      ; (l/4)*8192 + (l%4)*16
  v_mul_u32_u24 v{vLdOh}, 1152, v45
  v_lshl_add_u32 v{vLdOh}, v44, 4, v{vLdOh}    ; (l/4)*1152 + (l%4)*16
  v_lshrrev_b32 v43, 3, v46          ; l/8
  v_and_b32 v42, 7, v46
  v_mul_u32_u24 v{vLdO}, 1152, v43
  v_lshl_add_u32 v{vLdO}, v42, 4, v{vLdO}      ; (l/8)*1152 + (l%8)*16
  s_lshl_b32 s{sT0}, s{sWv_}, 12
  v_add_u32 v{vScr}, s{sT0}, v{vA}             ; scratch + l*16
  ; tr lane decomposition: gb=l/16, r'=(l%16)/4, c'=l%4
  v_lshrrev_b32 v43, 4, v46          ; gb
  v_bfe_u32 v42, v46, 2, 2           ; r'
  ; row = 16*(gb/2) + 4*(gb%2) + 8*(r'/2) + r'%2
  v_lshrrev_b32 v41, 1, v43
  v_lshlrev_b32 v41, 4, v41
  v_and_b32 v40, 1, v43
  v_lshl_add_u32 v41, v40, 2, v41
  v_lshrrev_b32 v40, 1, v42
  v_lshl_add_u32 v41, v40, 3, v41
  v_and_b32 v40, 1, v42
  v_add_u32 v41, v41, v40
  v_lshlrev_b32 v{vT}, 6, v41
  v_lshl_add_u32 v{vT}, v44, 3, v{vT}
  v_add_u32 v{vT}, s{sT0}, v{vT}
  v_lshl_add_u32 v41, v43, 3, v42
  v_lshlrev_b32 v{vT2}, 7, v41
  v_lshl_add_u32 v{vT2}, v44, 4, v{vT2}
  v_add_u32 v{vT2}, s{sT0}, v{vT2}
  v_lshlrev_b32 v{vT2h}, 6, v41
  v_lshl_add_u32 v{vT2h}, v44, 4, v{vT2h}
  v_add_u32 v{vT2h}, s{sT0}, v{vT2h}
  s_and_b32 s{sT1}, s{sWv_}, 1
  s_lshl_b32 s{sT1}, s{sT1}, 3
  v_add_u32 v{vT2h}, s{sT1}, v{vT2h}
  v_add_u32 v{vF1}, 0x10000, v{vXw}
  v_add_u32 v{vF2}, 0x20000, v{vXw}
""")
    def ldsaddr(f):
        b, imm = lds_frag_addr(f)
        return (vXw, vF1, vF2)[b], imm
    chunks = []
    for c in range(9): chunks.append(('q', c))
    for c in range(9): chunks.append(('k', c))
    for kap in range(4):
        chunks += [('o', kap, 0), ('o', kap, 1), ('oh', kap)]
    for c in range(9): chunks.append(('v', c))
    def dests(ch):
        if ch[0] == 'q': return [frag_q(0, ch[1]), frag_q(1, ch[1])]
        if ch[0] == 'k': return [frag_k(0, ch[1]), frag_k(1, ch[1])]
        if ch[0] == 'v': return [frag_v(0, ch[1]), frag_v(1, ch[1])]
        if ch[0] == 'o': return [frag_o(4*ch[2]+i, ch[1]) for i in range(4)]
        return [frag_o(8, ch[1])]
    def dest_vregs(ch):
        n = 8 if ch[0] in 'qkv' else 4
        r = set()
        for d in dests(ch):
            if d[0] == 'v': r |= set(range(d[1], d[1]+n))
        return r
    bufs = [48, 64] + list(range(80, 256, 16))
    n = len(chunks)
    MAXIN = 10
    used_final = set()
    assign = {}
    inflight = []
    nxt = 0
    sched = []
    final_before = []
    acc = set()
    for m in range(n):
        final_before.append(set(acc))
        acc |= dest_vregs(chunks[m])
    proc = 0
    busy = {}
    while proc < n:
        while nxt < n and len(inflight) < MAXIN:
            cand = None
            for b in bufs:
                if b in busy: continue
                rs = set(range(b, b+16))
                if rs & final_before[nxt]: continue
                cand = b; break
            if cand is None: break
            busy[cand] = nxt; assign[nxt] = cand; inflight.append(nxt); sched.append(('issue', nxt)); nxt += 1
        sched.append(('proc', proc))
        if proc >= 1: del busy[assign[proc-1]]
        inflight.remove(proc)
        proc += 1
    def nloads(ch): return 2 if ch[0] == 'oh' else 4
    srd_cur = None
    ptr = {'q': 50, 'k': 52, 'v': 54, 'o': 56, 'oh': 56}
    srd = {'q': 64, 'k': 68, 'v': 72, 'o': 76, 'oh': 76}
    for k_, p in (('q', 50), ('k', 52), ('v', 54), ('o', 56)):
        o(f"""  s_mov_b32 s{srd[k_]}, s{p}
  s_and_b32 s{srd[k_]+1}, s{p+1}, 0xffff
  s_mov_b32 s{srd[k_]+2}, 4718592
  s_mov_b32 s{srd[k_]+3}, 0x20000""")
    o(f"""  s_lshl_b32 s80, s{sH}, 8
  s_lshl_b32 s81, s{sWv_}, 6
  s_add_u32 s80, s80, s81            ; h*256 + w*64
  s_mul_i32 s82, s{sH}, {128*1152}
  s_lshl_b32 s83, s{sPi0}, 6
  s_add_u32 s83, s83, s82
  s_lshl_b32 s84, s{sPih}, 6
  s_add_u32 s84, s84, s82""")
    outstanding = []
    for kind, m in sched:
        ch = chunks[m]; b = assign[m]
        if kind == 'issue':
            if ch[0] in 'qkv':
                for i in range(4):
                    o(f"  s_add_u32 s85, s80, {(64*ch[1] + 16*i)*8192}")
                    o(f"  buffer_load_dwordx4 {v(b+4*i,4)}, v{vLdW}, s[{srd[ch[0]]}:{srd[ch[0]]+3}], s85 offen")
            elif ch[0] == 'o':
                for i in range(4):
                    o(f"  s_add_u32 s85, s83, {(32*ch[1] + 8*i)*1152 + ch[2]*128}")
                    o(f"  buffer_load_dwordx4 {v(b+4*i,4)}, v{vLdO}, s[76:79], s85 offen")
            else:
                for i in range(2):
                    o(f"  s_add_u32 s85, s84, {(32*ch[1] + 16*i)*1152}")
                    o(f"  buffer_load_dwordx4 {v(b+4*i,4)}, v{vLdOh}, s[76:79], s85 offen")
            outstanding.append(m)
        else:
            if hook and m == hook_at: hook()
            idx = outstanding.index(m)
            later = sum(nloads(chunks[x]) for x in outstanding[idx+1:])
            o(f"  s_waitcnt vmcnt({min(later,63)})")
            outstanding = outstanding[idx+1:]
            o("  s_waitcnt lgkmcnt(0)")
            for i in range(nloads(ch)):
                o(f"  ds_write_b128 v{vScr}, {v(b+4*i,4)} offset:{1024*i}")
            if ch[0] in 'qkv':
                for tau, d in enumerate(dests(ch)):
                    assert d[0] != 'lds'
                    for r_, off in ((0, 0), (2, 128), (4, 2048), (6, 2176)):
                        o(f"  ds_read_b64_tr_b16 {reg((d[0], d[1]+r_), 2)}, v{vT} offset:{off + 32*tau}")
            elif ch[0] == 'o':
                for i, d in enumerate(dests(ch)):
                    pim, x = i // 2, i % 2
                    o(f"  ds_read_b64_tr_b16 {v(b+4*i,2)}, v{vT2} offset:{64*pim + 8*x}")
                    o(f"  ds_read_b64_tr_b16 {v(b+4*i+2,2)}, v{vT2} offset:{512 + 64*pim + 8*x}")
                o("  s_waitcnt lgkmcnt(0)")
                for i, d in enumerate(dests(ch)):
                    ar, imm = ldsaddr(d[1])
                    o(f"  ds_write_b128 v{ar}, {v(b+4*i,4)} offset:{imm}")
            else:
                d = dests(ch)[0]
                o(f"  ds_read_b64_tr_b16 {v(b,2)}, v{vT2h} offset:0")
                o(f"  ds_read_b64_tr_b16 {v(b+2,2)}, v{vT2h} offset:256")
                o("  s_waitcnt lgkmcnt(0)")
                ar, imm = ldsaddr(d[1])
                o(f"  ds_write_b128 v{ar}, {v(b,4)} offset:{imm}")
    o("  s_waitcnt lgkmcnt(0)")


Q0, Q1, K0, K1, V0, V1 = 30, 34, 38, 42, 46, 50
W = [54, 58, 62]
T, U, QS = 66, 70, 74

class Cnt:
    def __init__(self, o, name, maxv):
        self.o, self.name, self.maxv, self.q = o, name, maxv, []
    def issue(self, tag):
        self.q.append(tag)
        assert len(self.q) <= self.maxv + 1, (self.name, self.q)
    def wait(self, tag):
        if tag not in self.q: return
        i = len(self.q) - 1 - self.q[::-1].index(tag)
        n = len(self.q) - 1 - i
        self.o(f"  s_waitcnt {self.name}cnt({n})")
        self.q = self.q[i+1:]
    def waitall(self):
        self.o(f"  s_waitcnt {self.name}cnt(0)")
        self.q = []

def smf(o, d, aop, b):
    o(f"  v_smfmac_f32_16x16x64_bf16 {v(d,4)}, {v(aop,4)}, {reg(b,8)}, v{vIdx}")


POLL_LIMIT = 1 << 20
PUBF = 'sc1'
PUBK = 'sc1'
PUBV = 'sc1'
KVF = ''
TCHF = ''
DUALF = True
DUALA = False
FSTAG = 16
ASTAG = 16
KVPOS = 'qk'
KVCNT = None
TOUCH = True
RESETW = False
vDummy = 79

def emit_loop(o, L, stf, timing=False, fdelay=0, adelay=0):
    WSr = f"s[{sWS}:{sWS+3}]"
    lg = Cnt(o, "lgkm", 15)
    def dsr(dst, ar, off, tag):
        o(f"  ds_read_b128 {v(dst,4)}, v{ar} offset:{off}")
        lg.issue(tag)
    def stamp(k):
        if timing:
            o(f"  s_memtime s[{86+2*k}:{87+2*k}]")
    T, U, QS, MW = 66, 70, 74, 78
    o(f"{L}_loop:")
    for wv in range(3):
        o(f"  s_cmp_eq_u32 s{sWv_}, {wv}\n  s_cbranch_scc1 {L}_qv{wv}")
    o(f"  s_branch {L}_qv3")
    side = []
    if KVPOS == 'qk': side += [f"  s_add_u32 s{sT1}, s{sKoff}, {VBUF-KBUF}",
             f"  buffer_load_dwordx4 {v(vKx,4)}, v{vA}, {WSr}, s{sKoff} offen {KVF}", None,
             f"  buffer_load_dwordx4 {v(vKx+4,4)}, v{vA}, {WSr}, s{sKoff} offen offset:1024 {KVF}", None, None,
             f"  buffer_load_dwordx4 {v(vVx,4)}, v{vA}, {WSr}, s{sT1} offen {KVF}", None, None,
             f"  buffer_load_dwordx4 {v(vVx+4,4)}, v{vA}, {WSr}, s{sT1} offen offset:1024 {KVF}", None]
    if KVCNT is not None:
        side += [f"  v_readfirstlane_b32 s{sT0}, v{vDummy}",
                 f"  s_cmp_ge_u32 s{sT0}, 128\n  s_cbranch_scc1 {{LP}}_kv\n"
                 f"  s_add_u32 s{sT0}, s{sStep}, 1\n  s_min_u32 s{sT0}, s{sT0}, 63\n  s_lshr_b32 s{sT0}, s{sT0}, 2\n  s_lshl_b32 s{sT0}, s{sT0}, 7\n  s_add_u32 s{sT0}, s{sT0}, {KVCNT}\n"
                 f"  v_mov_b32 v72, s{sT0}\n{{LP}}_kvp:\n  buffer_load_dword v73, v72, {WSr}, 0 offen sc1\n  s_waitcnt vmcnt(0)\n  v_readfirstlane_b32 s{sT0}, v73\n  s_add_u32 s{sPoll}, s{sPoll}, 1\n  s_cmp_gt_u32 s{sPoll}, {POLL_LIMIT}\n  s_cbranch_scc1 {L}_bail\n  s_cmp_ge_u32 s{sT0}, 128\n  s_cbranch_scc0 {{LP}}_kvp\n{{LP}}_kv:"]
    side += [f"  v_bfe_u32 v72, v{vA}, 4, 5", f"  v_lshlrev_b32 v72, 6, v72", f"  v_lshrrev_b32 v73, 9, v{vA}", f"  v_lshl_add_u32 v72, v73, 24, v72",
             f"  s_add_u32 s{sKoff}, s{sKoff}, {32*8192}", f"  buffer_load_dword v{vDummy}, v72, {WSr}, s{sKoff} offen {TCHF}"]
    side += [f"  v_bfe_u32 v73, v{vA}, 4, 5", f"  v_mul_u32_u24 v73, {H1_PROD}, v73", f"  v_lshrrev_b32 v72, 9, v{vA}", f"  v_lshl_add_u32 v73, v72, 6, v73", f"  v_add_u32 v73, s{sUnit}, v73",
             f"  s_add_u32 s{sT0}, s{sH1ld}, {H1_SLOT}", f"  buffer_load_dword v{vDummy}, v73, {WSr}, s{sT0} offen {TCHF}",
             f"  s_add_u32 s{sT0}, s{sH2pub}, s{sH2tch}", f"  v_lshlrev_b32 v72, 9, v{vA}", f"  s_mov_b64 exec, 3\n  buffer_load_dword v{vDummy}, v72, {WSr}, s{sT0} offen {TCHF}\n  s_mov_b64 exec, -1"]
    if KVCNT is not None:
        side += [f"  s_add_u32 s{sT0}, s{sStep}, 2\n  s_min_u32 s{sT0}, s{sT0}, 63\n  s_lshr_b32 s{sT0}, s{sT0}, 2\n  s_lshl_b32 s{sT0}, s{sT0}, 7",
                 f"  s_add_u32 s{sT0}, s{sT0}, {KVCNT}\n  v_mov_b32 v72, s{sT0}", f"  buffer_load_dword v{vDummy}, v72, {WSr}, 0 offen sc1"]
    side += [f"  v_mov_b32 v70, s{sStep}", f"  v_mov_b32 v71, s{sFlagOff}", f"  s_mov_b64 exec, 1\n  buffer_store_dword v70, v71, {WSr}, 0 offen {PUBF}\n  s_mov_b64 exec, -1"]
    side += [f"  v_add_u32 v{MW}, s{sW256}, v{vM}", f"  v_cndmask_b32 v{MW}, -16, v{MW}, s[{sMaskMw}:{sMaskMw+1}]"]
    NV_AFTER_KV = 4 + (1 if KVCNT is not None else 0)
    side_all = list(side)
    o.c("QK phase: own (register-resident) chunks first, the rest through LDS")
    for wv in range(4):
        o(f"{L}_av{wv}:")
        S1 = [58, 62, 66][:(3 if wv == 0 else 2)]
        offs = [sH2pl, sT1, sT2]
        if timing: o("  s_add_u32 s81, s81, 1\n  s_memtime s[68:69]")
        for r_, so in zip(S1, offs):
            o(f"  buffer_load_dwordx4 {v(r_,4)}, v{vA}, {WSr}, s{so} offen sc1")
        o(f"  s_add_u32 s{sPoll}, s{sPoll}, 1")
        o(f"  s_cmp_gt_u32 s{sPoll}, {POLL_LIMIT}")
        o(f"  s_cbranch_scc1 {L}_bail")
        o(f"  s_waitcnt vmcnt(0)")
        if timing: o("  s_memtime s[70:71]")
        o(f"  v_max3_u32 v78, v58, v60, v62")
        if wv == 0:
            o(f"  v_max3_u32 v78, v78, v64, v66\n  v_max_u32 v78, v78, v68")
        else:
            o(f"  v_max_u32 v78, v78, v64")
        o(f"  v_cmp_eq_u32 vcc, -1, v78")
        o(f"  s_cbranch_vccnz {L}_av{wv}")
        o(f"  ds_write_b128 v{vXw}, {v(58,4)} offset:{L_MEM}")
        o(f"  ds_write_b128 v{vXw}, {v(62,4)} offset:{L_MEM+4096}")
        if wv == 0: o(f"  ds_write_b128 v{vA}, {v(66,4)} offset:{L_MEM+8192}")
        o(f"{L}_qv{wv}:")
        if timing: o("  s_memtime s[72:73]")
        stamp(0)
        side = list(side_all)
        def pop(n):
            for _ in range(n):
                if side:
                    x = side.pop(0)
                    if x: o(x.replace("{LP}", f"{L}w{wv}"))
        lgq = Cnt(o, "lgkm", 15)
        def dsq(dst, off, tag):
            o(f"  ds_read_b128 {v(dst,4)}, v{vA} offset:{off}"); lgq.issue(tag)
        def qk(c, a_, np_=(1,1,1,1)):
            smf(o, Q0, a_, frag_q(0, c)); pop(np_[0])
            smf(o, Q1, a_, frag_q(1, c)); pop(np_[1])
            smf(o, K0, a_, frag_k(0, c)); pop(np_[2])
            smf(o, K1, a_, frag_k(1, c))
        own = [wv, wv+4] + ([8] if wv == 0 else [])
        rest = [c for c in range(9) if c not in own]
        qk(own[0], W[1])
        o("  s_waitcnt lgkmcnt(0)\n  s_barrier")
        dsq(W[0], L_MEM + 1024*rest[0], "r0"); dsq(W[1], L_MEM + 1024*rest[1], "r1")
        qk(own[1], W[2])
        dsq(W[2], L_MEM + 1024*rest[2], "r2")
        if wv == 0: qk(8, 66)
        for k, c in enumerate(rest):
            lgq.wait(f"r{k}")
            last = (k == len(rest)-1)
            qk(c, W[k % 3], (1, 2 if k >= len(rest)-3 else 1, 0 if last else 1, 0))
            if k + 3 < len(rest): dsq(W[k % 3], L_MEM + 1024*rest[k+3], f"r{k+3}")
            if not last: pop(1)
        while side: pop(1)
        free_order = [(len(rest)-3+i_) % 3 for i_ in range(3)]
        assert sorted(free_order) == [0, 1, 2]
        for sl in range(3):
            o(f"  ds_read_b128 {v(W[sl],4)}, v{vA} offset:{L_MEM + 1024*(6+sl)}")
        if wv < 3:
            o(f"  s_branch {L}_qkd")
    o(f"{L}_qkd:")
    lg.issue("V6"); lg.issue("V7"); lg.issue("V8")
    stamp(1)
    o.c("transpose q,k")
    def vpass(c, slot):
        smf(o, V0, W[slot], frag_v(0, c)); smf(o, V1, W[slot], frag_v(1, c))
    o(f"  v_cvt_pk_bf16_f32 v{T}, v{Q0}, v{Q0+1}")
    o(f"  v_cvt_pk_bf16_f32 v{T+1}, v{Q0+2}, v{Q0+3}")
    o(f"  v_cvt_pk_bf16_f32 v{T+2}, v{Q1}, v{Q1+1}")
    o(f"  v_cvt_pk_bf16_f32 v{T+3}, v{Q1+2}, v{Q1+3}")
    nop(o, 2)
    o(f"  v_cvt_pk_bf16_f32 v{U}, v{K0}, v{K0+1}")
    o(f"  v_mfma_f32_16x16x16_bf16 {v(Q0,4)}, {v(T,2)}, {v(vSel,2)}, 0")
    o(f"  v_cvt_pk_bf16_f32 v{U+1}, v{K0+2}, v{K0+3}")
    o(f"  v_cvt_pk_bf16_f32 v{U+2}, v{K1}, v{K1+1}")
    o(f"  v_mfma_f32_16x16x16_bf16 {v(Q1,4)}, {v(T+2,2)}, {v(vSel,2)}, 0")
    o(f"  v_cvt_pk_bf16_f32 v{U+3}, v{K1+2}, v{K1+3}")
    nop(o, 1)
    o(f"  v_mfma_f32_16x16x16_bf16 {v(K0,4)}, {v(U,2)}, {v(vSel,2)}, 0")
    o(f"  v_mfma_f32_16x16x16_bf16 {v(K1,4)}, {v(U+2,2)}, {v(vSel,2)}, 0")
    lg.wait("V6")
    smf(o, V0, W[0], frag_v(0, 6))
    o(f"  v_cvt_pk_bf16_f32 v{T}, v{Q0}, v{Q0+1}")
    o(f"  v_cvt_pk_bf16_f32 v{T+1}, v{Q0+2}, v{Q0+3}")
    o(f"  v_cvt_pk_bf16_f32 v{T+2}, v{Q1}, v{Q1+1}")
    o(f"  v_cvt_pk_bf16_f32 v{T+3}, v{Q1+2}, v{Q1+3}")
    smf(o, V1, W[0], frag_v(1, 6))
    dsr(W[0], vA, L_MEM, "B0")
    for i in range(4):
        o(f"  v_mov_b32_dpp v{QS+i}, v{T+i} row_ror:8 row_mask:0xf bank_mask:0xf")
    o(f"  s_waitcnt vmcnt({NV_AFTER_KV})")
    o(f"  v_mfma_f32_16x16x32_bf16 {v(Q0,4)}, {v(vKx,4)}, {v(T,4)}, 0")
    o(f"  v_cvt_pk_bf16_f32 v{U}, v{K0}, v{K0+1}")
    o(f"  v_cvt_pk_bf16_f32 v{U+1}, v{K0+2}, v{K0+3}")
    o(f"  v_mfma_f32_16x16x32_bf16 {v(Q0,4)}, {v(vKx+4,4)}, {v(QS,4)}, {v(Q0,4)}")
    o(f"  v_cvt_pk_bf16_f32 v{U+2}, v{K1}, v{K1+1}")
    o(f"  v_cvt_pk_bf16_f32 v{U+3}, v{K1+2}, v{K1+3}")
    nop(o, 2)
    o(f"  v_mfma_f32_16x16x32_bf16 {v(Q1,4)}, {v(U,4)}, {v(T,4)}, 0")
    lg.wait("V7")
    vpass(7, 1)
    dsr(W[1], vA, L_MEM + 1024, "B1")
    o(f"  ds_write_b128 v{vXw}, {v(Q0,4)} offset:{L_XEX}"); lg.issue("Xw")
    o(f"  ds_write_b128 v{MW}, {v(Q1,4)}"); lg.issue("Mw")
    o(f"  buffer_store_dwordx4 {v(U,4)}, v{vH1}, {WSr}, s{sKm} offen {PUBK}")
    lg.wait("V8")
    vpass(8, 2)
    dsr(W[2], vA, L_MEM + 2048, "B2")
    lg.wait("B0")
    vpass(0, 0)
    dsr(W[0], vA, L_MEM + 3072, "B3")
    lg.wait("Mw")
    o("  s_barrier")
    stamp(2)
    o.c("exchange reads")
    XP = [Q0, vKx, vKx+4, 74]
    MP = [Q1, 66, 42, 38]
    for k in range(4):
        dsr(XP[k], vA, L_XEX + 1024*k, f"XP{k}")
    for k in range(4):
        dsr(MP[k], vM, L_MEX + 256*k, f"MP{k}")
    lg.wait("B1")
    vpass(1, 1)
    dsr(W[1], vA, L_MEM + 4096, "B4")
    lg.wait("B2")
    vpass(2, 2)
    dsr(W[2], vA, L_MEM + 5120, "B5")
    lg.wait("B3")
    vpass(3, 0)
    lg.wait("XP3")
    for k in range(1, 4):
        o(f"  v_pk_add_f32 {v(Q0,2)}, {v(Q0,2)}, {v(XP[k],2)}")
        o(f"  v_pk_add_f32 {v(Q0+2,2)}, {v(Q0+2,2)}, {v(XP[k]+2,2)}")
    lg.wait("MP3")
    for k in range(1, 4):
        o(f"  v_pk_add_f32 {v(Q1,2)}, {v(Q1,2)}, {v(MP[k],2)}")
        o(f"  v_pk_add_f32 {v(Q1+2,2)}, {v(Q1+2,2)}, {v(MP[k]+2,2)}")
    WIN = [14, 18, 22, 26, 38, 42, 66, 70]
    lds_list = [(tl, kap, frag_o(tl, kap)[1]) for tl in range(9) for kap in range(4)]
    slot_of = {}
    st = dict(issued=0)
    BASE = (vXw, 78, 78)
    def issue_frag():
        n = st['issued']
        if n >= len(lds_list): return
        tl, kap, f = lds_list[n]
        sl = WIN[n % len(WIN)]
        b, imm = lds_frag_addr(f)
        if b == 2 and lds_frag_addr(f-1)[0] == 1:
            o(f"  v_add_u32 v78, 0x10000, v78")
        dsr(sl, BASE[b], imm, f"wo{n}")
        slot_of[(tl, kap)] = (sl, n)
        st['issued'] = n + 1
    o.c("softmax")
    MX, TM = 78, 42
    o(f"  v_max3_f32 v{MX}, v{Q0}, v{Q0+1}, v{Q0+2}")
    o(f"  v_max3_f32 v{TM}, v{Q0+3}, v{Q1}, v{Q1+1}")
    o(f"  v_max3_f32 v{MX}, v{MX}, v{Q1+2}, v{Q1+3}")
    o(f"  v_max_f32 v{MX}, v{MX}, v{TM}")
    lg.wait("B4")
    smf(o, V0, W[1], frag_v(0, 4))
    issue_frag()
    o(f"  v_max_f32_dpp v{MX}, v{MX}, v{MX} row_ror:8 row_mask:0xf bank_mask:0xf")
    smf(o, V1, W[1], frag_v(1, 4))
    o(f"  v_mov_b32 v{TM}, v{MX}")
    issue_frag()
    lg.wait("B5")
    smf(o, V0, W[2], frag_v(0, 5))
    o(f"  v_permlane16_swap_b32 v{MX}, v{TM}")
    o(f"  v_max_f32 v{MX}, v{MX}, v{TM}")
    o(f"  v_mov_b32 v{TM}, v{MX}")
    smf(o, V1, W[2], frag_v(1, 5))
    nop(o, 1)
    o(f"  v_permlane32_swap_b32 v{MX}, v{TM}")
    o(f"  v_max_f32 v{MX}, v{MX}, v{TM}")
    o(f"  v_mul_f32 v{MX}, s{sC}, v{MX}")
    for i in range(8):
        o(f"  v_fma_f32 v{Q0+i}, v{Q0+i}, s{sC}, -v{MX}")
    PX, PXs, PM, LA, LB, VP = 74, 76, 70, 72, 73, 66
    for i in range(8):
        o(f"  v_exp_f32 v{Q0+i}, v{Q0+i}")
    D0, D1 = 38, 42
    O0 = 70
    o.c("PV with the l-sum chain interleaved")
    o(f"  v_cvt_pk_bf16_f32 v{PX}, v{Q0}, v{Q0+1}")
    o(f"  v_cvt_pk_bf16_f32 v{PX+1}, v{Q0+2}, v{Q0+3}")
    o(f"  v_cvt_pk_bf16_f32 v{PM}, v{Q1}, v{Q1+1}")
    o(f"  v_cvt_pk_bf16_f32 v{PM+1}, v{Q1+2}, v{Q1+3}")
    o(f"  v_pk_add_f32 {v(LA,2)}, {v(Q0,2)}, {v(Q0+2,2)}")
    o(f"  v_pk_add_f32 {v(Q1,2)}, {v(Q1,2)}, {v(Q1+2,2)}")
    o(f"  v_mov_b32_dpp v{PXs}, v{PX} row_ror:8 row_mask:0xf bank_mask:0xf")
    o(f"  v_mov_b32_dpp v{PXs+1}, v{PX+1} row_ror:8 row_mask:0xf bank_mask:0xf")
    o(f"  v_add_f32 v{LA}, v{LA}, v{LB}")
    o(f"  v_add_f32 v{LB}, v{Q1}, v{Q1+1}")
    o(f"  v_mfma_f32_16x16x32_bf16 {v(D0,4)}, {v(vVx,4)}, {v(PX,4)}, 0")
    o(f"  v_fmamk_f32 v{LA}, v{LB}, 0x3e800000, v{LA}")
    o(f"  v_cvt_pk_bf16_f32 v{VP}, v{V0}, v{V0+1}")
    o(f"  v_mfma_f32_16x16x32_bf16 {v(D1,4)}, {v(vVx+4,4)}, {v(PX,4)}, 0")
    o(f"  v_cvt_pk_bf16_f32 v{VP+1}, v{V0+2}, v{V0+3}")
    o(f"  v_add_f32_dpp v{LA}, v{LA}, v{LA} row_ror:8 row_mask:0xf bank_mask:0xf")
    o(f"  v_mov_b32 v{LB}, v{LA}")
    o(f"  v_cvt_pk_bf16_f32 v{VP+2}, v{V1}, v{V1+1}")
    o(f"  v_mfma_f32_16x16x16_bf16 {v(D0,4)}, {v(VP,2)}, {v(PM,2)}, {v(D0,4)}")
    o(f"  v_cvt_pk_bf16_f32 v{VP+3}, v{V1+2}, v{V1+3}")
    o(f"  v_permlane16_swap_b32 v{LA}, v{LB}")
    o(f"  v_add_f32 v{LA}, v{LA}, v{LB}")
    o(f"  v_mov_b32 v{LB}, v{LA}")
    o(f"  v_mfma_f32_16x16x16_bf16 {v(D1,4)}, {v(VP+2,2)}, {v(PM,2)}, {v(D1,4)}")
    o(f"  s_add_u32 s{sVm}, s{sKm}, {VM-KM}")
    o(f"  s_cmp_eq_u32 s{sStep}, 63")
    o(f"  s_cbranch_scc1 {L}_done")
    o(f"  v_permlane32_swap_b32 v{LA}, v{LB}")
    o(f"  v_add_f32 v{LA}, v{LA}, v{LB}")
    o(f"  v_rcp_f32 v78, v{LA}")
    issue_frag()
    issue_frag()
    for i in range(0, 8, 2):
        o(f"  v_pk_mul_f32 {v(D0+i,2)}, {v(D0+i,2)}, {v(78,2)} op_sel_hi:[1,0]")
    o(f"  v_cvt_pk_bf16_f32 v{O0}, v{D0}, v{D0+1}")
    o(f"  v_cvt_pk_bf16_f32 v{O0+1}, v{D0+2}, v{D0+3}")
    o(f"  ds_write_b64 v{vOw}, {v(O0,2)}"); lg.issue("Ow0")
    o(f"  v_cvt_pk_bf16_f32 v{O0+2}, v{D1}, v{D1+1}")
    o(f"  v_cvt_pk_bf16_f32 v{O0+3}, v{D1+2}, v{D1+3}")
    o(f"  ds_write_b64 v{vOw}, {v(O0+2,2)} offset:512"); lg.issue("Ow1")
    o(f"  v_add_u32 v78, 0x10000, v{vXw}")
    o(f"  buffer_store_dwordx4 {v(VP,4)}, v{vA}, {WSr}, s{sVm} offen {PUBV}")
    issue_frag(); issue_frag()
    lg.wait("Ow1")
    o("  s_barrier")
    stamp(3)
    o.c("E phase")
    B = [46, 50, 54, 58]
    for k in range(4):
        dsr(B[k], vA, L_OEX + (k//2)*1024 + (k%2)*128, f"ob{k}")
    issue_frag(); issue_frag()
    D = [30, 34]
    PK, PKB = 62, 74
    for tl in range(9):
        post = []
        d = D[tl % 2]
        pend = []
        if tl >= 1:
            prev = tl - 1
            dd = D[prev % 2]; x = prev % 2; p = prev // 2
            pk = PK if p % 2 == 0 else PKB
            pend = [f"  v_cvt_pk_bf16_f32 v{pk+2*x}, v{dd}, v{dd+1}", f"  v_cvt_pk_bf16_f32 v{pk+2*x+1}, v{dd+2}, v{dd+3}"]
            if x == 1 and p % 2 == 1:
                post = [f"  v_mov_b32_dpp v{PK+i}, v{PKB+i} row_ror:8 row_mask:0xf bank_mask:0xc" for i in range(4)]
                post.append(f"  buffer_store_dwordx4 {v(PK,4)}, v{vA}, {WSr}, s{sH1st} offen offset:{1024*(p//2)} {stf}")
            else:
                post = []
        if tl >= 1: lg.wait(f"wo{4*tl+3}")
        for n_ in range(4):
            kap = n_
            if tl == 0: lg.wait(f"ob{kap}")
            sl, n = slot_of[(tl, kap)]
            if tl == 0: lg.wait(f"wo{n}")
            cin = "0" if n_ == 0 else v(d, 4)
            o(f"  v_mfma_f32_16x16x32_bf16 {v(d,4)}, {v(sl,4)}, {v(B[kap],4)}, {cin}")
            issue_frag()
            if n_ == 2 and pend:
                for x_ in pend: o(x_)
                pend = []
            if n_ == 3 and post:
                for x_ in post: o(x_)
                post = []
    for r in range(38, 46): o(f"  v_mov_b32 v{r}, 0")
    d = D[0]
    o(f"  v_cvt_pk_bf16_f32 v{PK}, v{d}, v{d+1}")
    o(f"  v_cvt_pk_bf16_f32 v{PK+1}, v{d+2}, v{d+3}")
    o(f"  buffer_store_dwordx2 {v(PK,2)}, v{vH1}, {WSr}, s{sH1h} offen {stf}")
    assert not lg.q, lg.q
    stamp(4)
    for r in list(range(30, 38)) + list(range(46, 54)): o(f"  v_mov_b32 v{r}, 0")
    nop(o, fdelay)
    o.c("F: reducers")
    vmst = f"  buffer_store_dwordx4 {v(66,4)}, v{vA}, {WSr}, s{sVm} offen {PUBV}"
    o(f"  s_cmp_eq_u32 s{sIsRed}, 0")
    o(f"  s_cbranch_scc1 {L}_nred")
    o(f"  s_add_u32 s{sT1}, s{sH1ld}, {8*H1_PROD}")
    o(f"  s_add_u32 s{sT2}, s{sH1ld}, {16*H1_PROD}")
    o(f"  s_add_u32 s{sT3}, s{sH1ld}, {24*H1_PROD}")
    FS1, FS2 = [54, 58, 62, 74], [14, 18, 22, 26]
    def f_loads(S):
        for k, so in enumerate((sH1ld, sT1, sT2, sT3)):
            o(f"  buffer_load_dwordx4 {v(S[k],4)}, v{vR}, {WSr}, s{so} offen sc1")
    def f_check(S, younger):
        for k in range(4):
            o(f"  s_waitcnt vmcnt({younger+3-k})")
            if timing and k == 3: o("  s_memtime s[66:67]")
            o(f"  v_mfma_f32_16x16x32_bf16 {v(70,4)}, {v(vSelR,4)}, {v(S[k],4)}, {'0' if k == 0 else v(70,4)}")
        nop(o, 8)
        o(f"  v_cmp_u_f32 vcc, v70, v70")
        for i_ in range(4):
            o(f"  v_add_f32_dpp v{70+i_}, v{70+i_}, v{70+i_} row_ror:8 row_mask:0xf bank_mask:0xf")
        o(f"  v_cvt_pk_bf16_f32 v66, v70, v71")
        o(f"  v_cvt_pk_bf16_f32 v67, v72, v73")
    def f_cnt():
        if timing: o("  s_add_u32 s80, s80, 1\n  s_memtime s[64:65]")
        o(f"  s_add_u32 s{sPoll}, s{sPoll}, 1")
        o(f"  s_cmp_gt_u32 s{sPoll}, {POLL_LIMIT}")
        o(f"  s_cbranch_scc1 {L}_bail")
    if timing: o("  s_add_u32 s80, s80, 1\n  s_memtime s[64:65]")
    f_loads(FS1)
    nop(o, FSTAG)
    f_loads(FS2)
    o(f"{L}_ra:")
    f_check(FS1, 4)
    o(f"  s_cbranch_vccz {L}_rok")
    f_loads(FS1); f_cnt()
    f_check(FS2, 4)
    o(f"  s_cbranch_vccz {L}_rok")
    f_loads(FS2); f_cnt()
    o(f"  s_branch {L}_ra")
    o(f"{L}_rok:")
    o(f"  buffer_store_dwordx2 {v(66,2)}, v{vP}, {WSr}, s{sH2pub} offen {stf}")
    o(f"{L}_nred:")
    o(f"{L}_cons:")
    o(f"  s_barrier")
    stamp(5)
    o.c("A: gather mem(s+1); per-step scalar updates double as the publish->visible delay")
    o(f"  s_add_u32 s{sH2pl}, s{sH2pub}, s{sW1024}")
    o(f"  s_add_u32 s{sT1}, s{sH2pl}, 4096")
    o(f"  s_add_u32 s{sT2}, s{sH2pub}, 8192")
    o(f"  s_add_u32 s{sStep}, s{sStep}, 1")
    for x in [f"  s_add_u32 s{sH1ld}, s{sH1ld}, {H1_SLOT}", f"  s_add_u32 s{sKm}, s{sKm}, {32*4096}",
             f"  s_add_u32 s{sH1st}, s{sH1ld}, s{sH1so}", f"  s_add_u32 s{sH1h}, s{sH1ld}, s{sH1ho}",
             f"  s_add_u32 s{sH2pub}, s{sH2pub}, {H2_SLOT}"]:
        o(x)
    nop(o, adelay)
    if timing:
        lab2 = o.label("nort")
        o(f"  s_memrealtime s[82:83]\n  s_memtime s[98:99]\n  s_waitcnt lgkmcnt(0)")
        o(f"  s_lshl_b32 s{sT0}, s{sH}, 2\n  s_add_u32 s{sT0}, s{sT0}, s{sWv_}\n  s_cmp_eq_u32 s{sT0}, 0\n  s_cbranch_scc0 {lab2}")
        o(f"  s_lshl_b32 s{sT0}, s{sStep}, 3\n  s_add_u32 s{sT0}, s{sT0}, {FLAGS + 0x3000}\n  v_mov_b32 v74, s82\n  v_mov_b32 v75, s98\n  v_mov_b32 v76, s{sT0}\n  buffer_store_dwordx2 v[74:75], v76, {WSr}, 0 offen")
        for k_, sr_ in enumerate([86, 88, 90, 92, 94, 96]):
            o(f"  s_lshl_b32 s{sT0}, s{sStep}, 5\n  s_add_u32 s{sT0}, s{sT0}, {FLAGS + 0x70000 + 4*k_}\n  v_mov_b32 v74, s{sr_}\n  v_mov_b32 v76, s{sT0}\n  buffer_store_dword v74, v76, {WSr}, 0 offen")
        o.put(lab2)
        lab = o.label("nost")
        o(f"  s_cmp_eq_u32 s{sStep}, 21")
        o(f"  s_cbranch_scc0 {lab}")
        for k, sr in enumerate([86,88,90,92,94,96,98,64,66,68,70,72]):
            o(f"  v_mov_b32 v74, s{sr}")
            o(f"  s_lshl_b32 s{sT0}, s{sH}, 2\n  s_add_u32 s{sT0}, s{sT0}, s{sWv_}\n  s_lshl_b32 s{sT0}, s{sT0}, 6\n  s_add_u32 s{sT0}, s{sT0}, {FLAGS + 4096 + 4*k}")
            o(f"  v_mov_b32 v75, s{sT0}")
            o(f"  buffer_store_dword v74, v75, {WSr}, 0 offen")
        o.put(lab)
    for wv in range(3):
        o(f"  s_cmp_eq_u32 s{sWv_}, {wv}\n  s_cbranch_scc1 {L}_av{wv}")
    o(f"  s_branch {L}_av3")
    o(f"{L}_bail:")
    o(f"  s_endpgm")
    o(f"{L}_done:")
    o(f"  buffer_store_dwordx4 {v(66,4)}, v{vA}, {WSr}, s{sVm} offen sc1")
    o(f"  s_waitcnt vmcnt(0) lgkmcnt(0)")
    o(f"  s_barrier")
    o(f"  s_cmp_lg_u32 s{sWv_}, 0\n  s_cbranch_scc1 {L}_fin")
    o(f"  v_mov_b32 v78, 64")
    o(f"  v_mov_b32 v77, s{sFlagOff}")
    o(f"  s_mov_b64 exec, 1\n  buffer_store_dword v78, v77, {WSr}, 0 offen sc1\n  s_mov_b64 exec, -1")
    o(f"  s_waitcnt vmcnt(0)")
    o(f"{L}_fin:")

def emit_init(o, L):
    WSr = f"s[{sWS}:{sWS+3}]"
    lab = o.label("noh2")
    o(f"""  s_lshl_b32 s{sT0}, s{sH}, 2
  s_add_u32 s{sT0}, s{sT0}, s{sWv_}
  s_lshl_b32 s{sFlagOff}, s{sH}, 7
  s_add_u32 s{sFlagOff}, s{sFlagOff}, {RFLAG}
  s_cmp_lg_u32 s{sWv_}, 0
  s_cselect_b32 s{sFlagOff}, 0x80000000, s{sFlagOff}
{lab}:""")

def emit_early(o):
    WSr = f"s[{sWS}:{sWS+3}]"
    o(f"""  ; scalar state for step 0
  s_lshl_b32 s{sKoff}, s{sH}, 13
  s_lshl_b32 s{sT1}, s{sWv_}, 11
  s_add_u32 s{sKoff}, s{sKoff}, s{sT1}
  s_lshl_b32 s{sKm}, s{sH}, 12
  s_add_u32 s{sKm}, s{sKm}, s{sW1024}
  s_add_u32 s{sKm}, s{sKm}, {KM}
  s_mov_b32 s{sH1ld}, {H1}
  s_mul_i32 s{sT1}, s{sH}, {H1_PROD}
  s_lshl_b32 s{sT2}, s{sWv_}, 11
  s_add_u32 s{sH1so}, s{sT1}, s{sT2}
  s_lshr_b32 s{sT2}, s{sWv_}, 1
  s_lshl_b32 s{sT2}, s{sT2}, 10
  s_add_u32 s{sH1ho}, s{sT1}, s{sT2}
  s_add_u32 s{sH1ho}, s{sH1ho}, 8192
  s_and_b32 s{sT2}, s{sWv_}, 1
  s_lshl_b32 s{sT2}, s{sT2}, 3
  s_add_u32 s{sH1ho}, s{sH1ho}, s{sT2}
  s_add_u32 s{sH1st}, s{sH1ld}, s{sH1so}
  s_add_u32 s{sH1h}, s{sH1ld}, s{sH1ho}
  s_mov_b32 s{sH2pub}, {H2 + H2_SLOT}
  v_bfe_u32 v47, v{vA}, 4, 5
  v_mul_u32_u24 v47, {H1_PROD}, v47
  v_add_u32 v47, s{sUnit}, v47
  buffer_load_dword v14, v47, {WSr}, s{sH1ld} offen
  s_add_u32 s{sT0}, s{sH2pub}, s{sW1024}
  v_lshlrev_b32 v46, 3, v{vA}
  buffer_load_dword v14, v46, {WSr}, s{sT0} offen
  s_add_u32 s{sT1}, s{sKoff}, {VBUF-KBUF}
  buffer_load_dwordx4 {v(vKx,4)}, v{vA}, {WSr}, s{sKoff} offen
  buffer_load_dwordx4 {v(vKx+4,4)}, v{vA}, {WSr}, s{sKoff} offen offset:1024
  buffer_load_dwordx4 {v(vVx,4)}, v{vA}, {WSr}, s{sT1} offen
  buffer_load_dwordx4 {v(vVx+4,4)}, v{vA}, {WSr}, s{sT1} offen offset:1024
""")

def emit_mem0(o, mid=None):
    WSr = f"s[{sWS}:{sWS+3}]"
    o.c("mem0 -> LDS: piece (j=8c+2g+u, t) = mem0[t][8j..8j+8)")
    o(f"""  s_mov_b32 s64, s48
  s_and_b32 s65, s49, 0xffff
  s_mov_b32 s66, 9216
  s_mov_b32 s67, 0x20000
  v_lshrrev_b32 v62, 4, v{vA}         ; lane
  v_and_b32 v63, 7, v62               ; t
  v_lshrrev_b32 v64, 3, v62           ; 2g+u
  v_mul_u32_u24 v63, 1152, v63
  v_lshl_add_u32 v63, v64, 4, v63     ; t*1152 + (2g+u)*16
  s_lshl_b32 s{sT0}, s{sWv_}, 7
  s_add_u32 s{sT1}, s{sT0}, 512
  v_mov_b32 v53, v63
  buffer_load_dwordx4 {v(58,4)}, v53, s[64:67], s{sT0} offen
  buffer_load_dwordx4 {v(62,4)}, v53, s[64:67], s{sT1} offen
  buffer_load_dwordx4 {v(66,4)}, v53, s[64:67], 0 offen offset:1024""")
    if mid: mid()
    o(f"""  s_waitcnt vmcnt(0)
  s_barrier
  ds_write_b128 v{vXw}, {v(58,4)} offset:{L_MEM}
  ds_write_b128 v{vXw}, {v(62,4)} offset:{L_MEM+4096}
  ds_write_b128 v{vA}, {v(66,4)} offset:{L_MEM+8192}""")
    for r in range(30, 54):
        o(f"  v_mov_b32 v{r}, 0")
    o(f"""  s_mov_b32 s{sStep}, 0
  s_mov_b32 s{sPoll}, 0
  s_mov_b32 s80, 0
  s_mov_b32 s81, 0
  s_waitcnt vmcnt(0) lgkmcnt(0)
  v_mov_b32 v{vDummy}, 128
  s_barrier""")
```

```python
from asmlib import *

COOP = True
L_MEM, L_XEX, L_MEX, L_OEX, L_W = 0, 9216, 13312, 14336, 16384

vA, vXw, vM, vOw, vR, vP, vIdx, vH1 = 0, 1, 2, 3, 4, 5, 6, 7
vSel, vSelR, vKx, vVx = 8, 10, 14, 22
sW = 4
sWS = 8
sH, sWv_, sStep = 12, 13, 14
sC = 15
sKoff, sKm, sH1st, sH1h, sH1ld, sH2pub, sH2pl = 16, 17, 18, 19, 20, 21, 22
sIsRed, sJ, sT0, sT1, sT2, sT3 = 23, 24, 25, 26, 27, 28
sPoll = 29
sH1rs, sH2rs = 30, 31
sFlagOff = 32
sX1, sX2, sX3 = 33, 34, 35
sW256 = 36
sMaskMw = 38
sPi0, sPih = 40, 41
sH1so, sH1ho, sW1024 = 42, 43, 37
sUnit = 45
sVm = 47
sH2tch = 46
sTm = 44

def frag_q(tau, c): return ('a', (tau*9 + c)*8)
def frag_k(tau, c):
    f = tau*9 + c
    return ('a', 144 + 8*f) if f < 14 else ('v', 80 + 8*(f-14))
def frag_v(tau, c):
    return ('v', 112 + 72*tau + 8*c)
def frag_o(tl, kap):
    return ('lds', 4*tl + kap)

def lds_frag_addr(f):
    off = L_W + f*4096
    return off // 65536, off % 65536

def nop(o, n):
    while n > 0:
        k = min(n, 16)
        o(f"  s_nop {k-1}")
        n -= k

def emit_consts(o):
    o.c("---- R lane constants; v0 holds lane id on entry (0..63), s13 = wave")
    o(f"""
  v_mov_b32 v30, v0                 ; lane
  v_and_b32 v31, 15, v30            ; c
  v_lshrrev_b32 v32, 4, v30         ; g
  v_and_b32 v33, 7, v30             ; t
  v_bfe_u32 v34, v30, 3, 1          ; u
  v_lshlrev_b32 v{vA}, 4, v30
  s_lshl_b32 s{sT0}, s{sWv_}, 10
  v_add_u32 v{vXw}, s{sT0}, v{vA}
  v_and_b32 v35, 1, v32             ; g%2
  v_lshlrev_b32 v{vM}, 7, v35
  v_lshl_add_u32 v{vM}, v33, 4, v{vM}
  ; vOw = (w/2)*1024 + (g/2)*256 + (w%2)*128 + t*16 + (g%2)*8 ; u==0 only
  s_lshr_b32 s{sT0}, s{sWv_}, 1
  s_lshl_b32 s{sT0}, s{sT0}, 10
  s_and_b32 s{sT1}, s{sWv_}, 1
  s_lshl_b32 s{sT1}, s{sT1}, 7
  s_add_u32 s{sT0}, s{sT0}, s{sT1}
  s_add_u32 s{sT0}, s{sT0}, {L_OEX}
  v_lshrrev_b32 v36, 1, v32         ; g/2
  v_lshlrev_b32 v{vOw}, 8, v36
  v_lshl_add_u32 v{vOw}, v33, 4, v{vOw}
  v_lshl_add_u32 v{vOw}, v35, 3, v{vOw}
  v_add_u32 v{vOw}, s{sT0}, v{vOw}
  v_mov_b32 v37, 0x7ffffff0
  v_cmp_eq_u32 vcc, 0, v34
  s_nop 1
  v_cndmask_b32 v{vOw}, v37, v{vOw}, vcc
  v_mov_b32 v37, 0x80000000
  v_cndmask_b32 v{vH1}, v37, v{vA}, vcc
  ; idx
  v_mov_b32 v38, 0x44444444
  v_mov_b32 v39, 0xeeeeeeee
  v_cndmask_b32 v{vIdx}, v39, v38, vcc
  s_lshl_b32 s{sJ}, s{sH}, 1
  s_add_u32 s{sJ}, s{sJ}, s{sWv_}
  s_add_u32 s{sT0}, s{sH}, 64
  s_cmp_eq_u32 s{sWv_}, 2
  s_cselect_b32 s{sJ}, s{sT0}, s{sJ}
  s_cmp_lt_u32 s{sWv_}, 2
  s_cselect_b32 s{sIsRed}, 1, 0
  s_cmp_eq_u32 s{sWv_}, 2
  s_cselect_b32 s{sT0}, 1, 0
  s_cmp_lt_u32 s{sH}, 8
  s_cselect_b32 s{sT1}, 1, 0
  s_and_b32 s{sT0}, s{sT0}, s{sT1}
  s_or_b32 s{sIsRed}, s{sIsRed}, s{sT0}
  s_cmp_eq_u32 s{sIsRed}, 0
  s_cselect_b32 s{sJ}, 0, s{sJ}
  ; unit j=(pi=j/4, g4=j%4): H1 offset of its 128B segment
  s_lshr_b32 s{sT0}, s{sJ}, 2            ; pi
  s_and_b32 s{sT1}, s{sJ}, 3             ; g4
  s_cmp_gt_u32 s{sT0}, 13
  s_cselect_b32 s{sT2}, 2, 0
  s_cmp_gt_u32 s{sT0}, 4
  s_cselect_b32 s{sT3}, 1, 0
  s_cmp_gt_u32 s{sT0}, 13
  s_cselect_b32 s{sT3}, 2, s{sT3}
  s_sub_u32 s{sT2}, s{sT0}, s{sT3}
  s_lshr_b32 s{sT3}, s{sT2}, 1
  s_lshl_b32 s{sT3}, s{sT3}, 10          ; (q/2)*1024
  s_and_b32 s{sT2}, s{sT2}, 1
  s_lshl_b32 s{sT2}, s{sT2}, 7           ; (q%2)*128
  s_add_u32 s{sT3}, s{sT3}, s{sT2}
  s_cmp_eq_u32 s{sT0}, 4
  s_cselect_b32 s{sT3}, 8192, s{sT3}
  s_cmp_eq_u32 s{sT0}, 13
  s_cselect_b32 s{sT3}, 9216, s{sT3}
  s_lshl_b32 s{sT1}, s{sT1}, 8
  s_add_u32 s{sT0}, s{sT3}, s{sT1}       ; + g4*256
  s_lshr_b32 s{sT1}, s{sJ}, 2
  s_cmp_eq_u32 s{sT1}, 4
  s_cselect_b32 s{sT2}, 2, s{sIsRed}
  s_cmp_eq_u32 s{sT1}, 13
  s_cselect_b32 s{sT2}, 2, s{sT2}
  s_cmp_eq_u32 s{sIsRed}, 0
  s_cselect_b32 s{sIsRed}, 0, s{sT2}
  v_lshl_add_u32 v40, v34, 2, v32
  v_mul_u32_u24 v40, {H1_PROD}, v40
  v_lshl_add_u32 v40, v33, 4, v40
  v_add_u32 v{vR}, s{sT0}, v40
  s_cmp_eq_u32 s{sIsRed}, 0
  s_cselect_b32 s{sT1}, 0x80000000, 0
  s_cselect_b32 s{sUnit}, 0x80000000, s{sT0}
  v_lshlrev_b32 v40, 4, v33
  v_lshl_add_u32 v40, v32, 3, v40
  s_lshl_b32 s{sT0}, s{sJ}, 7
  v_add_u32 v40, s{sT0}, v40
  v_and_b32 v41, 40, v30
  v_cmp_eq_u32 vcc, 0, v41
  s_nop 1
  v_cndmask_b32 v{vP}, v37, v40, vcc
  v_or_b32 v{vP}, s{sT1}, v{vP}
  s_mov_b64 s[{sMaskMw}:{sMaskMw+1}], vcc     ; lanes u==0,g<2
  ; Sel: e = c - 4*(g%2)
  v_lshlrev_b32 v40, 2, v35
  v_sub_u32 v40, v31, v40
  v_mov_b32 v41, 0x3f80
  v_mov_b32 v42, 0x3f800000
  v_mov_b32 v{vSel}, 0
  v_mov_b32 v{vSel+1}, 0
  v_cmp_eq_u32 vcc, 0, v40
  s_nop 1
  v_cndmask_b32 v{vSel}, v{vSel}, v41, vcc
  v_cmp_eq_u32 vcc, 1, v40
  s_nop 1
  v_cndmask_b32 v{vSel}, v{vSel}, v42, vcc
  v_cmp_eq_u32 vcc, 2, v40
  s_nop 1
  v_cndmask_b32 v{vSel+1}, v{vSel+1}, v41, vcc
  v_cmp_eq_u32 vcc, 3, v40
  s_nop 1
  v_cndmask_b32 v{vSel+1}, v{vSel+1}, v42, vcc""")
    for r in range(4):
        o(f"""  v_mov_b32 v{vSelR+r}, 0
  v_cmp_eq_u32 vcc, {2*r}, v31
  s_nop 1
  v_cndmask_b32 v{vSelR+r}, v{vSelR+r}, v41, vcc
  v_cmp_eq_u32 vcc, {2*r+1}, v31
  s_nop 1
  v_cndmask_b32 v{vSelR+r}, v{vSelR+r}, v42, vcc""")
    o(f"""
  s_lshl_b32 s{sW1024}, s{sWv_}, 10
  s_lshl_b32 s{sH2tch}, s{sH}, 2
  s_add_u32 s{sH2tch}, s{sH2tch}, s{sWv_}
  s_lshl_b32 s{sH2tch}, s{sH2tch}, 6
  s_add_u32 s{sH2tch}, s{sH2tch}, {H2_SLOT}
  s_mov_b32 s{sC}, 0x3e0293ee        ; 128^-0.5 * log2(e) = 0.12751743
  s_add_u32 s{sT0}, s{sWv_}, 1
  s_and_b32 s{sT0}, s{sT0}, 3
  s_lshl_b32 s{sX1}, s{sT0}, 10
  s_add_u32 s{sX1}, s{sX1}, {L_XEX}
  s_add_u32 s{sT0}, s{sWv_}, 2
  s_and_b32 s{sT0}, s{sT0}, 3
  s_lshl_b32 s{sX2}, s{sT0}, 10
  s_add_u32 s{sX2}, s{sX2}, {L_XEX}
  s_add_u32 s{sT0}, s{sWv_}, 3
  s_and_b32 s{sT0}, s{sT0}, 3
  s_lshl_b32 s{sX3}, s{sT0}, 10
  s_add_u32 s{sX3}, s{sX3}, {L_XEX}
  s_lshl_b32 s{sW256}, s{sWv_}, 8
  s_add_u32 s{sW256}, s{sW256}, {L_MEX}
  s_mul_i32 s{sPi0}, s{sWv_}, 9
  s_add_u32 s{sPi0}, s{sPi0}, 1
  s_lshr_b32 s{sPi0}, s{sPi0}, 1
  s_lshr_b32 s{sPih}, s{sWv_}, 1
  s_mul_i32 s{sPih}, s{sPih}, 9
  s_add_u32 s{sPih}, s{sPih}, 4
""")

def emit_weights(o, hook=None, hook_at=28):
    o.c("---- weight prologue")
    vLdW, vLdO, vLdOh, vScr, vT, vT2, vT2h, vF1, vF2 = 30, 31, 32, 33, 34, 35, 36, 37, 38
    TMP = 40
    o(f"""
  v_lshrrev_b32 v46, 4, v{vA}        ; lane
  v_lshrrev_b32 v45, 2, v46          ; l/4
  v_and_b32 v44, 3, v46              ; l%4
  v_lshlrev_b32 v{vLdW}, 13, v45
  v_lshl_add_u32 v{vLdW}, v44, 4, v{vLdW}      ; (l/4)*8192 + (l%4)*16
  v_mul_u32_u24 v{vLdOh}, 1152, v45
  v_lshl_add_u32 v{vLdOh}, v44, 4, v{vLdOh}    ; (l/4)*1152 + (l%4)*16
  v_lshrrev_b32 v43, 3, v46          ; l/8
  v_and_b32 v42, 7, v46
  v_mul_u32_u24 v{vLdO}, 1152, v43
  v_lshl_add_u32 v{vLdO}, v42, 4, v{vLdO}      ; (l/8)*1152 + (l%8)*16
  s_lshl_b32 s{sT0}, s{sWv_}, 12
  v_add_u32 v{vScr}, s{sT0}, v{vA}             ; scratch + l*16
  ; tr lane decomposition: gb=l/16, r'=(l%16)/4, c'=l%4
  v_lshrrev_b32 v43, 4, v46          ; gb
  v_bfe_u32 v42, v46, 2, 2           ; r'
  ; row = 16*(gb/2) + 4*(gb%2) + 8*(r'/2) + r'%2
  v_lshrrev_b32 v41, 1, v43
  v_lshlrev_b32 v41, 4, v41
  v_and_b32 v40, 1, v43
  v_lshl_add_u32 v41, v40, 2, v41
  v_lshrrev_b32 v40, 1, v42
  v_lshl_add_u32 v41, v40, 3, v41
  v_and_b32 v40, 1, v42
  v_add_u32 v41, v41, v40
  v_lshlrev_b32 v{vT}, 6, v41
  v_lshl_add_u32 v{vT}, v44, 3, v{vT}
  v_add_u32 v{vT}, s{sT0}, v{vT}
  v_lshl_add_u32 v41, v43, 3, v42
  v_lshlrev_b32 v{vT2}, 7, v41
  v_lshl_add_u32 v{vT2}, v44, 4, v{vT2}
  v_add_u32 v{vT2}, s{sT0}, v{vT2}
  v_lshlrev_b32 v{vT2h}, 6, v41
  v_lshl_add_u32 v{vT2h}, v44, 4, v{vT2h}
  v_add_u32 v{vT2h}, s{sT0}, v{vT2h}
  s_and_b32 s{sT1}, s{sWv_}, 1
  s_lshl_b32 s{sT1}, s{sT1}, 3
  v_add_u32 v{vT2h}, s{sT1}, v{vT2h}
  v_add_u32 v{vF1}, 0x10000, v{vXw}
  v_add_u32 v{vF2}, 0x20000, v{vXw}
""")
    vWr, vRd = 39, 43
    if COOP:
        o(f"""  v_lshrrev_b32 v48, 4, v{vA}        ; lane
  v_lshrrev_b32 v49, 4, v48          ; l/16
  v_and_b32 v50, 15, v48             ; l%16
  v_lshlrev_b32 v{vLdW}, 13, v49
  v_lshl_add_u32 v{vLdW}, v50, 4, v{vLdW}     ; (l/16)*8192 + (l%16)*16
  s_lshl_b32 s{sT0}, s{sWv_}, 12""")
        for i_ in range(4):
            o(f"""  v_add_u32 v51, {4*i_}, v49
  v_xor_b32 v51, v51, v50
  v_lshlrev_b32 v51, 4, v51
  v_lshl_add_u32 v51, v49, 8, v51
  v_add_u32 v51, {1024*i_}, v51
  v_add_u32 v{vWr+i_}, s{sT0}, v51""")
        o(f"""  v_bfe_u32 v51, v48, 2, 2           ; r'
  v_lshrrev_b32 v52, 1, v49          ; gb/2
  v_lshlrev_b32 v52, 4, v52
  v_and_b32 v53, 1, v49
  v_lshl_add_u32 v52, v53, 2, v52
  v_lshrrev_b32 v53, 1, v51
  v_lshl_add_u32 v52, v53, 3, v52
  v_and_b32 v53, 1, v51
  v_add_u32 v52, v52, v53            ; rowpart
  v_and_b32 v54, 3, v48              ; c'
  v_lshrrev_b32 v55, 1, v54          ; c'/2
  v_and_b32 v54, 1, v54
  v_lshlrev_b32 v54, 3, v54          ; (c'%2)*8
  s_lshl_b32 s{sT1}, s{sWv_}, 2""")
        for off2 in range(2):
            for tau in range(2):
                o(f"""  v_add_u32 v56, {2*off2}, v52
  v_and_b32 v57, 15, v56
  v_add_u32 v58, s{sT1}, v55
  v_add_u32 v58, {2*tau}, v58
  v_xor_b32 v57, v57, v58
  v_lshlrev_b32 v57, 4, v57
  v_lshl_add_u32 v57, v56, 8, v57
  v_add_u32 v{vRd+2*off2+tau}, v57, v54""")
    def ldsaddr(f):
        b, imm = lds_frag_addr(f)
        return (vXw, vF1, vF2)[b], imm
    chunks = []
    for c in range(9): chunks.append(('q', c))
    for c in range(9): chunks.append(('k', c))
    for kap in range(4):
        chunks += [('o', kap, 0), ('o', kap, 1), ('oh', kap)]
    for c in range(9): chunks.append(('v', c))
    def dests(ch):
        if ch[0] == 'q': return [frag_q(0, ch[1]), frag_q(1, ch[1])]
        if ch[0] == 'k': return [frag_k(0, ch[1]), frag_k(1, ch[1])]
        if ch[0] == 'v': return [frag_v(0, ch[1]), frag_v(1, ch[1])]
        if ch[0] == 'o': return [frag_o(4*ch[2]+i, ch[1]) for i in range(4)]
        return [frag_o(8, ch[1])]
    def dest_vregs(ch):
        n = 8 if ch[0] in 'qkv' else 4
        r = set()
        for d in dests(ch):
            if d[0] == 'v': r |= set(range(d[1], d[1]+n))
        return r
    bufs = [48, 64] + list(range(80, 256, 16))
    n = len(chunks)
    MAXIN = 10
    used_final = set()
    assign = {}
    inflight = []
    nxt = 0
    sched = []
    final_before = []
    acc = set()
    for m in range(n):
        final_before.append(set(acc))
        acc |= dest_vregs(chunks[m])
    proc = 0
    busy = {}
    while proc < n:
        while nxt < n and len(inflight) < MAXIN:
            cand = None
            for b in bufs:
                if b in busy: continue
                rs = set(range(b, b+16))
                if rs & final_before[nxt]: continue
                cand = b; break
            if cand is None: break
            busy[cand] = nxt; assign[nxt] = cand; inflight.append(nxt); sched.append(('issue', nxt)); nxt += 1
        sched.append(('proc', proc))
        if proc >= 1: del busy[assign[proc-1]]
        inflight.remove(proc)
        proc += 1
    def nloads(ch): return 2 if ch[0] == 'oh' else 4
    srd_cur = None
    ptr = {'q': 50, 'k': 52, 'v': 54, 'o': 56, 'oh': 56}
    srd = {'q': 64, 'k': 68, 'v': 72, 'o': 76, 'oh': 76}
    for k_, p in (('q', 50), ('k', 52), ('v', 54), ('o', 56)):
        o(f"""  s_mov_b32 s{srd[k_]}, s{p}
  s_and_b32 s{srd[k_]+1}, s{p+1}, 0xffff
  s_mov_b32 s{srd[k_]+2}, 4718592
  s_mov_b32 s{srd[k_]+3}, 0x20000""")
    o(f"""  s_lshl_b32 s80, s{sH}, 8
  s_lshl_b32 s81, s{sWv_}, {17 if COOP else 6}
  s_add_u32 s80, s80, s81
  s_mul_i32 s82, s{sH}, {128*1152}
  s_lshl_b32 s83, s{sPi0}, 6
  s_add_u32 s83, s83, s82
  s_lshl_b32 s84, s{sPih}, 6
  s_add_u32 s84, s84, s82""")
    outstanding = []
    for kind, m in sched:
        ch = chunks[m]; b = assign[m]
        if kind == 'issue':
            if ch[0] in 'qkv':
                for i in range(4):
                    o(f"  s_add_u32 s85, s80, {(64*ch[1] + (4 if COOP else 16)*i)*8192}")
                    o(f"  buffer_load_dwordx4 {v(b+4*i,4)}, v{vLdW}, s[{srd[ch[0]]}:{srd[ch[0]]+3}], s85 offen")
            elif ch[0] == 'o':
                for i in range(4):
                    o(f"  s_add_u32 s85, s83, {(32*ch[1] + 8*i)*1152 + ch[2]*128}")
                    o(f"  buffer_load_dwordx4 {v(b+4*i,4)}, v{vLdO}, s[76:79], s85 offen")
            else:
                for i in range(2):
                    o(f"  s_add_u32 s85, s84, {(32*ch[1] + 16*i)*1152}")
                    o(f"  buffer_load_dwordx4 {v(b+4*i,4)}, v{vLdOh}, s[76:79], s85 offen")
            outstanding.append(m)
        else:
            if hook and m == hook_at: hook()
            idx = outstanding.index(m)
            later = sum(nloads(chunks[x]) for x in outstanding[idx+1:])
            o(f"  s_waitcnt vmcnt({min(later,63)})")
            outstanding = outstanding[idx+1:]
            o("  s_waitcnt lgkmcnt(0)")
            coop = COOP and ch[0] in 'qkv'
            if coop or (COOP and m > 0 and chunks[m-1][0] in 'qkv'): o("  s_barrier")
            for i in range(nloads(ch)):
                o(f"  ds_write_b128 v{vWr+i if coop else vScr}, {v(b+4*i,4)} offset:{0 if coop else 1024*i}")
            if coop: o("  s_waitcnt lgkmcnt(0)\n  s_barrier")
            if ch[0] in 'qkv':
                for tau, d in enumerate(dests(ch)):
                    assert d[0] != 'lds'
                    for r_, off in ((0, 0), (2, 2), (4, 32), (6, 34)):
                        if coop:
                            o(f"  ds_read_b64_tr_b16 {reg((d[0], d[1]+r_), 2)}, v{vRd + 2*((off % 16)//2) + tau} offset:{(off // 16)*16*256}")
                        else:
                            o(f"  ds_read_b64_tr_b16 {reg((d[0], d[1]+r_), 2)}, v{vT} offset:{off*64 + 32*tau}")
            elif ch[0] == 'o':
                for i, d in enumerate(dests(ch)):
                    pim, x = i // 2, i % 2
                    o(f"  ds_read_b64_tr_b16 {v(b+4*i,2)}, v{vT2} offset:{64*pim + 8*x}")
                    o(f"  ds_read_b64_tr_b16 {v(b+4*i+2,2)}, v{vT2} offset:{512 + 64*pim + 8*x}")
                o("  s_waitcnt lgkmcnt(0)")
                for i, d in enumerate(dests(ch)):
                    ar, imm = ldsaddr(d[1])
                    o(f"  ds_write_b128 v{ar}, {v(b+4*i,4)} offset:{imm}")
            else:
                d = dests(ch)[0]
                o(f"  ds_read_b64_tr_b16 {v(b,2)}, v{vT2h} offset:0")
                o(f"  ds_read_b64_tr_b16 {v(b+2,2)}, v{vT2h} offset:256")
                o("  s_waitcnt lgkmcnt(0)")
                ar, imm = ldsaddr(d[1])
                o(f"  ds_write_b128 v{ar}, {v(b,4)} offset:{imm}")
    o("  s_waitcnt lgkmcnt(0)")


Q0, Q1, K0, K1, V0, V1 = 30, 34, 38, 42, 46, 50
W = [54, 58, 62]
T, U, QS = 66, 70, 74

class Cnt:
    def __init__(self, o, name, maxv):
        self.o, self.name, self.maxv, self.q = o, name, maxv, []
    def issue(self, tag):
        self.q.append(tag)
        assert len(self.q) <= self.maxv + 1, (self.name, self.q)
    def wait(self, tag):
        if tag not in self.q: return
        i = len(self.q) - 1 - self.q[::-1].index(tag)
        n = len(self.q) - 1 - i
        self.o(f"  s_waitcnt {self.name}cnt({n})")
        self.q = self.q[i+1:]
    def waitall(self):
        self.o(f"  s_waitcnt {self.name}cnt(0)")
        self.q = []

def smf(o, d, aop, b):
    o(f"  v_smfmac_f32_16x16x64_bf16 {v(d,4)}, {v(aop,4)}, {reg(b,8)}, v{vIdx}")


POLL_LIMIT = 1 << 20
PUBF = 'sc1'
PUBK = 'sc1'
PUBV = 'sc1'
KVF = ''
TCHF = ''
DUALF = True
DUALA = False
FSTAG = 16
ASTAG = 16
KVPOS = 'qk'
KVCNT = None
TOUCH = True
RESETW = False
vDummy = 79

def emit_loop(o, L, stf, timing=False, fdelay=0, adelay=0):
    WSr = f"s[{sWS}:{sWS+3}]"
    lg = Cnt(o, "lgkm", 15)
    def dsr(dst, ar, off, tag):
        o(f"  ds_read_b128 {v(dst,4)}, v{ar} offset:{off}")
        lg.issue(tag)
    def stamp(k):
        if timing:
            o(f"  s_memtime s[{86+2*k}:{87+2*k}]")
    T, U, QS, MW = 66, 70, 74, 78
    o(f"{L}_loop:")
    for wv in range(3):
        o(f"  s_cmp_eq_u32 s{sWv_}, {wv}\n  s_cbranch_scc1 {L}_qv{wv}")
    o(f"  s_branch {L}_qv3")
    side = []
    if KVPOS == 'qk': side += [f"  s_add_u32 s{sT1}, s{sKoff}, {VBUF-KBUF}",
             f"  buffer_load_dwordx4 {v(vKx,4)}, v{vA}, {WSr}, s{sKoff} offen {KVF}", None,
             f"  buffer_load_dwordx4 {v(vKx+4,4)}, v{vA}, {WSr}, s{sKoff} offen offset:1024 {KVF}", None, None,
             f"  buffer_load_dwordx4 {v(vVx,4)}, v{vA}, {WSr}, s{sT1} offen {KVF}", None, None,
             f"  buffer_load_dwordx4 {v(vVx+4,4)}, v{vA}, {WSr}, s{sT1} offen offset:1024 {KVF}", None]
    if KVCNT is not None:
        side += [f"  v_readfirstlane_b32 s{sT0}, v{vDummy}",
                 f"  s_cmp_ge_u32 s{sT0}, 128\n  s_cbranch_scc1 {{LP}}_kv\n"
                 f"  s_add_u32 s{sT0}, s{sStep}, 1\n  s_min_u32 s{sT0}, s{sT0}, 63\n  s_lshr_b32 s{sT0}, s{sT0}, 2\n  s_lshl_b32 s{sT0}, s{sT0}, 7\n  s_add_u32 s{sT0}, s{sT0}, {KVCNT}\n"
                 f"  v_mov_b32 v72, s{sT0}\n{{LP}}_kvp:\n  buffer_load_dword v73, v72, {WSr}, 0 offen sc1\n  s_waitcnt vmcnt(0)\n  v_readfirstlane_b32 s{sT0}, v73\n  s_add_u32 s{sPoll}, s{sPoll}, 1\n  s_cmp_gt_u32 s{sPoll}, {POLL_LIMIT}\n  s_cbranch_scc1 {L}_bail\n  s_cmp_ge_u32 s{sT0}, 128\n  s_cbranch_scc0 {{LP}}_kvp\n{{LP}}_kv:"]
    side += [f"  v_bfe_u32 v72, v{vA}, 4, 5", f"  v_lshlrev_b32 v72, 6, v72", f"  v_lshrrev_b32 v73, 9, v{vA}", f"  v_lshl_add_u32 v72, v73, 24, v72",
             f"  s_add_u32 s{sKoff}, s{sKoff}, {32*8192}", f"  buffer_load_dword v{vDummy}, v72, {WSr}, s{sKoff} offen {TCHF}"]
    side += [f"  v_bfe_u32 v73, v{vA}, 4, 5", f"  v_mul_u32_u24 v73, {H1_PROD}, v73", f"  v_lshrrev_b32 v72, 9, v{vA}", f"  v_lshl_add_u32 v73, v72, 6, v73", f"  v_add_u32 v73, s{sUnit}, v73",
             f"  s_add_u32 s{sT0}, s{sH1ld}, {H1_SLOT}", f"  buffer_load_dword v{vDummy}, v73, {WSr}, s{sT0} offen {TCHF}",
             f"  s_add_u32 s{sT0}, s{sH2pub}, s{sH2tch}", f"  v_lshlrev_b32 v72, 9, v{vA}", f"  s_mov_b64 exec, 3\n  buffer_load_dword v{vDummy}, v72, {WSr}, s{sT0} offen {TCHF}\n  s_mov_b64 exec, -1"]
    if KVCNT is not None:
        side += [f"  s_add_u32 s{sT0}, s{sStep}, 2\n  s_min_u32 s{sT0}, s{sT0}, 63\n  s_lshr_b32 s{sT0}, s{sT0}, 2\n  s_lshl_b32 s{sT0}, s{sT0}, 7",
                 f"  s_add_u32 s{sT0}, s{sT0}, {KVCNT}\n  v_mov_b32 v72, s{sT0}", f"  buffer_load_dword v{vDummy}, v72, {WSr}, 0 offen sc1"]
    side += [f"  v_mov_b32 v70, s{sStep}", f"  v_mov_b32 v71, s{sFlagOff}", f"  s_mov_b64 exec, 1\n  buffer_store_dword v70, v71, {WSr}, 0 offen {PUBF}\n  s_mov_b64 exec, -1"]
    side += [f"  v_add_u32 v{MW}, s{sW256}, v{vM}", f"  v_cndmask_b32 v{MW}, -16, v{MW}, s[{sMaskMw}:{sMaskMw+1}]"]
    NV_AFTER_KV = 4 + (1 if KVCNT is not None else 0)
    side_all = list(side)
    o.c("QK phase: own (register-resident) chunks first, the rest through LDS")
    for wv in range(4):
        o(f"{L}_av{wv}:")
        S1 = [58, 62, 66][:(3 if wv == 0 else 2)]
        offs = [sH2pl, sT1, sT2]
        if timing: o("  s_add_u32 s81, s81, 1\n  s_memtime s[68:69]")
        for r_, so in zip(S1, offs):
            o(f"  buffer_load_dwordx4 {v(r_,4)}, v{vA}, {WSr}, s{so} offen sc1")
        o(f"  s_add_u32 s{sPoll}, s{sPoll}, 1")
        o(f"  s_cmp_gt_u32 s{sPoll}, {POLL_LIMIT}")
        o(f"  s_cbranch_scc1 {L}_bail")
        o(f"  s_waitcnt vmcnt(0)")
        if timing: o("  s_memtime s[70:71]")
        o(f"  v_max3_u32 v78, v58, v60, v62")
        if wv == 0:
            o(f"  v_max3_u32 v78, v78, v64, v66\n  v_max_u32 v78, v78, v68")
        else:
            o(f"  v_max_u32 v78, v78, v64")
        o(f"  v_cmp_eq_u32 vcc, -1, v78")
        o(f"  s_cbranch_vccnz {L}_av{wv}")
        o(f"  ds_write_b128 v{vXw}, {v(58,4)} offset:{L_MEM}")
        o(f"  ds_write_b128 v{vXw}, {v(62,4)} offset:{L_MEM+4096}")
        if wv == 0: o(f"  ds_write_b128 v{vA}, {v(66,4)} offset:{L_MEM+8192}")
        o(f"{L}_qv{wv}:")
        if timing: o("  s_memtime s[72:73]")
        stamp(0)
        side = list(side_all)
        def pop(n):
            for _ in range(n):
                if side:
                    x = side.pop(0)
                    if x: o(x.replace("{LP}", f"{L}w{wv}"))
        lgq = Cnt(o, "lgkm", 15)
        def dsq(dst, off, tag):
            o(f"  ds_read_b128 {v(dst,4)}, v{vA} offset:{off}"); lgq.issue(tag)
        def qk(c, a_, np_=(1,1,1,1)):
            smf(o, Q0, a_, frag_q(0, c)); pop(np_[0])
            smf(o, Q1, a_, frag_q(1, c)); pop(np_[1])
            smf(o, K0, a_, frag_k(0, c)); pop(np_[2])
            smf(o, K1, a_, frag_k(1, c))
        own = [wv, wv+4] + ([8] if wv == 0 else [])
        rest = [c for c in range(9) if c not in own]
        qk(own[0], W[1])
        o("  s_waitcnt lgkmcnt(0)\n  s_barrier")
        dsq(W[0], L_MEM + 1024*rest[0], "r0"); dsq(W[1], L_MEM + 1024*rest[1], "r1")
        qk(own[1], W[2])
        dsq(W[2], L_MEM + 1024*rest[2], "r2")
        if wv == 0: qk(8, 66)
        for k, c in enumerate(rest):
            lgq.wait(f"r{k}")
            last = (k == len(rest)-1)
            qk(c, W[k % 3], (1, 2 if k >= len(rest)-3 else 1, 0 if last else 1, 0))
            if k + 3 < len(rest): dsq(W[k % 3], L_MEM + 1024*rest[k+3], f"r{k+3}")
            if not last: pop(1)
        while side: pop(1)
        free_order = [(len(rest)-3+i_) % 3 for i_ in range(3)]
        assert sorted(free_order) == [0, 1, 2]
        for sl in range(3):
            o(f"  ds_read_b128 {v(W[sl],4)}, v{vA} offset:{L_MEM + 1024*(6+sl)}")
        if wv < 3:
            o(f"  s_branch {L}_qkd")
    o(f"{L}_qkd:")
    lg.issue("V6"); lg.issue("V7"); lg.issue("V8")
    stamp(1)
    o.c("transpose q,k")
    def vpass(c, slot):
        smf(o, V0, W[slot], frag_v(0, c)); smf(o, V1, W[slot], frag_v(1, c))
    o(f"  v_cvt_pk_bf16_f32 v{T}, v{Q0}, v{Q0+1}")
    o(f"  v_cvt_pk_bf16_f32 v{T+1}, v{Q0+2}, v{Q0+3}")
    o(f"  v_cvt_pk_bf16_f32 v{T+2}, v{Q1}, v{Q1+1}")
    o(f"  v_cvt_pk_bf16_f32 v{T+3}, v{Q1+2}, v{Q1+3}")
    nop(o, 2)
    o(f"  v_cvt_pk_bf16_f32 v{U}, v{K0}, v{K0+1}")
    o(f"  v_mfma_f32_16x16x16_bf16 {v(Q0,4)}, {v(T,2)}, {v(vSel,2)}, 0")
    o(f"  v_cvt_pk_bf16_f32 v{U+1}, v{K0+2}, v{K0+3}")
    o(f"  v_cvt_pk_bf16_f32 v{U+2}, v{K1}, v{K1+1}")
    o(f"  v_mfma_f32_16x16x16_bf16 {v(Q1,4)}, {v(T+2,2)}, {v(vSel,2)}, 0")
    o(f"  v_cvt_pk_bf16_f32 v{U+3}, v{K1+2}, v{K1+3}")
    nop(o, 1)
    o(f"  v_mfma_f32_16x16x16_bf16 {v(K0,4)}, {v(U,2)}, {v(vSel,2)}, 0")
    o(f"  v_mfma_f32_16x16x16_bf16 {v(K1,4)}, {v(U+2,2)}, {v(vSel,2)}, 0")
    lg.wait("V6")
    smf(o, V0, W[0], frag_v(0, 6))
    o(f"  v_cvt_pk_bf16_f32 v{T}, v{Q0}, v{Q0+1}")
    o(f"  v_cvt_pk_bf16_f32 v{T+1}, v{Q0+2}, v{Q0+3}")
    o(f"  v_cvt_pk_bf16_f32 v{T+2}, v{Q1}, v{Q1+1}")
    o(f"  v_cvt_pk_bf16_f32 v{T+3}, v{Q1+2}, v{Q1+3}")
    smf(o, V1, W[0], frag_v(1, 6))
    dsr(W[0], vA, L_MEM, "B0")
    for i in range(4):
        o(f"  v_mov_b32_dpp v{QS+i}, v{T+i} row_ror:8 row_mask:0xf bank_mask:0xf")
    o(f"  s_waitcnt vmcnt({NV_AFTER_KV})")
    o(f"  v_mfma_f32_16x16x32_bf16 {v(Q0,4)}, {v(vKx,4)}, {v(T,4)}, 0")
    o(f"  v_cvt_pk_bf16_f32 v{U}, v{K0}, v{K0+1}")
    o(f"  v_cvt_pk_bf16_f32 v{U+1}, v{K0+2}, v{K0+3}")
    o(f"  v_mfma_f32_16x16x32_bf16 {v(Q0,4)}, {v(vKx+4,4)}, {v(QS,4)}, {v(Q0,4)}")
    o(f"  v_cvt_pk_bf16_f32 v{U+2}, v{K1}, v{K1+1}")
    o(f"  v_cvt_pk_bf16_f32 v{U+3}, v{K1+2}, v{K1+3}")
    nop(o, 2)
    o(f"  v_mfma_f32_16x16x32_bf16 {v(Q1,4)}, {v(U,4)}, {v(T,4)}, 0")
    lg.wait("V7")
    vpass(7, 1)
    dsr(W[1], vA, L_MEM + 1024, "B1")
    o(f"  ds_write_b128 v{vXw}, {v(Q0,4)} offset:{L_XEX}"); lg.issue("Xw")
    o(f"  ds_write_b128 v{MW}, {v(Q1,4)}"); lg.issue("Mw")
    o(f"  buffer_store_dwordx4 {v(U,4)}, v{vH1}, {WSr}, s{sKm} offen {PUBK}")
    lg.wait("V8")
    vpass(8, 2)
    dsr(W[2], vA, L_MEM + 2048, "B2")
    lg.wait("B0")
    vpass(0, 0)
    dsr(W[0], vA, L_MEM + 3072, "B3")
    lg.wait("Mw")
    o("  s_barrier")
    stamp(2)
    o.c("exchange reads")
    XP = [Q0, vKx, vKx+4, 74]
    MP = [Q1, 66, 42, 38]
    for k in range(4):
        dsr(XP[k], vA, L_XEX + 1024*k, f"XP{k}")
    for k in range(4):
        dsr(MP[k], vM, L_MEX + 256*k, f"MP{k}")
    lg.wait("B1")
    vpass(1, 1)
    dsr(W[1], vA, L_MEM + 4096, "B4")
    lg.wait("B2")
    vpass(2, 2)
    dsr(W[2], vA, L_MEM + 5120, "B5")
    lg.wait("B3")
    vpass(3, 0)
    lg.wait("XP3")
    for k in range(1, 4):
        o(f"  v_pk_add_f32 {v(Q0,2)}, {v(Q0,2)}, {v(XP[k],2)}")
        o(f"  v_pk_add_f32 {v(Q0+2,2)}, {v(Q0+2,2)}, {v(XP[k]+2,2)}")
    lg.wait("MP3")
    for k in range(1, 4):
        o(f"  v_pk_add_f32 {v(Q1,2)}, {v(Q1,2)}, {v(MP[k],2)}")
        o(f"  v_pk_add_f32 {v(Q1+2,2)}, {v(Q1+2,2)}, {v(MP[k]+2,2)}")
    WIN = [14, 18, 22, 26, 38, 42, 66, 70]
    lds_list = [(tl, kap, frag_o(tl, kap)[1]) for tl in range(9) for kap in range(4)]
    slot_of = {}
    st = dict(issued=0)
    BASE = (vXw, 78, 78)
    def issue_frag():
        n = st['issued']
        if n >= len(lds_list): return
        tl, kap, f = lds_list[n]
        sl = WIN[n % len(WIN)]
        b, imm = lds_frag_addr(f)
        if b == 2 and lds_frag_addr(f-1)[0] == 1:
            o(f"  v_add_u32 v78, 0x10000, v78")
        dsr(sl, BASE[b], imm, f"wo{n}")
        slot_of[(tl, kap)] = (sl, n)
        st['issued'] = n + 1
    o.c("softmax")
    MX, TM = 78, 42
    o(f"  v_max3_f32 v{MX}, v{Q0}, v{Q0+1}, v{Q0+2}")
    o(f"  v_max3_f32 v{TM}, v{Q0+3}, v{Q1}, v{Q1+1}")
    o(f"  v_max3_f32 v{MX}, v{MX}, v{Q1+2}, v{Q1+3}")
    o(f"  v_max_f32 v{MX}, v{MX}, v{TM}")
    lg.wait("B4")
    smf(o, V0, W[1], frag_v(0, 4))
    issue_frag()
    o(f"  v_max_f32_dpp v{MX}, v{MX}, v{MX} row_ror:8 row_mask:0xf bank_mask:0xf")
    smf(o, V1, W[1], frag_v(1, 4))
    o(f"  v_mov_b32 v{TM}, v{MX}")
    issue_frag()
    lg.wait("B5")
    smf(o, V0, W[2], frag_v(0, 5))
    o(f"  v_permlane16_swap_b32 v{MX}, v{TM}")
    o(f"  v_max_f32 v{MX}, v{MX}, v{TM}")
    o(f"  v_mov_b32 v{TM}, v{MX}")
    smf(o, V1, W[2], frag_v(1, 5))
    nop(o, 1)
    o(f"  v_permlane32_swap_b32 v{MX}, v{TM}")
    o(f"  v_max_f32 v{MX}, v{MX}, v{TM}")
    o(f"  v_mul_f32 v{MX}, s{sC}, v{MX}")
    for i in range(8):
        o(f"  v_fma_f32 v{Q0+i}, v{Q0+i}, s{sC}, -v{MX}")
    PX, PXs, PM, LA, LB, VP = 74, 76, 70, 72, 73, 66
    for i in range(8):
        o(f"  v_exp_f32 v{Q0+i}, v{Q0+i}")
    D0, D1 = 38, 42
    O0 = 70
    o.c("PV with the l-sum chain interleaved")
    o(f"  v_cvt_pk_bf16_f32 v{PX}, v{Q0}, v{Q0+1}")
    o(f"  v_cvt_pk_bf16_f32 v{PX+1}, v{Q0+2}, v{Q0+3}")
    o(f"  v_cvt_pk_bf16_f32 v{PM}, v{Q1}, v{Q1+1}")
    o(f"  v_cvt_pk_bf16_f32 v{PM+1}, v{Q1+2}, v{Q1+3}")
    o(f"  v_pk_add_f32 {v(LA,2)}, {v(Q0,2)}, {v(Q0+2,2)}")
    o(f"  v_pk_add_f32 {v(Q1,2)}, {v(Q1,2)}, {v(Q1+2,2)}")
    o(f"  v_mov_b32_dpp v{PXs}, v{PX} row_ror:8 row_mask:0xf bank_mask:0xf")
    o(f"  v_mov_b32_dpp v{PXs+1}, v{PX+1} row_ror:8 row_mask:0xf bank_mask:0xf")
    o(f"  v_add_f32 v{LA}, v{LA}, v{LB}")
    o(f"  v_add_f32 v{LB}, v{Q1}, v{Q1+1}")
    o(f"  v_mfma_f32_16x16x32_bf16 {v(D0,4)}, {v(vVx,4)}, {v(PX,4)}, 0")
    o(f"  v_fmamk_f32 v{LA}, v{LB}, 0x3e800000, v{LA}")
    o(f"  v_cvt_pk_bf16_f32 v{VP}, v{V0}, v{V0+1}")
    o(f"  v_mfma_f32_16x16x32_bf16 {v(D1,4)}, {v(vVx+4,4)}, {v(PX,4)}, 0")
    o(f"  v_cvt_pk_bf16_f32 v{VP+1}, v{V0+2}, v{V0+3}")
    o(f"  v_add_f32_dpp v{LA}, v{LA}, v{LA} row_ror:8 row_mask:0xf bank_mask:0xf")
    o(f"  v_mov_b32 v{LB}, v{LA}")
    o(f"  v_cvt_pk_bf16_f32 v{VP+2}, v{V1}, v{V1+1}")
    o(f"  v_mfma_f32_16x16x16_bf16 {v(D0,4)}, {v(VP,2)}, {v(PM,2)}, {v(D0,4)}")
    o(f"  v_cvt_pk_bf16_f32 v{VP+3}, v{V1+2}, v{V1+3}")
    o(f"  v_permlane16_swap_b32 v{LA}, v{LB}")
    o(f"  v_add_f32 v{LA}, v{LA}, v{LB}")
    o(f"  v_mov_b32 v{LB}, v{LA}")
    o(f"  v_mfma_f32_16x16x16_bf16 {v(D1,4)}, {v(VP+2,2)}, {v(PM,2)}, {v(D1,4)}")
    o(f"  s_add_u32 s{sVm}, s{sKm}, {VM-KM}")
    o(f"  s_cmp_eq_u32 s{sStep}, 63")
    o(f"  s_cbranch_scc1 {L}_done")
    o(f"  v_permlane32_swap_b32 v{LA}, v{LB}")
    o(f"  v_add_f32 v{LA}, v{LA}, v{LB}")
    o(f"  v_rcp_f32 v78, v{LA}")
    issue_frag()
    issue_frag()
    for i in range(0, 8, 2):
        o(f"  v_pk_mul_f32 {v(D0+i,2)}, {v(D0+i,2)}, {v(78,2)} op_sel_hi:[1,0]")
    o(f"  v_cvt_pk_bf16_f32 v{O0}, v{D0}, v{D0+1}")
    o(f"  v_cvt_pk_bf16_f32 v{O0+1}, v{D0+2}, v{D0+3}")
    o(f"  ds_write_b64 v{vOw}, {v(O0,2)}"); lg.issue("Ow0")
    o(f"  v_cvt_pk_bf16_f32 v{O0+2}, v{D1}, v{D1+1}")
    o(f"  v_cvt_pk_bf16_f32 v{O0+3}, v{D1+2}, v{D1+3}")
    o(f"  ds_write_b64 v{vOw}, {v(O0+2,2)} offset:512"); lg.issue("Ow1")
    o(f"  v_add_u32 v78, 0x10000, v{vXw}")
    o(f"  buffer_store_dwordx4 {v(VP,4)}, v{vA}, {WSr}, s{sVm} offen {PUBV}")
    issue_frag(); issue_frag()
    lg.wait("Ow1")
    o("  s_barrier")
    stamp(3)
    o.c("E phase")
    B = [46, 50, 54, 58]
    for k in range(4):
        dsr(B[k], vA, L_OEX + (k//2)*1024 + (k%2)*128, f"ob{k}")
    issue_frag(); issue_frag()
    D = [30, 34]
    PK, PKB = 62, 74
    for tl in range(9):
        post = []
        d = D[tl % 2]
        pend = []
        if tl >= 1:
            prev = tl - 1
            dd = D[prev % 2]; x = prev % 2; p = prev // 2
            pk = PK if p % 2 == 0 else PKB
            pend = [f"  v_cvt_pk_bf16_f32 v{pk+2*x}, v{dd}, v{dd+1}", f"  v_cvt_pk_bf16_f32 v{pk+2*x+1}, v{dd+2}, v{dd+3}"]
            if x == 1 and p % 2 == 1:
                post = [f"  v_mov_b32_dpp v{PK+i}, v{PKB+i} row_ror:8 row_mask:0xf bank_mask:0xc" for i in range(4)]
                post.append(f"  buffer_store_dwordx4 {v(PK,4)}, v{vA}, {WSr}, s{sH1st} offen offset:{1024*(p//2)} {stf}")
            else:
                post = []
        if tl >= 1: lg.wait(f"wo{4*tl+3}")
        for n_ in range(4):
            kap = n_
            if tl == 0: lg.wait(f"ob{kap}")
            sl, n = slot_of[(tl, kap)]
            if tl == 0: lg.wait(f"wo{n}")
            cin = "0" if n_ == 0 else v(d, 4)
            o(f"  v_mfma_f32_16x16x32_bf16 {v(d,4)}, {v(sl,4)}, {v(B[kap],4)}, {cin}")
            issue_frag()
            if n_ == 2 and pend:
                for x_ in pend: o(x_)
                pend = []
            if n_ == 3 and post:
                for x_ in post: o(x_)
                post = []
    for r in range(38, 46): o(f"  v_mov_b32 v{r}, 0")
    d = D[0]
    o(f"  v_cvt_pk_bf16_f32 v{PK}, v{d}, v{d+1}")
    o(f"  v_cvt_pk_bf16_f32 v{PK+1}, v{d+2}, v{d+3}")
    o(f"  buffer_store_dwordx2 {v(PK,2)}, v{vH1}, {WSr}, s{sH1h} offen {stf}")
    assert not lg.q, lg.q
    stamp(4)
    for r in list(range(30, 38)) + list(range(46, 54)): o(f"  v_mov_b32 v{r}, 0")
    nop(o, fdelay)
    o.c("F: reducers")
    vmst = f"  buffer_store_dwordx4 {v(66,4)}, v{vA}, {WSr}, s{sVm} offen {PUBV}"
    o(f"  s_cmp_eq_u32 s{sIsRed}, 0")
    o(f"  s_cbranch_scc1 {L}_nred")
    o(f"  s_add_u32 s{sT1}, s{sH1ld}, {8*H1_PROD}")
    o(f"  s_add_u32 s{sT2}, s{sH1ld}, {16*H1_PROD}")
    o(f"  s_add_u32 s{sT3}, s{sH1ld}, {24*H1_PROD}")
    FS1, FS2 = [54, 58, 62, 74], [14, 18, 22, 26]
    def f_loads(S):
        for k, so in enumerate((sH1ld, sT1, sT2, sT3)):
            o(f"  buffer_load_dwordx4 {v(S[k],4)}, v{vR}, {WSr}, s{so} offen sc1")
    def f_check(S, younger):
        for k in range(4):
            o(f"  s_waitcnt vmcnt({younger+3-k})")
            if timing and k == 3: o("  s_memtime s[66:67]")
            o(f"  v_mfma_f32_16x16x32_bf16 {v(70,4)}, {v(vSelR,4)}, {v(S[k],4)}, {'0' if k == 0 else v(70,4)}")
        nop(o, 8)
        o(f"  v_cmp_u_f32 vcc, v70, v70")
        for i_ in range(4):
            o(f"  v_add_f32_dpp v{70+i_}, v{70+i_}, v{70+i_} row_ror:8 row_mask:0xf bank_mask:0xf")
        o(f"  v_cvt_pk_bf16_f32 v66, v70, v71")
        o(f"  v_cvt_pk_bf16_f32 v67, v72, v73")
    def f_cnt():
        if timing: o("  s_add_u32 s80, s80, 1\n  s_memtime s[64:65]")
        o(f"  s_add_u32 s{sPoll}, s{sPoll}, 1")
        o(f"  s_cmp_gt_u32 s{sPoll}, {POLL_LIMIT}")
        o(f"  s_cbranch_scc1 {L}_bail")
    if timing: o("  s_add_u32 s80, s80, 1\n  s_memtime s[64:65]")
    f_loads(FS1)
    nop(o, FSTAG)
    f_loads(FS2)
    o(f"{L}_ra:")
    f_check(FS1, 4)
    o(f"  s_cbranch_vccz {L}_rok")
    f_loads(FS1); f_cnt()
    f_check(FS2, 4)
    o(f"  s_cbranch_vccz {L}_rok")
    f_loads(FS2); f_cnt()
    o(f"  s_branch {L}_ra")
    o(f"{L}_rok:")
    o(f"  buffer_store_dwordx2 {v(66,2)}, v{vP}, {WSr}, s{sH2pub} offen {stf}")
    o(f"{L}_nred:")
    o(f"{L}_cons:")
    o(f"  s_barrier")
    stamp(5)
    o.c("A: gather mem(s+1); per-step scalar updates double as the publish->visible delay")
    o(f"  s_add_u32 s{sH2pl}, s{sH2pub}, s{sW1024}")
    o(f"  s_add_u32 s{sT1}, s{sH2pl}, 4096")
    o(f"  s_add_u32 s{sT2}, s{sH2pub}, 8192")
    o(f"  s_add_u32 s{sStep}, s{sStep}, 1")
    for x in [f"  s_add_u32 s{sH1ld}, s{sH1ld}, {H1_SLOT}", f"  s_add_u32 s{sKm}, s{sKm}, {32*4096}",
             f"  s_add_u32 s{sH1st}, s{sH1ld}, s{sH1so}", f"  s_add_u32 s{sH1h}, s{sH1ld}, s{sH1ho}",
             f"  s_add_u32 s{sH2pub}, s{sH2pub}, {H2_SLOT}"]:
        o(x)
    nop(o, adelay)
    if timing:
        lab2 = o.label("nort")
        o(f"  s_memrealtime s[82:83]\n  s_memtime s[98:99]\n  s_waitcnt lgkmcnt(0)")
        o(f"  s_lshl_b32 s{sT0}, s{sH}, 2\n  s_add_u32 s{sT0}, s{sT0}, s{sWv_}\n  s_cmp_eq_u32 s{sT0}, 0\n  s_cbranch_scc0 {lab2}")
        o(f"  s_lshl_b32 s{sT0}, s{sStep}, 3\n  s_add_u32 s{sT0}, s{sT0}, {FLAGS + 0x3000}\n  v_mov_b32 v74, s82\n  v_mov_b32 v75, s98\n  v_mov_b32 v76, s{sT0}\n  buffer_store_dwordx2 v[74:75], v76, {WSr}, 0 offen")
        for k_, sr_ in enumerate([86, 88, 90, 92, 94, 96]):
            o(f"  s_lshl_b32 s{sT0}, s{sStep}, 5\n  s_add_u32 s{sT0}, s{sT0}, {FLAGS + 0x70000 + 4*k_}\n  v_mov_b32 v74, s{sr_}\n  v_mov_b32 v76, s{sT0}\n  buffer_store_dword v74, v76, {WSr}, 0 offen")
        o.put(lab2)
        lab = o.label("nost")
        o(f"  s_cmp_eq_u32 s{sStep}, 21")
        o(f"  s_cbranch_scc0 {lab}")
        for k, sr in enumerate([86,88,90,92,94,96,98,64,66,68,70,72]):
            o(f"  v_mov_b32 v74, s{sr}")
            o(f"  s_lshl_b32 s{sT0}, s{sH}, 2\n  s_add_u32 s{sT0}, s{sT0}, s{sWv_}\n  s_lshl_b32 s{sT0}, s{sT0}, 6\n  s_add_u32 s{sT0}, s{sT0}, {FLAGS + 4096 + 4*k}")
            o(f"  v_mov_b32 v75, s{sT0}")
            o(f"  buffer_store_dword v74, v75, {WSr}, 0 offen")
        o.put(lab)
    for wv in range(3):
        o(f"  s_cmp_eq_u32 s{sWv_}, {wv}\n  s_cbranch_scc1 {L}_av{wv}")
    o(f"  s_branch {L}_av3")
    o(f"{L}_bail:")
    o(f"  s_endpgm")
    o(f"{L}_done:")
    o(f"  buffer_store_dwordx4 {v(66,4)}, v{vA}, {WSr}, s{sVm} offen sc1")
    o(f"  s_waitcnt vmcnt(0) lgkmcnt(0)")
    o(f"  s_barrier")
    o(f"  s_cmp_lg_u32 s{sWv_}, 0\n  s_cbranch_scc1 {L}_fin")
    o(f"  v_mov_b32 v78, 64")
    o(f"  v_mov_b32 v77, s{sFlagOff}")
    o(f"  s_mov_b64 exec, 1\n  buffer_store_dword v78, v77, {WSr}, 0 offen sc1\n  s_mov_b64 exec, -1")
    o(f"  s_waitcnt vmcnt(0)")
    o(f"{L}_fin:")

def emit_init(o, L):
    WSr = f"s[{sWS}:{sWS+3}]"
    lab = o.label("noh2")
    o(f"""  s_lshl_b32 s{sT0}, s{sH}, 2
  s_add_u32 s{sT0}, s{sT0}, s{sWv_}
  s_lshl_b32 s{sFlagOff}, s{sH}, 7
  s_add_u32 s{sFlagOff}, s{sFlagOff}, {RFLAG}
  s_cmp_lg_u32 s{sWv_}, 0
  s_cselect_b32 s{sFlagOff}, 0x80000000, s{sFlagOff}
{lab}:""")

def emit_early(o):
    WSr = f"s[{sWS}:{sWS+3}]"
    o(f"""  ; scalar state for step 0
  s_lshl_b32 s{sKoff}, s{sH}, 13
  s_lshl_b32 s{sT1}, s{sWv_}, 11
  s_add_u32 s{sKoff}, s{sKoff}, s{sT1}
  s_lshl_b32 s{sKm}, s{sH}, 12
  s_add_u32 s{sKm}, s{sKm}, s{sW1024}
  s_add_u32 s{sKm}, s{sKm}, {KM}
  s_mov_b32 s{sH1ld}, {H1}
  s_mul_i32 s{sT1}, s{sH}, {H1_PROD}
  s_lshl_b32 s{sT2}, s{sWv_}, 11
  s_add_u32 s{sH1so}, s{sT1}, s{sT2}
  s_lshr_b32 s{sT2}, s{sWv_}, 1
  s_lshl_b32 s{sT2}, s{sT2}, 10
  s_add_u32 s{sH1ho}, s{sT1}, s{sT2}
  s_add_u32 s{sH1ho}, s{sH1ho}, 8192
  s_and_b32 s{sT2}, s{sWv_}, 1
  s_lshl_b32 s{sT2}, s{sT2}, 3
  s_add_u32 s{sH1ho}, s{sH1ho}, s{sT2}
  s_add_u32 s{sH1st}, s{sH1ld}, s{sH1so}
  s_add_u32 s{sH1h}, s{sH1ld}, s{sH1ho}
  s_mov_b32 s{sH2pub}, {H2 + H2_SLOT}
  v_bfe_u32 v47, v{vA}, 4, 5
  v_mul_u32_u24 v47, {H1_PROD}, v47
  v_add_u32 v47, s{sUnit}, v47
  buffer_load_dword v14, v47, {WSr}, s{sH1ld} offen
  s_add_u32 s{sT0}, s{sH2pub}, s{sW1024}
  v_lshlrev_b32 v47, 3, v{vA}
  buffer_load_dword v14, v47, {WSr}, s{sT0} offen
  s_add_u32 s{sT1}, s{sKoff}, {VBUF-KBUF}
  buffer_load_dwordx4 {v(vKx,4)}, v{vA}, {WSr}, s{sKoff} offen
  buffer_load_dwordx4 {v(vKx+4,4)}, v{vA}, {WSr}, s{sKoff} offen offset:1024
  buffer_load_dwordx4 {v(vVx,4)}, v{vA}, {WSr}, s{sT1} offen
  buffer_load_dwordx4 {v(vVx+4,4)}, v{vA}, {WSr}, s{sT1} offen offset:1024
""")

def emit_mem0(o, mid=None):
    WSr = f"s[{sWS}:{sWS+3}]"
    o.c("mem0 -> LDS: piece (j=8c+2g+u, t) = mem0[t][8j..8j+8)")
    o(f"""  s_mov_b32 s64, s48
  s_and_b32 s65, s49, 0xffff
  s_mov_b32 s66, 9216
  s_mov_b32 s67, 0x20000
  v_lshrrev_b32 v62, 4, v{vA}         ; lane
  v_and_b32 v63, 7, v62               ; t
  v_lshrrev_b32 v64, 3, v62           ; 2g+u
  v_mul_u32_u24 v63, 1152, v63
  v_lshl_add_u32 v63, v64, 4, v63     ; t*1152 + (2g+u)*16
  s_lshl_b32 s{sT0}, s{sWv_}, 7
  s_add_u32 s{sT1}, s{sT0}, 512
  v_mov_b32 v53, v63
  buffer_load_dwordx4 {v(58,4)}, v53, s[64:67], s{sT0} offen
  buffer_load_dwordx4 {v(62,4)}, v53, s[64:67], s{sT1} offen
  buffer_load_dwordx4 {v(66,4)}, v53, s[64:67], 0 offen offset:1024""")
    if mid: mid()
    o(f"""  s_waitcnt vmcnt(0)
  s_barrier
  ds_write_b128 v{vXw}, {v(58,4)} offset:{L_MEM}
  ds_write_b128 v{vXw}, {v(62,4)} offset:{L_MEM+4096}
  ds_write_b128 v{vA}, {v(66,4)} offset:{L_MEM+8192}""")
    for r in range(30, 54):
        o(f"  v_mov_b32 v{r}, 0")
    o(f"""  s_mov_b32 s{sStep}, 0
  s_mov_b32 s{sPoll}, 0
  s_mov_b32 s80, 0
  s_mov_b32 s81, 0
  s_waitcnt vmcnt(0) lgkmcnt(0)
  v_mov_b32 v{vDummy}, 128
  s_barrier""")
```

```python
from asmlib import *

TLBW = False
COOP = True
NOPROC = False
MAXIN_ = 14
ORDER = 'qkov'
L_MEM, L_XEX, L_MEX, L_OEX, L_W = 0, 9216, 13312, 14336, 16384

vA, vXw, vM, vOw, vR, vP, vIdx, vH1 = 0, 1, 2, 3, 4, 5, 6, 7
vSel, vSelR, vKx, vVx = 8, 10, 14, 22
sW = 4
sWS = 8
sH, sWv_, sStep = 12, 13, 14
sC = 15
sKoff, sKm, sH1st, sH1h, sH1ld, sH2pub, sH2pl = 16, 17, 18, 19, 20, 21, 22
sIsRed, sJ, sT0, sT1, sT2, sT3 = 23, 24, 25, 26, 27, 28
sPoll = 29
sH1rs, sH2rs = 30, 31
sFlagOff = 32
sX1, sX2, sX3 = 33, 34, 35
sW256 = 36
sMaskMw = 38
sPi0, sPih = 40, 41
sH1so, sH1ho, sW1024 = 42, 43, 37
sUnit = 45
sVm = 47
sH2tch = 46
sTm = 44

def frag_q(tau, c): return ('a', (tau*9 + c)*8)
def frag_k(tau, c):
    f = tau*9 + c
    return ('a', 144 + 8*f) if f < 14 else ('v', 80 + 8*(f-14))
def frag_v(tau, c):
    return ('v', 112 + 72*tau + 8*c)
def frag_o(tl, kap):
    return ('lds', 4*tl + kap)

def lds_frag_addr(f):
    off = L_W + f*4096
    return off // 65536, off % 65536

def nop(o, n):
    while n > 0:
        k = min(n, 16)
        o(f"  s_nop {k-1}")
        n -= k

def emit_consts(o):
    o.c("---- R lane constants; v0 holds lane id on entry (0..63), s13 = wave")
    o(f"""
  v_mov_b32 v30, v0                 ; lane
  v_and_b32 v31, 15, v30            ; c
  v_lshrrev_b32 v32, 4, v30         ; g
  v_and_b32 v33, 7, v30             ; t
  v_bfe_u32 v34, v30, 3, 1          ; u
  v_lshlrev_b32 v{vA}, 4, v30
  s_lshl_b32 s{sT0}, s{sWv_}, 10
  v_add_u32 v{vXw}, s{sT0}, v{vA}
  v_and_b32 v35, 1, v32             ; g%2
  v_lshlrev_b32 v{vM}, 7, v35
  v_lshl_add_u32 v{vM}, v33, 4, v{vM}
  ; vOw = (w/2)*1024 + (g/2)*256 + (w%2)*128 + t*16 + (g%2)*8 ; u==0 only
  s_lshr_b32 s{sT0}, s{sWv_}, 1
  s_lshl_b32 s{sT0}, s{sT0}, 10
  s_and_b32 s{sT1}, s{sWv_}, 1
  s_lshl_b32 s{sT1}, s{sT1}, 7
  s_add_u32 s{sT0}, s{sT0}, s{sT1}
  s_add_u32 s{sT0}, s{sT0}, {L_OEX}
  v_lshrrev_b32 v36, 1, v32         ; g/2
  v_lshlrev_b32 v{vOw}, 8, v36
  v_lshl_add_u32 v{vOw}, v33, 4, v{vOw}
  v_lshl_add_u32 v{vOw}, v35, 3, v{vOw}
  v_add_u32 v{vOw}, s{sT0}, v{vOw}
  v_mov_b32 v37, 0x7ffffff0
  v_cmp_eq_u32 vcc, 0, v34
  s_nop 1
  v_cndmask_b32 v{vOw}, v37, v{vOw}, vcc
  v_mov_b32 v37, 0x80000000
  v_cndmask_b32 v{vH1}, v37, v{vA}, vcc
  ; idx
  v_mov_b32 v38, 0x44444444
  v_mov_b32 v39, 0xeeeeeeee
  v_cndmask_b32 v{vIdx}, v39, v38, vcc
  s_lshl_b32 s{sJ}, s{sH}, 1
  s_add_u32 s{sJ}, s{sJ}, s{sWv_}
  s_add_u32 s{sT0}, s{sH}, 64
  s_cmp_eq_u32 s{sWv_}, 2
  s_cselect_b32 s{sJ}, s{sT0}, s{sJ}
  s_cmp_lt_u32 s{sWv_}, 2
  s_cselect_b32 s{sIsRed}, 1, 0
  s_cmp_eq_u32 s{sWv_}, 2
  s_cselect_b32 s{sT0}, 1, 0
  s_cmp_lt_u32 s{sH}, 8
  s_cselect_b32 s{sT1}, 1, 0
  s_and_b32 s{sT0}, s{sT0}, s{sT1}
  s_or_b32 s{sIsRed}, s{sIsRed}, s{sT0}
  s_cmp_eq_u32 s{sIsRed}, 0
  s_cselect_b32 s{sJ}, 0, s{sJ}
  ; unit j=(pi=j/4, g4=j%4): H1 offset of its 128B segment
  s_lshr_b32 s{sT0}, s{sJ}, 2            ; pi
  s_and_b32 s{sT1}, s{sJ}, 3             ; g4
  s_cmp_gt_u32 s{sT0}, 13
  s_cselect_b32 s{sT2}, 2, 0
  s_cmp_gt_u32 s{sT0}, 4
  s_cselect_b32 s{sT3}, 1, 0
  s_cmp_gt_u32 s{sT0}, 13
  s_cselect_b32 s{sT3}, 2, s{sT3}
  s_sub_u32 s{sT2}, s{sT0}, s{sT3}
  s_lshr_b32 s{sT3}, s{sT2}, 1
  s_lshl_b32 s{sT3}, s{sT3}, 10          ; (q/2)*1024
  s_and_b32 s{sT2}, s{sT2}, 1
  s_lshl_b32 s{sT2}, s{sT2}, 7           ; (q%2)*128
  s_add_u32 s{sT3}, s{sT3}, s{sT2}
  s_cmp_eq_u32 s{sT0}, 4
  s_cselect_b32 s{sT3}, 8192, s{sT3}
  s_cmp_eq_u32 s{sT0}, 13
  s_cselect_b32 s{sT3}, 9216, s{sT3}
  s_lshl_b32 s{sT1}, s{sT1}, 8
  s_add_u32 s{sT0}, s{sT3}, s{sT1}       ; + g4*256
  s_lshr_b32 s{sT1}, s{sJ}, 2
  s_cmp_eq_u32 s{sT1}, 4
  s_cselect_b32 s{sT2}, 2, s{sIsRed}
  s_cmp_eq_u32 s{sT1}, 13
  s_cselect_b32 s{sT2}, 2, s{sT2}
  s_cmp_eq_u32 s{sIsRed}, 0
  s_cselect_b32 s{sIsRed}, 0, s{sT2}
  v_lshl_add_u32 v40, v34, 2, v32
  v_mul_u32_u24 v40, {H1_PROD}, v40
  v_lshl_add_u32 v40, v33, 4, v40
  v_add_u32 v{vR}, s{sT0}, v40
  s_cmp_eq_u32 s{sIsRed}, 0
  s_cselect_b32 s{sT1}, 0x80000000, 0
  s_cselect_b32 s{sUnit}, 0x80000000, s{sT0}
  v_lshlrev_b32 v40, 4, v33
  v_lshl_add_u32 v40, v32, 3, v40
  s_lshl_b32 s{sT0}, s{sJ}, 7
  v_add_u32 v40, s{sT0}, v40
  v_and_b32 v41, 40, v30
  v_cmp_eq_u32 vcc, 0, v41
  s_nop 1
  v_cndmask_b32 v{vP}, v37, v40, vcc
  v_or_b32 v{vP}, s{sT1}, v{vP}
  s_mov_b64 s[{sMaskMw}:{sMaskMw+1}], vcc     ; lanes u==0,g<2
  ; Sel: e = c - 4*(g%2)
  v_lshlrev_b32 v40, 2, v35
  v_sub_u32 v40, v31, v40
  v_mov_b32 v41, 0x3f80
  v_mov_b32 v42, 0x3f800000
  v_mov_b32 v{vSel}, 0
  v_mov_b32 v{vSel+1}, 0
  v_cmp_eq_u32 vcc, 0, v40
  s_nop 1
  v_cndmask_b32 v{vSel}, v{vSel}, v41, vcc
  v_cmp_eq_u32 vcc, 1, v40
  s_nop 1
  v_cndmask_b32 v{vSel}, v{vSel}, v42, vcc
  v_cmp_eq_u32 vcc, 2, v40
  s_nop 1
  v_cndmask_b32 v{vSel+1}, v{vSel+1}, v41, vcc
  v_cmp_eq_u32 vcc, 3, v40
  s_nop 1
  v_cndmask_b32 v{vSel+1}, v{vSel+1}, v42, vcc""")
    for r in range(4):
        o(f"""  v_mov_b32 v{vSelR+r}, 0
  v_cmp_eq_u32 vcc, {2*r}, v31
  s_nop 1
  v_cndmask_b32 v{vSelR+r}, v{vSelR+r}, v41, vcc
  v_cmp_eq_u32 vcc, {2*r+1}, v31
  s_nop 1
  v_cndmask_b32 v{vSelR+r}, v{vSelR+r}, v42, vcc""")
    o(f"""
  s_lshl_b32 s{sW1024}, s{sWv_}, 10
  s_lshl_b32 s{sH2tch}, s{sH}, 2
  s_add_u32 s{sH2tch}, s{sH2tch}, s{sWv_}
  s_lshl_b32 s{sH2tch}, s{sH2tch}, 6
  s_add_u32 s{sH2tch}, s{sH2tch}, {H2_SLOT}
  s_mov_b32 s{sC}, 0x3e0293ee        ; 128^-0.5 * log2(e) = 0.12751743
  s_add_u32 s{sT0}, s{sWv_}, 1
  s_and_b32 s{sT0}, s{sT0}, 3
  s_lshl_b32 s{sX1}, s{sT0}, 10
  s_add_u32 s{sX1}, s{sX1}, {L_XEX}
  s_add_u32 s{sT0}, s{sWv_}, 2
  s_and_b32 s{sT0}, s{sT0}, 3
  s_lshl_b32 s{sX2}, s{sT0}, 10
  s_add_u32 s{sX2}, s{sX2}, {L_XEX}
  s_add_u32 s{sT0}, s{sWv_}, 3
  s_and_b32 s{sT0}, s{sT0}, 3
  s_lshl_b32 s{sX3}, s{sT0}, 10
  s_add_u32 s{sX3}, s{sX3}, {L_XEX}
  s_lshl_b32 s{sW256}, s{sWv_}, 8
  s_add_u32 s{sW256}, s{sW256}, {L_MEX}
  s_mul_i32 s{sPi0}, s{sWv_}, 9
  s_add_u32 s{sPi0}, s{sPi0}, 1
  s_lshr_b32 s{sPi0}, s{sPi0}, 1
  s_lshr_b32 s{sPih}, s{sWv_}, 1
  s_mul_i32 s{sPih}, s{sPih}, 9
  s_add_u32 s{sPih}, s{sPih}, 4
""")

def emit_weights(o, hook=None, hook_at=28):
    o.c("---- weight prologue")
    vLdW, vLdO, vLdOh, vScr, vT, vT2, vT2h, vF1, vF2 = 30, 31, 32, 33, 34, 35, 36, 37, 38
    TMP = 40
    o(f"""
  v_lshrrev_b32 v46, 4, v{vA}        ; lane
  v_lshrrev_b32 v45, 2, v46          ; l/4
  v_and_b32 v44, 3, v46              ; l%4
  v_lshlrev_b32 v{vLdW}, 13, v45
  v_lshl_add_u32 v{vLdW}, v44, 4, v{vLdW}      ; (l/4)*8192 + (l%4)*16
  v_mul_u32_u24 v{vLdOh}, 1152, v45
  v_lshl_add_u32 v{vLdOh}, v44, 4, v{vLdOh}    ; (l/4)*1152 + (l%4)*16
  v_lshrrev_b32 v43, 3, v46          ; l/8
  v_and_b32 v42, 7, v46
  v_mul_u32_u24 v{vLdO}, 1152, v43
  v_lshl_add_u32 v{vLdO}, v42, 4, v{vLdO}      ; (l/8)*1152 + (l%8)*16
  s_lshl_b32 s{sT0}, s{sWv_}, 12
  v_add_u32 v{vScr}, s{sT0}, v{vA}             ; scratch + l*16
  ; tr lane decomposition: gb=l/16, r'=(l%16)/4, c'=l%4
  v_lshrrev_b32 v43, 4, v46          ; gb
  v_bfe_u32 v42, v46, 2, 2           ; r'
  ; row = 16*(gb/2) + 4*(gb%2) + 8*(r'/2) + r'%2
  v_lshrrev_b32 v41, 1, v43
  v_lshlrev_b32 v41, 4, v41
  v_and_b32 v40, 1, v43
  v_lshl_add_u32 v41, v40, 2, v41
  v_lshrrev_b32 v40, 1, v42
  v_lshl_add_u32 v41, v40, 3, v41
  v_and_b32 v40, 1, v42
  v_add_u32 v41, v41, v40
  v_lshlrev_b32 v{vT}, 6, v41
  v_lshl_add_u32 v{vT}, v44, 3, v{vT}
  v_add_u32 v{vT}, s{sT0}, v{vT}
  v_lshl_add_u32 v41, v43, 3, v42
  v_lshlrev_b32 v{vT2}, 7, v41
  v_lshl_add_u32 v{vT2}, v44, 4, v{vT2}
  v_add_u32 v{vT2}, s{sT0}, v{vT2}
  v_lshlrev_b32 v{vT2h}, 6, v41
  v_lshl_add_u32 v{vT2h}, v44, 4, v{vT2h}
  v_add_u32 v{vT2h}, s{sT0}, v{vT2h}
  s_and_b32 s{sT1}, s{sWv_}, 1
  s_lshl_b32 s{sT1}, s{sT1}, 3
  v_add_u32 v{vT2h}, s{sT1}, v{vT2h}
  v_add_u32 v{vF1}, 0x10000, v{vXw}
  v_add_u32 v{vF2}, 0x20000, v{vXw}
""")
    vWr, vRd = 39, 43
    if COOP:
        o(f"""  v_lshrrev_b32 v48, 4, v{vA}        ; lane
  v_lshrrev_b32 v49, 4, v48          ; l/16
  v_and_b32 v50, 15, v48             ; l%16
  v_lshlrev_b32 v{vLdW}, 13, v49
  v_lshl_add_u32 v{vLdW}, v50, 4, v{vLdW}     ; (l/16)*8192 + (l%16)*16
  s_lshl_b32 s{sT0}, s{sWv_}, 12""")
        for i_ in range(4):
            o(f"""  v_add_u32 v51, {4*i_}, v49
  v_xor_b32 v51, v51, v50
  v_lshlrev_b32 v51, 4, v51
  v_lshl_add_u32 v51, v49, 8, v51
  v_add_u32 v51, {1024*i_}, v51
  v_add_u32 v{vWr+i_}, s{sT0}, v51""")
        o(f"""  v_bfe_u32 v51, v48, 2, 2           ; r'
  v_lshrrev_b32 v52, 1, v49          ; gb/2
  v_lshlrev_b32 v52, 4, v52
  v_and_b32 v53, 1, v49
  v_lshl_add_u32 v52, v53, 2, v52
  v_lshrrev_b32 v53, 1, v51
  v_lshl_add_u32 v52, v53, 3, v52
  v_and_b32 v53, 1, v51
  v_add_u32 v52, v52, v53            ; rowpart
  v_and_b32 v54, 3, v48              ; c'
  v_lshrrev_b32 v55, 1, v54          ; c'/2
  v_and_b32 v54, 1, v54
  v_lshlrev_b32 v54, 3, v54          ; (c'%2)*8
  s_lshl_b32 s{sT1}, s{sWv_}, 2""")
        for off2 in range(2):
            for tau in range(2):
                o(f"""  v_add_u32 v56, {2*off2}, v52
  v_and_b32 v57, 15, v56
  v_add_u32 v58, s{sT1}, v55
  v_add_u32 v58, {2*tau}, v58
  v_xor_b32 v57, v57, v58
  v_lshlrev_b32 v57, 4, v57
  v_lshl_add_u32 v57, v56, 8, v57
  v_add_u32 v{vRd+2*off2+tau}, v57, v54""")
    def ldsaddr(f):
        b, imm = lds_frag_addr(f)
        return (vXw, vF1, vF2)[b], imm
    chunks = []
    for mt in ORDER:
        if mt == 'o':
            for kap in range(4):
                chunks += [('o', kap, 0), ('o', kap, 1), ('oh', kap)]
        else:
            for c in range(9): chunks.append((mt, c))
    def dests(ch):
        if ch[0] == 'q': return [frag_q(0, ch[1]), frag_q(1, ch[1])]
        if ch[0] == 'k': return [frag_k(0, ch[1]), frag_k(1, ch[1])]
        if ch[0] == 'v': return [frag_v(0, ch[1]), frag_v(1, ch[1])]
        if ch[0] == 'o': return [frag_o(4*ch[2]+i, ch[1]) for i in range(4)]
        return [frag_o(8, ch[1])]
    def dest_vregs(ch):
        n = 8 if ch[0] in 'qkv' else 4
        r = set()
        for d in dests(ch):
            if d[0] == 'v': r |= set(range(d[1], d[1]+n))
        return r
    bufs = [48, 64] + list(range(80, 256, 16))
    n = len(chunks)
    MAXIN = MAXIN_
    used_final = set()
    assign = {}
    inflight = []
    nxt = 0
    sched = []
    final_before = []
    acc = set()
    for m in range(n):
        final_before.append(set(acc))
        acc |= dest_vregs(chunks[m])
    proc = 0
    busy = {}
    while proc < n:
        while nxt < n and len(inflight) < MAXIN:
            cand = None
            for b in bufs:
                if b in busy: continue
                rs = set(range(b, b+16))
                if rs & final_before[nxt]: continue
                cand = b; break
            if cand is None: break
            busy[cand] = nxt; assign[nxt] = cand; inflight.append(nxt); sched.append(('issue', nxt)); nxt += 1
        sched.append(('proc', proc))
        if proc >= 1: del busy[assign[proc-1]]
        inflight.remove(proc)
        proc += 1
    def nloads(ch): return 2 if ch[0] == 'oh' else 4
    srd_cur = None
    ptr = {'q': 50, 'k': 52, 'v': 54, 'o': 56, 'oh': 56}
    srd = {'q': 64, 'k': 68, 'v': 72, 'o': 76, 'oh': 76}
    for k_, p in (('q', 50), ('k', 52), ('v', 54), ('o', 56)):
        o(f"""  s_mov_b32 s{srd[k_]}, s{p}
  s_and_b32 s{srd[k_]+1}, s{p+1}, 0xffff
  s_mov_b32 s{srd[k_]+2}, 4718592
  s_mov_b32 s{srd[k_]+3}, 0x20000""")
    o(f"""  s_lshl_b32 s80, s{sH}, 8
  s_lshl_b32 s81, s{sWv_}, {17 if COOP else 6}
  s_add_u32 s80, s80, s81
  s_mul_i32 s82, s{sH}, {128*1152}
  s_lshl_b32 s83, s{sPi0}, 6
  s_add_u32 s83, s83, s82
  s_lshl_b32 s84, s{sPih}, 6
  s_add_u32 s84, s84, s82""")
    outstanding = []
    for kind, m in sched:
        ch = chunks[m]; b = assign[m]
        if kind == 'issue':
            if ch[0] in 'qkv':
                for i in range(4):
                    o(f"  s_add_u32 s85, s80, {(64*ch[1] + (4 if COOP else 16)*i)*8192}")
                    o(f"  buffer_load_dwordx4 {v(b+4*i,4)}, v{vLdW}, s[{srd[ch[0]]}:{srd[ch[0]]+3}], s85 offen")
            elif ch[0] == 'o':
                for i in range(4):
                    o(f"  s_add_u32 s85, s83, {(32*ch[1] + 8*i)*1152 + ch[2]*128}")
                    o(f"  buffer_load_dwordx4 {v(b+4*i,4)}, v{vLdO}, s[76:79], s85 offen")
            else:
                for i in range(2):
                    o(f"  s_add_u32 s85, s84, {(32*ch[1] + 16*i)*1152}")
                    o(f"  buffer_load_dwordx4 {v(b+4*i,4)}, v{vLdOh}, s[76:79], s85 offen")
            outstanding.append(m)
        else:
            if hook and m == hook_at: hook()
            idx = outstanding.index(m)
            later = sum(nloads(chunks[x]) for x in outstanding[idx+1:])
            o(f"  s_waitcnt vmcnt({min(later,63)})")
            outstanding = outstanding[idx+1:]
            if NOPROC: continue
            o("  s_waitcnt lgkmcnt(0)")
            coop = COOP and ch[0] in 'qkv'
            if coop or (COOP and m > 0 and chunks[m-1][0] in 'qkv'): o("  s_barrier")
            for i in range(nloads(ch)):
                o(f"  ds_write_b128 v{vWr+i if coop else vScr}, {v(b+4*i,4)} offset:{0 if coop else 1024*i}")
            if coop: o("  s_waitcnt lgkmcnt(0)\n  s_barrier")
            if ch[0] in 'qkv':
                for tau, d in enumerate(dests(ch)):
                    assert d[0] != 'lds'
                    for r_, off in ((0, 0), (2, 2), (4, 32), (6, 34)):
                        if coop:
                            o(f"  ds_read_b64_tr_b16 {reg((d[0], d[1]+r_), 2)}, v{vRd + 2*((off % 16)//2) + tau} offset:{(off // 16)*16*256}")
                        else:
                            o(f"  ds_read_b64_tr_b16 {reg((d[0], d[1]+r_), 2)}, v{vT} offset:{off*64 + 32*tau}")
            elif ch[0] == 'o':
                for i, d in enumerate(dests(ch)):
                    pim, x = i // 2, i % 2
                    o(f"  ds_read_b64_tr_b16 {v(b+4*i,2)}, v{vT2} offset:{64*pim + 8*x}")
                    o(f"  ds_read_b64_tr_b16 {v(b+4*i+2,2)}, v{vT2} offset:{512 + 64*pim + 8*x}")
                o("  s_waitcnt lgkmcnt(0)")
                for i, d in enumerate(dests(ch)):
                    ar, imm = ldsaddr(d[1])
                    o(f"  ds_write_b128 v{ar}, {v(b+4*i,4)} offset:{imm}")
            else:
                d = dests(ch)[0]
                o(f"  ds_read_b64_tr_b16 {v(b,2)}, v{vT2h} offset:0")
                o(f"  ds_read_b64_tr_b16 {v(b+2,2)}, v{vT2h} offset:256")
                o("  s_waitcnt lgkmcnt(0)")
                ar, imm = ldsaddr(d[1])
                o(f"  ds_write_b128 v{ar}, {v(b,4)} offset:{imm}")
    o("  s_waitcnt lgkmcnt(0)")


Q0, Q1, K0, K1, V0, V1 = 30, 34, 38, 42, 46, 50
W = [54, 58, 62]
T, U, QS = 66, 70, 74

class Cnt:
    def __init__(self, o, name, maxv):
        self.o, self.name, self.maxv, self.q = o, name, maxv, []
    def issue(self, tag):
        self.q.append(tag)
        assert len(self.q) <= self.maxv + 1, (self.name, self.q)
    def wait(self, tag):
        if tag not in self.q: return
        i = len(self.q) - 1 - self.q[::-1].index(tag)
        n = len(self.q) - 1 - i
        self.o(f"  s_waitcnt {self.name}cnt({n})")
        self.q = self.q[i+1:]
    def waitall(self):
        self.o(f"  s_waitcnt {self.name}cnt(0)")
        self.q = []

def smf(o, d, aop, b):
    o(f"  v_smfmac_f32_16x16x64_bf16 {v(d,4)}, {v(aop,4)}, {reg(b,8)}, v{vIdx}")


POLL_LIMIT = 1 << 20
PUBF = 'sc1'
PUBK = 'sc1'
PUBV = 'sc1'
KVF = ''
TCHF = ''
DUALF = True
DUALA = False
FSTAG = 16
ASTAG = 16
KVPOS = 'qk'
KVCNT = None
TOUCH = True
RESETW = False
vDummy = 79

def emit_loop(o, L, stf, timing=False, fdelay=0, adelay=0):
    WSr = f"s[{sWS}:{sWS+3}]"
    lg = Cnt(o, "lgkm", 15)
    def dsr(dst, ar, off, tag):
        o(f"  ds_read_b128 {v(dst,4)}, v{ar} offset:{off}")
        lg.issue(tag)
    def stamp(k):
        if timing:
            o(f"  s_memtime s[{86+2*k}:{87+2*k}]")
    T, U, QS, MW = 66, 70, 74, 78
    o(f"{L}_loop:")
    for wv in range(3):
        o(f"  s_cmp_eq_u32 s{sWv_}, {wv}\n  s_cbranch_scc1 {L}_qv{wv}")
    o(f"  s_branch {L}_qv3")
    side = []
    if KVPOS == 'qk': side += [f"  s_add_u32 s{sT1}, s{sKoff}, {VBUF-KBUF}",
             f"  buffer_load_dwordx4 {v(vKx,4)}, v{vA}, {WSr}, s{sKoff} offen {KVF}", None,
             f"  buffer_load_dwordx4 {v(vKx+4,4)}, v{vA}, {WSr}, s{sKoff} offen offset:1024 {KVF}", None, None,
             f"  buffer_load_dwordx4 {v(vVx,4)}, v{vA}, {WSr}, s{sT1} offen {KVF}", None, None,
             f"  buffer_load_dwordx4 {v(vVx+4,4)}, v{vA}, {WSr}, s{sT1} offen offset:1024 {KVF}", None]
    if KVCNT is not None:
        side += [f"  v_readfirstlane_b32 s{sT0}, v{vDummy}",
                 f"  s_cmp_ge_u32 s{sT0}, 128\n  s_cbranch_scc1 {{LP}}_kv\n"
                 f"  s_add_u32 s{sT0}, s{sStep}, 1\n  s_min_u32 s{sT0}, s{sT0}, 63\n  s_lshr_b32 s{sT0}, s{sT0}, 2\n  s_lshl_b32 s{sT0}, s{sT0}, 7\n  s_add_u32 s{sT0}, s{sT0}, {KVCNT}\n"
                 f"  v_mov_b32 v72, s{sT0}\n{{LP}}_kvp:\n  buffer_load_dword v73, v72, {WSr}, 0 offen sc1\n  s_waitcnt vmcnt(0)\n  v_readfirstlane_b32 s{sT0}, v73\n  s_add_u32 s{sPoll}, s{sPoll}, 1\n  s_cmp_gt_u32 s{sPoll}, {POLL_LIMIT}\n  s_cbranch_scc1 {L}_bail\n  s_cmp_ge_u32 s{sT0}, 128\n  s_cbranch_scc0 {{LP}}_kvp\n{{LP}}_kv:"]
    side += [f"  v_bfe_u32 v72, v{vA}, 4, 5", f"  v_lshlrev_b32 v72, 6, v72", f"  v_lshrrev_b32 v73, 9, v{vA}", f"  v_lshl_add_u32 v72, v73, 24, v72",
             f"  s_add_u32 s{sKoff}, s{sKoff}, {32*8192}", f"  buffer_load_dword v{vDummy}, v72, {WSr}, s{sKoff} offen {TCHF}"]
    side += [f"  v_bfe_u32 v73, v{vA}, 4, 5", f"  v_mul_u32_u24 v73, {H1_PROD}, v73", f"  v_lshrrev_b32 v72, 9, v{vA}", f"  v_lshl_add_u32 v73, v72, 6, v73", f"  v_add_u32 v73, s{sUnit}, v73",
             f"  s_add_u32 s{sT0}, s{sH1ld}, {H1_SLOT}", f"  buffer_load_dword v{vDummy}, v73, {WSr}, s{sT0} offen {TCHF}",
             f"  s_add_u32 s{sT0}, s{sH2pub}, s{sH2tch}", f"  v_lshlrev_b32 v72, 9, v{vA}", f"  s_mov_b64 exec, 3\n  buffer_load_dword v{vDummy}, v72, {WSr}, s{sT0} offen {TCHF}\n  s_mov_b64 exec, -1"]
    if KVCNT is not None:
        side += [f"  s_add_u32 s{sT0}, s{sStep}, 2\n  s_min_u32 s{sT0}, s{sT0}, 63\n  s_lshr_b32 s{sT0}, s{sT0}, 2\n  s_lshl_b32 s{sT0}, s{sT0}, 7",
                 f"  s_add_u32 s{sT0}, s{sT0}, {KVCNT}\n  v_mov_b32 v72, s{sT0}", f"  buffer_load_dword v{vDummy}, v72, {WSr}, 0 offen sc1"]
    side += [f"  v_mov_b32 v70, s{sStep}", f"  v_mov_b32 v71, s{sFlagOff}", f"  s_mov_b64 exec, 1\n  buffer_store_dword v70, v71, {WSr}, 0 offen {PUBF}\n  s_mov_b64 exec, -1"]
    side += [f"  v_add_u32 v{MW}, s{sW256}, v{vM}", f"  v_cndmask_b32 v{MW}, -16, v{MW}, s[{sMaskMw}:{sMaskMw+1}]"]
    NV_AFTER_KV = 4 + (1 if KVCNT is not None else 0)
    side_all = list(side)
    o.c("QK phase: own (register-resident) chunks first, the rest through LDS")
    for wv in range(4):
        o(f"{L}_av{wv}:")
        S1 = [58, 62, 66][:(3 if wv == 0 else 2)]
        offs = [sH2pl, sT1, sT2]
        if timing: o("  s_add_u32 s81, s81, 1\n  s_memtime s[68:69]")
        for r_, so in zip(S1, offs):
            o(f"  buffer_load_dwordx4 {v(r_,4)}, v{vA}, {WSr}, s{so} offen sc1")
        o(f"  s_add_u32 s{sPoll}, s{sPoll}, 1")
        o(f"  s_cmp_gt_u32 s{sPoll}, {POLL_LIMIT}")
        o(f"  s_cbranch_scc1 {L}_bail")
        o(f"  s_waitcnt vmcnt(0)")
        if timing: o("  s_memtime s[70:71]")
        o(f"  v_max3_u32 v78, v58, v60, v62")
        if wv == 0:
            o(f"  v_max3_u32 v78, v78, v64, v66\n  v_max_u32 v78, v78, v68")
        else:
            o(f"  v_max_u32 v78, v78, v64")
        o(f"  v_cmp_eq_u32 vcc, -1, v78")
        o(f"  s_cbranch_vccnz {L}_av{wv}")
        o(f"  ds_write_b128 v{vXw}, {v(58,4)} offset:{L_MEM}")
        o(f"  ds_write_b128 v{vXw}, {v(62,4)} offset:{L_MEM+4096}")
        if wv == 0: o(f"  ds_write_b128 v{vA}, {v(66,4)} offset:{L_MEM+8192}")
        o(f"{L}_qv{wv}:")
        if timing: o("  s_memtime s[72:73]")
        stamp(0)
        side = list(side_all)
        def pop(n):
            for _ in range(n):
                if side:
                    x = side.pop(0)
                    if x: o(x.replace("{LP}", f"{L}w{wv}"))
        lgq = Cnt(o, "lgkm", 15)
        def dsq(dst, off, tag):
            o(f"  ds_read_b128 {v(dst,4)}, v{vA} offset:{off}"); lgq.issue(tag)
        def qk(c, a_, np_=(1,1,1,1)):
            smf(o, Q0, a_, frag_q(0, c)); pop(np_[0])
            smf(o, Q1, a_, frag_q(1, c)); pop(np_[1])
            smf(o, K0, a_, frag_k(0, c)); pop(np_[2])
            smf(o, K1, a_, frag_k(1, c))
        own = [wv, wv+4] + ([8] if wv == 0 else [])
        rest = [c for c in range(9) if c not in own]
        qk(own[0], W[1])
        o("  s_waitcnt lgkmcnt(0)\n  s_barrier")
        dsq(W[0], L_MEM + 1024*rest[0], "r0"); dsq(W[1], L_MEM + 1024*rest[1], "r1")
        qk(own[1], W[2])
        dsq(W[2], L_MEM + 1024*rest[2], "r2")
        if wv == 0: qk(8, 66)
        for k, c in enumerate(rest):
            lgq.wait(f"r{k}")
            last = (k == len(rest)-1)
            qk(c, W[k % 3], (1, 2 if k >= len(rest)-3 else 1, 0 if last else 1, 0))
            if k + 3 < len(rest): dsq(W[k % 3], L_MEM + 1024*rest[k+3], f"r{k+3}")
            if not last: pop(1)
        while side: pop(1)
        free_order = [(len(rest)-3+i_) % 3 for i_ in range(3)]
        assert sorted(free_order) == [0, 1, 2]
        for sl in range(3):
            o(f"  ds_read_b128 {v(W[sl],4)}, v{vA} offset:{L_MEM + 1024*(6+sl)}")
        if wv < 3:
            o(f"  s_branch {L}_qkd")
    o(f"{L}_qkd:")
    lg.issue("V6"); lg.issue("V7"); lg.issue("V8")
    stamp(1)
    o.c("transpose q,k")
    def vpass(c, slot):
        smf(o, V0, W[slot], frag_v(0, c)); smf(o, V1, W[slot], frag_v(1, c))
    o(f"  v_cvt_pk_bf16_f32 v{T}, v{Q0}, v{Q0+1}")
    o(f"  v_cvt_pk_bf16_f32 v{T+1}, v{Q0+2}, v{Q0+3}")
    o(f"  v_cvt_pk_bf16_f32 v{T+2}, v{Q1}, v{Q1+1}")
    o(f"  v_cvt_pk_bf16_f32 v{T+3}, v{Q1+2}, v{Q1+3}")
    nop(o, 2)
    o(f"  v_cvt_pk_bf16_f32 v{U}, v{K0}, v{K0+1}")
    o(f"  v_mfma_f32_16x16x16_bf16 {v(Q0,4)}, {v(T,2)}, {v(vSel,2)}, 0")
    o(f"  v_cvt_pk_bf16_f32 v{U+1}, v{K0+2}, v{K0+3}")
    o(f"  v_cvt_pk_bf16_f32 v{U+2}, v{K1}, v{K1+1}")
    o(f"  v_mfma_f32_16x16x16_bf16 {v(Q1,4)}, {v(T+2,2)}, {v(vSel,2)}, 0")
    o(f"  v_cvt_pk_bf16_f32 v{U+3}, v{K1+2}, v{K1+3}")
    nop(o, 1)
    o(f"  v_mfma_f32_16x16x16_bf16 {v(K0,4)}, {v(U,2)}, {v(vSel,2)}, 0")
    o(f"  v_mfma_f32_16x16x16_bf16 {v(K1,4)}, {v(U+2,2)}, {v(vSel,2)}, 0")
    lg.wait("V6")
    smf(o, V0, W[0], frag_v(0, 6))
    o(f"  v_cvt_pk_bf16_f32 v{T}, v{Q0}, v{Q0+1}")
    o(f"  v_cvt_pk_bf16_f32 v{T+1}, v{Q0+2}, v{Q0+3}")
    o(f"  v_cvt_pk_bf16_f32 v{T+2}, v{Q1}, v{Q1+1}")
    o(f"  v_cvt_pk_bf16_f32 v{T+3}, v{Q1+2}, v{Q1+3}")
    smf(o, V1, W[0], frag_v(1, 6))
    dsr(W[0], vA, L_MEM, "B0")
    for i in range(4):
        o(f"  v_mov_b32_dpp v{QS+i}, v{T+i} row_ror:8 row_mask:0xf bank_mask:0xf")
    o(f"  s_waitcnt vmcnt({NV_AFTER_KV})")
    o(f"  v_mfma_f32_16x16x32_bf16 {v(Q0,4)}, {v(vKx,4)}, {v(T,4)}, 0")
    o(f"  v_cvt_pk_bf16_f32 v{U}, v{K0}, v{K0+1}")
    o(f"  v_cvt_pk_bf16_f32 v{U+1}, v{K0+2}, v{K0+3}")
    o(f"  v_mfma_f32_16x16x32_bf16 {v(Q0,4)}, {v(vKx+4,4)}, {v(QS,4)}, {v(Q0,4)}")
    o(f"  v_cvt_pk_bf16_f32 v{U+2}, v{K1}, v{K1+1}")
    o(f"  v_cvt_pk_bf16_f32 v{U+3}, v{K1+2}, v{K1+3}")
    nop(o, 2)
    o(f"  v_mfma_f32_16x16x32_bf16 {v(Q1,4)}, {v(U,4)}, {v(T,4)}, 0")
    lg.wait("V7")
    vpass(7, 1)
    dsr(W[1], vA, L_MEM + 1024, "B1")
    o(f"  ds_write_b128 v{vXw}, {v(Q0,4)} offset:{L_XEX}"); lg.issue("Xw")
    o(f"  ds_write_b128 v{MW}, {v(Q1,4)}"); lg.issue("Mw")
    o(f"  buffer_store_dwordx4 {v(U,4)}, v{vH1}, {WSr}, s{sKm} offen {PUBK}")
    lg.wait("V8")
    vpass(8, 2)
    dsr(W[2], vA, L_MEM + 2048, "B2")
    lg.wait("B0")
    vpass(0, 0)
    dsr(W[0], vA, L_MEM + 3072, "B3")
    lg.wait("Mw")
    o("  s_barrier")
    stamp(2)
    o.c("exchange reads")
    XP = [Q0, vKx, vKx+4, 74]
    MP = [Q1, 66, 42, 38]
    for k in range(4):
        dsr(XP[k], vA, L_XEX + 1024*k, f"XP{k}")
    for k in range(4):
        dsr(MP[k], vM, L_MEX + 256*k, f"MP{k}")
    lg.wait("B1")
    vpass(1, 1)
    dsr(W[1], vA, L_MEM + 4096, "B4")
    lg.wait("B2")
    vpass(2, 2)
    dsr(W[2], vA, L_MEM + 5120, "B5")
    lg.wait("B3")
    vpass(3, 0)
    lg.wait("XP3")
    for k in range(1, 4):
        o(f"  v_pk_add_f32 {v(Q0,2)}, {v(Q0,2)}, {v(XP[k],2)}")
        o(f"  v_pk_add_f32 {v(Q0+2,2)}, {v(Q0+2,2)}, {v(XP[k]+2,2)}")
    lg.wait("MP3")
    for k in range(1, 4):
        o(f"  v_pk_add_f32 {v(Q1,2)}, {v(Q1,2)}, {v(MP[k],2)}")
        o(f"  v_pk_add_f32 {v(Q1+2,2)}, {v(Q1+2,2)}, {v(MP[k]+2,2)}")
    WIN = [14, 18, 22, 26, 38, 42, 66, 70]
    lds_list = [(tl, kap, frag_o(tl, kap)[1]) for tl in range(9) for kap in range(4)]
    slot_of = {}
    st = dict(issued=0)
    BASE = (vXw, 78, 78)
    def issue_frag():
        n = st['issued']
        if n >= len(lds_list): return
        tl, kap, f = lds_list[n]
        sl = WIN[n % len(WIN)]
        b, imm = lds_frag_addr(f)
        if b == 2 and lds_frag_addr(f-1)[0] == 1:
            o(f"  v_add_u32 v78, 0x10000, v78")
        dsr(sl, BASE[b], imm, f"wo{n}")
        slot_of[(tl, kap)] = (sl, n)
        st['issued'] = n + 1
    o.c("softmax")
    MX, TM = 78, 42
    o(f"  v_max3_f32 v{MX}, v{Q0}, v{Q0+1}, v{Q0+2}")
    o(f"  v_max3_f32 v{TM}, v{Q0+3}, v{Q1}, v{Q1+1}")
    o(f"  v_max3_f32 v{MX}, v{MX}, v{Q1+2}, v{Q1+3}")
    o(f"  v_max_f32 v{MX}, v{MX}, v{TM}")
    lg.wait("B4")
    smf(o, V0, W[1], frag_v(0, 4))
    issue_frag()
    o(f"  v_max_f32_dpp v{MX}, v{MX}, v{MX} row_ror:8 row_mask:0xf bank_mask:0xf")
    smf(o, V1, W[1], frag_v(1, 4))
    o(f"  v_mov_b32 v{TM}, v{MX}")
    issue_frag()
    lg.wait("B5")
    smf(o, V0, W[2], frag_v(0, 5))
    o(f"  v_permlane16_swap_b32 v{MX}, v{TM}")
    o(f"  v_max_f32 v{MX}, v{MX}, v{TM}")
    o(f"  v_mov_b32 v{TM}, v{MX}")
    smf(o, V1, W[2], frag_v(1, 5))
    nop(o, 1)
    o(f"  v_permlane32_swap_b32 v{MX}, v{TM}")
    o(f"  v_max_f32 v{MX}, v{MX}, v{TM}")
    o(f"  v_mul_f32 v{MX}, s{sC}, v{MX}")
    for i in range(8):
        o(f"  v_fma_f32 v{Q0+i}, v{Q0+i}, s{sC}, -v{MX}")
    PX, PXs, PM, LA, LB, VP = 74, 76, 70, 72, 73, 66
    for i in range(8):
        o(f"  v_exp_f32 v{Q0+i}, v{Q0+i}")
    D0, D1 = 38, 42
    O0 = 70
    o.c("PV with the l-sum chain interleaved")
    o(f"  v_cvt_pk_bf16_f32 v{PX}, v{Q0}, v{Q0+1}")
    o(f"  v_cvt_pk_bf16_f32 v{PX+1}, v{Q0+2}, v{Q0+3}")
    o(f"  v_cvt_pk_bf16_f32 v{PM}, v{Q1}, v{Q1+1}")
    o(f"  v_cvt_pk_bf16_f32 v{PM+1}, v{Q1+2}, v{Q1+3}")
    o(f"  v_pk_add_f32 {v(LA,2)}, {v(Q0,2)}, {v(Q0+2,2)}")
    o(f"  v_pk_add_f32 {v(Q1,2)}, {v(Q1,2)}, {v(Q1+2,2)}")
    o(f"  v_mov_b32_dpp v{PXs}, v{PX} row_ror:8 row_mask:0xf bank_mask:0xf")
    o(f"  v_mov_b32_dpp v{PXs+1}, v{PX+1} row_ror:8 row_mask:0xf bank_mask:0xf")
    o(f"  v_add_f32 v{LA}, v{LA}, v{LB}")
    o(f"  v_add_f32 v{LB}, v{Q1}, v{Q1+1}")
    o(f"  v_mfma_f32_16x16x32_bf16 {v(D0,4)}, {v(vVx,4)}, {v(PX,4)}, 0")
    o(f"  v_fmamk_f32 v{LA}, v{LB}, 0x3e800000, v{LA}")
    o(f"  v_cvt_pk_bf16_f32 v{VP}, v{V0}, v{V0+1}")
    o(f"  v_mfma_f32_16x16x32_bf16 {v(D1,4)}, {v(vVx+4,4)}, {v(PX,4)}, 0")
    o(f"  v_cvt_pk_bf16_f32 v{VP+1}, v{V0+2}, v{V0+3}")
    o(f"  v_add_f32_dpp v{LA}, v{LA}, v{LA} row_ror:8 row_mask:0xf bank_mask:0xf")
    o(f"  v_mov_b32 v{LB}, v{LA}")
    o(f"  v_cvt_pk_bf16_f32 v{VP+2}, v{V1}, v{V1+1}")
    o(f"  v_mfma_f32_16x16x16_bf16 {v(D0,4)}, {v(VP,2)}, {v(PM,2)}, {v(D0,4)}")
    o(f"  v_cvt_pk_bf16_f32 v{VP+3}, v{V1+2}, v{V1+3}")
    o(f"  v_permlane16_swap_b32 v{LA}, v{LB}")
    o(f"  v_add_f32 v{LA}, v{LA}, v{LB}")
    o(f"  v_mov_b32 v{LB}, v{LA}")
    o(f"  v_mfma_f32_16x16x16_bf16 {v(D1,4)}, {v(VP+2,2)}, {v(PM,2)}, {v(D1,4)}")
    o(f"  s_add_u32 s{sVm}, s{sKm}, {VM-KM}")
    o(f"  s_cmp_eq_u32 s{sStep}, 63")
    o(f"  s_cbranch_scc1 {L}_done")
    o(f"  v_permlane32_swap_b32 v{LA}, v{LB}")
    o(f"  v_add_f32 v{LA}, v{LA}, v{LB}")
    o(f"  v_rcp_f32 v78, v{LA}")
    issue_frag()
    issue_frag()
    for i in range(0, 8, 2):
        o(f"  v_pk_mul_f32 {v(D0+i,2)}, {v(D0+i,2)}, {v(78,2)} op_sel_hi:[1,0]")
    o(f"  v_cvt_pk_bf16_f32 v{O0}, v{D0}, v{D0+1}")
    o(f"  v_cvt_pk_bf16_f32 v{O0+1}, v{D0+2}, v{D0+3}")
    o(f"  ds_write_b64 v{vOw}, {v(O0,2)}"); lg.issue("Ow0")
    o(f"  v_cvt_pk_bf16_f32 v{O0+2}, v{D1}, v{D1+1}")
    o(f"  v_cvt_pk_bf16_f32 v{O0+3}, v{D1+2}, v{D1+3}")
    o(f"  ds_write_b64 v{vOw}, {v(O0+2,2)} offset:512"); lg.issue("Ow1")
    o(f"  v_add_u32 v78, 0x10000, v{vXw}")
    o(f"  buffer_store_dwordx4 {v(VP,4)}, v{vA}, {WSr}, s{sVm} offen {PUBV}")
    issue_frag(); issue_frag()
    lg.wait("Ow1")
    o("  s_barrier")
    stamp(3)
    o.c("E phase")
    B = [46, 50, 54, 58]
    for k in range(4):
        dsr(B[k], vA, L_OEX + (k//2)*1024 + (k%2)*128, f"ob{k}")
    issue_frag(); issue_frag()
    D = [30, 34]
    PK, PKB = 62, 74
    for tl in range(9):
        post = []
        d = D[tl % 2]
        pend = []
        if tl >= 1:
            prev = tl - 1
            dd = D[prev % 2]; x = prev % 2; p = prev // 2
            pk = PK if p % 2 == 0 else PKB
            pend = [f"  v_cvt_pk_bf16_f32 v{pk+2*x}, v{dd}, v{dd+1}", f"  v_cvt_pk_bf16_f32 v{pk+2*x+1}, v{dd+2}, v{dd+3}"]
            if x == 1 and p % 2 == 1:
                post = [f"  v_mov_b32_dpp v{PK+i}, v{PKB+i} row_ror:8 row_mask:0xf bank_mask:0xc" for i in range(4)]
                post.append(f"  buffer_store_dwordx4 {v(PK,4)}, v{vA}, {WSr}, s{sH1st} offen offset:{1024*(p//2)} {stf}")
            else:
                post = []
        if tl >= 1: lg.wait(f"wo{4*tl+3}")
        for n_ in range(4):
            kap = n_
            if tl == 0: lg.wait(f"ob{kap}")
            sl, n = slot_of[(tl, kap)]
            if tl == 0: lg.wait(f"wo{n}")
            cin = "0" if n_ == 0 else v(d, 4)
            o(f"  v_mfma_f32_16x16x32_bf16 {v(d,4)}, {v(sl,4)}, {v(B[kap],4)}, {cin}")
            issue_frag()
            if n_ == 2 and pend:
                for x_ in pend: o(x_)
                pend = []
            if n_ == 3 and post:
                for x_ in post: o(x_)
                post = []
    for r in range(38, 46): o(f"  v_mov_b32 v{r}, 0")
    d = D[0]
    o(f"  v_cvt_pk_bf16_f32 v{PK}, v{d}, v{d+1}")
    o(f"  v_cvt_pk_bf16_f32 v{PK+1}, v{d+2}, v{d+3}")
    o(f"  buffer_store_dwordx2 {v(PK,2)}, v{vH1}, {WSr}, s{sH1h} offen {stf}")
    assert not lg.q, lg.q
    stamp(4)
    for r in list(range(30, 38)) + list(range(46, 54)): o(f"  v_mov_b32 v{r}, 0")
    nop(o, fdelay)
    o.c("F: reducers")
    vmst = f"  buffer_store_dwordx4 {v(66,4)}, v{vA}, {WSr}, s{sVm} offen {PUBV}"
    o(f"  s_cmp_eq_u32 s{sIsRed}, 0")
    o(f"  s_cbranch_scc1 {L}_nred")
    o(f"  s_add_u32 s{sT1}, s{sH1ld}, {8*H1_PROD}")
    o(f"  s_add_u32 s{sT2}, s{sH1ld}, {16*H1_PROD}")
    o(f"  s_add_u32 s{sT3}, s{sH1ld}, {24*H1_PROD}")
    FS1, FS2 = [54, 58, 62, 74], [14, 18, 22, 26]
    def f_loads(S):
        for k, so in enumerate((sH1ld, sT1, sT2, sT3)):
            o(f"  buffer_load_dwordx4 {v(S[k],4)}, v{vR}, {WSr}, s{so} offen sc1")
    def f_check(S, younger):
        for k in range(4):
            o(f"  s_waitcnt vmcnt({younger+3-k})")
            if timing and k == 3: o("  s_memtime s[66:67]")
            o(f"  v_mfma_f32_16x16x32_bf16 {v(70,4)}, {v(vSelR,4)}, {v(S[k],4)}, {'0' if k == 0 else v(70,4)}")
        nop(o, 8)
        o(f"  v_cmp_u_f32 vcc, v70, v70")
        for i_ in range(4):
            o(f"  v_add_f32_dpp v{70+i_}, v{70+i_}, v{70+i_} row_ror:8 row_mask:0xf bank_mask:0xf")
        o(f"  v_cvt_pk_bf16_f32 v66, v70, v71")
        o(f"  v_cvt_pk_bf16_f32 v67, v72, v73")
    def f_cnt():
        if timing: o("  s_add_u32 s80, s80, 1\n  s_memtime s[64:65]")
        o(f"  s_add_u32 s{sPoll}, s{sPoll}, 1")
        o(f"  s_cmp_gt_u32 s{sPoll}, {POLL_LIMIT}")
        o(f"  s_cbranch_scc1 {L}_bail")
    if timing: o("  s_add_u32 s80, s80, 1\n  s_memtime s[64:65]")
    f_loads(FS1)
    nop(o, FSTAG)
    f_loads(FS2)
    o(f"{L}_ra:")
    f_check(FS1, 4)
    o(f"  s_cbranch_vccz {L}_rok")
    f_loads(FS1); f_cnt()
    f_check(FS2, 4)
    o(f"  s_cbranch_vccz {L}_rok")
    f_loads(FS2); f_cnt()
    o(f"  s_branch {L}_ra")
    o(f"{L}_rok:")
    o(f"  buffer_store_dwordx2 {v(66,2)}, v{vP}, {WSr}, s{sH2pub} offen {stf}")
    o(f"{L}_nred:")
    o(f"{L}_cons:")
    o(f"  s_barrier")
    stamp(5)
    o.c("A: gather mem(s+1); per-step scalar updates double as the publish->visible delay")
    o(f"  s_add_u32 s{sH2pl}, s{sH2pub}, s{sW1024}")
    o(f"  s_add_u32 s{sT1}, s{sH2pl}, 4096")
    o(f"  s_add_u32 s{sT2}, s{sH2pub}, 8192")
    o(f"  s_add_u32 s{sStep}, s{sStep}, 1")
    for x in [f"  s_add_u32 s{sH1ld}, s{sH1ld}, {H1_SLOT}", f"  s_add_u32 s{sKm}, s{sKm}, {32*4096}",
             f"  s_add_u32 s{sH1st}, s{sH1ld}, s{sH1so}", f"  s_add_u32 s{sH1h}, s{sH1ld}, s{sH1ho}",
             f"  s_add_u32 s{sH2pub}, s{sH2pub}, {H2_SLOT}"]:
        o(x)
    nop(o, adelay)
    if timing:
        lab2 = o.label("nort")
        o(f"  s_memrealtime s[82:83]\n  s_memtime s[98:99]\n  s_waitcnt lgkmcnt(0)")
        o(f"  s_lshl_b32 s{sT0}, s{sH}, 2\n  s_add_u32 s{sT0}, s{sT0}, s{sWv_}\n  s_cmp_eq_u32 s{sT0}, 0\n  s_cbranch_scc0 {lab2}")
        o(f"  s_lshl_b32 s{sT0}, s{sStep}, 3\n  s_add_u32 s{sT0}, s{sT0}, {FLAGS + 0x3000}\n  v_mov_b32 v74, s82\n  v_mov_b32 v75, s98\n  v_mov_b32 v76, s{sT0}\n  buffer_store_dwordx2 v[74:75], v76, {WSr}, 0 offen")
        for k_, sr_ in enumerate([86, 88, 90, 92, 94, 96]):
            o(f"  s_lshl_b32 s{sT0}, s{sStep}, 5\n  s_add_u32 s{sT0}, s{sT0}, {FLAGS + 0x70000 + 4*k_}\n  v_mov_b32 v74, s{sr_}\n  v_mov_b32 v76, s{sT0}\n  buffer_store_dword v74, v76, {WSr}, 0 offen")
        o.put(lab2)
        lab = o.label("nost")
        o(f"  s_cmp_eq_u32 s{sStep}, 21")
        o(f"  s_cbranch_scc0 {lab}")
        for k, sr in enumerate([86,88,90,92,94,96,98,64,66,68,70,72]):
            o(f"  v_mov_b32 v74, s{sr}")
            o(f"  s_lshl_b32 s{sT0}, s{sH}, 2\n  s_add_u32 s{sT0}, s{sT0}, s{sWv_}\n  s_lshl_b32 s{sT0}, s{sT0}, 6\n  s_add_u32 s{sT0}, s{sT0}, {FLAGS + 4096 + 4*k}")
            o(f"  v_mov_b32 v75, s{sT0}")
            o(f"  buffer_store_dword v74, v75, {WSr}, 0 offen")
        o.put(lab)
    for wv in range(3):
        o(f"  s_cmp_eq_u32 s{sWv_}, {wv}\n  s_cbranch_scc1 {L}_av{wv}")
    o(f"  s_branch {L}_av3")
    o(f"{L}_bail:")
    o(f"  s_endpgm")
    o(f"{L}_done:")
    o(f"  buffer_store_dwordx4 {v(66,4)}, v{vA}, {WSr}, s{sVm} offen sc1")
    o(f"  s_waitcnt vmcnt(0) lgkmcnt(0)")
    o(f"  s_barrier")
    o(f"  s_cmp_lg_u32 s{sWv_}, 0\n  s_cbranch_scc1 {L}_fin")
    o(f"  v_mov_b32 v78, 64")
    o(f"  v_mov_b32 v77, s{sFlagOff}")
    o(f"  s_mov_b64 exec, 1\n  buffer_store_dword v78, v77, {WSr}, 0 offen sc1\n  s_mov_b64 exec, -1")
    o(f"  s_waitcnt vmcnt(0)")
    o(f"{L}_fin:")

def emit_init(o, L):
    WSr = f"s[{sWS}:{sWS+3}]"
    lab = o.label("noh2")
    o(f"""  s_lshl_b32 s{sT0}, s{sH}, 2
  s_add_u32 s{sT0}, s{sT0}, s{sWv_}
  s_lshl_b32 s{sFlagOff}, s{sH}, 7
  s_add_u32 s{sFlagOff}, s{sFlagOff}, {RFLAG}
  s_cmp_lg_u32 s{sWv_}, 0
  s_cselect_b32 s{sFlagOff}, 0x80000000, s{sFlagOff}
{lab}:""")

def emit_early(o):
    WSr = f"s[{sWS}:{sWS+3}]"
    if TLBW:
        o(f"""  v_lshrrev_b32 v47, 4, v{vA}
  v_lshlrev_b32 v47, 21, v47
  buffer_load_dword v14, v47, {WSr}, 0 offen
  v_add_u32 v47, 0x8000000, v47
  buffer_load_dword v14, v47, {WSr}, 0 offen""")
    o(f"""  ; scalar state for step 0
  s_lshl_b32 s{sKoff}, s{sH}, 13
  s_lshl_b32 s{sT1}, s{sWv_}, 11
  s_add_u32 s{sKoff}, s{sKoff}, s{sT1}
  s_lshl_b32 s{sKm}, s{sH}, 12
  s_add_u32 s{sKm}, s{sKm}, s{sW1024}
  s_add_u32 s{sKm}, s{sKm}, {KM}
  s_mov_b32 s{sH1ld}, {H1}
  s_mul_i32 s{sT1}, s{sH}, {H1_PROD}
  s_lshl_b32 s{sT2}, s{sWv_}, 11
  s_add_u32 s{sH1so}, s{sT1}, s{sT2}
  s_lshr_b32 s{sT2}, s{sWv_}, 1
  s_lshl_b32 s{sT2}, s{sT2}, 10
  s_add_u32 s{sH1ho}, s{sT1}, s{sT2}
  s_add_u32 s{sH1ho}, s{sH1ho}, 8192
  s_and_b32 s{sT2}, s{sWv_}, 1
  s_lshl_b32 s{sT2}, s{sT2}, 3
  s_add_u32 s{sH1ho}, s{sH1ho}, s{sT2}
  s_add_u32 s{sH1st}, s{sH1ld}, s{sH1so}
  s_add_u32 s{sH1h}, s{sH1ld}, s{sH1ho}
  s_mov_b32 s{sH2pub}, {H2 + H2_SLOT}
  v_bfe_u32 v47, v{vA}, 4, 5
  v_mul_u32_u24 v47, {H1_PROD}, v47
  v_add_u32 v47, s{sUnit}, v47
  buffer_load_dword v14, v47, {WSr}, s{sH1ld} offen
  s_add_u32 s{sT0}, s{sH2pub}, s{sW1024}
  v_lshlrev_b32 v47, 3, v{vA}
  buffer_load_dword v14, v47, {WSr}, s{sT0} offen
  s_add_u32 s{sT1}, s{sKoff}, {VBUF-KBUF}
  buffer_load_dwordx4 {v(vKx,4)}, v{vA}, {WSr}, s{sKoff} offen
  buffer_load_dwordx4 {v(vKx+4,4)}, v{vA}, {WSr}, s{sKoff} offen offset:1024
  buffer_load_dwordx4 {v(vVx,4)}, v{vA}, {WSr}, s{sT1} offen
  buffer_load_dwordx4 {v(vVx+4,4)}, v{vA}, {WSr}, s{sT1} offen offset:1024
""")

def emit_mem0(o, mid=None):
    WSr = f"s[{sWS}:{sWS+3}]"
    o.c("mem0 -> LDS: piece (j=8c+2g+u, t) = mem0[t][8j..8j+8)")
    o(f"""  s_mov_b32 s64, s48
  s_and_b32 s65, s49, 0xffff
  s_mov_b32 s66, 9216
  s_mov_b32 s67, 0x20000
  v_lshrrev_b32 v62, 4, v{vA}         ; lane
  v_and_b32 v63, 7, v62               ; t
  v_lshrrev_b32 v64, 3, v62           ; 2g+u
  v_mul_u32_u24 v63, 1152, v63
  v_lshl_add_u32 v63, v64, 4, v63     ; t*1152 + (2g+u)*16
  s_lshl_b32 s{sT0}, s{sWv_}, 7
  s_add_u32 s{sT1}, s{sT0}, 512
  v_mov_b32 v53, v63
  buffer_load_dwordx4 {v(58,4)}, v53, s[64:67], s{sT0} offen
  buffer_load_dwordx4 {v(62,4)}, v53, s[64:67], s{sT1} offen
  buffer_load_dwordx4 {v(66,4)}, v53, s[64:67], 0 offen offset:1024""")
    if mid: mid()
    o(f"""  s_waitcnt vmcnt(0)
  s_barrier
  ds_write_b128 v{vXw}, {v(58,4)} offset:{L_MEM}
  ds_write_b128 v{vXw}, {v(62,4)} offset:{L_MEM+4096}
  ds_write_b128 v{vA}, {v(66,4)} offset:{L_MEM+8192}""")
    for r in range(30, 54):
        o(f"  v_mov_b32 v{r}, 0")
    o(f"""  s_mov_b32 s{sStep}, 0
  s_mov_b32 s{sPoll}, 0
  s_mov_b32 s80, 0
  s_mov_b32 s81, 0
  s_waitcnt vmcnt(0) lgkmcnt(0)
  v_mov_b32 v{vDummy}, 128
  s_barrier""")
```

```python
from asmlib import *

TLBW = False
HALFT = False
COOP = True
NOPROC = False
MAXIN_ = 14
ORDER = 'qkov'
L_MEM, L_XEX, L_MEX, L_OEX, L_W = 0, 9216, 13312, 14336, 16384

vA, vXw, vM, vOw, vR, vP, vIdx, vH1 = 0, 1, 2, 3, 4, 5, 6, 7
vSel, vSelR, vKx, vVx = 8, 10, 14, 22
sW = 4
sWS = 8
sH, sWv_, sStep = 12, 13, 14
sC = 15
sKoff, sKm, sH1st, sH1h, sH1ld, sH2pub, sH2pl = 16, 17, 18, 19, 20, 21, 22
sIsRed, sJ, sT0, sT1, sT2, sT3 = 23, 24, 25, 26, 27, 28
sPoll = 29
sH1rs, sH2rs = 30, 31
sFlagOff = 32
sX1, sX2, sX3 = 33, 34, 35
sW256 = 36
sMaskMw = 38
sPi0, sPih = 40, 41
sH1so, sH1ho, sW1024 = 42, 43, 37
sUnit = 45
sVm = 47
sH2tch = 46
sTm = 44

def frag_q(tau, c): return ('a', (tau*9 + c)*8)
def frag_k(tau, c):
    f = tau*9 + c
    return ('a', 144 + 8*f) if f < 14 else ('v', 80 + 8*(f-14))
def frag_v(tau, c):
    return ('v', 112 + 72*tau + 8*c)
def frag_o(tl, kap):
    return ('lds', 4*tl + kap)

def lds_frag_addr(f):
    off = L_W + f*4096
    return off // 65536, off % 65536

def nop(o, n):
    while n > 0:
        k = min(n, 16)
        o(f"  s_nop {k-1}")
        n -= k

def emit_consts(o):
    o.c("---- R lane constants; v0 holds lane id on entry (0..63), s13 = wave")
    o(f"""
  v_mov_b32 v30, v0                 ; lane
  v_and_b32 v31, 15, v30            ; c
  v_lshrrev_b32 v32, 4, v30         ; g
  v_and_b32 v33, 7, v30             ; t
  v_bfe_u32 v34, v30, 3, 1          ; u
  v_lshlrev_b32 v{vA}, 4, v30
  s_lshl_b32 s{sT0}, s{sWv_}, 10
  v_add_u32 v{vXw}, s{sT0}, v{vA}
  v_and_b32 v35, 1, v32             ; g%2
  v_lshlrev_b32 v{vM}, 7, v35
  v_lshl_add_u32 v{vM}, v33, 4, v{vM}
  ; vOw = (w/2)*1024 + (g/2)*256 + (w%2)*128 + t*16 + (g%2)*8 ; u==0 only
  s_lshr_b32 s{sT0}, s{sWv_}, 1
  s_lshl_b32 s{sT0}, s{sT0}, 10
  s_and_b32 s{sT1}, s{sWv_}, 1
  s_lshl_b32 s{sT1}, s{sT1}, 7
  s_add_u32 s{sT0}, s{sT0}, s{sT1}
  s_add_u32 s{sT0}, s{sT0}, {L_OEX}
  v_lshrrev_b32 v36, 1, v32         ; g/2
  v_lshlrev_b32 v{vOw}, 8, v36
  v_lshl_add_u32 v{vOw}, v33, 4, v{vOw}
  v_lshl_add_u32 v{vOw}, v35, 3, v{vOw}
  v_add_u32 v{vOw}, s{sT0}, v{vOw}
  v_mov_b32 v37, 0x7ffffff0
  v_cmp_eq_u32 vcc, 0, v34
  s_nop 1
  v_cndmask_b32 v{vOw}, v37, v{vOw}, vcc
  v_mov_b32 v37, 0x80000000
  v_cndmask_b32 v{vH1}, v37, v{vA}, vcc
  ; idx
  v_mov_b32 v38, 0x44444444
  v_mov_b32 v39, 0xeeeeeeee
  v_cndmask_b32 v{vIdx}, v39, v38, vcc
  s_lshl_b32 s{sJ}, s{sH}, 1
  s_add_u32 s{sJ}, s{sJ}, s{sWv_}
  s_add_u32 s{sT0}, s{sH}, 64
  s_cmp_eq_u32 s{sWv_}, 2
  s_cselect_b32 s{sJ}, s{sT0}, s{sJ}
  s_cmp_lt_u32 s{sWv_}, 2
  s_cselect_b32 s{sIsRed}, 1, 0
  s_cmp_eq_u32 s{sWv_}, 2
  s_cselect_b32 s{sT0}, 1, 0
  s_cmp_lt_u32 s{sH}, 8
  s_cselect_b32 s{sT1}, 1, 0
  s_and_b32 s{sT0}, s{sT0}, s{sT1}
  s_or_b32 s{sIsRed}, s{sIsRed}, s{sT0}
  s_cmp_eq_u32 s{sIsRed}, 0
  s_cselect_b32 s{sJ}, 0, s{sJ}
  ; unit j=(pi=j/4, g4=j%4): H1 offset of its 128B segment
  s_lshr_b32 s{sT0}, s{sJ}, 2            ; pi
  s_and_b32 s{sT1}, s{sJ}, 3             ; g4
  s_cmp_gt_u32 s{sT0}, 13
  s_cselect_b32 s{sT2}, 2, 0
  s_cmp_gt_u32 s{sT0}, 4
  s_cselect_b32 s{sT3}, 1, 0
  s_cmp_gt_u32 s{sT0}, 13
  s_cselect_b32 s{sT3}, 2, s{sT3}
  s_sub_u32 s{sT2}, s{sT0}, s{sT3}
  s_lshr_b32 s{sT3}, s{sT2}, 1
  s_lshl_b32 s{sT3}, s{sT3}, 10          ; (q/2)*1024
  s_and_b32 s{sT2}, s{sT2}, 1
  s_lshl_b32 s{sT2}, s{sT2}, 7           ; (q%2)*128
  s_add_u32 s{sT3}, s{sT3}, s{sT2}
  s_cmp_eq_u32 s{sT0}, 4
  s_cselect_b32 s{sT3}, 8192, s{sT3}
  s_cmp_eq_u32 s{sT0}, 13
  s_cselect_b32 s{sT3}, 9216, s{sT3}
  s_lshl_b32 s{sT1}, s{sT1}, 8
  s_add_u32 s{sT0}, s{sT3}, s{sT1}       ; + g4*256
  s_lshr_b32 s{sT1}, s{sJ}, 2
  s_cmp_eq_u32 s{sT1}, 4
  s_cselect_b32 s{sT2}, 2, s{sIsRed}
  s_cmp_eq_u32 s{sT1}, 13
  s_cselect_b32 s{sT2}, 2, s{sT2}
  s_cmp_eq_u32 s{sIsRed}, 0
  s_cselect_b32 s{sIsRed}, 0, s{sT2}
  v_lshl_add_u32 v40, v34, 2, v32
  v_mul_u32_u24 v40, {H1_PROD}, v40
  v_lshl_add_u32 v40, v33, 4, v40
  v_add_u32 v{vR}, s{sT0}, v40
  s_cmp_eq_u32 s{sIsRed}, 0
  s_cselect_b32 s{sT1}, 0x80000000, 0
  s_cselect_b32 s{sUnit}, 0x80000000, s{sT0}
  v_lshlrev_b32 v40, 4, v33
  v_lshl_add_u32 v40, v32, 3, v40
  s_lshl_b32 s{sT0}, s{sJ}, 7
  v_add_u32 v40, s{sT0}, v40
  v_and_b32 v41, 40, v30
  v_cmp_eq_u32 vcc, 0, v41
  s_nop 1
  v_cndmask_b32 v{vP}, v37, v40, vcc
  v_or_b32 v{vP}, s{sT1}, v{vP}
  s_mov_b64 s[{sMaskMw}:{sMaskMw+1}], vcc     ; lanes u==0,g<2
  ; Sel: e = c - 4*(g%2)
  v_lshlrev_b32 v40, 2, v35
  v_sub_u32 v40, v31, v40
  v_mov_b32 v41, 0x3f80
  v_mov_b32 v42, 0x3f800000
  v_mov_b32 v{vSel}, 0
  v_mov_b32 v{vSel+1}, 0
  v_cmp_eq_u32 vcc, 0, v40
  s_nop 1
  v_cndmask_b32 v{vSel}, v{vSel}, v41, vcc
  v_cmp_eq_u32 vcc, 1, v40
  s_nop 1
  v_cndmask_b32 v{vSel}, v{vSel}, v42, vcc
  v_cmp_eq_u32 vcc, 2, v40
  s_nop 1
  v_cndmask_b32 v{vSel+1}, v{vSel+1}, v41, vcc
  v_cmp_eq_u32 vcc, 3, v40
  s_nop 1
  v_cndmask_b32 v{vSel+1}, v{vSel+1}, v42, vcc""")
    for r in range(4):
        o(f"""  v_mov_b32 v{vSelR+r}, 0
  v_cmp_eq_u32 vcc, {2*r}, v31
  s_nop 1
  v_cndmask_b32 v{vSelR+r}, v{vSelR+r}, v41, vcc
  v_cmp_eq_u32 vcc, {2*r+1}, v31
  s_nop 1
  v_cndmask_b32 v{vSelR+r}, v{vSelR+r}, v42, vcc""")
    o(f"""
  s_lshl_b32 s{sW1024}, s{sWv_}, 10
  s_lshl_b32 s{sH2tch}, s{sH}, 2
  s_add_u32 s{sH2tch}, s{sH2tch}, s{sWv_}
  s_lshl_b32 s{sH2tch}, s{sH2tch}, 6
  s_add_u32 s{sH2tch}, s{sH2tch}, {H2_SLOT}
  s_mov_b32 s{sC}, 0x3e0293ee        ; 128^-0.5 * log2(e) = 0.12751743
  s_add_u32 s{sT0}, s{sWv_}, 1
  s_and_b32 s{sT0}, s{sT0}, 3
  s_lshl_b32 s{sX1}, s{sT0}, 10
  s_add_u32 s{sX1}, s{sX1}, {L_XEX}
  s_add_u32 s{sT0}, s{sWv_}, 2
  s_and_b32 s{sT0}, s{sT0}, 3
  s_lshl_b32 s{sX2}, s{sT0}, 10
  s_add_u32 s{sX2}, s{sX2}, {L_XEX}
  s_add_u32 s{sT0}, s{sWv_}, 3
  s_and_b32 s{sT0}, s{sT0}, 3
  s_lshl_b32 s{sX3}, s{sT0}, 10
  s_add_u32 s{sX3}, s{sX3}, {L_XEX}
  s_lshl_b32 s{sW256}, s{sWv_}, 8
  s_add_u32 s{sW256}, s{sW256}, {L_MEX}
  s_mul_i32 s{sPi0}, s{sWv_}, 9
  s_add_u32 s{sPi0}, s{sPi0}, 1
  s_lshr_b32 s{sPi0}, s{sPi0}, 1
  s_lshr_b32 s{sPih}, s{sWv_}, 1
  s_mul_i32 s{sPih}, s{sPih}, 9
  s_add_u32 s{sPih}, s{sPih}, 4
""")

def emit_weights(o, hook=None, hook_at=28):
    o.c("---- weight prologue")
    vLdW, vLdO, vLdOh, vScr, vT, vT2, vT2h, vF1, vF2 = 30, 31, 32, 33, 34, 35, 36, 37, 38
    TMP = 40
    o(f"""
  v_lshrrev_b32 v46, 4, v{vA}        ; lane
  v_lshrrev_b32 v45, 2, v46          ; l/4
  v_and_b32 v44, 3, v46              ; l%4
  v_lshlrev_b32 v{vLdW}, 13, v45
  v_lshl_add_u32 v{vLdW}, v44, 4, v{vLdW}      ; (l/4)*8192 + (l%4)*16
  v_mul_u32_u24 v{vLdOh}, 1152, v45
  v_lshl_add_u32 v{vLdOh}, v44, 4, v{vLdOh}    ; (l/4)*1152 + (l%4)*16
  v_lshrrev_b32 v43, 3, v46          ; l/8
  v_and_b32 v42, 7, v46
  v_mul_u32_u24 v{vLdO}, 1152, v43
  v_lshl_add_u32 v{vLdO}, v42, 4, v{vLdO}      ; (l/8)*1152 + (l%8)*16
  s_lshl_b32 s{sT0}, s{sWv_}, 12
  v_add_u32 v{vScr}, s{sT0}, v{vA}             ; scratch + l*16
  ; tr lane decomposition: gb=l/16, r'=(l%16)/4, c'=l%4
  v_lshrrev_b32 v43, 4, v46          ; gb
  v_bfe_u32 v42, v46, 2, 2           ; r'
  ; row = 16*(gb/2) + 4*(gb%2) + 8*(r'/2) + r'%2
  v_lshrrev_b32 v41, 1, v43
  v_lshlrev_b32 v41, 4, v41
  v_and_b32 v40, 1, v43
  v_lshl_add_u32 v41, v40, 2, v41
  v_lshrrev_b32 v40, 1, v42
  v_lshl_add_u32 v41, v40, 3, v41
  v_and_b32 v40, 1, v42
  v_add_u32 v41, v41, v40
  v_lshlrev_b32 v{vT}, 6, v41
  v_lshl_add_u32 v{vT}, v44, 3, v{vT}
  v_add_u32 v{vT}, s{sT0}, v{vT}
  v_lshl_add_u32 v41, v43, 3, v42
  v_lshlrev_b32 v{vT2}, 7, v41
  v_lshl_add_u32 v{vT2}, v44, 4, v{vT2}
  v_add_u32 v{vT2}, s{sT0}, v{vT2}
  v_lshlrev_b32 v{vT2h}, 6, v41
  v_lshl_add_u32 v{vT2h}, v44, 4, v{vT2h}
  v_add_u32 v{vT2h}, s{sT0}, v{vT2h}
  s_and_b32 s{sT1}, s{sWv_}, 1
  s_lshl_b32 s{sT1}, s{sT1}, 3
  v_add_u32 v{vT2h}, s{sT1}, v{vT2h}
  v_add_u32 v{vF1}, 0x10000, v{vXw}
  v_add_u32 v{vF2}, 0x20000, v{vXw}
""")
    vWr, vRd = 39, 43
    if COOP:
        o(f"""  v_lshrrev_b32 v48, 4, v{vA}        ; lane
  v_lshrrev_b32 v49, 4, v48          ; l/16
  v_and_b32 v50, 15, v48             ; l%16
  v_lshlrev_b32 v{vLdW}, 13, v49
  v_lshl_add_u32 v{vLdW}, v50, 4, v{vLdW}     ; (l/16)*8192 + (l%16)*16
  s_lshl_b32 s{sT0}, s{sWv_}, 12""")
        for i_ in range(4):
            o(f"""  v_add_u32 v51, {4*i_}, v49
  v_xor_b32 v51, v51, v50
  v_lshlrev_b32 v51, 4, v51
  v_lshl_add_u32 v51, v49, 8, v51
  v_add_u32 v51, {1024*i_}, v51
  v_add_u32 v{vWr+i_}, s{sT0}, v51""")
        o(f"""  v_bfe_u32 v51, v48, 2, 2           ; r'
  v_lshrrev_b32 v52, 1, v49          ; gb/2
  v_lshlrev_b32 v52, 4, v52
  v_and_b32 v53, 1, v49
  v_lshl_add_u32 v52, v53, 2, v52
  v_lshrrev_b32 v53, 1, v51
  v_lshl_add_u32 v52, v53, 3, v52
  v_and_b32 v53, 1, v51
  v_add_u32 v52, v52, v53            ; rowpart
  v_and_b32 v54, 3, v48              ; c'
  v_lshrrev_b32 v55, 1, v54          ; c'/2
  v_and_b32 v54, 1, v54
  v_lshlrev_b32 v54, 3, v54          ; (c'%2)*8
  s_lshl_b32 s{sT1}, s{sWv_}, 2""")
        for off2 in range(2):
            for tau in range(2):
                o(f"""  v_add_u32 v56, {2*off2}, v52
  v_and_b32 v57, 15, v56
  v_add_u32 v58, s{sT1}, v55
  v_add_u32 v58, {2*tau}, v58
  v_xor_b32 v57, v57, v58
  v_lshlrev_b32 v57, 4, v57
  v_lshl_add_u32 v57, v56, 8, v57
  v_add_u32 v{vRd+2*off2+tau}, v57, v54""")
    def ldsaddr(f):
        b, imm = lds_frag_addr(f)
        return (vXw, vF1, vF2)[b], imm
    chunks = []
    for mt in ORDER:
        if mt == 'o':
            for kap in range(4):
                chunks += [('o', kap, 0), ('o', kap, 1), ('oh', kap)]
        else:
            for c in range(9): chunks.append((mt, c))
    def dests(ch):
        if ch[0] == 'q': return [frag_q(0, ch[1]), frag_q(1, ch[1])]
        if ch[0] == 'k': return [frag_k(0, ch[1]), frag_k(1, ch[1])]
        if ch[0] == 'v': return [frag_v(0, ch[1]), frag_v(1, ch[1])]
        if ch[0] == 'o': return [frag_o(4*ch[2]+i, ch[1]) for i in range(4)]
        return [frag_o(8, ch[1])]
    def dest_vregs(ch):
        n = 8 if ch[0] in 'qkv' else 4
        r = set()
        for d in dests(ch):
            if d[0] == 'v': r |= set(range(d[1], d[1]+n))
        return r
    bufs = [48, 64] + list(range(80, 256, 16))
    n = len(chunks)
    MAXIN = MAXIN_
    used_final = set()
    assign = {}
    inflight = []
    nxt = 0
    sched = []
    final_before = []
    acc = set()
    for m in range(n):
        final_before.append(set(acc))
        acc |= dest_vregs(chunks[m])
    proc = 0
    busy = {}
    while proc < n:
        while nxt < n and len(inflight) < MAXIN:
            cand = None
            for b in bufs:
                if b in busy: continue
                rs = set(range(b, b+16))
                if rs & final_before[nxt]: continue
                cand = b; break
            if cand is None: break
            busy[cand] = nxt; assign[nxt] = cand; inflight.append(nxt); sched.append(('issue', nxt)); nxt += 1
        sched.append(('proc', proc))
        if proc >= 1: del busy[assign[proc-1]]
        inflight.remove(proc)
        proc += 1
    def nloads(ch): return 2 if ch[0] == 'oh' else 4
    srd_cur = None
    ptr = {'q': 50, 'k': 52, 'v': 54, 'o': 56, 'oh': 56}
    srd = {'q': 64, 'k': 68, 'v': 72, 'o': 76, 'oh': 76}
    for k_, p in (('q', 50), ('k', 52), ('v', 54), ('o', 56)):
        o(f"""  s_mov_b32 s{srd[k_]}, s{p}
  s_and_b32 s{srd[k_]+1}, s{p+1}, 0xffff
  s_mov_b32 s{srd[k_]+2}, 4718592
  s_mov_b32 s{srd[k_]+3}, 0x20000""")
    o(f"""  s_lshl_b32 s80, s{sH}, 8
  s_lshl_b32 s81, s{sWv_}, {17 if COOP else 6}
  s_add_u32 s80, s80, s81
  s_mul_i32 s82, s{sH}, {128*1152}
  s_lshl_b32 s83, s{sPi0}, 6
  s_add_u32 s83, s83, s82
  s_lshl_b32 s84, s{sPih}, 6
  s_add_u32 s84, s84, s82""")
    outstanding = []
    for kind, m in sched:
        ch = chunks[m]; b = assign[m]
        if kind == 'issue':
            if ch[0] in 'qkv':
                for i in range(4):
                    o(f"  s_add_u32 s85, s80, {(64*ch[1] + (4 if COOP else 16)*i)*8192}")
                    o(f"  buffer_load_dwordx4 {v(b+4*i,4)}, v{vLdW}, s[{srd[ch[0]]}:{srd[ch[0]]+3}], s85 offen")
            elif ch[0] == 'o':
                for i in range(4):
                    o(f"  s_add_u32 s85, s83, {(32*ch[1] + 8*i)*1152 + ch[2]*128}")
                    o(f"  buffer_load_dwordx4 {v(b+4*i,4)}, v{vLdO}, s[76:79], s85 offen")
            else:
                for i in range(2):
                    o(f"  s_add_u32 s85, s84, {(32*ch[1] + 16*i)*1152}")
                    o(f"  buffer_load_dwordx4 {v(b+4*i,4)}, v{vLdOh}, s[76:79], s85 offen")
            outstanding.append(m)
        else:
            if hook and m == hook_at: hook()
            idx = outstanding.index(m)
            later = sum(nloads(chunks[x]) for x in outstanding[idx+1:])
            o(f"  s_waitcnt vmcnt({min(later,63)})")
            outstanding = outstanding[idx+1:]
            if NOPROC: continue
            o("  s_waitcnt lgkmcnt(0)")
            coop = COOP and ch[0] in 'qkv'
            if coop or (COOP and m > 0 and chunks[m-1][0] in 'qkv'): o("  s_barrier")
            for i in range(nloads(ch)):
                o(f"  ds_write_b128 v{vWr+i if coop else vScr}, {v(b+4*i,4)} offset:{0 if coop else 1024*i}")
            if coop: o("  s_waitcnt lgkmcnt(0)\n  s_barrier")
            if ch[0] in 'qkv':
                for tau, d in enumerate(dests(ch)):
                    assert d[0] != 'lds'
                    for r_, off in ((0, 0), (2, 2), (4, 32), (6, 34)):
                        if coop:
                            o(f"  ds_read_b64_tr_b16 {reg((d[0], d[1]+r_), 2)}, v{vRd + 2*((off % 16)//2) + tau} offset:{(off // 16)*16*256}")
                        else:
                            o(f"  ds_read_b64_tr_b16 {reg((d[0], d[1]+r_), 2)}, v{vT} offset:{off*64 + 32*tau}")
            elif ch[0] == 'o':
                for i, d in enumerate(dests(ch)):
                    pim, x = i // 2, i % 2
                    o(f"  ds_read_b64_tr_b16 {v(b+4*i,2)}, v{vT2} offset:{64*pim + 8*x}")
                    o(f"  ds_read_b64_tr_b16 {v(b+4*i+2,2)}, v{vT2} offset:{512 + 64*pim + 8*x}")
                o("  s_waitcnt lgkmcnt(0)")
                for i, d in enumerate(dests(ch)):
                    ar, imm = ldsaddr(d[1])
                    o(f"  ds_write_b128 v{ar}, {v(b+4*i,4)} offset:{imm}")
            else:
                d = dests(ch)[0]
                o(f"  ds_read_b64_tr_b16 {v(b,2)}, v{vT2h} offset:0")
                o(f"  ds_read_b64_tr_b16 {v(b+2,2)}, v{vT2h} offset:256")
                o("  s_waitcnt lgkmcnt(0)")
                ar, imm = ldsaddr(d[1])
                o(f"  ds_write_b128 v{ar}, {v(b,4)} offset:{imm}")
    o("  s_waitcnt lgkmcnt(0)")


Q0, Q1, K0, K1, V0, V1 = 30, 34, 38, 42, 46, 50
W = [54, 58, 62]
T, U, QS = 66, 70, 74

class Cnt:
    def __init__(self, o, name, maxv):
        self.o, self.name, self.maxv, self.q = o, name, maxv, []
    def issue(self, tag):
        self.q.append(tag)
        assert len(self.q) <= self.maxv + 1, (self.name, self.q)
    def wait(self, tag):
        if tag not in self.q: return
        i = len(self.q) - 1 - self.q[::-1].index(tag)
        n = len(self.q) - 1 - i
        self.o(f"  s_waitcnt {self.name}cnt({n})")
        self.q = self.q[i+1:]
    def waitall(self):
        self.o(f"  s_waitcnt {self.name}cnt(0)")
        self.q = []

def smf(o, d, aop, b):
    o(f"  v_smfmac_f32_16x16x64_bf16 {v(d,4)}, {v(aop,4)}, {reg(b,8)}, v{vIdx}")


POLL_LIMIT = 1 << 20
PUBF = 'sc1'
PUBK = 'sc1'
PUBV = 'sc1'
KVF = ''
TCHF = ''
DUALF = True
DUALA = False
FSTAG = 16
ASTAG = 16
KVPOS = 'qk'
KVCNT = None
TOUCH = True
RESETW = False
vDummy = 79

def emit_loop(o, L, stf, timing=False, fdelay=0, adelay=0):
    WSr = f"s[{sWS}:{sWS+3}]"
    lg = Cnt(o, "lgkm", 15)
    def dsr(dst, ar, off, tag):
        o(f"  ds_read_b128 {v(dst,4)}, v{ar} offset:{off}")
        lg.issue(tag)
    def stamp(k):
        if timing:
            o(f"  s_memtime s[{86+2*k}:{87+2*k}]")
    T, U, QS, MW = 66, 70, 74, 78
    o(f"{L}_loop:")
    for wv in range(3):
        o(f"  s_cmp_eq_u32 s{sWv_}, {wv}\n  s_cbranch_scc1 {L}_qv{wv}")
    o(f"  s_branch {L}_qv3")
    side = []
    if KVPOS == 'qk': side += [f"  s_add_u32 s{sT1}, s{sKoff}, {VBUF-KBUF}",
             f"  buffer_load_dwordx4 {v(vKx,4)}, v{vA}, {WSr}, s{sKoff} offen {KVF}", None,
             f"  buffer_load_dwordx4 {v(vKx+4,4)}, v{vA}, {WSr}, s{sKoff} offen offset:1024 {KVF}", None, None,
             f"  buffer_load_dwordx4 {v(vVx,4)}, v{vA}, {WSr}, s{sT1} offen {KVF}", None, None,
             f"  buffer_load_dwordx4 {v(vVx+4,4)}, v{vA}, {WSr}, s{sT1} offen offset:1024 {KVF}", None]
    if KVCNT is not None:
        side += [f"  v_readfirstlane_b32 s{sT0}, v{vDummy}",
                 f"  s_cmp_ge_u32 s{sT0}, 128\n  s_cbranch_scc1 {{LP}}_kv\n"
                 f"  s_add_u32 s{sT0}, s{sStep}, 1\n  s_min_u32 s{sT0}, s{sT0}, 63\n  s_lshr_b32 s{sT0}, s{sT0}, 2\n  s_lshl_b32 s{sT0}, s{sT0}, 7\n  s_add_u32 s{sT0}, s{sT0}, {KVCNT}\n"
                 f"  v_mov_b32 v72, s{sT0}\n{{LP}}_kvp:\n  buffer_load_dword v73, v72, {WSr}, 0 offen sc1\n  s_waitcnt vmcnt(0)\n  v_readfirstlane_b32 s{sT0}, v73\n  s_add_u32 s{sPoll}, s{sPoll}, 1\n  s_cmp_gt_u32 s{sPoll}, {POLL_LIMIT}\n  s_cbranch_scc1 {L}_bail\n  s_cmp_ge_u32 s{sT0}, 128\n  s_cbranch_scc0 {{LP}}_kvp\n{{LP}}_kv:"]
    if HALFT:
        side += [f"  v_bfe_u32 v72, v{vA}, 4, 4", f"  v_lshlrev_b32 v72, 7, v72", f"  v_bfe_u32 v73, v{vA}, 8, 1", f"  v_lshl_add_u32 v72, v73, 24, v72",
                 f"  s_add_u32 s{sKoff}, s{sKoff}, {32*8192}", f"  s_mov_b32 exec_hi, 0\n  buffer_load_dword v{vDummy}, v72, {WSr}, s{sKoff} offen {TCHF}\n  s_mov_b32 exec_hi, -1"]
        side += [f"  v_bfe_u32 v73, v{vA}, 4, 5", f"  v_mul_u32_u24 v73, {H1_PROD}, v73", f"  v_add_u32 v73, s{sUnit}, v73",
                 f"  s_add_u32 s{sT0}, s{sH1ld}, {H1_SLOT}", f"  s_mov_b32 exec_hi, 0\n  buffer_load_dword v{vDummy}, v73, {WSr}, s{sT0} offen {TCHF}\n  s_mov_b32 exec_hi, -1",
                 f"  s_add_u32 s{sT0}, s{sH2pub}, s{sH2tch}", f"  v_lshlrev_b32 v72, 9, v{vA}", f"  s_mov_b64 exec, 3\n  buffer_load_dword v{vDummy}, v72, {WSr}, s{sT0} offen {TCHF}\n  s_mov_b64 exec, -1"]
    else:
        side += [f"  v_bfe_u32 v72, v{vA}, 4, 5", f"  v_lshlrev_b32 v72, 6, v72", f"  v_lshrrev_b32 v73, 9, v{vA}", f"  v_lshl_add_u32 v72, v73, 24, v72",
                 f"  s_add_u32 s{sKoff}, s{sKoff}, {32*8192}", f"  buffer_load_dword v{vDummy}, v72, {WSr}, s{sKoff} offen {TCHF}"]
        side += [f"  v_bfe_u32 v73, v{vA}, 4, 5", f"  v_mul_u32_u24 v73, {H1_PROD}, v73", f"  v_lshrrev_b32 v72, 9, v{vA}", f"  v_lshl_add_u32 v73, v72, 6, v73", f"  v_add_u32 v73, s{sUnit}, v73",
                 f"  s_add_u32 s{sT0}, s{sH1ld}, {H1_SLOT}", f"  buffer_load_dword v{vDummy}, v73, {WSr}, s{sT0} offen {TCHF}",
                 f"  s_add_u32 s{sT0}, s{sH2pub}, s{sH2tch}", f"  v_lshlrev_b32 v72, 9, v{vA}", f"  s_mov_b64 exec, 3\n  buffer_load_dword v{vDummy}, v72, {WSr}, s{sT0} offen {TCHF}\n  s_mov_b64 exec, -1"]
    if KVCNT is not None:
        side += [f"  s_add_u32 s{sT0}, s{sStep}, 2\n  s_min_u32 s{sT0}, s{sT0}, 63\n  s_lshr_b32 s{sT0}, s{sT0}, 2\n  s_lshl_b32 s{sT0}, s{sT0}, 7",
                 f"  s_add_u32 s{sT0}, s{sT0}, {KVCNT}\n  v_mov_b32 v72, s{sT0}", f"  buffer_load_dword v{vDummy}, v72, {WSr}, 0 offen sc1"]
    side += [f"  v_mov_b32 v70, s{sStep}", f"  v_mov_b32 v71, s{sFlagOff}", f"  s_mov_b64 exec, 1\n  buffer_store_dword v70, v71, {WSr}, 0 offen {PUBF}\n  s_mov_b64 exec, -1"]
    side += [f"  v_add_u32 v{MW}, s{sW256}, v{vM}", f"  v_cndmask_b32 v{MW}, -16, v{MW}, s[{sMaskMw}:{sMaskMw+1}]"]
    NV_AFTER_KV = 4 + (1 if KVCNT is not None else 0)
    side_all = list(side)
    o.c("QK phase: own (register-resident) chunks first, the rest through LDS")
    for wv in range(4):
        o(f"{L}_av{wv}:")
        S1 = [58, 62, 66][:(3 if wv == 0 else 2)]
        offs = [sH2pl, sT1, sT2]
        if timing: o("  s_add_u32 s81, s81, 1\n  s_memtime s[68:69]")
        for r_, so in zip(S1, offs):
            o(f"  buffer_load_dwordx4 {v(r_,4)}, v{vA}, {WSr}, s{so} offen sc1")
        o(f"  s_add_u32 s{sPoll}, s{sPoll}, 1")
        o(f"  s_cmp_gt_u32 s{sPoll}, {POLL_LIMIT}")
        o(f"  s_cbranch_scc1 {L}_bail")
        o(f"  s_waitcnt vmcnt(0)")
        if timing: o("  s_memtime s[70:71]")
        o(f"  v_max3_u32 v78, v58, v60, v62")
        if wv == 0:
            o(f"  v_max3_u32 v78, v78, v64, v66\n  v_max_u32 v78, v78, v68")
        else:
            o(f"  v_max_u32 v78, v78, v64")
        o(f"  v_cmp_eq_u32 vcc, -1, v78")
        o(f"  s_cbranch_vccnz {L}_av{wv}")
        o(f"  ds_write_b128 v{vXw}, {v(58,4)} offset:{L_MEM}")
        o(f"  ds_write_b128 v{vXw}, {v(62,4)} offset:{L_MEM+4096}")
        if wv == 0: o(f"  ds_write_b128 v{vA}, {v(66,4)} offset:{L_MEM+8192}")
        o(f"{L}_qv{wv}:")
        if timing: o("  s_memtime s[72:73]")
        stamp(0)
        side = list(side_all)
        def pop(n):
            for _ in range(n):
                if side:
                    x = side.pop(0)
                    if x: o(x.replace("{LP}", f"{L}w{wv}"))
        lgq = Cnt(o, "lgkm", 15)
        def dsq(dst, off, tag):
            o(f"  ds_read_b128 {v(dst,4)}, v{vA} offset:{off}"); lgq.issue(tag)
        def qk(c, a_, np_=(1,1,1,1)):
            smf(o, Q0, a_, frag_q(0, c)); pop(np_[0])
            smf(o, Q1, a_, frag_q(1, c)); pop(np_[1])
            smf(o, K0, a_, frag_k(0, c)); pop(np_[2])
            smf(o, K1, a_, frag_k(1, c))
        own = [wv, wv+4] + ([8] if wv == 0 else [])
        rest = [c for c in range(9) if c not in own]
        qk(own[0], W[1])
        o("  s_waitcnt lgkmcnt(0)\n  s_barrier")
        dsq(W[0], L_MEM + 1024*rest[0], "r0"); dsq(W[1], L_MEM + 1024*rest[1], "r1")
        qk(own[1], W[2])
        dsq(W[2], L_MEM + 1024*rest[2], "r2")
        if wv == 0: qk(8, 66)
        for k, c in enumerate(rest):
            lgq.wait(f"r{k}")
            last = (k == len(rest)-1)
            qk(c, W[k % 3], (1, 2 if k >= len(rest)-3 else 1, 0 if last else 1, 0))
            if k + 3 < len(rest): dsq(W[k % 3], L_MEM + 1024*rest[k+3], f"r{k+3}")
            if not last: pop(1)
        while side: pop(1)
        free_order = [(len(rest)-3+i_) % 3 for i_ in range(3)]
        assert sorted(free_order) == [0, 1, 2]
        for sl in range(3):
            o(f"  ds_read_b128 {v(W[sl],4)}, v{vA} offset:{L_MEM + 1024*(6+sl)}")
        if wv < 3:
            o(f"  s_branch {L}_qkd")
    o(f"{L}_qkd:")
    lg.issue("V6"); lg.issue("V7"); lg.issue("V8")
    stamp(1)
    o.c("transpose q,k")
    def vpass(c, slot):
        smf(o, V0, W[slot], frag_v(0, c)); smf(o, V1, W[slot], frag_v(1, c))
    o(f"  v_cvt_pk_bf16_f32 v{T}, v{Q0}, v{Q0+1}")
    o(f"  v_cvt_pk_bf16_f32 v{T+1}, v{Q0+2}, v{Q0+3}")
    o(f"  v_cvt_pk_bf16_f32 v{T+2}, v{Q1}, v{Q1+1}")
    o(f"  v_cvt_pk_bf16_f32 v{T+3}, v{Q1+2}, v{Q1+3}")
    nop(o, 2)
    o(f"  v_cvt_pk_bf16_f32 v{U}, v{K0}, v{K0+1}")
    o(f"  v_mfma_f32_16x16x16_bf16 {v(Q0,4)}, {v(T,2)}, {v(vSel,2)}, 0")
    o(f"  v_cvt_pk_bf16_f32 v{U+1}, v{K0+2}, v{K0+3}")
    o(f"  v_cvt_pk_bf16_f32 v{U+2}, v{K1}, v{K1+1}")
    o(f"  v_mfma_f32_16x16x16_bf16 {v(Q1,4)}, {v(T+2,2)}, {v(vSel,2)}, 0")
    o(f"  v_cvt_pk_bf16_f32 v{U+3}, v{K1+2}, v{K1+3}")
    nop(o, 1)
    o(f"  v_mfma_f32_16x16x16_bf16 {v(K0,4)}, {v(U,2)}, {v(vSel,2)}, 0")
    o(f"  v_mfma_f32_16x16x16_bf16 {v(K1,4)}, {v(U+2,2)}, {v(vSel,2)}, 0")
    lg.wait("V6")
    smf(o, V0, W[0], frag_v(0, 6))
    o(f"  v_cvt_pk_bf16_f32 v{T}, v{Q0}, v{Q0+1}")
    o(f"  v_cvt_pk_bf16_f32 v{T+1}, v{Q0+2}, v{Q0+3}")
    o(f"  v_cvt_pk_bf16_f32 v{T+2}, v{Q1}, v{Q1+1}")
    o(f"  v_cvt_pk_bf16_f32 v{T+3}, v{Q1+2}, v{Q1+3}")
    smf(o, V1, W[0], frag_v(1, 6))
    dsr(W[0], vA, L_MEM, "B0")
    for i in range(4):
        o(f"  v_mov_b32_dpp v{QS+i}, v{T+i} row_ror:8 row_mask:0xf bank_mask:0xf")
    o(f"  s_waitcnt vmcnt({NV_AFTER_KV})")
    o(f"  v_mfma_f32_16x16x32_bf16 {v(Q0,4)}, {v(vKx,4)}, {v(T,4)}, 0")
    o(f"  v_cvt_pk_bf16_f32 v{U}, v{K0}, v{K0+1}")
    o(f"  v_cvt_pk_bf16_f32 v{U+1}, v{K0+2}, v{K0+3}")
    o(f"  v_mfma_f32_16x16x32_bf16 {v(Q0,4)}, {v(vKx+4,4)}, {v(QS,4)}, {v(Q0,4)}")
    o(f"  v_cvt_pk_bf16_f32 v{U+2}, v{K1}, v{K1+1}")
    o(f"  v_cvt_pk_bf16_f32 v{U+3}, v{K1+2}, v{K1+3}")
    nop(o, 2)
    o(f"  v_mfma_f32_16x16x32_bf16 {v(Q1,4)}, {v(U,4)}, {v(T,4)}, 0")
    lg.wait("V7")
    vpass(7, 1)
    dsr(W[1], vA, L_MEM + 1024, "B1")
    o(f"  ds_write_b128 v{vXw}, {v(Q0,4)} offset:{L_XEX}"); lg.issue("Xw")
    o(f"  ds_write_b128 v{MW}, {v(Q1,4)}"); lg.issue("Mw")
    o(f"  buffer_store_dwordx4 {v(U,4)}, v{vH1}, {WSr}, s{sKm} offen {PUBK}")
    lg.wait("V8")
    vpass(8, 2)
    dsr(W[2], vA, L_MEM + 2048, "B2")
    lg.wait("B0")
    vpass(0, 0)
    dsr(W[0], vA, L_MEM + 3072, "B3")
    lg.wait("Mw")
    o("  s_barrier")
    stamp(2)
    o.c("exchange reads")
    XP = [Q0, vKx, vKx+4, 74]
    MP = [Q1, 66, 42, 38]
    for k in range(4):
        dsr(XP[k], vA, L_XEX + 1024*k, f"XP{k}")
    for k in range(4):
        dsr(MP[k], vM, L_MEX + 256*k, f"MP{k}")
    lg.wait("B1")
    vpass(1, 1)
    dsr(W[1], vA, L_MEM + 4096, "B4")
    lg.wait("B2")
    vpass(2, 2)
    dsr(W[2], vA, L_MEM + 5120, "B5")
    lg.wait("B3")
    vpass(3, 0)
    lg.wait("XP3")
    for k in range(1, 4):
        o(f"  v_pk_add_f32 {v(Q0,2)}, {v(Q0,2)}, {v(XP[k],2)}")
        o(f"  v_pk_add_f32 {v(Q0+2,2)}, {v(Q0+2,2)}, {v(XP[k]+2,2)}")
    lg.wait("MP3")
    for k in range(1, 4):
        o(f"  v_pk_add_f32 {v(Q1,2)}, {v(Q1,2)}, {v(MP[k],2)}")
        o(f"  v_pk_add_f32 {v(Q1+2,2)}, {v(Q1+2,2)}, {v(MP[k]+2,2)}")
    WIN = [14, 18, 22, 26, 38, 42, 66, 70]
    lds_list = [(tl, kap, frag_o(tl, kap)[1]) for tl in range(9) for kap in range(4)]
    slot_of = {}
    st = dict(issued=0)
    BASE = (vXw, 78, 78)
    def issue_frag():
        n = st['issued']
        if n >= len(lds_list): return
        tl, kap, f = lds_list[n]
        sl = WIN[n % len(WIN)]
        b, imm = lds_frag_addr(f)
        if b == 2 and lds_frag_addr(f-1)[0] == 1:
            o(f"  v_add_u32 v78, 0x10000, v78")
        dsr(sl, BASE[b], imm, f"wo{n}")
        slot_of[(tl, kap)] = (sl, n)
        st['issued'] = n + 1
    o.c("softmax")
    MX, TM = 78, 42
    o(f"  v_max3_f32 v{MX}, v{Q0}, v{Q0+1}, v{Q0+2}")
    o(f"  v_max3_f32 v{TM}, v{Q0+3}, v{Q1}, v{Q1+1}")
    o(f"  v_max3_f32 v{MX}, v{MX}, v{Q1+2}, v{Q1+3}")
    o(f"  v_max_f32 v{MX}, v{MX}, v{TM}")
    lg.wait("B4")
    smf(o, V0, W[1], frag_v(0, 4))
    issue_frag()
    o(f"  v_max_f32_dpp v{MX}, v{MX}, v{MX} row_ror:8 row_mask:0xf bank_mask:0xf")
    smf(o, V1, W[1], frag_v(1, 4))
    o(f"  v_mov_b32 v{TM}, v{MX}")
    issue_frag()
    lg.wait("B5")
    smf(o, V0, W[2], frag_v(0, 5))
    o(f"  v_permlane16_swap_b32 v{MX}, v{TM}")
    o(f"  v_max_f32 v{MX}, v{MX}, v{TM}")
    o(f"  v_mov_b32 v{TM}, v{MX}")
    smf(o, V1, W[2], frag_v(1, 5))
    nop(o, 1)
    o(f"  v_permlane32_swap_b32 v{MX}, v{TM}")
    o(f"  v_max_f32 v{MX}, v{MX}, v{TM}")
    o(f"  v_mul_f32 v{MX}, s{sC}, v{MX}")
    for i in range(8):
        o(f"  v_fma_f32 v{Q0+i}, v{Q0+i}, s{sC}, -v{MX}")
    PX, PXs, PM, LA, LB, VP = 74, 76, 70, 72, 73, 66
    for i in range(8):
        o(f"  v_exp_f32 v{Q0+i}, v{Q0+i}")
    D0, D1 = 38, 42
    O0 = 70
    o.c("PV with the l-sum chain interleaved")
    o(f"  v_cvt_pk_bf16_f32 v{PX}, v{Q0}, v{Q0+1}")
    o(f"  v_cvt_pk_bf16_f32 v{PX+1}, v{Q0+2}, v{Q0+3}")
    o(f"  v_cvt_pk_bf16_f32 v{PM}, v{Q1}, v{Q1+1}")
    o(f"  v_cvt_pk_bf16_f32 v{PM+1}, v{Q1+2}, v{Q1+3}")
    o(f"  v_pk_add_f32 {v(LA,2)}, {v(Q0,2)}, {v(Q0+2,2)}")
    o(f"  v_pk_add_f32 {v(Q1,2)}, {v(Q1,2)}, {v(Q1+2,2)}")
    o(f"  v_mov_b32_dpp v{PXs}, v{PX} row_ror:8 row_mask:0xf bank_mask:0xf")
    o(f"  v_mov_b32_dpp v{PXs+1}, v{PX+1} row_ror:8 row_mask:0xf bank_mask:0xf")
    o(f"  v_add_f32 v{LA}, v{LA}, v{LB}")
    o(f"  v_add_f32 v{LB}, v{Q1}, v{Q1+1}")
    o(f"  v_mfma_f32_16x16x32_bf16 {v(D0,4)}, {v(vVx,4)}, {v(PX,4)}, 0")
    o(f"  v_fmamk_f32 v{LA}, v{LB}, 0x3e800000, v{LA}")
    o(f"  v_cvt_pk_bf16_f32 v{VP}, v{V0}, v{V0+1}")
    o(f"  v_mfma_f32_16x16x32_bf16 {v(D1,4)}, {v(vVx+4,4)}, {v(PX,4)}, 0")
    o(f"  v_cvt_pk_bf16_f32 v{VP+1}, v{V0+2}, v{V0+3}")
    o(f"  v_add_f32_dpp v{LA}, v{LA}, v{LA} row_ror:8 row_mask:0xf bank_mask:0xf")
    o(f"  v_mov_b32 v{LB}, v{LA}")
    o(f"  v_cvt_pk_bf16_f32 v{VP+2}, v{V1}, v{V1+1}")
    o(f"  v_mfma_f32_16x16x16_bf16 {v(D0,4)}, {v(VP,2)}, {v(PM,2)}, {v(D0,4)}")
    o(f"  v_cvt_pk_bf16_f32 v{VP+3}, v{V1+2}, v{V1+3}")
    o(f"  v_permlane16_swap_b32 v{LA}, v{LB}")
    o(f"  v_add_f32 v{LA}, v{LA}, v{LB}")
    o(f"  v_mov_b32 v{LB}, v{LA}")
    o(f"  v_mfma_f32_16x16x16_bf16 {v(D1,4)}, {v(VP+2,2)}, {v(PM,2)}, {v(D1,4)}")
    o(f"  s_add_u32 s{sVm}, s{sKm}, {VM-KM}")
    o(f"  s_cmp_eq_u32 s{sStep}, 63")
    o(f"  s_cbranch_scc1 {L}_done")
    o(f"  v_permlane32_swap_b32 v{LA}, v{LB}")
    o(f"  v_add_f32 v{LA}, v{LA}, v{LB}")
    o(f"  v_rcp_f32 v78, v{LA}")
    issue_frag()
    issue_frag()
    for i in range(0, 8, 2):
        o(f"  v_pk_mul_f32 {v(D0+i,2)}, {v(D0+i,2)}, {v(78,2)} op_sel_hi:[1,0]")
    o(f"  v_cvt_pk_bf16_f32 v{O0}, v{D0}, v{D0+1}")
    o(f"  v_cvt_pk_bf16_f32 v{O0+1}, v{D0+2}, v{D0+3}")
    o(f"  ds_write_b64 v{vOw}, {v(O0,2)}"); lg.issue("Ow0")
    o(f"  v_cvt_pk_bf16_f32 v{O0+2}, v{D1}, v{D1+1}")
    o(f"  v_cvt_pk_bf16_f32 v{O0+3}, v{D1+2}, v{D1+3}")
    o(f"  ds_write_b64 v{vOw}, {v(O0+2,2)} offset:512"); lg.issue("Ow1")
    o(f"  v_add_u32 v78, 0x10000, v{vXw}")
    o(f"  buffer_store_dwordx4 {v(VP,4)}, v{vA}, {WSr}, s{sVm} offen {PUBV}")
    issue_frag(); issue_frag()
    lg.wait("Ow1")
    o("  s_barrier")
    stamp(3)
    o.c("E phase")
    B = [46, 50, 54, 58]
    for k in range(4):
        dsr(B[k], vA, L_OEX + (k//2)*1024 + (k%2)*128, f"ob{k}")
    issue_frag(); issue_frag()
    D = [30, 34]
    PK, PKB = 62, 74
    for tl in range(9):
        post = []
        d = D[tl % 2]
        pend = []
        if tl >= 1:
            prev = tl - 1
            dd = D[prev % 2]; x = prev % 2; p = prev // 2
            pk = PK if p % 2 == 0 else PKB
            pend = [f"  v_cvt_pk_bf16_f32 v{pk+2*x}, v{dd}, v{dd+1}", f"  v_cvt_pk_bf16_f32 v{pk+2*x+1}, v{dd+2}, v{dd+3}"]
            if x == 1 and p % 2 == 1:
                post = [f"  v_mov_b32_dpp v{PK+i}, v{PKB+i} row_ror:8 row_mask:0xf bank_mask:0xc" for i in range(4)]
                post.append(f"  buffer_store_dwordx4 {v(PK,4)}, v{vA}, {WSr}, s{sH1st} offen offset:{1024*(p//2)} {stf}")
            else:
                post = []
        if tl >= 1: lg.wait(f"wo{4*tl+3}")
        for n_ in range(4):
            kap = n_
            if tl == 0: lg.wait(f"ob{kap}")
            sl, n = slot_of[(tl, kap)]
            if tl == 0: lg.wait(f"wo{n}")
            cin = "0" if n_ == 0 else v(d, 4)
            o(f"  v_mfma_f32_16x16x32_bf16 {v(d,4)}, {v(sl,4)}, {v(B[kap],4)}, {cin}")
            issue_frag()
            if n_ == 2 and pend:
                for x_ in pend: o(x_)
                pend = []
            if n_ == 3 and post:
                for x_ in post: o(x_)
                post = []
    for r in range(38, 46): o(f"  v_mov_b32 v{r}, 0")
    d = D[0]
    o(f"  v_cvt_pk_bf16_f32 v{PK}, v{d}, v{d+1}")
    o(f"  v_cvt_pk_bf16_f32 v{PK+1}, v{d+2}, v{d+3}")
    o(f"  buffer_store_dwordx2 {v(PK,2)}, v{vH1}, {WSr}, s{sH1h} offen {stf}")
    assert not lg.q, lg.q
    stamp(4)
    for r in list(range(30, 38)) + list(range(46, 54)): o(f"  v_mov_b32 v{r}, 0")
    nop(o, fdelay)
    o.c("F: reducers")
    vmst = f"  buffer_store_dwordx4 {v(66,4)}, v{vA}, {WSr}, s{sVm} offen {PUBV}"
    o(f"  s_cmp_eq_u32 s{sIsRed}, 0")
    o(f"  s_cbranch_scc1 {L}_nred")
    o(f"  s_add_u32 s{sT1}, s{sH1ld}, {8*H1_PROD}")
    o(f"  s_add_u32 s{sT2}, s{sH1ld}, {16*H1_PROD}")
    o(f"  s_add_u32 s{sT3}, s{sH1ld}, {24*H1_PROD}")
    FS1, FS2 = [54, 58, 62, 74], [14, 18, 22, 26]
    def f_loads(S):
        for k, so in enumerate((sH1ld, sT1, sT2, sT3)):
            o(f"  buffer_load_dwordx4 {v(S[k],4)}, v{vR}, {WSr}, s{so} offen sc1")
    def f_check(S, younger):
        for k in range(4):
            o(f"  s_waitcnt vmcnt({younger+3-k})")
            if timing and k == 3: o("  s_memtime s[66:67]")
            o(f"  v_mfma_f32_16x16x32_bf16 {v(70,4)}, {v(vSelR,4)}, {v(S[k],4)}, {'0' if k == 0 else v(70,4)}")
        nop(o, 8)
        o(f"  v_cmp_u_f32 vcc, v70, v70")
        for i_ in range(4):
            o(f"  v_add_f32_dpp v{70+i_}, v{70+i_}, v{70+i_} row_ror:8 row_mask:0xf bank_mask:0xf")
        o(f"  v_cvt_pk_bf16_f32 v66, v70, v71")
        o(f"  v_cvt_pk_bf16_f32 v67, v72, v73")
    def f_cnt():
        if timing: o("  s_add_u32 s80, s80, 1\n  s_memtime s[64:65]")
        o(f"  s_add_u32 s{sPoll}, s{sPoll}, 1")
        o(f"  s_cmp_gt_u32 s{sPoll}, {POLL_LIMIT}")
        o(f"  s_cbranch_scc1 {L}_bail")
    if timing: o("  s_add_u32 s80, s80, 1\n  s_memtime s[64:65]")
    f_loads(FS1)
    nop(o, FSTAG)
    f_loads(FS2)
    o(f"{L}_ra:")
    f_check(FS1, 4)
    o(f"  s_cbranch_vccz {L}_rok")
    f_loads(FS1); f_cnt()
    f_check(FS2, 4)
    o(f"  s_cbranch_vccz {L}_rok")
    f_loads(FS2); f_cnt()
    o(f"  s_branch {L}_ra")
    o(f"{L}_rok:")
    o(f"  buffer_store_dwordx2 {v(66,2)}, v{vP}, {WSr}, s{sH2pub} offen {stf}")
    o(f"{L}_nred:")
    o(f"{L}_cons:")
    o(f"  s_barrier")
    stamp(5)
    o.c("A: gather mem(s+1); per-step scalar updates double as the publish->visible delay")
    o(f"  s_add_u32 s{sH2pl}, s{sH2pub}, s{sW1024}")
    o(f"  s_add_u32 s{sT1}, s{sH2pl}, 4096")
    o(f"  s_add_u32 s{sT2}, s{sH2pub}, 8192")
    o(f"  s_add_u32 s{sStep}, s{sStep}, 1")
    for x in [f"  s_add_u32 s{sH1ld}, s{sH1ld}, {H1_SLOT}", f"  s_add_u32 s{sKm}, s{sKm}, {32*4096}",
             f"  s_add_u32 s{sH1st}, s{sH1ld}, s{sH1so}", f"  s_add_u32 s{sH1h}, s{sH1ld}, s{sH1ho}",
             f"  s_add_u32 s{sH2pub}, s{sH2pub}, {H2_SLOT}"]:
        o(x)
    nop(o, adelay)
    if timing:
        lab2 = o.label("nort")
        o(f"  s_memrealtime s[82:83]\n  s_memtime s[98:99]\n  s_waitcnt lgkmcnt(0)")
        o(f"  s_lshl_b32 s{sT0}, s{sH}, 2\n  s_add_u32 s{sT0}, s{sT0}, s{sWv_}\n  s_cmp_eq_u32 s{sT0}, 0\n  s_cbranch_scc0 {lab2}")
        o(f"  s_lshl_b32 s{sT0}, s{sStep}, 3\n  s_add_u32 s{sT0}, s{sT0}, {FLAGS + 0x3000}\n  v_mov_b32 v74, s82\n  v_mov_b32 v75, s98\n  v_mov_b32 v76, s{sT0}\n  buffer_store_dwordx2 v[74:75], v76, {WSr}, 0 offen")
        for k_, sr_ in enumerate([86, 88, 90, 92, 94, 96]):
            o(f"  s_lshl_b32 s{sT0}, s{sStep}, 5\n  s_add_u32 s{sT0}, s{sT0}, {FLAGS + 0x70000 + 4*k_}\n  v_mov_b32 v74, s{sr_}\n  v_mov_b32 v76, s{sT0}\n  buffer_store_dword v74, v76, {WSr}, 0 offen")
        o.put(lab2)
        lab = o.label("nost")
        o(f"  s_cmp_eq_u32 s{sStep}, 21")
        o(f"  s_cbranch_scc0 {lab}")
        for k, sr in enumerate([86,88,90,92,94,96,98,64,66,68,70,72]):
            o(f"  v_mov_b32 v74, s{sr}")
            o(f"  s_lshl_b32 s{sT0}, s{sH}, 2\n  s_add_u32 s{sT0}, s{sT0}, s{sWv_}\n  s_lshl_b32 s{sT0}, s{sT0}, 6\n  s_add_u32 s{sT0}, s{sT0}, {FLAGS + 4096 + 4*k}")
            o(f"  v_mov_b32 v75, s{sT0}")
            o(f"  buffer_store_dword v74, v75, {WSr}, 0 offen")
        o.put(lab)
    for wv in range(3):
        o(f"  s_cmp_eq_u32 s{sWv_}, {wv}\n  s_cbranch_scc1 {L}_av{wv}")
    o(f"  s_branch {L}_av3")
    o(f"{L}_bail:")
    o(f"  s_endpgm")
    o(f"{L}_done:")
    o(f"  buffer_store_dwordx4 {v(66,4)}, v{vA}, {WSr}, s{sVm} offen sc1")
    o(f"  s_waitcnt vmcnt(0) lgkmcnt(0)")
    o(f"  s_barrier")
    o(f"  s_cmp_lg_u32 s{sWv_}, 0\n  s_cbranch_scc1 {L}_fin")
    o(f"  v_mov_b32 v78, 64")
    o(f"  v_mov_b32 v77, s{sFlagOff}")
    o(f"  s_mov_b64 exec, 1\n  buffer_store_dword v78, v77, {WSr}, 0 offen sc1\n  s_mov_b64 exec, -1")
    o(f"  s_waitcnt vmcnt(0)")
    o(f"{L}_fin:")

def emit_init(o, L):
    WSr = f"s[{sWS}:{sWS+3}]"
    lab = o.label("noh2")
    o(f"""  s_lshl_b32 s{sT0}, s{sH}, 2
  s_add_u32 s{sT0}, s{sT0}, s{sWv_}
  s_lshl_b32 s{sFlagOff}, s{sH}, 7
  s_add_u32 s{sFlagOff}, s{sFlagOff}, {RFLAG}
  s_cmp_lg_u32 s{sWv_}, 0
  s_cselect_b32 s{sFlagOff}, 0x80000000, s{sFlagOff}
{lab}:""")

def emit_early(o):
    WSr = f"s[{sWS}:{sWS+3}]"
    if TLBW:
        o(f"""  v_lshrrev_b32 v47, 4, v{vA}
  v_lshlrev_b32 v47, 21, v47
  buffer_load_dword v14, v47, {WSr}, 0 offen
  v_add_u32 v47, 0x8000000, v47
  buffer_load_dword v14, v47, {WSr}, 0 offen""")
    o(f"""  ; scalar state for step 0
  s_lshl_b32 s{sKoff}, s{sH}, 13
  s_lshl_b32 s{sT1}, s{sWv_}, 11
  s_add_u32 s{sKoff}, s{sKoff}, s{sT1}
  s_lshl_b32 s{sKm}, s{sH}, 12
  s_add_u32 s{sKm}, s{sKm}, s{sW1024}
  s_add_u32 s{sKm}, s{sKm}, {KM}
  s_mov_b32 s{sH1ld}, {H1}
  s_mul_i32 s{sT1}, s{sH}, {H1_PROD}
  s_lshl_b32 s{sT2}, s{sWv_}, 11
  s_add_u32 s{sH1so}, s{sT1}, s{sT2}
  s_lshr_b32 s{sT2}, s{sWv_}, 1
  s_lshl_b32 s{sT2}, s{sT2}, 10
  s_add_u32 s{sH1ho}, s{sT1}, s{sT2}
  s_add_u32 s{sH1ho}, s{sH1ho}, 8192
  s_and_b32 s{sT2}, s{sWv_}, 1
  s_lshl_b32 s{sT2}, s{sT2}, 3
  s_add_u32 s{sH1ho}, s{sH1ho}, s{sT2}
  s_add_u32 s{sH1st}, s{sH1ld}, s{sH1so}
  s_add_u32 s{sH1h}, s{sH1ld}, s{sH1ho}
  s_mov_b32 s{sH2pub}, {H2 + H2_SLOT}
  v_bfe_u32 v47, v{vA}, 4, 5
  v_mul_u32_u24 v47, {H1_PROD}, v47
  v_add_u32 v47, s{sUnit}, v47
  buffer_load_dword v14, v47, {WSr}, s{sH1ld} offen
  s_add_u32 s{sT0}, s{sH2pub}, s{sW1024}
  v_lshlrev_b32 v47, 3, v{vA}
  buffer_load_dword v14, v47, {WSr}, s{sT0} offen
  s_add_u32 s{sT1}, s{sKoff}, {VBUF-KBUF}
  buffer_load_dwordx4 {v(vKx,4)}, v{vA}, {WSr}, s{sKoff} offen
  buffer_load_dwordx4 {v(vKx+4,4)}, v{vA}, {WSr}, s{sKoff} offen offset:1024
  buffer_load_dwordx4 {v(vVx,4)}, v{vA}, {WSr}, s{sT1} offen
  buffer_load_dwordx4 {v(vVx+4,4)}, v{vA}, {WSr}, s{sT1} offen offset:1024
""")

def emit_mem0(o, mid=None):
    WSr = f"s[{sWS}:{sWS+3}]"
    o.c("mem0 -> LDS: piece (j=8c+2g+u, t) = mem0[t][8j..8j+8)")
    o(f"""  s_mov_b32 s64, s48
  s_and_b32 s65, s49, 0xffff
  s_mov_b32 s66, 9216
  s_mov_b32 s67, 0x20000
  v_lshrrev_b32 v62, 4, v{vA}         ; lane
  v_and_b32 v63, 7, v62               ; t
  v_lshrrev_b32 v64, 3, v62           ; 2g+u
  v_mul_u32_u24 v63, 1152, v63
  v_lshl_add_u32 v63, v64, 4, v63     ; t*1152 + (2g+u)*16
  s_lshl_b32 s{sT0}, s{sWv_}, 7
  s_add_u32 s{sT1}, s{sT0}, 512
  v_mov_b32 v53, v63
  buffer_load_dwordx4 {v(58,4)}, v53, s[64:67], s{sT0} offen
  buffer_load_dwordx4 {v(62,4)}, v53, s[64:67], s{sT1} offen
  buffer_load_dwordx4 {v(66,4)}, v53, s[64:67], 0 offen offset:1024""")
    if mid: mid()
    o(f"""  s_waitcnt vmcnt(0)
  s_barrier
  ds_write_b128 v{vXw}, {v(58,4)} offset:{L_MEM}
  ds_write_b128 v{vXw}, {v(62,4)} offset:{L_MEM+4096}
  ds_write_b128 v{vA}, {v(66,4)} offset:{L_MEM+8192}""")
    for r in range(30, 54):
        o(f"  v_mov_b32 v{r}, 0")
    o(f"""  s_mov_b32 s{sStep}, 0
  s_mov_b32 s{sPoll}, 0
  s_mov_b32 s80, 0
  s_mov_b32 s81, 0
  s_waitcnt vmcnt(0) lgkmcnt(0)
  v_mov_b32 v{vDummy}, 128
  s_barrier""")
```

```python
from asmlib import *

TLBW = False
HALFT = True
KV4 = True
COOP = True
NOPROC = False
MAXIN_ = 14
ORDER = 'qkov'
L_MEM, L_XEX, L_MEX, L_OEX, L_W = 0, 9216, 13312, 14336, 16384

vA, vXw, vM, vOw, vR, vP, vIdx, vH1 = 0, 1, 2, 3, 4, 5, 6, 7
vSel, vSelR, vKx, vVx = 8, 10, 14, 22
sW = 4
sWS = 8
sH, sWv_, sStep = 12, 13, 14
sC = 15
sKoff, sKm, sH1st, sH1h, sH1ld, sH2pub, sH2pl = 16, 17, 18, 19, 20, 21, 22
sIsRed, sJ, sT0, sT1, sT2, sT3 = 23, 24, 25, 26, 27, 28
sPoll = 29
sH1rs, sH2rs = 30, 31
sFlagOff = 32
sX1, sX2, sX3 = 33, 34, 35
sW256 = 36
sMaskMw = 38
sPi0, sPih = 40, 41
sH1so, sH1ho, sW1024 = 42, 43, 37
sUnit = 45
sVm = 47
sH2tch = 46
sTm = 44

def frag_q(tau, c): return ('a', (tau*9 + c)*8)
def frag_k(tau, c):
    f = tau*9 + c
    return ('a', 144 + 8*f) if f < 14 else ('v', 80 + 8*(f-14))
def frag_v(tau, c):
    return ('v', 112 + 72*tau + 8*c)
def frag_o(tl, kap):
    return ('lds', 4*tl + kap)

def lds_frag_addr(f):
    off = L_W + f*4096
    return off // 65536, off % 65536

def nop(o, n):
    while n > 0:
        k = min(n, 16)
        o(f"  s_nop {k-1}")
        n -= k

def emit_consts(o):
    o.c("---- R lane constants; v0 holds lane id on entry (0..63), s13 = wave")
    o(f"""
  v_mov_b32 v30, v0                 ; lane
  v_and_b32 v31, 15, v30            ; c
  v_lshrrev_b32 v32, 4, v30         ; g
  v_and_b32 v33, 7, v30             ; t
  v_bfe_u32 v34, v30, 3, 1          ; u
  v_lshlrev_b32 v{vA}, 4, v30
  s_lshl_b32 s{sT0}, s{sWv_}, 10
  v_add_u32 v{vXw}, s{sT0}, v{vA}
  v_and_b32 v35, 1, v32             ; g%2
  v_lshlrev_b32 v{vM}, 7, v35
  v_lshl_add_u32 v{vM}, v33, 4, v{vM}
  ; vOw = (w/2)*1024 + (g/2)*256 + (w%2)*128 + t*16 + (g%2)*8 ; u==0 only
  s_lshr_b32 s{sT0}, s{sWv_}, 1
  s_lshl_b32 s{sT0}, s{sT0}, 10
  s_and_b32 s{sT1}, s{sWv_}, 1
  s_lshl_b32 s{sT1}, s{sT1}, 7
  s_add_u32 s{sT0}, s{sT0}, s{sT1}
  s_add_u32 s{sT0}, s{sT0}, {L_OEX}
  v_lshrrev_b32 v36, 1, v32         ; g/2
  v_lshlrev_b32 v{vOw}, 8, v36
  v_lshl_add_u32 v{vOw}, v33, 4, v{vOw}
  v_lshl_add_u32 v{vOw}, v35, 3, v{vOw}
  v_add_u32 v{vOw}, s{sT0}, v{vOw}
  v_mov_b32 v37, 0x7ffffff0
  v_cmp_eq_u32 vcc, 0, v34
  s_nop 1
  v_cndmask_b32 v{vOw}, v37, v{vOw}, vcc
  v_mov_b32 v37, 0x80000000
  v_cndmask_b32 v{vH1}, v37, v{vA}, vcc
  ; idx
  v_mov_b32 v38, 0x44444444
  v_mov_b32 v39, 0xeeeeeeee
  v_cndmask_b32 v{vIdx}, v39, v38, vcc
  s_lshl_b32 s{sJ}, s{sH}, 1
  s_add_u32 s{sJ}, s{sJ}, s{sWv_}
  s_add_u32 s{sT0}, s{sH}, 64
  s_cmp_eq_u32 s{sWv_}, 2
  s_cselect_b32 s{sJ}, s{sT0}, s{sJ}
  s_cmp_lt_u32 s{sWv_}, 2
  s_cselect_b32 s{sIsRed}, 1, 0
  s_cmp_eq_u32 s{sWv_}, 2
  s_cselect_b32 s{sT0}, 1, 0
  s_cmp_lt_u32 s{sH}, 8
  s_cselect_b32 s{sT1}, 1, 0
  s_and_b32 s{sT0}, s{sT0}, s{sT1}
  s_or_b32 s{sIsRed}, s{sIsRed}, s{sT0}
  s_cmp_eq_u32 s{sIsRed}, 0
  s_cselect_b32 s{sJ}, 0, s{sJ}
  ; unit j=(pi=j/4, g4=j%4): H1 offset of its 128B segment
  s_lshr_b32 s{sT0}, s{sJ}, 2            ; pi
  s_and_b32 s{sT1}, s{sJ}, 3             ; g4
  s_cmp_gt_u32 s{sT0}, 13
  s_cselect_b32 s{sT2}, 2, 0
  s_cmp_gt_u32 s{sT0}, 4
  s_cselect_b32 s{sT3}, 1, 0
  s_cmp_gt_u32 s{sT0}, 13
  s_cselect_b32 s{sT3}, 2, s{sT3}
  s_sub_u32 s{sT2}, s{sT0}, s{sT3}
  s_lshr_b32 s{sT3}, s{sT2}, 1
  s_lshl_b32 s{sT3}, s{sT3}, 10          ; (q/2)*1024
  s_and_b32 s{sT2}, s{sT2}, 1
  s_lshl_b32 s{sT2}, s{sT2}, 7           ; (q%2)*128
  s_add_u32 s{sT3}, s{sT3}, s{sT2}
  s_cmp_eq_u32 s{sT0}, 4
  s_cselect_b32 s{sT3}, 8192, s{sT3}
  s_cmp_eq_u32 s{sT0}, 13
  s_cselect_b32 s{sT3}, 9216, s{sT3}
  s_lshl_b32 s{sT1}, s{sT1}, 8
  s_add_u32 s{sT0}, s{sT3}, s{sT1}       ; + g4*256
  s_lshr_b32 s{sT1}, s{sJ}, 2
  s_cmp_eq_u32 s{sT1}, 4
  s_cselect_b32 s{sT2}, 2, s{sIsRed}
  s_cmp_eq_u32 s{sT1}, 13
  s_cselect_b32 s{sT2}, 2, s{sT2}
  s_cmp_eq_u32 s{sIsRed}, 0
  s_cselect_b32 s{sIsRed}, 0, s{sT2}
  v_lshl_add_u32 v40, v34, 2, v32
  v_mul_u32_u24 v40, {H1_PROD}, v40
  v_lshl_add_u32 v40, v33, 4, v40
  v_add_u32 v{vR}, s{sT0}, v40
  s_cmp_eq_u32 s{sIsRed}, 0
  s_cselect_b32 s{sT1}, 0x80000000, 0
  s_cselect_b32 s{sUnit}, 0x80000000, s{sT0}
  v_lshlrev_b32 v40, 4, v33
  v_lshl_add_u32 v40, v32, 3, v40
  s_lshl_b32 s{sT0}, s{sJ}, 7
  v_add_u32 v40, s{sT0}, v40
  v_and_b32 v41, 40, v30
  v_cmp_eq_u32 vcc, 0, v41
  s_nop 1
  v_cndmask_b32 v{vP}, v37, v40, vcc
  v_or_b32 v{vP}, s{sT1}, v{vP}
  s_mov_b64 s[{sMaskMw}:{sMaskMw+1}], vcc     ; lanes u==0,g<2
  ; Sel: e = c - 4*(g%2)
  v_lshlrev_b32 v40, 2, v35
  v_sub_u32 v40, v31, v40
  v_mov_b32 v41, 0x3f80
  v_mov_b32 v42, 0x3f800000
  v_mov_b32 v{vSel}, 0
  v_mov_b32 v{vSel+1}, 0
  v_cmp_eq_u32 vcc, 0, v40
  s_nop 1
  v_cndmask_b32 v{vSel}, v{vSel}, v41, vcc
  v_cmp_eq_u32 vcc, 1, v40
  s_nop 1
  v_cndmask_b32 v{vSel}, v{vSel}, v42, vcc
  v_cmp_eq_u32 vcc, 2, v40
  s_nop 1
  v_cndmask_b32 v{vSel+1}, v{vSel+1}, v41, vcc
  v_cmp_eq_u32 vcc, 3, v40
  s_nop 1
  v_cndmask_b32 v{vSel+1}, v{vSel+1}, v42, vcc""")
    for r in range(4):
        o(f"""  v_mov_b32 v{vSelR+r}, 0
  v_cmp_eq_u32 vcc, {2*r}, v31
  s_nop 1
  v_cndmask_b32 v{vSelR+r}, v{vSelR+r}, v41, vcc
  v_cmp_eq_u32 vcc, {2*r+1}, v31
  s_nop 1
  v_cndmask_b32 v{vSelR+r}, v{vSelR+r}, v42, vcc""")
    o(f"""
  s_lshl_b32 s{sW1024}, s{sWv_}, 10
  s_lshl_b32 s{sH2tch}, s{sH}, 2
  s_add_u32 s{sH2tch}, s{sH2tch}, s{sWv_}
  s_lshl_b32 s{sH2tch}, s{sH2tch}, 6
  s_add_u32 s{sH2tch}, s{sH2tch}, {H2_SLOT}
  s_mov_b32 s{sC}, 0x3e0293ee        ; 128^-0.5 * log2(e) = 0.12751743
  s_add_u32 s{sT0}, s{sWv_}, 1
  s_and_b32 s{sT0}, s{sT0}, 3
  s_lshl_b32 s{sX1}, s{sT0}, 10
  s_add_u32 s{sX1}, s{sX1}, {L_XEX}
  s_add_u32 s{sT0}, s{sWv_}, 2
  s_and_b32 s{sT0}, s{sT0}, 3
  s_lshl_b32 s{sX2}, s{sT0}, 10
  s_add_u32 s{sX2}, s{sX2}, {L_XEX}
  s_add_u32 s{sT0}, s{sWv_}, 3
  s_and_b32 s{sT0}, s{sT0}, 3
  s_lshl_b32 s{sX3}, s{sT0}, 10
  s_add_u32 s{sX3}, s{sX3}, {L_XEX}
  s_lshl_b32 s{sW256}, s{sWv_}, 8
  s_add_u32 s{sW256}, s{sW256}, {L_MEX}
  s_mul_i32 s{sPi0}, s{sWv_}, 9
  s_add_u32 s{sPi0}, s{sPi0}, 1
  s_lshr_b32 s{sPi0}, s{sPi0}, 1
  s_lshr_b32 s{sPih}, s{sWv_}, 1
  s_mul_i32 s{sPih}, s{sPih}, 9
  s_add_u32 s{sPih}, s{sPih}, 4
""")

def emit_weights(o, hook=None, hook_at=28):
    o.c("---- weight prologue")
    vLdW, vLdO, vLdOh, vScr, vT, vT2, vT2h, vF1, vF2 = 30, 31, 32, 33, 34, 35, 36, 37, 38
    TMP = 40
    o(f"""
  v_lshrrev_b32 v46, 4, v{vA}        ; lane
  v_lshrrev_b32 v45, 2, v46          ; l/4
  v_and_b32 v44, 3, v46              ; l%4
  v_lshlrev_b32 v{vLdW}, 13, v45
  v_lshl_add_u32 v{vLdW}, v44, 4, v{vLdW}      ; (l/4)*8192 + (l%4)*16
  v_mul_u32_u24 v{vLdOh}, 1152, v45
  v_lshl_add_u32 v{vLdOh}, v44, 4, v{vLdOh}    ; (l/4)*1152 + (l%4)*16
  v_lshrrev_b32 v43, 3, v46          ; l/8
  v_and_b32 v42, 7, v46
  v_mul_u32_u24 v{vLdO}, 1152, v43
  v_lshl_add_u32 v{vLdO}, v42, 4, v{vLdO}      ; (l/8)*1152 + (l%8)*16
  s_lshl_b32 s{sT0}, s{sWv_}, 12
  v_add_u32 v{vScr}, s{sT0}, v{vA}             ; scratch + l*16
  ; tr lane decomposition: gb=l/16, r'=(l%16)/4, c'=l%4
  v_lshrrev_b32 v43, 4, v46          ; gb
  v_bfe_u32 v42, v46, 2, 2           ; r'
  ; row = 16*(gb/2) + 4*(gb%2) + 8*(r'/2) + r'%2
  v_lshrrev_b32 v41, 1, v43
  v_lshlrev_b32 v41, 4, v41
  v_and_b32 v40, 1, v43
  v_lshl_add_u32 v41, v40, 2, v41
  v_lshrrev_b32 v40, 1, v42
  v_lshl_add_u32 v41, v40, 3, v41
  v_and_b32 v40, 1, v42
  v_add_u32 v41, v41, v40
  v_lshlrev_b32 v{vT}, 6, v41
  v_lshl_add_u32 v{vT}, v44, 3, v{vT}
  v_add_u32 v{vT}, s{sT0}, v{vT}
  v_lshl_add_u32 v41, v43, 3, v42
  v_lshlrev_b32 v{vT2}, 7, v41
  v_lshl_add_u32 v{vT2}, v44, 4, v{vT2}
  v_add_u32 v{vT2}, s{sT0}, v{vT2}
  v_lshlrev_b32 v{vT2h}, 6, v41
  v_lshl_add_u32 v{vT2h}, v44, 4, v{vT2h}
  v_add_u32 v{vT2h}, s{sT0}, v{vT2h}
  s_and_b32 s{sT1}, s{sWv_}, 1
  s_lshl_b32 s{sT1}, s{sT1}, 3
  v_add_u32 v{vT2h}, s{sT1}, v{vT2h}
  v_add_u32 v{vF1}, 0x10000, v{vXw}
  v_add_u32 v{vF2}, 0x20000, v{vXw}
""")
    vWr, vRd = 39, 43
    if COOP:
        o(f"""  v_lshrrev_b32 v48, 4, v{vA}        ; lane
  v_lshrrev_b32 v49, 4, v48          ; l/16
  v_and_b32 v50, 15, v48             ; l%16
  v_lshlrev_b32 v{vLdW}, 13, v49
  v_lshl_add_u32 v{vLdW}, v50, 4, v{vLdW}     ; (l/16)*8192 + (l%16)*16
  s_lshl_b32 s{sT0}, s{sWv_}, 12""")
        for i_ in range(4):
            o(f"""  v_add_u32 v51, {4*i_}, v49
  v_xor_b32 v51, v51, v50
  v_lshlrev_b32 v51, 4, v51
  v_lshl_add_u32 v51, v49, 8, v51
  v_add_u32 v51, {1024*i_}, v51
  v_add_u32 v{vWr+i_}, s{sT0}, v51""")
        o(f"""  v_bfe_u32 v51, v48, 2, 2           ; r'
  v_lshrrev_b32 v52, 1, v49          ; gb/2
  v_lshlrev_b32 v52, 4, v52
  v_and_b32 v53, 1, v49
  v_lshl_add_u32 v52, v53, 2, v52
  v_lshrrev_b32 v53, 1, v51
  v_lshl_add_u32 v52, v53, 3, v52
  v_and_b32 v53, 1, v51
  v_add_u32 v52, v52, v53            ; rowpart
  v_and_b32 v54, 3, v48              ; c'
  v_lshrrev_b32 v55, 1, v54          ; c'/2
  v_and_b32 v54, 1, v54
  v_lshlrev_b32 v54, 3, v54          ; (c'%2)*8
  s_lshl_b32 s{sT1}, s{sWv_}, 2""")
        for off2 in range(2):
            for tau in range(2):
                o(f"""  v_add_u32 v56, {2*off2}, v52
  v_and_b32 v57, 15, v56
  v_add_u32 v58, s{sT1}, v55
  v_add_u32 v58, {2*tau}, v58
  v_xor_b32 v57, v57, v58
  v_lshlrev_b32 v57, 4, v57
  v_lshl_add_u32 v57, v56, 8, v57
  v_add_u32 v{vRd+2*off2+tau}, v57, v54""")
    def ldsaddr(f):
        b, imm = lds_frag_addr(f)
        return (vXw, vF1, vF2)[b], imm
    chunks = []
    for mt in ORDER:
        if mt == 'o':
            for kap in range(4):
                chunks += [('o', kap, 0), ('o', kap, 1), ('oh', kap)]
        else:
            for c in range(9): chunks.append((mt, c))
    def dests(ch):
        if ch[0] == 'q': return [frag_q(0, ch[1]), frag_q(1, ch[1])]
        if ch[0] == 'k': return [frag_k(0, ch[1]), frag_k(1, ch[1])]
        if ch[0] == 'v': return [frag_v(0, ch[1]), frag_v(1, ch[1])]
        if ch[0] == 'o': return [frag_o(4*ch[2]+i, ch[1]) for i in range(4)]
        return [frag_o(8, ch[1])]
    def dest_vregs(ch):
        n = 8 if ch[0] in 'qkv' else 4
        r = set()
        for d in dests(ch):
            if d[0] == 'v': r |= set(range(d[1], d[1]+n))
        return r
    bufs = [48, 64] + list(range(80, 256, 16))
    n = len(chunks)
    MAXIN = MAXIN_
    used_final = set()
    assign = {}
    inflight = []
    nxt = 0
    sched = []
    final_before = []
    acc = set()
    for m in range(n):
        final_before.append(set(acc))
        acc |= dest_vregs(chunks[m])
    proc = 0
    busy = {}
    while proc < n:
        while nxt < n and len(inflight) < MAXIN:
            cand = None
            for b in bufs:
                if b in busy: continue
                rs = set(range(b, b+16))
                if rs & final_before[nxt]: continue
                cand = b; break
            if cand is None: break
            busy[cand] = nxt; assign[nxt] = cand; inflight.append(nxt); sched.append(('issue', nxt)); nxt += 1
        sched.append(('proc', proc))
        if proc >= 1: del busy[assign[proc-1]]
        inflight.remove(proc)
        proc += 1
    def nloads(ch): return 2 if ch[0] == 'oh' else 4
    srd_cur = None
    ptr = {'q': 50, 'k': 52, 'v': 54, 'o': 56, 'oh': 56}
    srd = {'q': 64, 'k': 68, 'v': 72, 'o': 76, 'oh': 76}
    for k_, p in (('q', 50), ('k', 52), ('v', 54), ('o', 56)):
        o(f"""  s_mov_b32 s{srd[k_]}, s{p}
  s_and_b32 s{srd[k_]+1}, s{p+1}, 0xffff
  s_mov_b32 s{srd[k_]+2}, 4718592
  s_mov_b32 s{srd[k_]+3}, 0x20000""")
    o(f"""  s_lshl_b32 s80, s{sH}, 8
  s_lshl_b32 s81, s{sWv_}, {17 if COOP else 6}
  s_add_u32 s80, s80, s81
  s_mul_i32 s82, s{sH}, {128*1152}
  s_lshl_b32 s83, s{sPi0}, 6
  s_add_u32 s83, s83, s82
  s_lshl_b32 s84, s{sPih}, 6
  s_add_u32 s84, s84, s82""")
    outstanding = []
    for kind, m in sched:
        ch = chunks[m]; b = assign[m]
        if kind == 'issue':
            if ch[0] in 'qkv':
                for i in range(4):
                    o(f"  s_add_u32 s85, s80, {(64*ch[1] + (4 if COOP else 16)*i)*8192}")
                    o(f"  buffer_load_dwordx4 {v(b+4*i,4)}, v{vLdW}, s[{srd[ch[0]]}:{srd[ch[0]]+3}], s85 offen")
            elif ch[0] == 'o':
                for i in range(4):
                    o(f"  s_add_u32 s85, s83, {(32*ch[1] + 8*i)*1152 + ch[2]*128}")
                    o(f"  buffer_load_dwordx4 {v(b+4*i,4)}, v{vLdO}, s[76:79], s85 offen")
            else:
                for i in range(2):
                    o(f"  s_add_u32 s85, s84, {(32*ch[1] + 16*i)*1152}")
                    o(f"  buffer_load_dwordx4 {v(b+4*i,4)}, v{vLdOh}, s[76:79], s85 offen")
            outstanding.append(m)
        else:
            if hook and m == hook_at: hook()
            idx = outstanding.index(m)
            later = sum(nloads(chunks[x]) for x in outstanding[idx+1:])
            o(f"  s_waitcnt vmcnt({min(later,63)})")
            outstanding = outstanding[idx+1:]
            if NOPROC: continue
            o("  s_waitcnt lgkmcnt(0)")
            coop = COOP and ch[0] in 'qkv'
            if coop or (COOP and m > 0 and chunks[m-1][0] in 'qkv'): o("  s_barrier")
            for i in range(nloads(ch)):
                o(f"  ds_write_b128 v{vWr+i if coop else vScr}, {v(b+4*i,4)} offset:{0 if coop else 1024*i}")
            if coop: o("  s_waitcnt lgkmcnt(0)\n  s_barrier")
            if ch[0] in 'qkv':
                for tau, d in enumerate(dests(ch)):
                    assert d[0] != 'lds'
                    for r_, off in ((0, 0), (2, 2), (4, 32), (6, 34)):
                        if coop:
                            o(f"  ds_read_b64_tr_b16 {reg((d[0], d[1]+r_), 2)}, v{vRd + 2*((off % 16)//2) + tau} offset:{(off // 16)*16*256}")
                        else:
                            o(f"  ds_read_b64_tr_b16 {reg((d[0], d[1]+r_), 2)}, v{vT} offset:{off*64 + 32*tau}")
            elif ch[0] == 'o':
                for i, d in enumerate(dests(ch)):
                    pim, x = i // 2, i % 2
                    o(f"  ds_read_b64_tr_b16 {v(b+4*i,2)}, v{vT2} offset:{64*pim + 8*x}")
                    o(f"  ds_read_b64_tr_b16 {v(b+4*i+2,2)}, v{vT2} offset:{512 + 64*pim + 8*x}")
                o("  s_waitcnt lgkmcnt(0)")
                for i, d in enumerate(dests(ch)):
                    ar, imm = ldsaddr(d[1])
                    o(f"  ds_write_b128 v{ar}, {v(b+4*i,4)} offset:{imm}")
            else:
                d = dests(ch)[0]
                o(f"  ds_read_b64_tr_b16 {v(b,2)}, v{vT2h} offset:0")
                o(f"  ds_read_b64_tr_b16 {v(b+2,2)}, v{vT2h} offset:256")
                o("  s_waitcnt lgkmcnt(0)")
                ar, imm = ldsaddr(d[1])
                o(f"  ds_write_b128 v{ar}, {v(b,4)} offset:{imm}")
    o("  s_waitcnt lgkmcnt(0)")


Q0, Q1, K0, K1, V0, V1 = 30, 34, 38, 42, 46, 50
W = [54, 58, 62]
T, U, QS = 66, 70, 74

class Cnt:
    def __init__(self, o, name, maxv):
        self.o, self.name, self.maxv, self.q = o, name, maxv, []
    def issue(self, tag):
        self.q.append(tag)
        assert len(self.q) <= self.maxv + 1, (self.name, self.q)
    def wait(self, tag):
        if tag not in self.q: return
        i = len(self.q) - 1 - self.q[::-1].index(tag)
        n = len(self.q) - 1 - i
        self.o(f"  s_waitcnt {self.name}cnt({n})")
        self.q = self.q[i+1:]
    def waitall(self):
        self.o(f"  s_waitcnt {self.name}cnt(0)")
        self.q = []

def smf(o, d, aop, b):
    o(f"  v_smfmac_f32_16x16x64_bf16 {v(d,4)}, {v(aop,4)}, {reg(b,8)}, v{vIdx}")


POLL_LIMIT = 1 << 20
PUBF = 'sc1'
PUBK = 'sc1'
PUBV = 'sc1'
KVF = ''
TCHF = ''
DUALF = True
DUALA = False
FSTAG = 16
ASTAG = 16
KVPOS = 'qk'
KVCNT = None
TOUCH = True
RESETW = False
vDummy = 79

def emit_loop(o, L, stf, timing=False, fdelay=0, adelay=0):
    WSr = f"s[{sWS}:{sWS+3}]"
    lg = Cnt(o, "lgkm", 15)
    def dsr(dst, ar, off, tag):
        o(f"  ds_read_b128 {v(dst,4)}, v{ar} offset:{off}")
        lg.issue(tag)
    def stamp(k):
        if timing:
            o(f"  s_memtime s[{86+2*k}:{87+2*k}]")
    T, U, QS, MW = 66, 70, 74, 78
    o(f"{L}_loop:")
    for wv in range(3):
        o(f"  s_cmp_eq_u32 s{sWv_}, {wv}\n  s_cbranch_scc1 {L}_qv{wv}")
    o(f"  s_branch {L}_qv3")
    side = []
    if KVPOS == 'qk': side += [f"  s_add_u32 s{sT1}, s{sKoff}, {VBUF-KBUF}",
             f"  buffer_load_dwordx4 {v(vKx,4)}, v{vA}, {WSr}, s{sKoff} offen {KVF}", None,
             f"  buffer_load_dwordx4 {v(vKx+4,4)}, v{vA}, {WSr}, s{sKoff} offen offset:1024 {KVF}", None, None,
             f"  buffer_load_dwordx4 {v(vVx,4)}, v{vA}, {WSr}, s{sT1} offen {KVF}", None, None,
             f"  buffer_load_dwordx4 {v(vVx+4,4)}, v{vA}, {WSr}, s{sT1} offen offset:1024 {KVF}", None]
    if KVCNT is not None:
        side += [f"  v_readfirstlane_b32 s{sT0}, v{vDummy}",
                 (f"  s_add_u32 s{sT2}, s{sStep}, 1\n  s_and_b32 s{sT2}, s{sT2}, 3\n  s_cmp_lg_u32 s{sT2}, 0\n  s_cbranch_scc1 {{LP}}_kv\n" if KV4 else "") +
                 f"  s_cmp_ge_u32 s{sT0}, 128\n  s_cbranch_scc1 {{LP}}_kv\n"
                 f"  s_add_u32 s{sT0}, s{sStep}, 1\n  s_min_u32 s{sT0}, s{sT0}, 63\n  s_lshr_b32 s{sT0}, s{sT0}, 2\n  s_lshl_b32 s{sT0}, s{sT0}, 7\n  s_add_u32 s{sT0}, s{sT0}, {KVCNT}\n"
                 f"  v_mov_b32 v72, s{sT0}\n{{LP}}_kvp:\n  buffer_load_dword v73, v72, {WSr}, 0 offen sc1\n  s_waitcnt vmcnt(0)\n  v_readfirstlane_b32 s{sT0}, v73\n  s_add_u32 s{sPoll}, s{sPoll}, 1\n  s_cmp_gt_u32 s{sPoll}, {POLL_LIMIT}\n  s_cbranch_scc1 {L}_bail\n  s_cmp_ge_u32 s{sT0}, 128\n  s_cbranch_scc0 {{LP}}_kvp\n{{LP}}_kv:"]
    if HALFT:
        side += [f"  v_bfe_u32 v72, v{vA}, 4, 4", f"  v_lshlrev_b32 v72, 7, v72", f"  v_bfe_u32 v73, v{vA}, 8, 1", f"  v_lshl_add_u32 v72, v73, 24, v72",
                 f"  s_add_u32 s{sKoff}, s{sKoff}, {32*8192}", f"  s_mov_b32 exec_hi, 0\n  buffer_load_dword v{vDummy}, v72, {WSr}, s{sKoff} offen {TCHF}\n  s_mov_b32 exec_hi, -1"]
        side += [f"  v_bfe_u32 v73, v{vA}, 4, 5", f"  v_mul_u32_u24 v73, {H1_PROD}, v73", f"  v_add_u32 v73, s{sUnit}, v73",
                 f"  s_add_u32 s{sT0}, s{sH1ld}, {H1_SLOT}", f"  s_mov_b32 exec_hi, 0\n  buffer_load_dword v{vDummy}, v73, {WSr}, s{sT0} offen {TCHF}\n  s_mov_b32 exec_hi, -1",
                 f"  s_add_u32 s{sT0}, s{sH2pub}, s{sH2tch}", f"  v_lshlrev_b32 v72, 9, v{vA}", f"  s_mov_b64 exec, 3\n  buffer_load_dword v{vDummy}, v72, {WSr}, s{sT0} offen {TCHF}\n  s_mov_b64 exec, -1"]
    else:
        side += [f"  v_bfe_u32 v72, v{vA}, 4, 5", f"  v_lshlrev_b32 v72, 6, v72", f"  v_lshrrev_b32 v73, 9, v{vA}", f"  v_lshl_add_u32 v72, v73, 24, v72",
                 f"  s_add_u32 s{sKoff}, s{sKoff}, {32*8192}", f"  buffer_load_dword v{vDummy}, v72, {WSr}, s{sKoff} offen {TCHF}"]
        side += [f"  v_bfe_u32 v73, v{vA}, 4, 5", f"  v_mul_u32_u24 v73, {H1_PROD}, v73", f"  v_lshrrev_b32 v72, 9, v{vA}", f"  v_lshl_add_u32 v73, v72, 6, v73", f"  v_add_u32 v73, s{sUnit}, v73",
                 f"  s_add_u32 s{sT0}, s{sH1ld}, {H1_SLOT}", f"  buffer_load_dword v{vDummy}, v73, {WSr}, s{sT0} offen {TCHF}",
                 f"  s_add_u32 s{sT0}, s{sH2pub}, s{sH2tch}", f"  v_lshlrev_b32 v72, 9, v{vA}", f"  s_mov_b64 exec, 3\n  buffer_load_dword v{vDummy}, v72, {WSr}, s{sT0} offen {TCHF}\n  s_mov_b64 exec, -1"]
    if KVCNT is not None:
        side += [f"  s_add_u32 s{sT0}, s{sStep}, 2\n  s_min_u32 s{sT0}, s{sT0}, 63\n  s_lshr_b32 s{sT0}, s{sT0}, 2\n  s_lshl_b32 s{sT0}, s{sT0}, 7",
                 f"  s_add_u32 s{sT0}, s{sT0}, {KVCNT}\n" + (f"  s_add_u32 s{sT2}, s{sStep}, 2\n  s_and_b32 s{sT2}, s{sT2}, 3\n  s_cmp_eq_u32 s{sT2}, 0\n  s_cselect_b32 s{sT0}, s{sT0}, 0x80000000\n" if KV4 else "") + f"  v_mov_b32 v72, s{sT0}", f"  s_mov_b64 exec, 1\n  buffer_load_dword v{vDummy}, v72, {WSr}, 0 offen sc1\n  s_mov_b64 exec, -1"]
    side += [f"  v_mov_b32 v70, s{sStep}", f"  v_mov_b32 v71, s{sFlagOff}", f"  s_mov_b64 exec, 1\n  buffer_store_dword v70, v71, {WSr}, 0 offen {PUBF}\n  s_mov_b64 exec, -1"]
    side += [f"  v_add_u32 v{MW}, s{sW256}, v{vM}", f"  v_cndmask_b32 v{MW}, -16, v{MW}, s[{sMaskMw}:{sMaskMw+1}]"]
    NV_AFTER_KV = 4 + (1 if KVCNT is not None else 0)
    side_all = list(side)
    o.c("QK phase: own (register-resident) chunks first, the rest through LDS")
    for wv in range(4):
        o(f"{L}_av{wv}:")
        S1 = [58, 62, 66][:(3 if wv == 0 else 2)]
        offs = [sH2pl, sT1, sT2]
        if timing: o("  s_add_u32 s81, s81, 1\n  s_memtime s[68:69]")
        for r_, so in zip(S1, offs):
            o(f"  buffer_load_dwordx4 {v(r_,4)}, v{vA}, {WSr}, s{so} offen sc1")
        o(f"  s_add_u32 s{sPoll}, s{sPoll}, 1")
        o(f"  s_cmp_gt_u32 s{sPoll}, {POLL_LIMIT}")
        o(f"  s_cbranch_scc1 {L}_bail")
        o(f"  s_waitcnt vmcnt(0)")
        if timing: o("  s_memtime s[70:71]")
        o(f"  v_max3_u32 v78, v58, v60, v62")
        if wv == 0:
            o(f"  v_max3_u32 v78, v78, v64, v66\n  v_max_u32 v78, v78, v68")
        else:
            o(f"  v_max_u32 v78, v78, v64")
        o(f"  v_cmp_eq_u32 vcc, -1, v78")
        o(f"  s_cbranch_vccnz {L}_av{wv}")
        o(f"  ds_write_b128 v{vXw}, {v(58,4)} offset:{L_MEM}")
        o(f"  ds_write_b128 v{vXw}, {v(62,4)} offset:{L_MEM+4096}")
        if wv == 0: o(f"  ds_write_b128 v{vA}, {v(66,4)} offset:{L_MEM+8192}")
        o(f"{L}_qv{wv}:")
        if timing: o("  s_memtime s[72:73]")
        stamp(0)
        side = list(side_all)
        def pop(n):
            for _ in range(n):
                if side:
                    x = side.pop(0)
                    if x: o(x.replace("{LP}", f"{L}w{wv}"))
        lgq = Cnt(o, "lgkm", 15)
        def dsq(dst, off, tag):
            o(f"  ds_read_b128 {v(dst,4)}, v{vA} offset:{off}"); lgq.issue(tag)
        def qk(c, a_, np_=(1,1,1,1)):
            smf(o, Q0, a_, frag_q(0, c)); pop(np_[0])
            smf(o, Q1, a_, frag_q(1, c)); pop(np_[1])
            smf(o, K0, a_, frag_k(0, c)); pop(np_[2])
            smf(o, K1, a_, frag_k(1, c))
        own = [wv, wv+4] + ([8] if wv == 0 else [])
        rest = [c for c in range(9) if c not in own]
        qk(own[0], W[1])
        o("  s_waitcnt lgkmcnt(0)\n  s_barrier")
        dsq(W[0], L_MEM + 1024*rest[0], "r0"); dsq(W[1], L_MEM + 1024*rest[1], "r1")
        qk(own[1], W[2])
        dsq(W[2], L_MEM + 1024*rest[2], "r2")
        if wv == 0: qk(8, 66)
        for k, c in enumerate(rest):
            lgq.wait(f"r{k}")
            last = (k == len(rest)-1)
            qk(c, W[k % 3], (1, 2 if k >= len(rest)-3 else 1, 0 if last else 1, 0))
            if k + 3 < len(rest): dsq(W[k % 3], L_MEM + 1024*rest[k+3], f"r{k+3}")
            if not last: pop(1)
        while side: pop(1)
        free_order = [(len(rest)-3+i_) % 3 for i_ in range(3)]
        assert sorted(free_order) == [0, 1, 2]
        for sl in range(3):
            o(f"  ds_read_b128 {v(W[sl],4)}, v{vA} offset:{L_MEM + 1024*(6+sl)}")
        if wv < 3:
            o(f"  s_branch {L}_qkd")
    o(f"{L}_qkd:")
    lg.issue("V6"); lg.issue("V7"); lg.issue("V8")
    stamp(1)
    o.c("transpose q,k")
    def vpass(c, slot):
        smf(o, V0, W[slot], frag_v(0, c)); smf(o, V1, W[slot], frag_v(1, c))
    o(f"  v_cvt_pk_bf16_f32 v{T}, v{Q0}, v{Q0+1}")
    o(f"  v_cvt_pk_bf16_f32 v{T+1}, v{Q0+2}, v{Q0+3}")
    o(f"  v_cvt_pk_bf16_f32 v{T+2}, v{Q1}, v{Q1+1}")
    o(f"  v_cvt_pk_bf16_f32 v{T+3}, v{Q1+2}, v{Q1+3}")
    nop(o, 2)
    o(f"  v_cvt_pk_bf16_f32 v{U}, v{K0}, v{K0+1}")
    o(f"  v_mfma_f32_16x16x16_bf16 {v(Q0,4)}, {v(T,2)}, {v(vSel,2)}, 0")
    o(f"  v_cvt_pk_bf16_f32 v{U+1}, v{K0+2}, v{K0+3}")
    o(f"  v_cvt_pk_bf16_f32 v{U+2}, v{K1}, v{K1+1}")
    o(f"  v_mfma_f32_16x16x16_bf16 {v(Q1,4)}, {v(T+2,2)}, {v(vSel,2)}, 0")
    o(f"  v_cvt_pk_bf16_f32 v{U+3}, v{K1+2}, v{K1+3}")
    nop(o, 1)
    o(f"  v_mfma_f32_16x16x16_bf16 {v(K0,4)}, {v(U,2)}, {v(vSel,2)}, 0")
    o(f"  v_mfma_f32_16x16x16_bf16 {v(K1,4)}, {v(U+2,2)}, {v(vSel,2)}, 0")
    lg.wait("V6")
    smf(o, V0, W[0], frag_v(0, 6))
    o(f"  v_cvt_pk_bf16_f32 v{T}, v{Q0}, v{Q0+1}")
    o(f"  v_cvt_pk_bf16_f32 v{T+1}, v{Q0+2}, v{Q0+3}")
    o(f"  v_cvt_pk_bf16_f32 v{T+2}, v{Q1}, v{Q1+1}")
    o(f"  v_cvt_pk_bf16_f32 v{T+3}, v{Q1+2}, v{Q1+3}")
    smf(o, V1, W[0], frag_v(1, 6))
    dsr(W[0], vA, L_MEM, "B0")
    for i in range(4):
        o(f"  v_mov_b32_dpp v{QS+i}, v{T+i} row_ror:8 row_mask:0xf bank_mask:0xf")
    o(f"  s_waitcnt vmcnt({NV_AFTER_KV})")
    o(f"  v_mfma_f32_16x16x32_bf16 {v(Q0,4)}, {v(vKx,4)}, {v(T,4)}, 0")
    o(f"  v_cvt_pk_bf16_f32 v{U}, v{K0}, v{K0+1}")
    o(f"  v_cvt_pk_bf16_f32 v{U+1}, v{K0+2}, v{K0+3}")
    o(f"  v_mfma_f32_16x16x32_bf16 {v(Q0,4)}, {v(vKx+4,4)}, {v(QS,4)}, {v(Q0,4)}")
    o(f"  v_cvt_pk_bf16_f32 v{U+2}, v{K1}, v{K1+1}")
    o(f"  v_cvt_pk_bf16_f32 v{U+3}, v{K1+2}, v{K1+3}")
    nop(o, 2)
    o(f"  v_mfma_f32_16x16x32_bf16 {v(Q1,4)}, {v(U,4)}, {v(T,4)}, 0")
    lg.wait("V7")
    vpass(7, 1)
    dsr(W[1], vA, L_MEM + 1024, "B1")
    o(f"  ds_write_b128 v{vXw}, {v(Q0,4)} offset:{L_XEX}"); lg.issue("Xw")
    o(f"  ds_write_b128 v{MW}, {v(Q1,4)}"); lg.issue("Mw")
    o(f"  buffer_store_dwordx4 {v(U,4)}, v{vH1}, {WSr}, s{sKm} offen {PUBK}")
    lg.wait("V8")
    vpass(8, 2)
    dsr(W[2], vA, L_MEM + 2048, "B2")
    lg.wait("B0")
    vpass(0, 0)
    dsr(W[0], vA, L_MEM + 3072, "B3")
    lg.wait("Mw")
    o("  s_barrier")
    stamp(2)
    o.c("exchange reads")
    XP = [Q0, vKx, vKx+4, 74]
    MP = [Q1, 66, 42, 38]
    for k in range(4):
        dsr(XP[k], vA, L_XEX + 1024*k, f"XP{k}")
    for k in range(4):
        dsr(MP[k], vM, L_MEX + 256*k, f"MP{k}")
    lg.wait("B1")
    vpass(1, 1)
    dsr(W[1], vA, L_MEM + 4096, "B4")
    lg.wait("B2")
    vpass(2, 2)
    dsr(W[2], vA, L_MEM + 5120, "B5")
    lg.wait("B3")
    vpass(3, 0)
    lg.wait("XP3")
    for k in range(1, 4):
        o(f"  v_pk_add_f32 {v(Q0,2)}, {v(Q0,2)}, {v(XP[k],2)}")
        o(f"  v_pk_add_f32 {v(Q0+2,2)}, {v(Q0+2,2)}, {v(XP[k]+2,2)}")
    lg.wait("MP3")
    for k in range(1, 4):
        o(f"  v_pk_add_f32 {v(Q1,2)}, {v(Q1,2)}, {v(MP[k],2)}")
        o(f"  v_pk_add_f32 {v(Q1+2,2)}, {v(Q1+2,2)}, {v(MP[k]+2,2)}")
    WIN = [14, 18, 22, 26, 38, 42, 66, 70]
    lds_list = [(tl, kap, frag_o(tl, kap)[1]) for tl in range(9) for kap in range(4)]
    slot_of = {}
    st = dict(issued=0)
    BASE = (vXw, 78, 78)
    def issue_frag():
        n = st['issued']
        if n >= len(lds_list): return
        tl, kap, f = lds_list[n]
        sl = WIN[n % len(WIN)]
        b, imm = lds_frag_addr(f)
        if b == 2 and lds_frag_addr(f-1)[0] == 1:
            o(f"  v_add_u32 v78, 0x10000, v78")
        dsr(sl, BASE[b], imm, f"wo{n}")
        slot_of[(tl, kap)] = (sl, n)
        st['issued'] = n + 1
    o.c("softmax")
    MX, TM = 78, 42
    o(f"  v_max3_f32 v{MX}, v{Q0}, v{Q0+1}, v{Q0+2}")
    o(f"  v_max3_f32 v{TM}, v{Q0+3}, v{Q1}, v{Q1+1}")
    o(f"  v_max3_f32 v{MX}, v{MX}, v{Q1+2}, v{Q1+3}")
    o(f"  v_max_f32 v{MX}, v{MX}, v{TM}")
    lg.wait("B4")
    smf(o, V0, W[1], frag_v(0, 4))
    issue_frag()
    o(f"  v_max_f32_dpp v{MX}, v{MX}, v{MX} row_ror:8 row_mask:0xf bank_mask:0xf")
    smf(o, V1, W[1], frag_v(1, 4))
    o(f"  v_mov_b32 v{TM}, v{MX}")
    issue_frag()
    lg.wait("B5")
    smf(o, V0, W[2], frag_v(0, 5))
    o(f"  v_permlane16_swap_b32 v{MX}, v{TM}")
    o(f"  v_max_f32 v{MX}, v{MX}, v{TM}")
    o(f"  v_mov_b32 v{TM}, v{MX}")
    smf(o, V1, W[2], frag_v(1, 5))
    nop(o, 1)
    o(f"  v_permlane32_swap_b32 v{MX}, v{TM}")
    o(f"  v_max_f32 v{MX}, v{MX}, v{TM}")
    o(f"  v_mul_f32 v{MX}, s{sC}, v{MX}")
    for i in range(8):
        o(f"  v_fma_f32 v{Q0+i}, v{Q0+i}, s{sC}, -v{MX}")
    PX, PXs, PM, LA, LB, VP = 74, 76, 70, 72, 73, 66
    for i in range(8):
        o(f"  v_exp_f32 v{Q0+i}, v{Q0+i}")
    D0, D1 = 38, 42
    O0 = 70
    o.c("PV with the l-sum chain interleaved")
    o(f"  v_cvt_pk_bf16_f32 v{PX}, v{Q0}, v{Q0+1}")
    o(f"  v_cvt_pk_bf16_f32 v{PX+1}, v{Q0+2}, v{Q0+3}")
    o(f"  v_cvt_pk_bf16_f32 v{PM}, v{Q1}, v{Q1+1}")
    o(f"  v_cvt_pk_bf16_f32 v{PM+1}, v{Q1+2}, v{Q1+3}")
    o(f"  v_pk_add_f32 {v(LA,2)}, {v(Q0,2)}, {v(Q0+2,2)}")
    o(f"  v_pk_add_f32 {v(Q1,2)}, {v(Q1,2)}, {v(Q1+2,2)}")
    o(f"  v_mov_b32_dpp v{PXs}, v{PX} row_ror:8 row_mask:0xf bank_mask:0xf")
    o(f"  v_mov_b32_dpp v{PXs+1}, v{PX+1} row_ror:8 row_mask:0xf bank_mask:0xf")
    o(f"  v_add_f32 v{LA}, v{LA}, v{LB}")
    o(f"  v_add_f32 v{LB}, v{Q1}, v{Q1+1}")
    o(f"  v_mfma_f32_16x16x32_bf16 {v(D0,4)}, {v(vVx,4)}, {v(PX,4)}, 0")
    o(f"  v_fmamk_f32 v{LA}, v{LB}, 0x3e800000, v{LA}")
    o(f"  v_cvt_pk_bf16_f32 v{VP}, v{V0}, v{V0+1}")
    o(f"  v_mfma_f32_16x16x32_bf16 {v(D1,4)}, {v(vVx+4,4)}, {v(PX,4)}, 0")
    o(f"  v_cvt_pk_bf16_f32 v{VP+1}, v{V0+2}, v{V0+3}")
    o(f"  v_add_f32_dpp v{LA}, v{LA}, v{LA} row_ror:8 row_mask:0xf bank_mask:0xf")
    o(f"  v_mov_b32 v{LB}, v{LA}")
    o(f"  v_cvt_pk_bf16_f32 v{VP+2}, v{V1}, v{V1+1}")
    o(f"  v_mfma_f32_16x16x16_bf16 {v(D0,4)}, {v(VP,2)}, {v(PM,2)}, {v(D0,4)}")
    o(f"  v_cvt_pk_bf16_f32 v{VP+3}, v{V1+2}, v{V1+3}")
    o(f"  v_permlane16_swap_b32 v{LA}, v{LB}")
    o(f"  v_add_f32 v{LA}, v{LA}, v{LB}")
    o(f"  v_mov_b32 v{LB}, v{LA}")
    o(f"  v_mfma_f32_16x16x16_bf16 {v(D1,4)}, {v(VP+2,2)}, {v(PM,2)}, {v(D1,4)}")
    o(f"  s_add_u32 s{sVm}, s{sKm}, {VM-KM}")
    o(f"  s_cmp_eq_u32 s{sStep}, 63")
    o(f"  s_cbranch_scc1 {L}_done")
    o(f"  v_permlane32_swap_b32 v{LA}, v{LB}")
    o(f"  v_add_f32 v{LA}, v{LA}, v{LB}")
    o(f"  v_rcp_f32 v78, v{LA}")
    issue_frag()
    issue_frag()
    for i in range(0, 8, 2):
        o(f"  v_pk_mul_f32 {v(D0+i,2)}, {v(D0+i,2)}, {v(78,2)} op_sel_hi:[1,0]")
    o(f"  v_cvt_pk_bf16_f32 v{O0}, v{D0}, v{D0+1}")
    o(f"  v_cvt_pk_bf16_f32 v{O0+1}, v{D0+2}, v{D0+3}")
    o(f"  ds_write_b64 v{vOw}, {v(O0,2)}"); lg.issue("Ow0")
    o(f"  v_cvt_pk_bf16_f32 v{O0+2}, v{D1}, v{D1+1}")
    o(f"  v_cvt_pk_bf16_f32 v{O0+3}, v{D1+2}, v{D1+3}")
    o(f"  ds_write_b64 v{vOw}, {v(O0+2,2)} offset:512"); lg.issue("Ow1")
    o(f"  v_add_u32 v78, 0x10000, v{vXw}")
    o(f"  buffer_store_dwordx4 {v(VP,4)}, v{vA}, {WSr}, s{sVm} offen {PUBV}")
    issue_frag(); issue_frag()
    lg.wait("Ow1")
    o("  s_barrier")
    stamp(3)
    o.c("E phase")
    B = [46, 50, 54, 58]
    for k in range(4):
        dsr(B[k], vA, L_OEX + (k//2)*1024 + (k%2)*128, f"ob{k}")
    issue_frag(); issue_frag()
    D = [30, 34]
    PK, PKB = 62, 74
    for tl in range(9):
        post = []
        d = D[tl % 2]
        pend = []
        if tl >= 1:
            prev = tl - 1
            dd = D[prev % 2]; x = prev % 2; p = prev // 2
            pk = PK if p % 2 == 0 else PKB
            pend = [f"  v_cvt_pk_bf16_f32 v{pk+2*x}, v{dd}, v{dd+1}", f"  v_cvt_pk_bf16_f32 v{pk+2*x+1}, v{dd+2}, v{dd+3}"]
            if x == 1 and p % 2 == 1:
                post = [f"  v_mov_b32_dpp v{PK+i}, v{PKB+i} row_ror:8 row_mask:0xf bank_mask:0xc" for i in range(4)]
                post.append(f"  buffer_store_dwordx4 {v(PK,4)}, v{vA}, {WSr}, s{sH1st} offen offset:{1024*(p//2)} {stf}")
            else:
                post = []
        if tl >= 1: lg.wait(f"wo{4*tl+3}")
        for n_ in range(4):
            kap = n_
            if tl == 0: lg.wait(f"ob{kap}")
            sl, n = slot_of[(tl, kap)]
            if tl == 0: lg.wait(f"wo{n}")
            cin = "0" if n_ == 0 else v(d, 4)
            o(f"  v_mfma_f32_16x16x32_bf16 {v(d,4)}, {v(sl,4)}, {v(B[kap],4)}, {cin}")
            issue_frag()
            if n_ == 2 and pend:
                for x_ in pend: o(x_)
                pend = []
            if n_ == 3 and post:
                for x_ in post: o(x_)
                post = []
    for r in range(38, 46): o(f"  v_mov_b32 v{r}, 0")
    d = D[0]
    o(f"  v_cvt_pk_bf16_f32 v{PK}, v{d}, v{d+1}")
    o(f"  v_cvt_pk_bf16_f32 v{PK+1}, v{d+2}, v{d+3}")
    o(f"  buffer_store_dwordx2 {v(PK,2)}, v{vH1}, {WSr}, s{sH1h} offen {stf}")
    assert not lg.q, lg.q
    stamp(4)
    for r in list(range(30, 38)) + list(range(46, 54)): o(f"  v_mov_b32 v{r}, 0")
    nop(o, fdelay)
    o.c("F: reducers")
    vmst = f"  buffer_store_dwordx4 {v(66,4)}, v{vA}, {WSr}, s{sVm} offen {PUBV}"
    o(f"  s_cmp_eq_u32 s{sIsRed}, 0")
    o(f"  s_cbranch_scc1 {L}_nred")
    o(f"  s_add_u32 s{sT1}, s{sH1ld}, {8*H1_PROD}")
    o(f"  s_add_u32 s{sT2}, s{sH1ld}, {16*H1_PROD}")
    o(f"  s_add_u32 s{sT3}, s{sH1ld}, {24*H1_PROD}")
    FS1, FS2 = [54, 58, 62, 74], [14, 18, 22, 26]
    def f_loads(S):
        for k, so in enumerate((sH1ld, sT1, sT2, sT3)):
            o(f"  buffer_load_dwordx4 {v(S[k],4)}, v{vR}, {WSr}, s{so} offen sc1")
    def f_check(S, younger):
        for k in range(4):
            o(f"  s_waitcnt vmcnt({younger+3-k})")
            if timing and k == 3: o("  s_memtime s[66:67]")
            o(f"  v_mfma_f32_16x16x32_bf16 {v(70,4)}, {v(vSelR,4)}, {v(S[k],4)}, {'0' if k == 0 else v(70,4)}")
        nop(o, 8)
        o(f"  v_cmp_u_f32 vcc, v70, v70")
        for i_ in range(4):
            o(f"  v_add_f32_dpp v{70+i_}, v{70+i_}, v{70+i_} row_ror:8 row_mask:0xf bank_mask:0xf")
        o(f"  v_cvt_pk_bf16_f32 v66, v70, v71")
        o(f"  v_cvt_pk_bf16_f32 v67, v72, v73")
    def f_cnt():
        if timing: o("  s_add_u32 s80, s80, 1\n  s_memtime s[64:65]")
        o(f"  s_add_u32 s{sPoll}, s{sPoll}, 1")
        o(f"  s_cmp_gt_u32 s{sPoll}, {POLL_LIMIT}")
        o(f"  s_cbranch_scc1 {L}_bail")
    if timing: o("  s_add_u32 s80, s80, 1\n  s_memtime s[64:65]")
    f_loads(FS1)
    nop(o, FSTAG)
    f_loads(FS2)
    o(f"{L}_ra:")
    f_check(FS1, 4)
    o(f"  s_cbranch_vccz {L}_rok")
    f_loads(FS1); f_cnt()
    f_check(FS2, 4)
    o(f"  s_cbranch_vccz {L}_rok")
    f_loads(FS2); f_cnt()
    o(f"  s_branch {L}_ra")
    o(f"{L}_rok:")
    o(f"  buffer_store_dwordx2 {v(66,2)}, v{vP}, {WSr}, s{sH2pub} offen {stf}")
    o(f"{L}_nred:")
    o(f"{L}_cons:")
    o(f"  s_barrier")
    stamp(5)
    o.c("A: gather mem(s+1); per-step scalar updates double as the publish->visible delay")
    o(f"  s_add_u32 s{sH2pl}, s{sH2pub}, s{sW1024}")
    o(f"  s_add_u32 s{sT1}, s{sH2pl}, 4096")
    o(f"  s_add_u32 s{sT2}, s{sH2pub}, 8192")
    o(f"  s_add_u32 s{sStep}, s{sStep}, 1")
    for x in [f"  s_add_u32 s{sH1ld}, s{sH1ld}, {H1_SLOT}", f"  s_add_u32 s{sKm}, s{sKm}, {32*4096}",
             f"  s_add_u32 s{sH1st}, s{sH1ld}, s{sH1so}", f"  s_add_u32 s{sH1h}, s{sH1ld}, s{sH1ho}",
             f"  s_add_u32 s{sH2pub}, s{sH2pub}, {H2_SLOT}"]:
        o(x)
    nop(o, adelay)
    if timing:
        lab2 = o.label("nort")
        o(f"  s_memrealtime s[82:83]\n  s_memtime s[98:99]\n  s_waitcnt lgkmcnt(0)")
        o(f"  s_lshl_b32 s{sT0}, s{sH}, 2\n  s_add_u32 s{sT0}, s{sT0}, s{sWv_}\n  s_cmp_eq_u32 s{sT0}, 0\n  s_cbranch_scc0 {lab2}")
        o(f"  s_lshl_b32 s{sT0}, s{sStep}, 3\n  s_add_u32 s{sT0}, s{sT0}, {FLAGS + 0x3000}\n  v_mov_b32 v74, s82\n  v_mov_b32 v75, s98\n  v_mov_b32 v76, s{sT0}\n  buffer_store_dwordx2 v[74:75], v76, {WSr}, 0 offen")
        for k_, sr_ in enumerate([86, 88, 90, 92, 94, 96]):
            o(f"  s_lshl_b32 s{sT0}, s{sStep}, 5\n  s_add_u32 s{sT0}, s{sT0}, {FLAGS + 0x70000 + 4*k_}\n  v_mov_b32 v74, s{sr_}\n  v_mov_b32 v76, s{sT0}\n  buffer_store_dword v74, v76, {WSr}, 0 offen")
        o.put(lab2)
        lab = o.label("nost")
        o(f"  s_cmp_eq_u32 s{sStep}, 21")
        o(f"  s_cbranch_scc0 {lab}")
        for k, sr in enumerate([86,88,90,92,94,96,98,64,66,68,70,72]):
            o(f"  v_mov_b32 v74, s{sr}")
            o(f"  s_lshl_b32 s{sT0}, s{sH}, 2\n  s_add_u32 s{sT0}, s{sT0}, s{sWv_}\n  s_lshl_b32 s{sT0}, s{sT0}, 6\n  s_add_u32 s{sT0}, s{sT0}, {FLAGS + 4096 + 4*k}")
            o(f"  v_mov_b32 v75, s{sT0}")
            o(f"  buffer_store_dword v74, v75, {WSr}, 0 offen")
        o.put(lab)
    for wv in range(3):
        o(f"  s_cmp_eq_u32 s{sWv_}, {wv}\n  s_cbranch_scc1 {L}_av{wv}")
    o(f"  s_branch {L}_av3")
    o(f"{L}_bail:")
    o(f"  s_endpgm")
    o(f"{L}_done:")
    o(f"  buffer_store_dwordx4 {v(66,4)}, v{vA}, {WSr}, s{sVm} offen sc1")
    o(f"  s_waitcnt vmcnt(0) lgkmcnt(0)")
    o(f"  s_barrier")
    o(f"  s_cmp_lg_u32 s{sWv_}, 0\n  s_cbranch_scc1 {L}_fin")
    o(f"  v_mov_b32 v78, 64")
    o(f"  v_mov_b32 v77, s{sFlagOff}")
    o(f"  s_mov_b64 exec, 1\n  buffer_store_dword v78, v77, {WSr}, 0 offen sc1\n  s_mov_b64 exec, -1")
    o(f"  s_waitcnt vmcnt(0)")
    o(f"{L}_fin:")

def emit_init(o, L):
    WSr = f"s[{sWS}:{sWS+3}]"
    lab = o.label("noh2")
    o(f"""  s_lshl_b32 s{sT0}, s{sH}, 2
  s_add_u32 s{sT0}, s{sT0}, s{sWv_}
  s_lshl_b32 s{sFlagOff}, s{sH}, 7
  s_add_u32 s{sFlagOff}, s{sFlagOff}, {RFLAG}
  s_cmp_lg_u32 s{sWv_}, 0
  s_cselect_b32 s{sFlagOff}, 0x80000000, s{sFlagOff}
{lab}:""")

def emit_early(o):
    WSr = f"s[{sWS}:{sWS+3}]"
    if TLBW:
        o(f"""  v_lshrrev_b32 v47, 4, v{vA}
  v_lshlrev_b32 v47, 21, v47
  buffer_load_dword v14, v47, {WSr}, 0 offen
  v_add_u32 v47, 0x8000000, v47
  buffer_load_dword v14, v47, {WSr}, 0 offen""")
    o(f"""  ; scalar state for step 0
  s_lshl_b32 s{sKoff}, s{sH}, 13
  s_lshl_b32 s{sT1}, s{sWv_}, 11
  s_add_u32 s{sKoff}, s{sKoff}, s{sT1}
  s_lshl_b32 s{sKm}, s{sH}, 12
  s_add_u32 s{sKm}, s{sKm}, s{sW1024}
  s_add_u32 s{sKm}, s{sKm}, {KM}
  s_mov_b32 s{sH1ld}, {H1}
  s_mul_i32 s{sT1}, s{sH}, {H1_PROD}
  s_lshl_b32 s{sT2}, s{sWv_}, 11
  s_add_u32 s{sH1so}, s{sT1}, s{sT2}
  s_lshr_b32 s{sT2}, s{sWv_}, 1
  s_lshl_b32 s{sT2}, s{sT2}, 10
  s_add_u32 s{sH1ho}, s{sT1}, s{sT2}
  s_add_u32 s{sH1ho}, s{sH1ho}, 8192
  s_and_b32 s{sT2}, s{sWv_}, 1
  s_lshl_b32 s{sT2}, s{sT2}, 3
  s_add_u32 s{sH1ho}, s{sH1ho}, s{sT2}
  s_add_u32 s{sH1st}, s{sH1ld}, s{sH1so}
  s_add_u32 s{sH1h}, s{sH1ld}, s{sH1ho}
  s_mov_b32 s{sH2pub}, {H2 + H2_SLOT}
  v_bfe_u32 v47, v{vA}, 4, 5
  v_mul_u32_u24 v47, {H1_PROD}, v47
  v_add_u32 v47, s{sUnit}, v47
  buffer_load_dword v14, v47, {WSr}, s{sH1ld} offen
  s_add_u32 s{sT0}, s{sH2pub}, s{sW1024}
  v_lshlrev_b32 v47, 3, v{vA}
  buffer_load_dword v14, v47, {WSr}, s{sT0} offen
  s_add_u32 s{sT1}, s{sKoff}, {VBUF-KBUF}
  buffer_load_dwordx4 {v(vKx,4)}, v{vA}, {WSr}, s{sKoff} offen
  buffer_load_dwordx4 {v(vKx+4,4)}, v{vA}, {WSr}, s{sKoff} offen offset:1024
  buffer_load_dwordx4 {v(vVx,4)}, v{vA}, {WSr}, s{sT1} offen
  buffer_load_dwordx4 {v(vVx+4,4)}, v{vA}, {WSr}, s{sT1} offen offset:1024
""")

def emit_mem0(o, mid=None):
    WSr = f"s[{sWS}:{sWS+3}]"
    o.c("mem0 -> LDS: piece (j=8c+2g+u, t) = mem0[t][8j..8j+8)")
    o(f"""  s_mov_b32 s64, s48
  s_and_b32 s65, s49, 0xffff
  s_mov_b32 s66, 9216
  s_mov_b32 s67, 0x20000
  v_lshrrev_b32 v62, 4, v{vA}         ; lane
  v_and_b32 v63, 7, v62               ; t
  v_lshrrev_b32 v64, 3, v62           ; 2g+u
  v_mul_u32_u24 v63, 1152, v63
  v_lshl_add_u32 v63, v64, 4, v63     ; t*1152 + (2g+u)*16
  s_lshl_b32 s{sT0}, s{sWv_}, 7
  s_add_u32 s{sT1}, s{sT0}, 512
  v_mov_b32 v53, v63
  buffer_load_dwordx4 {v(58,4)}, v53, s[64:67], s{sT0} offen
  buffer_load_dwordx4 {v(62,4)}, v53, s[64:67], s{sT1} offen
  buffer_load_dwordx4 {v(66,4)}, v53, s[64:67], 0 offen offset:1024""")
    if mid: mid()
    o(f"""  s_waitcnt vmcnt(0)
  s_barrier
  ds_write_b128 v{vXw}, {v(58,4)} offset:{L_MEM}
  ds_write_b128 v{vXw}, {v(62,4)} offset:{L_MEM+4096}
  ds_write_b128 v{vA}, {v(66,4)} offset:{L_MEM+8192}""")
    for r in range(30, 54):
        o(f"  v_mov_b32 v{r}, 0")
    o(f"""  s_mov_b32 s{sStep}, 0
  s_mov_b32 s{sPoll}, 0
  s_mov_b32 s80, 0
  s_mov_b32 s81, 0
  s_waitcnt vmcnt(0) lgkmcnt(0)
  v_mov_b32 v{vDummy}, 128
  s_barrier""")
```

```python
from asmlib import *

TLBW = False
WNT = ''
HALFT = True
KV4 = True
COOP = True
NOPROC = False
MAXIN_ = 14
ORDER = 'qkov'
L_MEM, L_XEX, L_MEX, L_OEX, L_W = 0, 9216, 13312, 14336, 16384

vA, vXw, vM, vOw, vR, vP, vIdx, vH1 = 0, 1, 2, 3, 4, 5, 6, 7
vSel, vSelR, vKx, vVx = 8, 10, 14, 22
sW = 4
sWS = 8
sH, sWv_, sStep = 12, 13, 14
sC = 15
sKoff, sKm, sH1st, sH1h, sH1ld, sH2pub, sH2pl = 16, 17, 18, 19, 20, 21, 22
sIsRed, sJ, sT0, sT1, sT2, sT3 = 23, 24, 25, 26, 27, 28
sPoll = 29
sH1rs, sH2rs = 30, 31
sFlagOff = 32
sX1, sX2, sX3 = 33, 34, 35
sW256 = 36
sMaskMw = 38
sPi0, sPih = 40, 41
sH1so, sH1ho, sW1024 = 42, 43, 37
sUnit = 45
sVm = 47
sH2tch = 46
sTm = 44

def frag_q(tau, c): return ('a', (tau*9 + c)*8)
def frag_k(tau, c):
    f = tau*9 + c
    return ('a', 144 + 8*f) if f < 14 else ('v', 80 + 8*(f-14))
def frag_v(tau, c):
    return ('v', 112 + 72*tau + 8*c)
def frag_o(tl, kap):
    return ('lds', 4*tl + kap)

def lds_frag_addr(f):
    off = L_W + f*4096
    return off // 65536, off % 65536

def nop(o, n):
    while n > 0:
        k = min(n, 16)
        o(f"  s_nop {k-1}")
        n -= k

def emit_consts(o):
    o.c("---- R lane constants; v0 holds lane id on entry (0..63), s13 = wave")
    o(f"""
  v_mov_b32 v30, v0                 ; lane
  v_and_b32 v31, 15, v30            ; c
  v_lshrrev_b32 v32, 4, v30         ; g
  v_and_b32 v33, 7, v30             ; t
  v_bfe_u32 v34, v30, 3, 1          ; u
  v_lshlrev_b32 v{vA}, 4, v30
  s_lshl_b32 s{sT0}, s{sWv_}, 10
  v_add_u32 v{vXw}, s{sT0}, v{vA}
  v_and_b32 v35, 1, v32             ; g%2
  v_lshlrev_b32 v{vM}, 7, v35
  v_lshl_add_u32 v{vM}, v33, 4, v{vM}
  ; vOw = (w/2)*1024 + (g/2)*256 + (w%2)*128 + t*16 + (g%2)*8 ; u==0 only
  s_lshr_b32 s{sT0}, s{sWv_}, 1
  s_lshl_b32 s{sT0}, s{sT0}, 10
  s_and_b32 s{sT1}, s{sWv_}, 1
  s_lshl_b32 s{sT1}, s{sT1}, 7
  s_add_u32 s{sT0}, s{sT0}, s{sT1}
  s_add_u32 s{sT0}, s{sT0}, {L_OEX}
  v_lshrrev_b32 v36, 1, v32         ; g/2
  v_lshlrev_b32 v{vOw}, 8, v36
  v_lshl_add_u32 v{vOw}, v33, 4, v{vOw}
  v_lshl_add_u32 v{vOw}, v35, 3, v{vOw}
  v_add_u32 v{vOw}, s{sT0}, v{vOw}
  v_mov_b32 v37, 0x7ffffff0
  v_cmp_eq_u32 vcc, 0, v34
  s_nop 1
  v_cndmask_b32 v{vOw}, v37, v{vOw}, vcc
  v_mov_b32 v37, 0x80000000
  v_cndmask_b32 v{vH1}, v37, v{vA}, vcc
  ; idx
  v_mov_b32 v38, 0x44444444
  v_mov_b32 v39, 0xeeeeeeee
  v_cndmask_b32 v{vIdx}, v39, v38, vcc
  s_lshl_b32 s{sJ}, s{sH}, 1
  s_add_u32 s{sJ}, s{sJ}, s{sWv_}
  s_add_u32 s{sT0}, s{sH}, 64
  s_cmp_eq_u32 s{sWv_}, 2
  s_cselect_b32 s{sJ}, s{sT0}, s{sJ}
  s_cmp_lt_u32 s{sWv_}, 2
  s_cselect_b32 s{sIsRed}, 1, 0
  s_cmp_eq_u32 s{sWv_}, 2
  s_cselect_b32 s{sT0}, 1, 0
  s_cmp_lt_u32 s{sH}, 8
  s_cselect_b32 s{sT1}, 1, 0
  s_and_b32 s{sT0}, s{sT0}, s{sT1}
  s_or_b32 s{sIsRed}, s{sIsRed}, s{sT0}
  s_cmp_eq_u32 s{sIsRed}, 0
  s_cselect_b32 s{sJ}, 0, s{sJ}
  ; unit j=(pi=j/4, g4=j%4): H1 offset of its 128B segment
  s_lshr_b32 s{sT0}, s{sJ}, 2            ; pi
  s_and_b32 s{sT1}, s{sJ}, 3             ; g4
  s_cmp_gt_u32 s{sT0}, 13
  s_cselect_b32 s{sT2}, 2, 0
  s_cmp_gt_u32 s{sT0}, 4
  s_cselect_b32 s{sT3}, 1, 0
  s_cmp_gt_u32 s{sT0}, 13
  s_cselect_b32 s{sT3}, 2, s{sT3}
  s_sub_u32 s{sT2}, s{sT0}, s{sT3}
  s_lshr_b32 s{sT3}, s{sT2}, 1
  s_lshl_b32 s{sT3}, s{sT3}, 10          ; (q/2)*1024
  s_and_b32 s{sT2}, s{sT2}, 1
  s_lshl_b32 s{sT2}, s{sT2}, 7           ; (q%2)*128
  s_add_u32 s{sT3}, s{sT3}, s{sT2}
  s_cmp_eq_u32 s{sT0}, 4
  s_cselect_b32 s{sT3}, 8192, s{sT3}
  s_cmp_eq_u32 s{sT0}, 13
  s_cselect_b32 s{sT3}, 9216, s{sT3}
  s_lshl_b32 s{sT1}, s{sT1}, 8
  s_add_u32 s{sT0}, s{sT3}, s{sT1}       ; + g4*256
  s_lshr_b32 s{sT1}, s{sJ}, 2
  s_cmp_eq_u32 s{sT1}, 4
  s_cselect_b32 s{sT2}, 2, s{sIsRed}
  s_cmp_eq_u32 s{sT1}, 13
  s_cselect_b32 s{sT2}, 2, s{sT2}
  s_cmp_eq_u32 s{sIsRed}, 0
  s_cselect_b32 s{sIsRed}, 0, s{sT2}
  v_lshl_add_u32 v40, v34, 2, v32
  v_mul_u32_u24 v40, {H1_PROD}, v40
  v_lshl_add_u32 v40, v33, 4, v40
  v_add_u32 v{vR}, s{sT0}, v40
  s_cmp_eq_u32 s{sIsRed}, 0
  s_cselect_b32 s{sT1}, 0x80000000, 0
  s_cselect_b32 s{sUnit}, 0x80000000, s{sT0}
  v_lshlrev_b32 v40, 4, v33
  v_lshl_add_u32 v40, v32, 3, v40
  s_lshl_b32 s{sT0}, s{sJ}, 7
  v_add_u32 v40, s{sT0}, v40
  v_and_b32 v41, 40, v30
  v_cmp_eq_u32 vcc, 0, v41
  s_nop 1
  v_cndmask_b32 v{vP}, v37, v40, vcc
  v_or_b32 v{vP}, s{sT1}, v{vP}
  s_mov_b64 s[{sMaskMw}:{sMaskMw+1}], vcc     ; lanes u==0,g<2
  ; Sel: e = c - 4*(g%2)
  v_lshlrev_b32 v40, 2, v35
  v_sub_u32 v40, v31, v40
  v_mov_b32 v41, 0x3f80
  v_mov_b32 v42, 0x3f800000
  v_mov_b32 v{vSel}, 0
  v_mov_b32 v{vSel+1}, 0
  v_cmp_eq_u32 vcc, 0, v40
  s_nop 1
  v_cndmask_b32 v{vSel}, v{vSel}, v41, vcc
  v_cmp_eq_u32 vcc, 1, v40
  s_nop 1
  v_cndmask_b32 v{vSel}, v{vSel}, v42, vcc
  v_cmp_eq_u32 vcc, 2, v40
  s_nop 1
  v_cndmask_b32 v{vSel+1}, v{vSel+1}, v41, vcc
  v_cmp_eq_u32 vcc, 3, v40
  s_nop 1
  v_cndmask_b32 v{vSel+1}, v{vSel+1}, v42, vcc""")
    for r in range(4):
        o(f"""  v_mov_b32 v{vSelR+r}, 0
  v_cmp_eq_u32 vcc, {2*r}, v31
  s_nop 1
  v_cndmask_b32 v{vSelR+r}, v{vSelR+r}, v41, vcc
  v_cmp_eq_u32 vcc, {2*r+1}, v31
  s_nop 1
  v_cndmask_b32 v{vSelR+r}, v{vSelR+r}, v42, vcc""")
    o(f"""
  s_lshl_b32 s{sW1024}, s{sWv_}, 10
  s_lshl_b32 s{sH2tch}, s{sH}, 2
  s_add_u32 s{sH2tch}, s{sH2tch}, s{sWv_}
  s_lshl_b32 s{sH2tch}, s{sH2tch}, 6
  s_add_u32 s{sH2tch}, s{sH2tch}, {H2_SLOT}
  s_mov_b32 s{sC}, 0x3e0293ee        ; 128^-0.5 * log2(e) = 0.12751743
  s_add_u32 s{sT0}, s{sWv_}, 1
  s_and_b32 s{sT0}, s{sT0}, 3
  s_lshl_b32 s{sX1}, s{sT0}, 10
  s_add_u32 s{sX1}, s{sX1}, {L_XEX}
  s_add_u32 s{sT0}, s{sWv_}, 2
  s_and_b32 s{sT0}, s{sT0}, 3
  s_lshl_b32 s{sX2}, s{sT0}, 10
  s_add_u32 s{sX2}, s{sX2}, {L_XEX}
  s_add_u32 s{sT0}, s{sWv_}, 3
  s_and_b32 s{sT0}, s{sT0}, 3
  s_lshl_b32 s{sX3}, s{sT0}, 10
  s_add_u32 s{sX3}, s{sX3}, {L_XEX}
  s_lshl_b32 s{sW256}, s{sWv_}, 8
  s_add_u32 s{sW256}, s{sW256}, {L_MEX}
  s_mul_i32 s{sPi0}, s{sWv_}, 9
  s_add_u32 s{sPi0}, s{sPi0}, 1
  s_lshr_b32 s{sPi0}, s{sPi0}, 1
  s_lshr_b32 s{sPih}, s{sWv_}, 1
  s_mul_i32 s{sPih}, s{sPih}, 9
  s_add_u32 s{sPih}, s{sPih}, 4
""")

def emit_weights(o, hook=None, hook_at=28):
    o.c("---- weight prologue")
    vLdW, vLdO, vLdOh, vScr, vT, vT2, vT2h, vF1, vF2 = 30, 31, 32, 33, 34, 35, 36, 37, 38
    TMP = 40
    o(f"""
  v_lshrrev_b32 v46, 4, v{vA}        ; lane
  v_lshrrev_b32 v45, 2, v46          ; l/4
  v_and_b32 v44, 3, v46              ; l%4
  v_lshlrev_b32 v{vLdW}, 13, v45
  v_lshl_add_u32 v{vLdW}, v44, 4, v{vLdW}      ; (l/4)*8192 + (l%4)*16
  v_mul_u32_u24 v{vLdOh}, 1152, v45
  v_lshl_add_u32 v{vLdOh}, v44, 4, v{vLdOh}    ; (l/4)*1152 + (l%4)*16
  v_lshrrev_b32 v43, 3, v46          ; l/8
  v_and_b32 v42, 7, v46
  v_mul_u32_u24 v{vLdO}, 1152, v43
  v_lshl_add_u32 v{vLdO}, v42, 4, v{vLdO}      ; (l/8)*1152 + (l%8)*16
  s_lshl_b32 s{sT0}, s{sWv_}, 12
  v_add_u32 v{vScr}, s{sT0}, v{vA}             ; scratch + l*16
  ; tr lane decomposition: gb=l/16, r'=(l%16)/4, c'=l%4
  v_lshrrev_b32 v43, 4, v46          ; gb
  v_bfe_u32 v42, v46, 2, 2           ; r'
  ; row = 16*(gb/2) + 4*(gb%2) + 8*(r'/2) + r'%2
  v_lshrrev_b32 v41, 1, v43
  v_lshlrev_b32 v41, 4, v41
  v_and_b32 v40, 1, v43
  v_lshl_add_u32 v41, v40, 2, v41
  v_lshrrev_b32 v40, 1, v42
  v_lshl_add_u32 v41, v40, 3, v41
  v_and_b32 v40, 1, v42
  v_add_u32 v41, v41, v40
  v_lshlrev_b32 v{vT}, 6, v41
  v_lshl_add_u32 v{vT}, v44, 3, v{vT}
  v_add_u32 v{vT}, s{sT0}, v{vT}
  v_lshl_add_u32 v41, v43, 3, v42
  v_lshlrev_b32 v{vT2}, 7, v41
  v_lshl_add_u32 v{vT2}, v44, 4, v{vT2}
  v_add_u32 v{vT2}, s{sT0}, v{vT2}
  v_lshlrev_b32 v{vT2h}, 6, v41
  v_lshl_add_u32 v{vT2h}, v44, 4, v{vT2h}
  v_add_u32 v{vT2h}, s{sT0}, v{vT2h}
  s_and_b32 s{sT1}, s{sWv_}, 1
  s_lshl_b32 s{sT1}, s{sT1}, 3
  v_add_u32 v{vT2h}, s{sT1}, v{vT2h}
  v_add_u32 v{vF1}, 0x10000, v{vXw}
  v_add_u32 v{vF2}, 0x20000, v{vXw}
""")
    vWr, vRd = 39, 43
    if COOP:
        o(f"""  v_lshrrev_b32 v48, 4, v{vA}        ; lane
  v_lshrrev_b32 v49, 4, v48          ; l/16
  v_and_b32 v50, 15, v48             ; l%16
  v_lshlrev_b32 v{vLdW}, 13, v49
  v_lshl_add_u32 v{vLdW}, v50, 4, v{vLdW}     ; (l/16)*8192 + (l%16)*16
  s_lshl_b32 s{sT0}, s{sWv_}, 12""")
        for i_ in range(4):
            o(f"""  v_add_u32 v51, {4*i_}, v49
  v_xor_b32 v51, v51, v50
  v_lshlrev_b32 v51, 4, v51
  v_lshl_add_u32 v51, v49, 8, v51
  v_add_u32 v51, {1024*i_}, v51
  v_add_u32 v{vWr+i_}, s{sT0}, v51""")
        o(f"""  v_bfe_u32 v51, v48, 2, 2           ; r'
  v_lshrrev_b32 v52, 1, v49          ; gb/2
  v_lshlrev_b32 v52, 4, v52
  v_and_b32 v53, 1, v49
  v_lshl_add_u32 v52, v53, 2, v52
  v_lshrrev_b32 v53, 1, v51
  v_lshl_add_u32 v52, v53, 3, v52
  v_and_b32 v53, 1, v51
  v_add_u32 v52, v52, v53            ; rowpart
  v_and_b32 v54, 3, v48              ; c'
  v_lshrrev_b32 v55, 1, v54          ; c'/2
  v_and_b32 v54, 1, v54
  v_lshlrev_b32 v54, 3, v54          ; (c'%2)*8
  s_lshl_b32 s{sT1}, s{sWv_}, 2""")
        for off2 in range(2):
            for tau in range(2):
                o(f"""  v_add_u32 v56, {2*off2}, v52
  v_and_b32 v57, 15, v56
  v_add_u32 v58, s{sT1}, v55
  v_add_u32 v58, {2*tau}, v58
  v_xor_b32 v57, v57, v58
  v_lshlrev_b32 v57, 4, v57
  v_lshl_add_u32 v57, v56, 8, v57
  v_add_u32 v{vRd+2*off2+tau}, v57, v54""")
    def ldsaddr(f):
        b, imm = lds_frag_addr(f)
        return (vXw, vF1, vF2)[b], imm
    chunks = []
    for mt in ORDER:
        if mt == 'o':
            for kap in range(4):
                chunks += [('o', kap, 0), ('o', kap, 1), ('oh', kap)]
        else:
            for c in range(9): chunks.append((mt, c))
    def dests(ch):
        if ch[0] == 'q': return [frag_q(0, ch[1]), frag_q(1, ch[1])]
        if ch[0] == 'k': return [frag_k(0, ch[1]), frag_k(1, ch[1])]
        if ch[0] == 'v': return [frag_v(0, ch[1]), frag_v(1, ch[1])]
        if ch[0] == 'o': return [frag_o(4*ch[2]+i, ch[1]) for i in range(4)]
        return [frag_o(8, ch[1])]
    def dest_vregs(ch):
        n = 8 if ch[0] in 'qkv' else 4
        r = set()
        for d in dests(ch):
            if d[0] == 'v': r |= set(range(d[1], d[1]+n))
        return r
    bufs = [48, 64] + list(range(80, 256, 16))
    n = len(chunks)
    MAXIN = MAXIN_
    used_final = set()
    assign = {}
    inflight = []
    nxt = 0
    sched = []
    final_before = []
    acc = set()
    for m in range(n):
        final_before.append(set(acc))
        acc |= dest_vregs(chunks[m])
    proc = 0
    busy = {}
    while proc < n:
        while nxt < n and len(inflight) < MAXIN:
            cand = None
            for b in bufs:
                if b in busy: continue
                rs = set(range(b, b+16))
                if rs & final_before[nxt]: continue
                cand = b; break
            if cand is None: break
            busy[cand] = nxt; assign[nxt] = cand; inflight.append(nxt); sched.append(('issue', nxt)); nxt += 1
        sched.append(('proc', proc))
        if proc >= 1: del busy[assign[proc-1]]
        inflight.remove(proc)
        proc += 1
    def nloads(ch): return 2 if ch[0] == 'oh' else 4
    srd_cur = None
    ptr = {'q': 50, 'k': 52, 'v': 54, 'o': 56, 'oh': 56}
    srd = {'q': 64, 'k': 68, 'v': 72, 'o': 76, 'oh': 76}
    for k_, p in (('q', 50), ('k', 52), ('v', 54), ('o', 56)):
        o(f"""  s_mov_b32 s{srd[k_]}, s{p}
  s_and_b32 s{srd[k_]+1}, s{p+1}, 0xffff
  s_mov_b32 s{srd[k_]+2}, 4718592
  s_mov_b32 s{srd[k_]+3}, 0x20000""")
    o(f"""  s_lshl_b32 s80, s{sH}, 8
  s_lshl_b32 s81, s{sWv_}, {17 if COOP else 6}
  s_add_u32 s80, s80, s81
  s_mul_i32 s82, s{sH}, {128*1152}
  s_lshl_b32 s83, s{sPi0}, 6
  s_add_u32 s83, s83, s82
  s_lshl_b32 s84, s{sPih}, 6
  s_add_u32 s84, s84, s82""")
    outstanding = []
    for kind, m in sched:
        ch = chunks[m]; b = assign[m]
        if kind == 'issue':
            if ch[0] in 'qkv':
                for i in range(4):
                    o(f"  s_add_u32 s85, s80, {(64*ch[1] + (4 if COOP else 16)*i)*8192}")
                    o(f"  buffer_load_dwordx4 {v(b+4*i,4)}, v{vLdW}, s[{srd[ch[0]]}:{srd[ch[0]]+3}], s85 offen {WNT}")
            elif ch[0] == 'o':
                for i in range(4):
                    o(f"  s_add_u32 s85, s83, {(32*ch[1] + 8*i)*1152 + ch[2]*128}")
                    o(f"  buffer_load_dwordx4 {v(b+4*i,4)}, v{vLdO}, s[76:79], s85 offen {WNT}")
            else:
                for i in range(2):
                    o(f"  s_add_u32 s85, s84, {(32*ch[1] + 16*i)*1152}")
                    o(f"  buffer_load_dwordx4 {v(b+4*i,4)}, v{vLdOh}, s[76:79], s85 offen {WNT}")
            outstanding.append(m)
        else:
            if hook and m == hook_at: hook()
            idx = outstanding.index(m)
            later = sum(nloads(chunks[x]) for x in outstanding[idx+1:])
            o(f"  s_waitcnt vmcnt({min(later,63)})")
            outstanding = outstanding[idx+1:]
            if NOPROC: continue
            o("  s_waitcnt lgkmcnt(0)")
            coop = COOP and ch[0] in 'qkv'
            if coop or (COOP and m > 0 and chunks[m-1][0] in 'qkv'): o("  s_barrier")
            for i in range(nloads(ch)):
                o(f"  ds_write_b128 v{vWr+i if coop else vScr}, {v(b+4*i,4)} offset:{0 if coop else 1024*i}")
            if coop: o("  s_waitcnt lgkmcnt(0)\n  s_barrier")
            if ch[0] in 'qkv':
                for tau, d in enumerate(dests(ch)):
                    assert d[0] != 'lds'
                    for r_, off in ((0, 0), (2, 2), (4, 32), (6, 34)):
                        if coop:
                            o(f"  ds_read_b64_tr_b16 {reg((d[0], d[1]+r_), 2)}, v{vRd + 2*((off % 16)//2) + tau} offset:{(off // 16)*16*256}")
                        else:
                            o(f"  ds_read_b64_tr_b16 {reg((d[0], d[1]+r_), 2)}, v{vT} offset:{off*64 + 32*tau}")
            elif ch[0] == 'o':
                for i, d in enumerate(dests(ch)):
                    pim, x = i // 2, i % 2
                    o(f"  ds_read_b64_tr_b16 {v(b+4*i,2)}, v{vT2} offset:{64*pim + 8*x}")
                    o(f"  ds_read_b64_tr_b16 {v(b+4*i+2,2)}, v{vT2} offset:{512 + 64*pim + 8*x}")
                o("  s_waitcnt lgkmcnt(0)")
                for i, d in enumerate(dests(ch)):
                    ar, imm = ldsaddr(d[1])
                    o(f"  ds_write_b128 v{ar}, {v(b+4*i,4)} offset:{imm}")
            else:
                d = dests(ch)[0]
                o(f"  ds_read_b64_tr_b16 {v(b,2)}, v{vT2h} offset:0")
                o(f"  ds_read_b64_tr_b16 {v(b+2,2)}, v{vT2h} offset:256")
                o("  s_waitcnt lgkmcnt(0)")
                ar, imm = ldsaddr(d[1])
                o(f"  ds_write_b128 v{ar}, {v(b,4)} offset:{imm}")
    o("  s_waitcnt lgkmcnt(0)")


Q0, Q1, K0, K1, V0, V1 = 30, 34, 38, 42, 46, 50
W = [54, 58, 62]
T, U, QS = 66, 70, 74

class Cnt:
    def __init__(self, o, name, maxv):
        self.o, self.name, self.maxv, self.q = o, name, maxv, []
    def issue(self, tag):
        self.q.append(tag)
        assert len(self.q) <= self.maxv + 1, (self.name, self.q)
    def wait(self, tag):
        if tag not in self.q: return
        i = len(self.q) - 1 - self.q[::-1].index(tag)
        n = len(self.q) - 1 - i
        self.o(f"  s_waitcnt {self.name}cnt({n})")
        self.q = self.q[i+1:]
    def waitall(self):
        self.o(f"  s_waitcnt {self.name}cnt(0)")
        self.q = []

def smf(o, d, aop, b):
    o(f"  v_smfmac_f32_16x16x64_bf16 {v(d,4)}, {v(aop,4)}, {reg(b,8)}, v{vIdx}")


POLL_LIMIT = 1 << 20
PUBF = 'sc1'
PUBK = 'sc1'
PUBV = 'sc1'
KVF = ''
TCHF = ''
DUALF = True
DUALA = False
FSTAG = 16
ASTAG = 16
KVPOS = 'qk'
KVCNT = None
TOUCH = True
RESETW = False
vDummy = 79

def emit_loop(o, L, stf, timing=False, fdelay=0, adelay=0):
    WSr = f"s[{sWS}:{sWS+3}]"
    lg = Cnt(o, "lgkm", 15)
    def dsr(dst, ar, off, tag):
        o(f"  ds_read_b128 {v(dst,4)}, v{ar} offset:{off}")
        lg.issue(tag)
    def stamp(k):
        if timing:
            o(f"  s_memtime s[{86+2*k}:{87+2*k}]")
    T, U, QS, MW = 66, 70, 74, 78
    o(f"{L}_loop:")
    for wv in range(3):
        o(f"  s_cmp_eq_u32 s{sWv_}, {wv}\n  s_cbranch_scc1 {L}_qv{wv}")
    o(f"  s_branch {L}_qv3")
    side = []
    if KVPOS == 'qk': side += [f"  s_add_u32 s{sT1}, s{sKoff}, {VBUF-KBUF}",
             f"  buffer_load_dwordx4 {v(vKx,4)}, v{vA}, {WSr}, s{sKoff} offen {KVF}", None,
             f"  buffer_load_dwordx4 {v(vKx+4,4)}, v{vA}, {WSr}, s{sKoff} offen offset:1024 {KVF}", None, None,
             f"  buffer_load_dwordx4 {v(vVx,4)}, v{vA}, {WSr}, s{sT1} offen {KVF}", None, None,
             f"  buffer_load_dwordx4 {v(vVx+4,4)}, v{vA}, {WSr}, s{sT1} offen offset:1024 {KVF}", None]
    if KVCNT is not None:
        side += [f"  v_readfirstlane_b32 s{sT0}, v{vDummy}",
                 (f"  s_add_u32 s{sT2}, s{sStep}, 1\n  s_and_b32 s{sT2}, s{sT2}, 3\n  s_cmp_lg_u32 s{sT2}, 0\n  s_cbranch_scc1 {{LP}}_kv\n" if KV4 else "") +
                 f"  s_cmp_ge_u32 s{sT0}, 128\n  s_cbranch_scc1 {{LP}}_kv\n"
                 f"  s_add_u32 s{sT0}, s{sStep}, 1\n  s_min_u32 s{sT0}, s{sT0}, 63\n  s_lshr_b32 s{sT0}, s{sT0}, 2\n  s_lshl_b32 s{sT0}, s{sT0}, 7\n  s_add_u32 s{sT0}, s{sT0}, {KVCNT}\n"
                 f"  v_mov_b32 v72, s{sT0}\n{{LP}}_kvp:\n  buffer_load_dword v73, v72, {WSr}, 0 offen sc1\n  s_waitcnt vmcnt(0)\n  v_readfirstlane_b32 s{sT0}, v73\n  s_add_u32 s{sPoll}, s{sPoll}, 1\n  s_cmp_gt_u32 s{sPoll}, {POLL_LIMIT}\n  s_cbranch_scc1 {L}_bail\n  s_cmp_ge_u32 s{sT0}, 128\n  s_cbranch_scc0 {{LP}}_kvp\n{{LP}}_kv:"]
    if HALFT:
        side += [f"  v_bfe_u32 v72, v{vA}, 4, 4", f"  v_lshlrev_b32 v72, 7, v72", f"  v_bfe_u32 v73, v{vA}, 8, 1", f"  v_lshl_add_u32 v72, v73, 24, v72",
                 f"  s_add_u32 s{sKoff}, s{sKoff}, {32*8192}", f"  s_mov_b32 exec_hi, 0\n  buffer_load_dword v{vDummy}, v72, {WSr}, s{sKoff} offen {TCHF}\n  s_mov_b32 exec_hi, -1"]
        side += [f"  v_bfe_u32 v73, v{vA}, 4, 5", f"  v_mul_u32_u24 v73, {H1_PROD}, v73", f"  v_add_u32 v73, s{sUnit}, v73",
                 f"  s_add_u32 s{sT0}, s{sH1ld}, {H1_SLOT}", f"  s_mov_b32 exec_hi, 0\n  buffer_load_dword v{vDummy}, v73, {WSr}, s{sT0} offen {TCHF}\n  s_mov_b32 exec_hi, -1",
                 f"  s_add_u32 s{sT0}, s{sH2pub}, s{sH2tch}", f"  v_lshlrev_b32 v72, 9, v{vA}", f"  s_mov_b64 exec, 3\n  buffer_load_dword v{vDummy}, v72, {WSr}, s{sT0} offen {TCHF}\n  s_mov_b64 exec, -1"]
    else:
        side += [f"  v_bfe_u32 v72, v{vA}, 4, 5", f"  v_lshlrev_b32 v72, 6, v72", f"  v_lshrrev_b32 v73, 9, v{vA}", f"  v_lshl_add_u32 v72, v73, 24, v72",
                 f"  s_add_u32 s{sKoff}, s{sKoff}, {32*8192}", f"  buffer_load_dword v{vDummy}, v72, {WSr}, s{sKoff} offen {TCHF}"]
        side += [f"  v_bfe_u32 v73, v{vA}, 4, 5", f"  v_mul_u32_u24 v73, {H1_PROD}, v73", f"  v_lshrrev_b32 v72, 9, v{vA}", f"  v_lshl_add_u32 v73, v72, 6, v73", f"  v_add_u32 v73, s{sUnit}, v73",
                 f"  s_add_u32 s{sT0}, s{sH1ld}, {H1_SLOT}", f"  buffer_load_dword v{vDummy}, v73, {WSr}, s{sT0} offen {TCHF}",
                 f"  s_add_u32 s{sT0}, s{sH2pub}, s{sH2tch}", f"  v_lshlrev_b32 v72, 9, v{vA}", f"  s_mov_b64 exec, 3\n  buffer_load_dword v{vDummy}, v72, {WSr}, s{sT0} offen {TCHF}\n  s_mov_b64 exec, -1"]
    if KVCNT is not None:
        side += [f"  s_add_u32 s{sT0}, s{sStep}, 2\n  s_min_u32 s{sT0}, s{sT0}, 63\n  s_lshr_b32 s{sT0}, s{sT0}, 2\n  s_lshl_b32 s{sT0}, s{sT0}, 7",
                 f"  s_add_u32 s{sT0}, s{sT0}, {KVCNT}\n" + (f"  s_add_u32 s{sT2}, s{sStep}, 2\n  s_and_b32 s{sT2}, s{sT2}, 3\n  s_cmp_eq_u32 s{sT2}, 0\n  s_cselect_b32 s{sT0}, s{sT0}, 0x80000000\n" if KV4 else "") + f"  v_mov_b32 v72, s{sT0}", f"  s_mov_b64 exec, 1\n  buffer_load_dword v{vDummy}, v72, {WSr}, 0 offen sc1\n  s_mov_b64 exec, -1"]
    side += [f"  v_mov_b32 v70, s{sStep}", f"  v_mov_b32 v71, s{sFlagOff}", f"  s_mov_b64 exec, 1\n  buffer_store_dword v70, v71, {WSr}, 0 offen {PUBF}\n  s_mov_b64 exec, -1"]
    side += [f"  v_add_u32 v{MW}, s{sW256}, v{vM}", f"  v_cndmask_b32 v{MW}, -16, v{MW}, s[{sMaskMw}:{sMaskMw+1}]"]
    NV_AFTER_KV = 4 + (1 if KVCNT is not None else 0)
    side_all = list(side)
    o.c("QK phase: own (register-resident) chunks first, the rest through LDS")
    for wv in range(4):
        o(f"{L}_av{wv}:")
        S1 = [58, 62, 66][:(3 if wv == 0 else 2)]
        offs = [sH2pl, sT1, sT2]
        if timing: o("  s_add_u32 s81, s81, 1\n  s_memtime s[68:69]")
        for r_, so in zip(S1, offs):
            o(f"  buffer_load_dwordx4 {v(r_,4)}, v{vA}, {WSr}, s{so} offen sc1")
        o(f"  s_add_u32 s{sPoll}, s{sPoll}, 1")
        o(f"  s_cmp_gt_u32 s{sPoll}, {POLL_LIMIT}")
        o(f"  s_cbranch_scc1 {L}_bail")
        o(f"  s_waitcnt vmcnt(0)")
        if timing: o("  s_memtime s[70:71]")
        o(f"  v_max3_u32 v78, v58, v60, v62")
        if wv == 0:
            o(f"  v_max3_u32 v78, v78, v64, v66\n  v_max_u32 v78, v78, v68")
        else:
            o(f"  v_max_u32 v78, v78, v64")
        o(f"  v_cmp_eq_u32 vcc, -1, v78")
        o(f"  s_cbranch_vccnz {L}_av{wv}")
        o(f"  ds_write_b128 v{vXw}, {v(58,4)} offset:{L_MEM}")
        o(f"  ds_write_b128 v{vXw}, {v(62,4)} offset:{L_MEM+4096}")
        if wv == 0: o(f"  ds_write_b128 v{vA}, {v(66,4)} offset:{L_MEM+8192}")
        o(f"{L}_qv{wv}:")
        if timing: o("  s_memtime s[72:73]")
        stamp(0)
        side = list(side_all)
        def pop(n):
            for _ in range(n):
                if side:
                    x = side.pop(0)
                    if x: o(x.replace("{LP}", f"{L}w{wv}"))
        lgq = Cnt(o, "lgkm", 15)
        def dsq(dst, off, tag):
            o(f"  ds_read_b128 {v(dst,4)}, v{vA} offset:{off}"); lgq.issue(tag)
        def qk(c, a_, np_=(1,1,1,1)):
            smf(o, Q0, a_, frag_q(0, c)); pop(np_[0])
            smf(o, Q1, a_, frag_q(1, c)); pop(np_[1])
            smf(o, K0, a_, frag_k(0, c)); pop(np_[2])
            smf(o, K1, a_, frag_k(1, c))
        own = [wv, wv+4] + ([8] if wv == 0 else [])
        rest = [c for c in range(9) if c not in own]
        qk(own[0], W[1])
        o("  s_waitcnt lgkmcnt(0)\n  s_barrier")
        dsq(W[0], L_MEM + 1024*rest[0], "r0"); dsq(W[1], L_MEM + 1024*rest[1], "r1")
        qk(own[1], W[2])
        dsq(W[2], L_MEM + 1024*rest[2], "r2")
        if wv == 0: qk(8, 66)
        for k, c in enumerate(rest):
            lgq.wait(f"r{k}")
            last = (k == len(rest)-1)
            qk(c, W[k % 3], (1, 2 if k >= len(rest)-3 else 1, 0 if last else 1, 0))
            if k + 3 < len(rest): dsq(W[k % 3], L_MEM + 1024*rest[k+3], f"r{k+3}")
            if not last: pop(1)
        while side: pop(1)
        free_order = [(len(rest)-3+i_) % 3 for i_ in range(3)]
        assert sorted(free_order) == [0, 1, 2]
        for sl in range(3):
            o(f"  ds_read_b128 {v(W[sl],4)}, v{vA} offset:{L_MEM + 1024*(6+sl)}")
        if wv < 3:
            o(f"  s_branch {L}_qkd")
    o(f"{L}_qkd:")
    lg.issue("V6"); lg.issue("V7"); lg.issue("V8")
    stamp(1)
    o.c("transpose q,k")
    def vpass(c, slot):
        smf(o, V0, W[slot], frag_v(0, c)); smf(o, V1, W[slot], frag_v(1, c))
    o(f"  v_cvt_pk_bf16_f32 v{T}, v{Q0}, v{Q0+1}")
    o(f"  v_cvt_pk_bf16_f32 v{T+1}, v{Q0+2}, v{Q0+3}")
    o(f"  v_cvt_pk_bf16_f32 v{T+2}, v{Q1}, v{Q1+1}")
    o(f"  v_cvt_pk_bf16_f32 v{T+3}, v{Q1+2}, v{Q1+3}")
    nop(o, 2)
    o(f"  v_cvt_pk_bf16_f32 v{U}, v{K0}, v{K0+1}")
    o(f"  v_mfma_f32_16x16x16_bf16 {v(Q0,4)}, {v(T,2)}, {v(vSel,2)}, 0")
    o(f"  v_cvt_pk_bf16_f32 v{U+1}, v{K0+2}, v{K0+3}")
    o(f"  v_cvt_pk_bf16_f32 v{U+2}, v{K1}, v{K1+1}")
    o(f"  v_mfma_f32_16x16x16_bf16 {v(Q1,4)}, {v(T+2,2)}, {v(vSel,2)}, 0")
    o(f"  v_cvt_pk_bf16_f32 v{U+3}, v{K1+2}, v{K1+3}")
    nop(o, 1)
    o(f"  v_mfma_f32_16x16x16_bf16 {v(K0,4)}, {v(U,2)}, {v(vSel,2)}, 0")
    o(f"  v_mfma_f32_16x16x16_bf16 {v(K1,4)}, {v(U+2,2)}, {v(vSel,2)}, 0")
    lg.wait("V6")
    smf(o, V0, W[0], frag_v(0, 6))
    o(f"  v_cvt_pk_bf16_f32 v{T}, v{Q0}, v{Q0+1}")
    o(f"  v_cvt_pk_bf16_f32 v{T+1}, v{Q0+2}, v{Q0+3}")
    o(f"  v_cvt_pk_bf16_f32 v{T+2}, v{Q1}, v{Q1+1}")
    o(f"  v_cvt_pk_bf16_f32 v{T+3}, v{Q1+2}, v{Q1+3}")
    smf(o, V1, W[0], frag_v(1, 6))
    dsr(W[0], vA, L_MEM, "B0")
    for i in range(4):
        o(f"  v_mov_b32_dpp v{QS+i}, v{T+i} row_ror:8 row_mask:0xf bank_mask:0xf")
    o(f"  s_waitcnt vmcnt({NV_AFTER_KV})")
    o(f"  v_mfma_f32_16x16x32_bf16 {v(Q0,4)}, {v(vKx,4)}, {v(T,4)}, 0")
    o(f"  v_cvt_pk_bf16_f32 v{U}, v{K0}, v{K0+1}")
    o(f"  v_cvt_pk_bf16_f32 v{U+1}, v{K0+2}, v{K0+3}")
    o(f"  v_mfma_f32_16x16x32_bf16 {v(Q0,4)}, {v(vKx+4,4)}, {v(QS,4)}, {v(Q0,4)}")
    o(f"  v_cvt_pk_bf16_f32 v{U+2}, v{K1}, v{K1+1}")
    o(f"  v_cvt_pk_bf16_f32 v{U+3}, v{K1+2}, v{K1+3}")
    nop(o, 2)
    o(f"  v_mfma_f32_16x16x32_bf16 {v(Q1,4)}, {v(U,4)}, {v(T,4)}, 0")
    lg.wait("V7")
    vpass(7, 1)
    dsr(W[1], vA, L_MEM + 1024, "B1")
    o(f"  ds_write_b128 v{vXw}, {v(Q0,4)} offset:{L_XEX}"); lg.issue("Xw")
    o(f"  ds_write_b128 v{MW}, {v(Q1,4)}"); lg.issue("Mw")
    o(f"  buffer_store_dwordx4 {v(U,4)}, v{vH1}, {WSr}, s{sKm} offen {PUBK}")
    lg.wait("V8")
    vpass(8, 2)
    dsr(W[2], vA, L_MEM + 2048, "B2")
    lg.wait("B0")
    vpass(0, 0)
    dsr(W[0], vA, L_MEM + 3072, "B3")
    lg.wait("Mw")
    o("  s_barrier")
    stamp(2)
    o.c("exchange reads")
    XP = [Q0, vKx, vKx+4, 74]
    MP = [Q1, 66, 42, 38]
    for k in range(4):
        dsr(XP[k], vA, L_XEX + 1024*k, f"XP{k}")
    for k in range(4):
        dsr(MP[k], vM, L_MEX + 256*k, f"MP{k}")
    lg.wait("B1")
    vpass(1, 1)
    dsr(W[1], vA, L_MEM + 4096, "B4")
    lg.wait("B2")
    vpass(2, 2)
    dsr(W[2], vA, L_MEM + 5120, "B5")
    lg.wait("B3")
    vpass(3, 0)
    lg.wait("XP3")
    for k in range(1, 4):
        o(f"  v_pk_add_f32 {v(Q0,2)}, {v(Q0,2)}, {v(XP[k],2)}")
        o(f"  v_pk_add_f32 {v(Q0+2,2)}, {v(Q0+2,2)}, {v(XP[k]+2,2)}")
    lg.wait("MP3")
    for k in range(1, 4):
        o(f"  v_pk_add_f32 {v(Q1,2)}, {v(Q1,2)}, {v(MP[k],2)}")
        o(f"  v_pk_add_f32 {v(Q1+2,2)}, {v(Q1+2,2)}, {v(MP[k]+2,2)}")
    WIN = [14, 18, 22, 26, 38, 42, 66, 70]
    lds_list = [(tl, kap, frag_o(tl, kap)[1]) for tl in range(9) for kap in range(4)]
    slot_of = {}
    st = dict(issued=0)
    BASE = (vXw, 78, 78)
    def issue_frag():
        n = st['issued']
        if n >= len(lds_list): return
        tl, kap, f = lds_list[n]
        sl = WIN[n % len(WIN)]
        b, imm = lds_frag_addr(f)
        if b == 2 and lds_frag_addr(f-1)[0] == 1:
            o(f"  v_add_u32 v78, 0x10000, v78")
        dsr(sl, BASE[b], imm, f"wo{n}")
        slot_of[(tl, kap)] = (sl, n)
        st['issued'] = n + 1
    o.c("softmax")
    MX, TM = 78, 42
    o(f"  v_max3_f32 v{MX}, v{Q0}, v{Q0+1}, v{Q0+2}")
    o(f"  v_max3_f32 v{TM}, v{Q0+3}, v{Q1}, v{Q1+1}")
    o(f"  v_max3_f32 v{MX}, v{MX}, v{Q1+2}, v{Q1+3}")
    o(f"  v_max_f32 v{MX}, v{MX}, v{TM}")
    lg.wait("B4")
    smf(o, V0, W[1], frag_v(0, 4))
    issue_frag()
    o(f"  v_max_f32_dpp v{MX}, v{MX}, v{MX} row_ror:8 row_mask:0xf bank_mask:0xf")
    smf(o, V1, W[1], frag_v(1, 4))
    o(f"  v_mov_b32 v{TM}, v{MX}")
    issue_frag()
    lg.wait("B5")
    smf(o, V0, W[2], frag_v(0, 5))
    o(f"  v_permlane16_swap_b32 v{MX}, v{TM}")
    o(f"  v_max_f32 v{MX}, v{MX}, v{TM}")
    o(f"  v_mov_b32 v{TM}, v{MX}")
    smf(o, V1, W[2], frag_v(1, 5))
    nop(o, 1)
    o(f"  v_permlane32_swap_b32 v{MX}, v{TM}")
    o(f"  v_max_f32 v{MX}, v{MX}, v{TM}")
    o(f"  v_mul_f32 v{MX}, s{sC}, v{MX}")
    for i in range(8):
        o(f"  v_fma_f32 v{Q0+i}, v{Q0+i}, s{sC}, -v{MX}")
    PX, PXs, PM, LA, LB, VP = 74, 76, 70, 72, 73, 66
    for i in range(8):
        o(f"  v_exp_f32 v{Q0+i}, v{Q0+i}")
    D0, D1 = 38, 42
    O0 = 70
    o.c("PV with the l-sum chain interleaved")
    o(f"  v_cvt_pk_bf16_f32 v{PX}, v{Q0}, v{Q0+1}")
    o(f"  v_cvt_pk_bf16_f32 v{PX+1}, v{Q0+2}, v{Q0+3}")
    o(f"  v_cvt_pk_bf16_f32 v{PM}, v{Q1}, v{Q1+1}")
    o(f"  v_cvt_pk_bf16_f32 v{PM+1}, v{Q1+2}, v{Q1+3}")
    o(f"  v_pk_add_f32 {v(LA,2)}, {v(Q0,2)}, {v(Q0+2,2)}")
    o(f"  v_pk_add_f32 {v(Q1,2)}, {v(Q1,2)}, {v(Q1+2,2)}")
    o(f"  v_mov_b32_dpp v{PXs}, v{PX} row_ror:8 row_mask:0xf bank_mask:0xf")
    o(f"  v_mov_b32_dpp v{PXs+1}, v{PX+1} row_ror:8 row_mask:0xf bank_mask:0xf")
    o(f"  v_add_f32 v{LA}, v{LA}, v{LB}")
    o(f"  v_add_f32 v{LB}, v{Q1}, v{Q1+1}")
    o(f"  v_mfma_f32_16x16x32_bf16 {v(D0,4)}, {v(vVx,4)}, {v(PX,4)}, 0")
    o(f"  v_fmamk_f32 v{LA}, v{LB}, 0x3e800000, v{LA}")
    o(f"  v_cvt_pk_bf16_f32 v{VP}, v{V0}, v{V0+1}")
    o(f"  v_mfma_f32_16x16x32_bf16 {v(D1,4)}, {v(vVx+4,4)}, {v(PX,4)}, 0")
    o(f"  v_cvt_pk_bf16_f32 v{VP+1}, v{V0+2}, v{V0+3}")
    o(f"  v_add_f32_dpp v{LA}, v{LA}, v{LA} row_ror:8 row_mask:0xf bank_mask:0xf")
    o(f"  v_mov_b32 v{LB}, v{LA}")
    o(f"  v_cvt_pk_bf16_f32 v{VP+2}, v{V1}, v{V1+1}")
    o(f"  v_mfma_f32_16x16x16_bf16 {v(D0,4)}, {v(VP,2)}, {v(PM,2)}, {v(D0,4)}")
    o(f"  v_cvt_pk_bf16_f32 v{VP+3}, v{V1+2}, v{V1+3}")
    o(f"  v_permlane16_swap_b32 v{LA}, v{LB}")
    o(f"  v_add_f32 v{LA}, v{LA}, v{LB}")
    o(f"  v_mov_b32 v{LB}, v{LA}")
    o(f"  v_mfma_f32_16x16x16_bf16 {v(D1,4)}, {v(VP+2,2)}, {v(PM,2)}, {v(D1,4)}")
    o(f"  s_add_u32 s{sVm}, s{sKm}, {VM-KM}")
    o(f"  s_cmp_eq_u32 s{sStep}, 63")
    o(f"  s_cbranch_scc1 {L}_done")
    o(f"  v_permlane32_swap_b32 v{LA}, v{LB}")
    o(f"  v_add_f32 v{LA}, v{LA}, v{LB}")
    o(f"  v_rcp_f32 v78, v{LA}")
    issue_frag()
    issue_frag()
    for i in range(0, 8, 2):
        o(f"  v_pk_mul_f32 {v(D0+i,2)}, {v(D0+i,2)}, {v(78,2)} op_sel_hi:[1,0]")
    o(f"  v_cvt_pk_bf16_f32 v{O0}, v{D0}, v{D0+1}")
    o(f"  v_cvt_pk_bf16_f32 v{O0+1}, v{D0+2}, v{D0+3}")
    o(f"  ds_write_b64 v{vOw}, {v(O0,2)}"); lg.issue("Ow0")
    o(f"  v_cvt_pk_bf16_f32 v{O0+2}, v{D1}, v{D1+1}")
    o(f"  v_cvt_pk_bf16_f32 v{O0+3}, v{D1+2}, v{D1+3}")
    o(f"  ds_write_b64 v{vOw}, {v(O0+2,2)} offset:512"); lg.issue("Ow1")
    o(f"  v_add_u32 v78, 0x10000, v{vXw}")
    o(f"  buffer_store_dwordx4 {v(VP,4)}, v{vA}, {WSr}, s{sVm} offen {PUBV}")
    issue_frag(); issue_frag()
    lg.wait("Ow1")
    o("  s_barrier")
    stamp(3)
    o.c("E phase")
    B = [46, 50, 54, 58]
    for k in range(4):
        dsr(B[k], vA, L_OEX + (k//2)*1024 + (k%2)*128, f"ob{k}")
    issue_frag(); issue_frag()
    D = [30, 34]
    PK, PKB = 62, 74
    for tl in range(9):
        post = []
        d = D[tl % 2]
        pend = []
        if tl >= 1:
            prev = tl - 1
            dd = D[prev % 2]; x = prev % 2; p = prev // 2
            pk = PK if p % 2 == 0 else PKB
            pend = [f"  v_cvt_pk_bf16_f32 v{pk+2*x}, v{dd}, v{dd+1}", f"  v_cvt_pk_bf16_f32 v{pk+2*x+1}, v{dd+2}, v{dd+3}"]
            if x == 1 and p % 2 == 1:
                post = [f"  v_mov_b32_dpp v{PK+i}, v{PKB+i} row_ror:8 row_mask:0xf bank_mask:0xc" for i in range(4)]
                post.append(f"  buffer_store_dwordx4 {v(PK,4)}, v{vA}, {WSr}, s{sH1st} offen offset:{1024*(p//2)} {stf}")
            else:
                post = []
        if tl >= 1: lg.wait(f"wo{4*tl+3}")
        for n_ in range(4):
            kap = n_
            if tl == 0: lg.wait(f"ob{kap}")
            sl, n = slot_of[(tl, kap)]
            if tl == 0: lg.wait(f"wo{n}")
            cin = "0" if n_ == 0 else v(d, 4)
            o(f"  v_mfma_f32_16x16x32_bf16 {v(d,4)}, {v(sl,4)}, {v(B[kap],4)}, {cin}")
            issue_frag()
            if n_ == 2 and pend:
                for x_ in pend: o(x_)
                pend = []
            if n_ == 3 and post:
                for x_ in post: o(x_)
                post = []
    for r in range(38, 46): o(f"  v_mov_b32 v{r}, 0")
    d = D[0]
    o(f"  v_cvt_pk_bf16_f32 v{PK}, v{d}, v{d+1}")
    o(f"  v_cvt_pk_bf16_f32 v{PK+1}, v{d+2}, v{d+3}")
    o(f"  buffer_store_dwordx2 {v(PK,2)}, v{vH1}, {WSr}, s{sH1h} offen {stf}")
    assert not lg.q, lg.q
    stamp(4)
    for r in list(range(30, 38)) + list(range(46, 54)): o(f"  v_mov_b32 v{r}, 0")
    nop(o, fdelay)
    o.c("F: reducers")
    vmst = f"  buffer_store_dwordx4 {v(66,4)}, v{vA}, {WSr}, s{sVm} offen {PUBV}"
    o(f"  s_cmp_eq_u32 s{sIsRed}, 0")
    o(f"  s_cbranch_scc1 {L}_nred")
    o(f"  s_add_u32 s{sT1}, s{sH1ld}, {8*H1_PROD}")
    o(f"  s_add_u32 s{sT2}, s{sH1ld}, {16*H1_PROD}")
    o(f"  s_add_u32 s{sT3}, s{sH1ld}, {24*H1_PROD}")
    FS1, FS2 = [54, 58, 62, 74], [14, 18, 22, 26]
    def f_loads(S):
        for k, so in enumerate((sH1ld, sT1, sT2, sT3)):
            o(f"  buffer_load_dwordx4 {v(S[k],4)}, v{vR}, {WSr}, s{so} offen sc1")
    def f_check(S, younger):
        for k in range(4):
            o(f"  s_waitcnt vmcnt({younger+3-k})")
            if timing and k == 3: o("  s_memtime s[66:67]")
            o(f"  v_mfma_f32_16x16x32_bf16 {v(70,4)}, {v(vSelR,4)}, {v(S[k],4)}, {'0' if k == 0 else v(70,4)}")
        nop(o, 8)
        o(f"  v_cmp_u_f32 vcc, v70, v70")
        for i_ in range(4):
            o(f"  v_add_f32_dpp v{70+i_}, v{70+i_}, v{70+i_} row_ror:8 row_mask:0xf bank_mask:0xf")
        o(f"  v_cvt_pk_bf16_f32 v66, v70, v71")
        o(f"  v_cvt_pk_bf16_f32 v67, v72, v73")
    def f_cnt():
        if timing: o("  s_add_u32 s80, s80, 1\n  s_memtime s[64:65]")
        o(f"  s_add_u32 s{sPoll}, s{sPoll}, 1")
        o(f"  s_cmp_gt_u32 s{sPoll}, {POLL_LIMIT}")
        o(f"  s_cbranch_scc1 {L}_bail")
    if timing: o("  s_add_u32 s80, s80, 1\n  s_memtime s[64:65]")
    f_loads(FS1)
    nop(o, FSTAG)
    f_loads(FS2)
    o(f"{L}_ra:")
    f_check(FS1, 4)
    o(f"  s_cbranch_vccz {L}_rok")
    f_loads(FS1); f_cnt()
    f_check(FS2, 4)
    o(f"  s_cbranch_vccz {L}_rok")
    f_loads(FS2); f_cnt()
    o(f"  s_branch {L}_ra")
    o(f"{L}_rok:")
    o(f"  buffer_store_dwordx2 {v(66,2)}, v{vP}, {WSr}, s{sH2pub} offen {stf}")
    o(f"{L}_nred:")
    o(f"{L}_cons:")
    o(f"  s_barrier")
    stamp(5)
    o.c("A: gather mem(s+1); per-step scalar updates double as the publish->visible delay")
    o(f"  s_add_u32 s{sH2pl}, s{sH2pub}, s{sW1024}")
    o(f"  s_add_u32 s{sT1}, s{sH2pl}, 4096")
    o(f"  s_add_u32 s{sT2}, s{sH2pub}, 8192")
    o(f"  s_add_u32 s{sStep}, s{sStep}, 1")
    for x in [f"  s_add_u32 s{sH1ld}, s{sH1ld}, {H1_SLOT}", f"  s_add_u32 s{sKm}, s{sKm}, {32*4096}",
             f"  s_add_u32 s{sH1st}, s{sH1ld}, s{sH1so}", f"  s_add_u32 s{sH1h}, s{sH1ld}, s{sH1ho}",
             f"  s_add_u32 s{sH2pub}, s{sH2pub}, {H2_SLOT}"]:
        o(x)
    nop(o, adelay)
    if timing:
        lab2 = o.label("nort")
        o(f"  s_memrealtime s[82:83]\n  s_memtime s[98:99]\n  s_waitcnt lgkmcnt(0)")
        o(f"  s_lshl_b32 s{sT0}, s{sH}, 2\n  s_add_u32 s{sT0}, s{sT0}, s{sWv_}\n  s_cmp_eq_u32 s{sT0}, 0\n  s_cbranch_scc0 {lab2}")
        o(f"  s_lshl_b32 s{sT0}, s{sStep}, 3\n  s_add_u32 s{sT0}, s{sT0}, {FLAGS + 0x3000}\n  v_mov_b32 v74, s82\n  v_mov_b32 v75, s98\n  v_mov_b32 v76, s{sT0}\n  buffer_store_dwordx2 v[74:75], v76, {WSr}, 0 offen")
        for k_, sr_ in enumerate([86, 88, 90, 92, 94, 96]):
            o(f"  s_lshl_b32 s{sT0}, s{sStep}, 5\n  s_add_u32 s{sT0}, s{sT0}, {FLAGS + 0x70000 + 4*k_}\n  v_mov_b32 v74, s{sr_}\n  v_mov_b32 v76, s{sT0}\n  buffer_store_dword v74, v76, {WSr}, 0 offen")
        o.put(lab2)
        lab = o.label("nost")
        o(f"  s_cmp_eq_u32 s{sStep}, 21")
        o(f"  s_cbranch_scc0 {lab}")
        for k, sr in enumerate([86,88,90,92,94,96,98,64,66,68,70,72]):
            o(f"  v_mov_b32 v74, s{sr}")
            o(f"  s_lshl_b32 s{sT0}, s{sH}, 2\n  s_add_u32 s{sT0}, s{sT0}, s{sWv_}\n  s_lshl_b32 s{sT0}, s{sT0}, 6\n  s_add_u32 s{sT0}, s{sT0}, {FLAGS + 4096 + 4*k}")
            o(f"  v_mov_b32 v75, s{sT0}")
            o(f"  buffer_store_dword v74, v75, {WSr}, 0 offen")
        o.put(lab)
    for wv in range(3):
        o(f"  s_cmp_eq_u32 s{sWv_}, {wv}\n  s_cbranch_scc1 {L}_av{wv}")
    o(f"  s_branch {L}_av3")
    o(f"{L}_bail:")
    o(f"  s_endpgm")
    o(f"{L}_done:")
    o(f"  buffer_store_dwordx4 {v(66,4)}, v{vA}, {WSr}, s{sVm} offen sc1")
    o(f"  s_waitcnt vmcnt(0) lgkmcnt(0)")
    o(f"  s_barrier")
    o(f"  s_cmp_lg_u32 s{sWv_}, 0\n  s_cbranch_scc1 {L}_fin")
    o(f"  v_mov_b32 v78, 64")
    o(f"  v_mov_b32 v77, s{sFlagOff}")
    o(f"  s_mov_b64 exec, 1\n  buffer_store_dword v78, v77, {WSr}, 0 offen sc1\n  s_mov_b64 exec, -1")
    o(f"  s_waitcnt vmcnt(0)")
    o(f"{L}_fin:")

def emit_init(o, L):
    WSr = f"s[{sWS}:{sWS+3}]"
    lab = o.label("noh2")
    o(f"""  s_lshl_b32 s{sT0}, s{sH}, 2
  s_add_u32 s{sT0}, s{sT0}, s{sWv_}
  s_lshl_b32 s{sFlagOff}, s{sH}, 7
  s_add_u32 s{sFlagOff}, s{sFlagOff}, {RFLAG}
  s_cmp_lg_u32 s{sWv_}, 0
  s_cselect_b32 s{sFlagOff}, 0x80000000, s{sFlagOff}
{lab}:""")

def emit_early(o):
    WSr = f"s[{sWS}:{sWS+3}]"
    if TLBW:
        o(f"""  v_lshrrev_b32 v47, 4, v{vA}
  v_lshlrev_b32 v47, 21, v47
  buffer_load_dword v14, v47, {WSr}, 0 offen
  v_add_u32 v47, 0x8000000, v47
  buffer_load_dword v14, v47, {WSr}, 0 offen""")
    o(f"""  ; scalar state for step 0
  s_lshl_b32 s{sKoff}, s{sH}, 13
  s_lshl_b32 s{sT1}, s{sWv_}, 11
  s_add_u32 s{sKoff}, s{sKoff}, s{sT1}
  s_lshl_b32 s{sKm}, s{sH}, 12
  s_add_u32 s{sKm}, s{sKm}, s{sW1024}
  s_add_u32 s{sKm}, s{sKm}, {KM}
  s_mov_b32 s{sH1ld}, {H1}
  s_mul_i32 s{sT1}, s{sH}, {H1_PROD}
  s_lshl_b32 s{sT2}, s{sWv_}, 11
  s_add_u32 s{sH1so}, s{sT1}, s{sT2}
  s_lshr_b32 s{sT2}, s{sWv_}, 1
  s_lshl_b32 s{sT2}, s{sT2}, 10
  s_add_u32 s{sH1ho}, s{sT1}, s{sT2}
  s_add_u32 s{sH1ho}, s{sH1ho}, 8192
  s_and_b32 s{sT2}, s{sWv_}, 1
  s_lshl_b32 s{sT2}, s{sT2}, 3
  s_add_u32 s{sH1ho}, s{sH1ho}, s{sT2}
  s_add_u32 s{sH1st}, s{sH1ld}, s{sH1so}
  s_add_u32 s{sH1h}, s{sH1ld}, s{sH1ho}
  s_mov_b32 s{sH2pub}, {H2 + H2_SLOT}
  v_bfe_u32 v47, v{vA}, 4, 5
  v_mul_u32_u24 v47, {H1_PROD}, v47
  v_add_u32 v47, s{sUnit}, v47
  buffer_load_dword v14, v47, {WSr}, s{sH1ld} offen
  s_add_u32 s{sT0}, s{sH2pub}, s{sW1024}
  v_lshlrev_b32 v47, 3, v{vA}
  buffer_load_dword v14, v47, {WSr}, s{sT0} offen
  s_add_u32 s{sT1}, s{sKoff}, {VBUF-KBUF}
  buffer_load_dwordx4 {v(vKx,4)}, v{vA}, {WSr}, s{sKoff} offen
  buffer_load_dwordx4 {v(vKx+4,4)}, v{vA}, {WSr}, s{sKoff} offen offset:1024
  buffer_load_dwordx4 {v(vVx,4)}, v{vA}, {WSr}, s{sT1} offen
  buffer_load_dwordx4 {v(vVx+4,4)}, v{vA}, {WSr}, s{sT1} offen offset:1024
""")

def emit_mem0(o, mid=None):
    WSr = f"s[{sWS}:{sWS+3}]"
    o.c("mem0 -> LDS: piece (j=8c+2g+u, t) = mem0[t][8j..8j+8)")
    o(f"""  s_mov_b32 s64, s48
  s_and_b32 s65, s49, 0xffff
  s_mov_b32 s66, 9216
  s_mov_b32 s67, 0x20000
  v_lshrrev_b32 v62, 4, v{vA}         ; lane
  v_and_b32 v63, 7, v62               ; t
  v_lshrrev_b32 v64, 3, v62           ; 2g+u
  v_mul_u32_u24 v63, 1152, v63
  v_lshl_add_u32 v63, v64, 4, v63     ; t*1152 + (2g+u)*16
  s_lshl_b32 s{sT0}, s{sWv_}, 7
  s_add_u32 s{sT1}, s{sT0}, 512
  v_mov_b32 v53, v63
  buffer_load_dwordx4 {v(58,4)}, v53, s[64:67], s{sT0} offen
  buffer_load_dwordx4 {v(62,4)}, v53, s[64:67], s{sT1} offen
  buffer_load_dwordx4 {v(66,4)}, v53, s[64:67], 0 offen offset:1024""")
    if mid: mid()
    o(f"""  s_waitcnt vmcnt(0)
  s_barrier
  ds_write_b128 v{vXw}, {v(58,4)} offset:{L_MEM}
  ds_write_b128 v{vXw}, {v(62,4)} offset:{L_MEM+4096}
  ds_write_b128 v{vA}, {v(66,4)} offset:{L_MEM+8192}""")
    for r in range(30, 54):
        o(f"  v_mov_b32 v{r}, 0")
    o(f"""  s_mov_b32 s{sStep}, 0
  s_mov_b32 s{sPoll}, 0
  s_mov_b32 s80, 0
  s_mov_b32 s81, 0
  s_waitcnt vmcnt(0) lgkmcnt(0)
  v_mov_b32 v{vDummy}, 128
  s_barrier""")
```

```python
from asmlib import *

TLBW = False
WNT = ''
HALFT = True
KV4 = True
COOP = True
NOPROC = False
MAXIN_ = 14
ORDER = 'qkov'
L_MEM, L_XEX, L_MEX, L_OEX, L_W = 0, 9216, 13312, 14336, 16384

vA, vXw, vM, vOw, vR, vP, vIdx, vH1 = 0, 1, 2, 3, 4, 5, 6, 7
vSel, vSelR, vKx, vVx = 8, 10, 14, 22
sW = 4
sWS = 8
sH, sWv_, sStep = 12, 13, 14
sC = 15
sKoff, sKm, sH1st, sH1h, sH1ld, sH2pub, sH2pl = 16, 17, 18, 19, 20, 21, 22
sIsRed, sJ, sT0, sT1, sT2, sT3 = 23, 24, 25, 26, 27, 28
sPoll = 29
sH1rs, sH2rs = 30, 31
sFlagOff = 32
sX1, sX2, sX3 = 33, 34, 35
sW256 = 36
sMaskMw = 38
sPi0, sPih = 40, 41
sH1so, sH1ho, sW1024 = 42, 43, 37
sUnit = 45
sS0, sEx = 30, 31
sVm = 47
sH2tch = 46
sTm = 44

def frag_q(tau, c): return ('a', (tau*9 + c)*8)
def frag_k(tau, c):
    f = tau*9 + c
    return ('a', 144 + 8*f) if f < 14 else ('v', 80 + 8*(f-14))
def frag_v(tau, c):
    return ('v', 112 + 72*tau + 8*c)
def frag_o(tl, kap):
    return ('lds', 4*tl + kap)

def lds_frag_addr(f):
    off = L_W + f*4096
    return off // 65536, off % 65536

def nop(o, n):
    while n > 0:
        k = min(n, 16)
        o(f"  s_nop {k-1}")
        n -= k

def emit_consts(o):
    o.c("---- R lane constants; v0 holds lane id on entry (0..63), s13 = wave")
    o(f"""
  v_mov_b32 v30, v0                 ; lane
  v_and_b32 v31, 15, v30            ; c
  v_lshrrev_b32 v32, 4, v30         ; g
  v_and_b32 v33, 7, v30             ; t
  v_bfe_u32 v34, v30, 3, 1          ; u
  v_lshlrev_b32 v{vA}, 4, v30
  s_lshl_b32 s{sT0}, s{sWv_}, 10
  v_add_u32 v{vXw}, s{sT0}, v{vA}
  v_and_b32 v35, 1, v32             ; g%2
  v_lshlrev_b32 v{vM}, 7, v35
  v_lshl_add_u32 v{vM}, v33, 4, v{vM}
  ; vOw = (w/2)*1024 + (g/2)*256 + (w%2)*128 + t*16 + (g%2)*8 ; u==0 only
  s_lshr_b32 s{sT0}, s{sWv_}, 1
  s_lshl_b32 s{sT0}, s{sT0}, 10
  s_and_b32 s{sT1}, s{sWv_}, 1
  s_lshl_b32 s{sT1}, s{sT1}, 7
  s_add_u32 s{sT0}, s{sT0}, s{sT1}
  s_add_u32 s{sT0}, s{sT0}, {L_OEX}
  v_lshrrev_b32 v36, 1, v32         ; g/2
  v_lshlrev_b32 v{vOw}, 8, v36
  v_lshl_add_u32 v{vOw}, v33, 4, v{vOw}
  v_lshl_add_u32 v{vOw}, v35, 3, v{vOw}
  v_add_u32 v{vOw}, s{sT0}, v{vOw}
  v_mov_b32 v37, 0x7ffffff0
  v_cmp_eq_u32 vcc, 0, v34
  s_nop 1
  v_cndmask_b32 v{vOw}, v37, v{vOw}, vcc
  v_mov_b32 v37, 0x80000000
  v_cndmask_b32 v{vH1}, v37, v{vA}, vcc
  ; idx
  v_mov_b32 v38, 0x44444444
  v_mov_b32 v39, 0xeeeeeeee
  v_cndmask_b32 v{vIdx}, v39, v38, vcc
  s_lshl_b32 s{sJ}, s{sH}, 1
  s_add_u32 s{sJ}, s{sJ}, s{sWv_}
  s_add_u32 s{sT0}, s{sH}, 64
  s_cmp_eq_u32 s{sWv_}, 2
  s_cselect_b32 s{sJ}, s{sT0}, s{sJ}
  s_cmp_lt_u32 s{sWv_}, 2
  s_cselect_b32 s{sIsRed}, 1, 0
  s_cmp_eq_u32 s{sWv_}, 2
  s_cselect_b32 s{sT0}, 1, 0
  s_cmp_lt_u32 s{sH}, 8
  s_cselect_b32 s{sT1}, 1, 0
  s_and_b32 s{sT0}, s{sT0}, s{sT1}
  s_or_b32 s{sIsRed}, s{sIsRed}, s{sT0}
  s_cmp_eq_u32 s{sIsRed}, 0
  s_cselect_b32 s{sJ}, 0, s{sJ}
  ; unit j=(pi=j/4, g4=j%4): H1 offset of its 128B segment
  s_lshr_b32 s{sT0}, s{sJ}, 2            ; pi
  s_and_b32 s{sT1}, s{sJ}, 3             ; g4
  s_cmp_gt_u32 s{sT0}, 13
  s_cselect_b32 s{sT2}, 2, 0
  s_cmp_gt_u32 s{sT0}, 4
  s_cselect_b32 s{sT3}, 1, 0
  s_cmp_gt_u32 s{sT0}, 13
  s_cselect_b32 s{sT3}, 2, s{sT3}
  s_sub_u32 s{sT2}, s{sT0}, s{sT3}
  s_lshr_b32 s{sT3}, s{sT2}, 1
  s_lshl_b32 s{sT3}, s{sT3}, 10          ; (q/2)*1024
  s_and_b32 s{sT2}, s{sT2}, 1
  s_lshl_b32 s{sT2}, s{sT2}, 7           ; (q%2)*128
  s_add_u32 s{sT3}, s{sT3}, s{sT2}
  s_cmp_eq_u32 s{sT0}, 4
  s_cselect_b32 s{sT3}, 8192, s{sT3}
  s_cmp_eq_u32 s{sT0}, 13
  s_cselect_b32 s{sT3}, 9216, s{sT3}
  s_lshl_b32 s{sT1}, s{sT1}, 8
  s_add_u32 s{sT0}, s{sT3}, s{sT1}       ; + g4*256
  s_lshr_b32 s{sT1}, s{sJ}, 2
  s_cmp_eq_u32 s{sT1}, 4
  s_cselect_b32 s{sT2}, 2, s{sIsRed}
  s_cmp_eq_u32 s{sT1}, 13
  s_cselect_b32 s{sT2}, 2, s{sT2}
  s_cmp_eq_u32 s{sIsRed}, 0
  s_cselect_b32 s{sIsRed}, 0, s{sT2}
  v_lshl_add_u32 v40, v34, 2, v32
  v_mul_u32_u24 v40, {H1_PROD}, v40
  v_lshl_add_u32 v40, v33, 4, v40
  v_add_u32 v{vR}, s{sT0}, v40
  s_cmp_eq_u32 s{sIsRed}, 0
  s_cselect_b32 s{sT1}, 0x80000000, 0
  s_cselect_b32 s{sUnit}, 0x80000000, s{sT0}
  v_lshlrev_b32 v40, 4, v33
  v_lshl_add_u32 v40, v32, 3, v40
  s_lshl_b32 s{sT0}, s{sJ}, 7
  v_add_u32 v40, s{sT0}, v40
  v_and_b32 v41, 40, v30
  v_cmp_eq_u32 vcc, 0, v41
  s_nop 1
  v_cndmask_b32 v{vP}, v37, v40, vcc
  v_or_b32 v{vP}, s{sT1}, v{vP}
  s_mov_b64 s[{sMaskMw}:{sMaskMw+1}], vcc     ; lanes u==0,g<2
  ; Sel: e = c - 4*(g%2)
  v_lshlrev_b32 v40, 2, v35
  v_sub_u32 v40, v31, v40
  v_mov_b32 v41, 0x3f80
  v_mov_b32 v42, 0x3f800000
  v_mov_b32 v{vSel}, 0
  v_mov_b32 v{vSel+1}, 0
  v_cmp_eq_u32 vcc, 0, v40
  s_nop 1
  v_cndmask_b32 v{vSel}, v{vSel}, v41, vcc
  v_cmp_eq_u32 vcc, 1, v40
  s_nop 1
  v_cndmask_b32 v{vSel}, v{vSel}, v42, vcc
  v_cmp_eq_u32 vcc, 2, v40
  s_nop 1
  v_cndmask_b32 v{vSel+1}, v{vSel+1}, v41, vcc
  v_cmp_eq_u32 vcc, 3, v40
  s_nop 1
  v_cndmask_b32 v{vSel+1}, v{vSel+1}, v42, vcc""")
    for r in range(4):
        o(f"""  v_mov_b32 v{vSelR+r}, 0
  v_cmp_eq_u32 vcc, {2*r}, v31
  s_nop 1
  v_cndmask_b32 v{vSelR+r}, v{vSelR+r}, v41, vcc
  v_cmp_eq_u32 vcc, {2*r+1}, v31
  s_nop 1
  v_cndmask_b32 v{vSelR+r}, v{vSelR+r}, v42, vcc""")
    o(f"""
  s_lshl_b32 s{sW1024}, s{sWv_}, 10
  s_lshl_b32 s{sH2tch}, s{sH}, 2
  s_add_u32 s{sH2tch}, s{sH2tch}, s{sWv_}
  s_lshl_b32 s{sH2tch}, s{sH2tch}, 6
  s_add_u32 s{sH2tch}, s{sH2tch}, {H2_SLOT}
  s_mov_b32 s{sC}, 0x3e0293ee        ; 128^-0.5 * log2(e) = 0.12751743
  s_lshl_b32 s{sW256}, s{sWv_}, 8
  s_add_u32 s{sW256}, s{sW256}, {L_MEX}
  s_mul_i32 s{sPi0}, s{sWv_}, 9
  s_add_u32 s{sPi0}, s{sPi0}, 1
  s_lshr_b32 s{sPi0}, s{sPi0}, 1
  s_lshr_b32 s{sPih}, s{sWv_}, 1
  s_mul_i32 s{sPih}, s{sPih}, 9
  s_add_u32 s{sPih}, s{sPih}, 4
""")

def emit_weights(o, hook=None, hook_at=28):
    o.c("---- weight prologue")
    vLdW, vLdO, vLdOh, vScr, vT, vT2, vT2h, vF1, vF2 = 30, 31, 32, 33, 34, 35, 36, 37, 38
    TMP = 40
    o(f"""
  v_lshrrev_b32 v46, 4, v{vA}        ; lane
  v_lshrrev_b32 v45, 2, v46          ; l/4
  v_and_b32 v44, 3, v46              ; l%4
  v_lshlrev_b32 v{vLdW}, 13, v45
  v_lshl_add_u32 v{vLdW}, v44, 4, v{vLdW}      ; (l/4)*8192 + (l%4)*16
  v_mul_u32_u24 v{vLdOh}, 1152, v45
  v_lshl_add_u32 v{vLdOh}, v44, 4, v{vLdOh}    ; (l/4)*1152 + (l%4)*16
  v_lshrrev_b32 v43, 3, v46          ; l/8
  v_and_b32 v42, 7, v46
  v_mul_u32_u24 v{vLdO}, 1152, v43
  v_lshl_add_u32 v{vLdO}, v42, 4, v{vLdO}      ; (l/8)*1152 + (l%8)*16
  s_lshl_b32 s{sT0}, s{sWv_}, 12
  v_add_u32 v{vScr}, s{sT0}, v{vA}             ; scratch + l*16
  ; tr lane decomposition: gb=l/16, r'=(l%16)/4, c'=l%4
  v_lshrrev_b32 v43, 4, v46          ; gb
  v_bfe_u32 v42, v46, 2, 2           ; r'
  ; row = 16*(gb/2) + 4*(gb%2) + 8*(r'/2) + r'%2
  v_lshrrev_b32 v41, 1, v43
  v_lshlrev_b32 v41, 4, v41
  v_and_b32 v40, 1, v43
  v_lshl_add_u32 v41, v40, 2, v41
  v_lshrrev_b32 v40, 1, v42
  v_lshl_add_u32 v41, v40, 3, v41
  v_and_b32 v40, 1, v42
  v_add_u32 v41, v41, v40
  v_lshlrev_b32 v{vT}, 6, v41
  v_lshl_add_u32 v{vT}, v44, 3, v{vT}
  v_add_u32 v{vT}, s{sT0}, v{vT}
  v_lshl_add_u32 v41, v43, 3, v42
  v_lshlrev_b32 v{vT2}, 7, v41
  v_lshl_add_u32 v{vT2}, v44, 4, v{vT2}
  v_add_u32 v{vT2}, s{sT0}, v{vT2}
  v_lshlrev_b32 v{vT2h}, 6, v41
  v_lshl_add_u32 v{vT2h}, v44, 4, v{vT2h}
  v_add_u32 v{vT2h}, s{sT0}, v{vT2h}
  s_and_b32 s{sT1}, s{sWv_}, 1
  s_lshl_b32 s{sT1}, s{sT1}, 3
  v_add_u32 v{vT2h}, s{sT1}, v{vT2h}
  v_add_u32 v{vF1}, 0x10000, v{vXw}
  v_add_u32 v{vF2}, 0x20000, v{vXw}
""")
    vWr, vRd = 39, 43
    if COOP:
        o(f"""  v_lshrrev_b32 v48, 4, v{vA}        ; lane
  v_lshrrev_b32 v49, 4, v48          ; l/16
  v_and_b32 v50, 15, v48             ; l%16
  v_lshlrev_b32 v{vLdW}, 13, v49
  v_lshl_add_u32 v{vLdW}, v50, 4, v{vLdW}     ; (l/16)*8192 + (l%16)*16
  s_lshl_b32 s{sT0}, s{sWv_}, 12""")
        for i_ in range(4):
            o(f"""  v_add_u32 v51, {4*i_}, v49
  v_xor_b32 v51, v51, v50
  v_lshlrev_b32 v51, 4, v51
  v_lshl_add_u32 v51, v49, 8, v51
  v_add_u32 v51, {1024*i_}, v51
  v_add_u32 v{vWr+i_}, s{sT0}, v51""")
        o(f"""  v_bfe_u32 v51, v48, 2, 2           ; r'
  v_lshrrev_b32 v52, 1, v49          ; gb/2
  v_lshlrev_b32 v52, 4, v52
  v_and_b32 v53, 1, v49
  v_lshl_add_u32 v52, v53, 2, v52
  v_lshrrev_b32 v53, 1, v51
  v_lshl_add_u32 v52, v53, 3, v52
  v_and_b32 v53, 1, v51
  v_add_u32 v52, v52, v53            ; rowpart
  v_and_b32 v54, 3, v48              ; c'
  v_lshrrev_b32 v55, 1, v54          ; c'/2
  v_and_b32 v54, 1, v54
  v_lshlrev_b32 v54, 3, v54          ; (c'%2)*8
  s_lshl_b32 s{sT1}, s{sWv_}, 2""")
        for off2 in range(2):
            for tau in range(2):
                o(f"""  v_add_u32 v56, {2*off2}, v52
  v_and_b32 v57, 15, v56
  v_add_u32 v58, s{sT1}, v55
  v_add_u32 v58, {2*tau}, v58
  v_xor_b32 v57, v57, v58
  v_lshlrev_b32 v57, 4, v57
  v_lshl_add_u32 v57, v56, 8, v57
  v_add_u32 v{vRd+2*off2+tau}, v57, v54""")
    def ldsaddr(f):
        b, imm = lds_frag_addr(f)
        return (vXw, vF1, vF2)[b], imm
    chunks = []
    for mt in ORDER:
        if mt == 'o':
            for kap in range(4):
                chunks += [('o', kap, 0), ('o', kap, 1), ('oh', kap)]
        else:
            for c in range(9): chunks.append((mt, c))
    def dests(ch):
        if ch[0] == 'q': return [frag_q(0, ch[1]), frag_q(1, ch[1])]
        if ch[0] == 'k': return [frag_k(0, ch[1]), frag_k(1, ch[1])]
        if ch[0] == 'v': return [frag_v(0, ch[1]), frag_v(1, ch[1])]
        if ch[0] == 'o': return [frag_o(4*ch[2]+i, ch[1]) for i in range(4)]
        return [frag_o(8, ch[1])]
    def dest_vregs(ch):
        n = 8 if ch[0] in 'qkv' else 4
        r = set()
        for d in dests(ch):
            if d[0] == 'v': r |= set(range(d[1], d[1]+n))
        return r
    bufs = [48, 64] + list(range(80, 256, 16))
    n = len(chunks)
    MAXIN = MAXIN_
    used_final = set()
    assign = {}
    inflight = []
    nxt = 0
    sched = []
    final_before = []
    acc = set()
    for m in range(n):
        final_before.append(set(acc))
        acc |= dest_vregs(chunks[m])
    proc = 0
    busy = {}
    while proc < n:
        while nxt < n and len(inflight) < MAXIN:
            cand = None
            for b in bufs:
                if b in busy: continue
                rs = set(range(b, b+16))
                if rs & final_before[nxt]: continue
                cand = b; break
            if cand is None: break
            busy[cand] = nxt; assign[nxt] = cand; inflight.append(nxt); sched.append(('issue', nxt)); nxt += 1
        sched.append(('proc', proc))
        if proc >= 1: del busy[assign[proc-1]]
        inflight.remove(proc)
        proc += 1
    def nloads(ch): return 2 if ch[0] == 'oh' else 4
    srd_cur = None
    ptr = {'q': 50, 'k': 52, 'v': 54, 'o': 56, 'oh': 56}
    srd = {'q': 64, 'k': 68, 'v': 72, 'o': 76, 'oh': 76}
    for k_, p in (('q', 50), ('k', 52), ('v', 54), ('o', 56)):
        o(f"""  s_mov_b32 s{srd[k_]}, s{p}
  s_and_b32 s{srd[k_]+1}, s{p+1}, 0xffff
  s_mov_b32 s{srd[k_]+2}, 4718592
  s_mov_b32 s{srd[k_]+3}, 0x20000""")
    o(f"""  s_lshl_b32 s80, s{sH}, 8
  s_lshl_b32 s81, s{sWv_}, {17 if COOP else 6}
  s_add_u32 s80, s80, s81
  s_mul_i32 s82, s{sH}, {128*1152}
  s_lshl_b32 s83, s{sPi0}, 6
  s_add_u32 s83, s83, s82
  s_lshl_b32 s84, s{sPih}, 6
  s_add_u32 s84, s84, s82""")
    outstanding = []
    for kind, m in sched:
        ch = chunks[m]; b = assign[m]
        if kind == 'issue':
            if ch[0] in 'qkv':
                for i in range(4):
                    o(f"  s_add_u32 s85, s80, {(64*ch[1] + (4 if COOP else 16)*i)*8192}")
                    o(f"  buffer_load_dwordx4 {v(b+4*i,4)}, v{vLdW}, s[{srd[ch[0]]}:{srd[ch[0]]+3}], s85 offen {WNT}")
            elif ch[0] == 'o':
                for i in range(4):
                    o(f"  s_add_u32 s85, s83, {(32*ch[1] + 8*i)*1152 + ch[2]*128}")
                    o(f"  buffer_load_dwordx4 {v(b+4*i,4)}, v{vLdO}, s[76:79], s85 offen {WNT}")
            else:
                for i in range(2):
                    o(f"  s_add_u32 s85, s84, {(32*ch[1] + 16*i)*1152}")
                    o(f"  buffer_load_dwordx4 {v(b+4*i,4)}, v{vLdOh}, s[76:79], s85 offen {WNT}")
            outstanding.append(m)
        else:
            if hook and m == hook_at: hook()
            idx = outstanding.index(m)
            later = sum(nloads(chunks[x]) for x in outstanding[idx+1:])
            o(f"  s_waitcnt vmcnt({min(later,63)})")
            outstanding = outstanding[idx+1:]
            if NOPROC: continue
            o("  s_waitcnt lgkmcnt(0)")
            coop = COOP and ch[0] in 'qkv'
            if coop or (COOP and m > 0 and chunks[m-1][0] in 'qkv'): o("  s_barrier")
            for i in range(nloads(ch)):
                o(f"  ds_write_b128 v{vWr+i if coop else vScr}, {v(b+4*i,4)} offset:{0 if coop else 1024*i}")
            if coop: o("  s_waitcnt lgkmcnt(0)\n  s_barrier")
            if ch[0] in 'qkv':
                for tau, d in enumerate(dests(ch)):
                    assert d[0] != 'lds'
                    for r_, off in ((0, 0), (2, 2), (4, 32), (6, 34)):
                        if coop:
                            o(f"  ds_read_b64_tr_b16 {reg((d[0], d[1]+r_), 2)}, v{vRd + 2*((off % 16)//2) + tau} offset:{(off // 16)*16*256}")
                        else:
                            o(f"  ds_read_b64_tr_b16 {reg((d[0], d[1]+r_), 2)}, v{vT} offset:{off*64 + 32*tau}")
            elif ch[0] == 'o':
                for i, d in enumerate(dests(ch)):
                    pim, x = i // 2, i % 2
                    o(f"  ds_read_b64_tr_b16 {v(b+4*i,2)}, v{vT2} offset:{64*pim + 8*x}")
                    o(f"  ds_read_b64_tr_b16 {v(b+4*i+2,2)}, v{vT2} offset:{512 + 64*pim + 8*x}")
                o("  s_waitcnt lgkmcnt(0)")
                for i, d in enumerate(dests(ch)):
                    ar, imm = ldsaddr(d[1])
                    o(f"  ds_write_b128 v{ar}, {v(b+4*i,4)} offset:{imm}")
            else:
                d = dests(ch)[0]
                o(f"  ds_read_b64_tr_b16 {v(b,2)}, v{vT2h} offset:0")
                o(f"  ds_read_b64_tr_b16 {v(b+2,2)}, v{vT2h} offset:256")
                o("  s_waitcnt lgkmcnt(0)")
                ar, imm = ldsaddr(d[1])
                o(f"  ds_write_b128 v{ar}, {v(b,4)} offset:{imm}")
    o("  s_waitcnt lgkmcnt(0)")


Q0, Q1, K0, K1, V0, V1 = 30, 34, 38, 42, 46, 50
W = [54, 58, 62]
T, U, QS = 66, 70, 74

class Cnt:
    def __init__(self, o, name, maxv):
        self.o, self.name, self.maxv, self.q = o, name, maxv, []
    def issue(self, tag):
        self.q.append(tag)
        assert len(self.q) <= self.maxv + 1, (self.name, self.q)
    def wait(self, tag):
        if tag not in self.q: return
        i = len(self.q) - 1 - self.q[::-1].index(tag)
        n = len(self.q) - 1 - i
        self.o(f"  s_waitcnt {self.name}cnt({n})")
        self.q = self.q[i+1:]
    def waitall(self):
        self.o(f"  s_waitcnt {self.name}cnt(0)")
        self.q = []

def smf(o, d, aop, b):
    o(f"  v_smfmac_f32_16x16x64_bf16 {v(d,4)}, {v(aop,4)}, {reg(b,8)}, v{vIdx}")


POLL_LIMIT = 1 << 20
PUBF = 'sc1'
PUBK = 'sc1'
PUBV = 'sc1'
KVF = ''
TCHF = ''
DUALF = True
DUALA = False
FSTAG = 16
ASTAG = 16
KVPOS = 'qk'
KVCNT = None
TOUCH = True
RESETW = False
vDummy = 79

def emit_loop(o, L, stf, timing=False, fdelay=0, adelay=0, can_exit=False):
    TCHF = 'sc1' if stf else globals()['TCHF']
    WSr = f"s[{sWS}:{sWS+3}]"
    lg = Cnt(o, "lgkm", 15)
    def dsr(dst, ar, off, tag):
        o(f"  ds_read_b128 {v(dst,4)}, v{ar} offset:{off}")
        lg.issue(tag)
    def stamp(k):
        if timing:
            o(f"  s_memtime s[{86+2*k}:{87+2*k}]")
    T, U, QS, MW = 66, 70, 74, 78
    o(f"{L}_loop:")
    o(f"  s_cmp_eq_u32 s{sS0}, 0\n  s_cbranch_scc1 {L}_l0")
    o(f"  s_sub_u32 s{sT0}, s{sH2pub}, {H2_SLOT}\n  s_add_u32 s{sH2pl}, s{sT0}, s{sW1024}\n  s_add_u32 s{sT1}, s{sH2pl}, 4096\n  s_add_u32 s{sT2}, s{sT0}, 8192\n  s_branch {L}_adisp\n{L}_l0:")
    for wv in range(3):
        o(f"  s_cmp_eq_u32 s{sWv_}, {wv}\n  s_cbranch_scc1 {L}_qv{wv}")
    o(f"  s_branch {L}_qv3")
    side = []
    if KVPOS == 'qk': side += [f"  s_add_u32 s{sT1}, s{sKoff}, {VBUF-KBUF}",
             f"  buffer_load_dwordx4 {v(vKx,4)}, v{vA}, {WSr}, s{sKoff} offen {KVF}", None,
             f"  buffer_load_dwordx4 {v(vKx+4,4)}, v{vA}, {WSr}, s{sKoff} offen offset:1024 {KVF}", None, None,
             f"  buffer_load_dwordx4 {v(vVx,4)}, v{vA}, {WSr}, s{sT1} offen {KVF}", None, None,
             f"  buffer_load_dwordx4 {v(vVx+4,4)}, v{vA}, {WSr}, s{sT1} offen offset:1024 {KVF}", None]
    if KVCNT is not None:
        side += [f"  v_readfirstlane_b32 s{sT0}, v{vDummy}",
                 (f"  s_add_u32 s{sT2}, s{sStep}, 1\n  s_and_b32 s{sT2}, s{sT2}, 3\n  s_cmp_lg_u32 s{sT2}, 0\n  s_cbranch_scc1 {{LP}}_kv\n" if KV4 else "") +
                 f"  s_cmp_ge_u32 s{sT0}, 128\n  s_cbranch_scc1 {{LP}}_kv\n"
                 f"  s_add_u32 s{sT0}, s{sStep}, 1\n  s_min_u32 s{sT0}, s{sT0}, 63\n  s_lshr_b32 s{sT0}, s{sT0}, 2\n  s_lshl_b32 s{sT0}, s{sT0}, 7\n  s_add_u32 s{sT0}, s{sT0}, {KVCNT}\n"
                 f"  v_mov_b32 v72, s{sT0}\n{{LP}}_kvp:\n  buffer_load_dword v73, v72, {WSr}, 0 offen sc1\n  s_waitcnt vmcnt(0)\n  v_readfirstlane_b32 s{sT0}, v73\n  s_add_u32 s{sPoll}, s{sPoll}, 1\n  s_cmp_gt_u32 s{sPoll}, {POLL_LIMIT}\n  s_cbranch_scc1 {L}_bail\n  s_cmp_ge_u32 s{sT0}, 128\n  s_cbranch_scc0 {{LP}}_kvp\n{{LP}}_kv:"]
    if HALFT:
        side += [f"  v_bfe_u32 v72, v{vA}, 4, 4", f"  v_lshlrev_b32 v72, 7, v72", f"  v_bfe_u32 v73, v{vA}, 8, 1", f"  v_lshl_add_u32 v72, v73, 24, v72",
                 f"  s_add_u32 s{sKoff}, s{sKoff}, {32*8192}", f"  s_mov_b32 exec_hi, 0\n  buffer_load_dword v{vDummy}, v72, {WSr}, s{sKoff} offen {TCHF}\n  s_mov_b32 exec_hi, -1"]
        side += [f"  v_bfe_u32 v73, v{vA}, 4, 5", f"  v_mul_u32_u24 v73, {H1_PROD}, v73", f"  v_add_u32 v73, s{sUnit}, v73",
                 f"  s_add_u32 s{sT0}, s{sH1ld}, {H1_SLOT}", f"  s_mov_b32 exec_hi, 0\n  buffer_load_dword v{vDummy}, v73, {WSr}, s{sT0} offen {TCHF}\n  s_mov_b32 exec_hi, -1",
                 f"  s_add_u32 s{sT0}, s{sH2pub}, s{sH2tch}", f"  v_lshlrev_b32 v72, 9, v{vA}", f"  s_mov_b64 exec, 3\n  buffer_load_dword v{vDummy}, v72, {WSr}, s{sT0} offen {TCHF}\n  s_mov_b64 exec, -1"]
    else:
        side += [f"  v_bfe_u32 v72, v{vA}, 4, 5", f"  v_lshlrev_b32 v72, 6, v72", f"  v_lshrrev_b32 v73, 9, v{vA}", f"  v_lshl_add_u32 v72, v73, 24, v72",
                 f"  s_add_u32 s{sKoff}, s{sKoff}, {32*8192}", f"  buffer_load_dword v{vDummy}, v72, {WSr}, s{sKoff} offen {TCHF}"]
        side += [f"  v_bfe_u32 v73, v{vA}, 4, 5", f"  v_mul_u32_u24 v73, {H1_PROD}, v73", f"  v_lshrrev_b32 v72, 9, v{vA}", f"  v_lshl_add_u32 v73, v72, 6, v73", f"  v_add_u32 v73, s{sUnit}, v73",
                 f"  s_add_u32 s{sT0}, s{sH1ld}, {H1_SLOT}", f"  buffer_load_dword v{vDummy}, v73, {WSr}, s{sT0} offen {TCHF}",
                 f"  s_add_u32 s{sT0}, s{sH2pub}, s{sH2tch}", f"  v_lshlrev_b32 v72, 9, v{vA}", f"  s_mov_b64 exec, 3\n  buffer_load_dword v{vDummy}, v72, {WSr}, s{sT0} offen {TCHF}\n  s_mov_b64 exec, -1"]
    if KVCNT is not None:
        side += [f"  s_add_u32 s{sT0}, s{sStep}, 2\n  s_min_u32 s{sT0}, s{sT0}, 63\n  s_lshr_b32 s{sT0}, s{sT0}, 2\n  s_lshl_b32 s{sT0}, s{sT0}, 7",
                 f"  s_add_u32 s{sT0}, s{sT0}, {KVCNT}\n" + (f"  s_add_u32 s{sT2}, s{sStep}, 2\n  s_and_b32 s{sT2}, s{sT2}, 3\n  s_cmp_eq_u32 s{sT2}, 0\n  s_cselect_b32 s{sT0}, s{sT0}, 0x80000000\n" if KV4 else "") + f"  v_mov_b32 v72, s{sT0}", f"  s_mov_b64 exec, 1\n  buffer_load_dword v{vDummy}, v72, {WSr}, 0 offen sc1\n  s_mov_b64 exec, -1"]
    side += [f"  v_mov_b32 v70, s{sStep}", f"  s_cmp_eq_u32 s{sStep}, s{sS0}\n  s_cselect_b32 s{sT0}, 0x80000000, s{sFlagOff}\n  v_mov_b32 v71, s{sT0}", f"  s_mov_b64 exec, 1\n  buffer_store_dword v70, v71, {WSr}, 0 offen {PUBF}\n  s_mov_b64 exec, -1"]
    side += [f"  v_add_u32 v{MW}, s{sW256}, v{vM}", f"  v_cndmask_b32 v{MW}, -16, v{MW}, s[{sMaskMw}:{sMaskMw+1}]"]
    NV_AFTER_KV = 4 + (1 if KVCNT is not None else 0)
    side_all = list(side)
    o.c("QK phase: own (register-resident) chunks first, the rest through LDS")
    for wv in range(4):
        o(f"{L}_av{wv}:")
        S1 = [58, 62, 66][:(3 if wv == 0 else 2)]
        offs = [sH2pl, sT1, sT2]
        if timing: o("  s_add_u32 s81, s81, 1\n  s_memtime s[68:69]")
        for r_, so in zip(S1, offs):
            o(f"  buffer_load_dwordx4 {v(r_,4)}, v{vA}, {WSr}, s{so} offen sc1")
        o(f"  s_add_u32 s{sPoll}, s{sPoll}, 1")
        o(f"  s_cmp_gt_u32 s{sPoll}, {POLL_LIMIT}")
        o(f"  s_cbranch_scc1 {L}_bail")
        o(f"  s_waitcnt vmcnt(0)")
        if timing: o("  s_memtime s[70:71]")
        o(f"  v_max3_u32 v78, v58, v60, v62")
        if wv == 0:
            o(f"  v_max3_u32 v78, v78, v64, v66\n  v_max_u32 v78, v78, v68")
        else:
            o(f"  v_max_u32 v78, v78, v64")
        o(f"  v_cmp_eq_u32 vcc, -1, v78")
        o(f"  s_cbranch_vccnz {L}_av{wv}")
        o(f"  ds_write_b128 v{vXw}, {v(58,4)} offset:{L_MEM}")
        o(f"  ds_write_b128 v{vXw}, {v(62,4)} offset:{L_MEM+4096}")
        if wv == 0: o(f"  ds_write_b128 v{vA}, {v(66,4)} offset:{L_MEM+8192}")
        o(f"{L}_qv{wv}:")
        if timing: o("  s_memtime s[72:73]")
        stamp(0)
        side = list(side_all)
        def pop(n):
            for _ in range(n):
                if side:
                    x = side.pop(0)
                    if x: o(x.replace("{LP}", f"{L}w{wv}"))
        lgq = Cnt(o, "lgkm", 15)
        def dsq(dst, off, tag):
            o(f"  ds_read_b128 {v(dst,4)}, v{vA} offset:{off}"); lgq.issue(tag)
        def qk(c, a_, np_=(1,1,1,1)):
            smf(o, Q0, a_, frag_q(0, c)); pop(np_[0])
            smf(o, Q1, a_, frag_q(1, c)); pop(np_[1])
            smf(o, K0, a_, frag_k(0, c)); pop(np_[2])
            smf(o, K1, a_, frag_k(1, c))
        own = [wv, wv+4] + ([8] if wv == 0 else [])
        rest = [c for c in range(9) if c not in own]
        qk(own[0], W[1])
        o("  s_waitcnt lgkmcnt(0)\n  s_barrier")
        dsq(W[0], L_MEM + 1024*rest[0], "r0"); dsq(W[1], L_MEM + 1024*rest[1], "r1")
        qk(own[1], W[2])
        dsq(W[2], L_MEM + 1024*rest[2], "r2")
        if wv == 0: qk(8, 66)
        for k, c in enumerate(rest):
            lgq.wait(f"r{k}")
            last = (k == len(rest)-1)
            qk(c, W[k % 3], (1, 2 if k >= len(rest)-3 else 1, 0 if last else 1, 0))
            if k + 3 < len(rest): dsq(W[k % 3], L_MEM + 1024*rest[k+3], f"r{k+3}")
            if not last: pop(1)
        while side: pop(1)
        free_order = [(len(rest)-3+i_) % 3 for i_ in range(3)]
        assert sorted(free_order) == [0, 1, 2]
        for sl in range(3):
            o(f"  ds_read_b128 {v(W[sl],4)}, v{vA} offset:{L_MEM + 1024*(6+sl)}")
        if wv < 3:
            o(f"  s_branch {L}_qkd")
    o(f"{L}_qkd:")
    lg.issue("V6"); lg.issue("V7"); lg.issue("V8")
    stamp(1)
    o.c("transpose q,k")
    def vpass(c, slot):
        smf(o, V0, W[slot], frag_v(0, c)); smf(o, V1, W[slot], frag_v(1, c))
    o(f"  v_cvt_pk_bf16_f32 v{T}, v{Q0}, v{Q0+1}")
    o(f"  v_cvt_pk_bf16_f32 v{T+1}, v{Q0+2}, v{Q0+3}")
    o(f"  v_cvt_pk_bf16_f32 v{T+2}, v{Q1}, v{Q1+1}")
    o(f"  v_cvt_pk_bf16_f32 v{T+3}, v{Q1+2}, v{Q1+3}")
    nop(o, 2)
    o(f"  v_cvt_pk_bf16_f32 v{U}, v{K0}, v{K0+1}")
    o(f"  v_mfma_f32_16x16x16_bf16 {v(Q0,4)}, {v(T,2)}, {v(vSel,2)}, 0")
    o(f"  v_cvt_pk_bf16_f32 v{U+1}, v{K0+2}, v{K0+3}")
    o(f"  v_cvt_pk_bf16_f32 v{U+2}, v{K1}, v{K1+1}")
    o(f"  v_mfma_f32_16x16x16_bf16 {v(Q1,4)}, {v(T+2,2)}, {v(vSel,2)}, 0")
    o(f"  v_cvt_pk_bf16_f32 v{U+3}, v{K1+2}, v{K1+3}")
    nop(o, 1)
    o(f"  v_mfma_f32_16x16x16_bf16 {v(K0,4)}, {v(U,2)}, {v(vSel,2)}, 0")
    o(f"  v_mfma_f32_16x16x16_bf16 {v(K1,4)}, {v(U+2,2)}, {v(vSel,2)}, 0")
    lg.wait("V6")
    smf(o, V0, W[0], frag_v(0, 6))
    o(f"  v_cvt_pk_bf16_f32 v{T}, v{Q0}, v{Q0+1}")
    o(f"  v_cvt_pk_bf16_f32 v{T+1}, v{Q0+2}, v{Q0+3}")
    o(f"  v_cvt_pk_bf16_f32 v{T+2}, v{Q1}, v{Q1+1}")
    o(f"  v_cvt_pk_bf16_f32 v{T+3}, v{Q1+2}, v{Q1+3}")
    smf(o, V1, W[0], frag_v(1, 6))
    dsr(W[0], vA, L_MEM, "B0")
    for i in range(4):
        o(f"  v_mov_b32_dpp v{QS+i}, v{T+i} row_ror:8 row_mask:0xf bank_mask:0xf")
    o(f"  s_waitcnt vmcnt({NV_AFTER_KV})")
    o(f"  v_mfma_f32_16x16x32_bf16 {v(Q0,4)}, {v(vKx,4)}, {v(T,4)}, 0")
    o(f"  v_cvt_pk_bf16_f32 v{U}, v{K0}, v{K0+1}")
    o(f"  v_cvt_pk_bf16_f32 v{U+1}, v{K0+2}, v{K0+3}")
    o(f"  v_mfma_f32_16x16x32_bf16 {v(Q0,4)}, {v(vKx+4,4)}, {v(QS,4)}, {v(Q0,4)}")
    o(f"  v_cvt_pk_bf16_f32 v{U+2}, v{K1}, v{K1+1}")
    o(f"  v_cvt_pk_bf16_f32 v{U+3}, v{K1+2}, v{K1+3}")
    nop(o, 2)
    o(f"  v_mfma_f32_16x16x32_bf16 {v(Q1,4)}, {v(U,4)}, {v(T,4)}, 0")
    lg.wait("V7")
    vpass(7, 1)
    dsr(W[1], vA, L_MEM + 1024, "B1")
    o(f"  ds_write_b128 v{vXw}, {v(Q0,4)} offset:{L_XEX}"); lg.issue("Xw")
    o(f"  ds_write_b128 v{MW}, {v(Q1,4)}"); lg.issue("Mw")
    o(f"  buffer_store_dwordx4 {v(U,4)}, v{vH1}, {WSr}, s{sKm} offen {PUBK}")
    lg.wait("V8")
    vpass(8, 2)
    dsr(W[2], vA, L_MEM + 2048, "B2")
    lg.wait("B0")
    vpass(0, 0)
    dsr(W[0], vA, L_MEM + 3072, "B3")
    lg.wait("Mw")
    o("  s_barrier")
    stamp(2)
    o.c("exchange reads")
    XP = [Q0, vKx, vKx+4, 74]
    MP = [Q1, 66, 42, 38]
    for k in range(4):
        dsr(XP[k], vA, L_XEX + 1024*k, f"XP{k}")
    for k in range(4):
        dsr(MP[k], vM, L_MEX + 256*k, f"MP{k}")
    lg.wait("B1")
    vpass(1, 1)
    dsr(W[1], vA, L_MEM + 4096, "B4")
    lg.wait("B2")
    vpass(2, 2)
    dsr(W[2], vA, L_MEM + 5120, "B5")
    lg.wait("B3")
    vpass(3, 0)
    lg.wait("XP3")
    for k in range(1, 4):
        o(f"  v_pk_add_f32 {v(Q0,2)}, {v(Q0,2)}, {v(XP[k],2)}")
        o(f"  v_pk_add_f32 {v(Q0+2,2)}, {v(Q0+2,2)}, {v(XP[k]+2,2)}")
    lg.wait("MP3")
    for k in range(1, 4):
        o(f"  v_pk_add_f32 {v(Q1,2)}, {v(Q1,2)}, {v(MP[k],2)}")
        o(f"  v_pk_add_f32 {v(Q1+2,2)}, {v(Q1+2,2)}, {v(MP[k]+2,2)}")
    WIN = [14, 18, 22, 26, 38, 42, 66, 70]
    lds_list = [(tl, kap, frag_o(tl, kap)[1]) for tl in range(9) for kap in range(4)]
    slot_of = {}
    st = dict(issued=0)
    BASE = (vXw, 78, 78)
    def issue_frag():
        n = st['issued']
        if n >= len(lds_list): return
        tl, kap, f = lds_list[n]
        sl = WIN[n % len(WIN)]
        b, imm = lds_frag_addr(f)
        if b == 2 and lds_frag_addr(f-1)[0] == 1:
            o(f"  v_add_u32 v78, 0x10000, v78")
        dsr(sl, BASE[b], imm, f"wo{n}")
        slot_of[(tl, kap)] = (sl, n)
        st['issued'] = n + 1
    o.c("softmax")
    MX, TM = 78, 42
    o(f"  v_max3_f32 v{MX}, v{Q0}, v{Q0+1}, v{Q0+2}")
    o(f"  v_max3_f32 v{TM}, v{Q0+3}, v{Q1}, v{Q1+1}")
    o(f"  v_max3_f32 v{MX}, v{MX}, v{Q1+2}, v{Q1+3}")
    o(f"  v_max_f32 v{MX}, v{MX}, v{TM}")
    lg.wait("B4")
    smf(o, V0, W[1], frag_v(0, 4))
    issue_frag()
    o(f"  v_max_f32_dpp v{MX}, v{MX}, v{MX} row_ror:8 row_mask:0xf bank_mask:0xf")
    smf(o, V1, W[1], frag_v(1, 4))
    o(f"  v_mov_b32 v{TM}, v{MX}")
    issue_frag()
    lg.wait("B5")
    smf(o, V0, W[2], frag_v(0, 5))
    o(f"  v_permlane16_swap_b32 v{MX}, v{TM}")
    o(f"  v_max_f32 v{MX}, v{MX}, v{TM}")
    o(f"  v_mov_b32 v{TM}, v{MX}")
    smf(o, V1, W[2], frag_v(1, 5))
    nop(o, 1)
    o(f"  v_permlane32_swap_b32 v{MX}, v{TM}")
    o(f"  v_max_f32 v{MX}, v{MX}, v{TM}")
    o(f"  v_mul_f32 v{MX}, s{sC}, v{MX}")
    for i in range(8):
        o(f"  v_fma_f32 v{Q0+i}, v{Q0+i}, s{sC}, -v{MX}")
    PX, PXs, PM, LA, LB, VP = 74, 76, 70, 72, 73, 66
    for i in range(8):
        o(f"  v_exp_f32 v{Q0+i}, v{Q0+i}")
    D0, D1 = 38, 42
    O0 = 70
    o.c("PV with the l-sum chain interleaved")
    o(f"  v_cvt_pk_bf16_f32 v{PX}, v{Q0}, v{Q0+1}")
    o(f"  v_cvt_pk_bf16_f32 v{PX+1}, v{Q0+2}, v{Q0+3}")
    o(f"  v_cvt_pk_bf16_f32 v{PM}, v{Q1}, v{Q1+1}")
    o(f"  v_cvt_pk_bf16_f32 v{PM+1}, v{Q1+2}, v{Q1+3}")
    o(f"  v_pk_add_f32 {v(LA,2)}, {v(Q0,2)}, {v(Q0+2,2)}")
    o(f"  v_pk_add_f32 {v(Q1,2)}, {v(Q1,2)}, {v(Q1+2,2)}")
    o(f"  v_mov_b32_dpp v{PXs}, v{PX} row_ror:8 row_mask:0xf bank_mask:0xf")
    o(f"  v_mov_b32_dpp v{PXs+1}, v{PX+1} row_ror:8 row_mask:0xf bank_mask:0xf")
    o(f"  v_add_f32 v{LA}, v{LA}, v{LB}")
    o(f"  v_add_f32 v{LB}, v{Q1}, v{Q1+1}")
    o(f"  v_mfma_f32_16x16x32_bf16 {v(D0,4)}, {v(vVx,4)}, {v(PX,4)}, 0")
    o(f"  v_fmamk_f32 v{LA}, v{LB}, 0x3e800000, v{LA}")
    o(f"  v_cvt_pk_bf16_f32 v{VP}, v{V0}, v{V0+1}")
    o(f"  v_mfma_f32_16x16x32_bf16 {v(D1,4)}, {v(vVx+4,4)}, {v(PX,4)}, 0")
    o(f"  v_cvt_pk_bf16_f32 v{VP+1}, v{V0+2}, v{V0+3}")
    o(f"  v_add_f32_dpp v{LA}, v{LA}, v{LA} row_ror:8 row_mask:0xf bank_mask:0xf")
    o(f"  v_mov_b32 v{LB}, v{LA}")
    o(f"  v_cvt_pk_bf16_f32 v{VP+2}, v{V1}, v{V1+1}")
    o(f"  v_mfma_f32_16x16x16_bf16 {v(D0,4)}, {v(VP,2)}, {v(PM,2)}, {v(D0,4)}")
    o(f"  v_cvt_pk_bf16_f32 v{VP+3}, v{V1+2}, v{V1+3}")
    o(f"  v_permlane16_swap_b32 v{LA}, v{LB}")
    o(f"  v_add_f32 v{LA}, v{LA}, v{LB}")
    o(f"  v_mov_b32 v{LB}, v{LA}")
    o(f"  v_mfma_f32_16x16x16_bf16 {v(D1,4)}, {v(VP+2,2)}, {v(PM,2)}, {v(D1,4)}")
    o(f"  s_add_u32 s{sVm}, s{sKm}, {VM-KM}")
    o(f"  s_cmp_eq_u32 s{sStep}, 63")
    o(f"  s_cbranch_scc1 {L}_done")
    o(f"  v_permlane32_swap_b32 v{LA}, v{LB}")
    o(f"  v_add_f32 v{LA}, v{LA}, v{LB}")
    o(f"  v_rcp_f32 v78, v{LA}")
    issue_frag()
    issue_frag()
    for i in range(0, 8, 2):
        o(f"  v_pk_mul_f32 {v(D0+i,2)}, {v(D0+i,2)}, {v(78,2)} op_sel_hi:[1,0]")
    o(f"  v_cvt_pk_bf16_f32 v{O0}, v{D0}, v{D0+1}")
    o(f"  v_cvt_pk_bf16_f32 v{O0+1}, v{D0+2}, v{D0+3}")
    o(f"  ds_write_b64 v{vOw}, {v(O0,2)}"); lg.issue("Ow0")
    o(f"  v_cvt_pk_bf16_f32 v{O0+2}, v{D1}, v{D1+1}")
    o(f"  v_cvt_pk_bf16_f32 v{O0+3}, v{D1+2}, v{D1+3}")
    o(f"  ds_write_b64 v{vOw}, {v(O0+2,2)} offset:512"); lg.issue("Ow1")
    o(f"  v_add_u32 v78, 0x10000, v{vXw}")
    o(f"  buffer_store_dwordx4 {v(VP,4)}, v{vA}, {WSr}, s{sVm} offen {PUBV}")
    issue_frag(); issue_frag()
    lg.wait("Ow1")
    o("  s_barrier")
    stamp(3)
    o.c("E phase")
    B = [46, 50, 54, 58]
    for k in range(4):
        dsr(B[k], vA, L_OEX + (k//2)*1024 + (k%2)*128, f"ob{k}")
    issue_frag(); issue_frag()
    D = [30, 34]
    PK, PKB = 62, 74
    for tl in range(9):
        post = []
        d = D[tl % 2]
        pend = []
        if tl >= 1:
            prev = tl - 1
            dd = D[prev % 2]; x = prev % 2; p = prev // 2
            pk = PK if p % 2 == 0 else PKB
            pend = [f"  v_cvt_pk_bf16_f32 v{pk+2*x}, v{dd}, v{dd+1}", f"  v_cvt_pk_bf16_f32 v{pk+2*x+1}, v{dd+2}, v{dd+3}"]
            if x == 1 and p % 2 == 1:
                post = [f"  v_mov_b32_dpp v{PK+i}, v{PKB+i} row_ror:8 row_mask:0xf bank_mask:0xc" for i in range(4)]
                post.append(f"  buffer_store_dwordx4 {v(PK,4)}, v{vA}, {WSr}, s{sH1st} offen offset:{1024*(p//2)} {stf}")
            else:
                post = []
        if tl >= 1: lg.wait(f"wo{4*tl+3}")
        for n_ in range(4):
            kap = n_
            if tl == 0: lg.wait(f"ob{kap}")
            sl, n = slot_of[(tl, kap)]
            if tl == 0: lg.wait(f"wo{n}")
            cin = "0" if n_ == 0 else v(d, 4)
            o(f"  v_mfma_f32_16x16x32_bf16 {v(d,4)}, {v(sl,4)}, {v(B[kap],4)}, {cin}")
            issue_frag()
            if n_ == 2 and pend:
                for x_ in pend: o(x_)
                pend = []
            if n_ == 3 and post:
                for x_ in post: o(x_)
                post = []
    for r in range(38, 46): o(f"  v_mov_b32 v{r}, 0")
    d = D[0]
    o(f"  v_cvt_pk_bf16_f32 v{PK}, v{d}, v{d+1}")
    o(f"  v_cvt_pk_bf16_f32 v{PK+1}, v{d+2}, v{d+3}")
    o(f"  buffer_store_dwordx2 {v(PK,2)}, v{vH1}, {WSr}, s{sH1h} offen {stf}")
    assert not lg.q, lg.q
    stamp(4)
    for r in list(range(30, 38)) + list(range(46, 54)): o(f"  v_mov_b32 v{r}, 0")
    nop(o, fdelay)
    o.c("F: reducers")
    vmst = f"  buffer_store_dwordx4 {v(66,4)}, v{vA}, {WSr}, s{sVm} offen {PUBV}"
    o(f"  s_cmp_eq_u32 s{sIsRed}, 0")
    o(f"  s_cbranch_scc1 {L}_nred")
    o(f"  s_add_u32 s{sT1}, s{sH1ld}, {8*H1_PROD}")
    o(f"  s_add_u32 s{sT2}, s{sH1ld}, {16*H1_PROD}")
    o(f"  s_add_u32 s{sT3}, s{sH1ld}, {24*H1_PROD}")
    FS1, FS2 = [54, 58, 62, 74], [14, 18, 22, 26]
    def f_loads(S):
        for k, so in enumerate((sH1ld, sT1, sT2, sT3)):
            o(f"  buffer_load_dwordx4 {v(S[k],4)}, v{vR}, {WSr}, s{so} offen sc1")
    def f_check(S, younger):
        for k in range(4):
            o(f"  s_waitcnt vmcnt({younger+3-k})")
            if timing and k == 3: o("  s_memtime s[66:67]")
            o(f"  v_mfma_f32_16x16x32_bf16 {v(70,4)}, {v(vSelR,4)}, {v(S[k],4)}, {'0' if k == 0 else v(70,4)}")
        nop(o, 8)
        o(f"  v_cmp_u_f32 vcc, v70, v70")
        for i_ in range(4):
            o(f"  v_add_f32_dpp v{70+i_}, v{70+i_}, v{70+i_} row_ror:8 row_mask:0xf bank_mask:0xf")
        o(f"  v_cvt_pk_bf16_f32 v66, v70, v71")
        o(f"  v_cvt_pk_bf16_f32 v67, v72, v73")
    def f_cnt():
        if timing: o("  s_add_u32 s80, s80, 1\n  s_memtime s[64:65]")
        o(f"  s_add_u32 s{sPoll}, s{sPoll}, 1")
        o(f"  s_cmp_gt_u32 s{sPoll}, {POLL_LIMIT}")
        o(f"  s_cbranch_scc1 {L}_bail")
    if timing: o("  s_add_u32 s80, s80, 1\n  s_memtime s[64:65]")
    f_loads(FS1)
    nop(o, FSTAG)
    f_loads(FS2)
    o(f"{L}_ra:")
    f_check(FS1, 4)
    o(f"  s_cbranch_vccz {L}_rok")
    f_loads(FS1); f_cnt()
    f_check(FS2, 4)
    o(f"  s_cbranch_vccz {L}_rok")
    f_loads(FS2); f_cnt()
    o(f"  s_branch {L}_ra")
    o(f"{L}_rok:")
    o(f"  buffer_store_dwordx2 {v(66,2)}, v{vP}, {WSr}, s{sH2pub} offen {stf}")
    o(f"{L}_nred:")
    o(f"{L}_cons:")
    o(f"  s_barrier")
    if can_exit:
        o(f"  s_add_u32 s{sT0}, s{sStep}, 1\n  s_cmp_eq_u32 s{sT0}, s{sEx}\n  s_cbranch_scc1 {L}_done2")
    stamp(5)
    o.c("A: gather mem(s+1); per-step scalar updates double as the publish->visible delay")
    o(f"  s_add_u32 s{sH2pl}, s{sH2pub}, s{sW1024}")
    o(f"  s_add_u32 s{sT1}, s{sH2pl}, 4096")
    o(f"  s_add_u32 s{sT2}, s{sH2pub}, 8192")
    o(f"  s_add_u32 s{sStep}, s{sStep}, 1")
    for x in [f"  s_add_u32 s{sH1ld}, s{sH1ld}, {H1_SLOT}", f"  s_add_u32 s{sKm}, s{sKm}, {32*4096}",
             f"  s_add_u32 s{sH1st}, s{sH1ld}, s{sH1so}", f"  s_add_u32 s{sH1h}, s{sH1ld}, s{sH1ho}",
             f"  s_add_u32 s{sH2pub}, s{sH2pub}, {H2_SLOT}"]:
        o(x)
    nop(o, adelay)
    if timing:
        lab2 = o.label("nort")
        o(f"  s_memrealtime s[82:83]\n  s_memtime s[98:99]\n  s_waitcnt lgkmcnt(0)")
        o(f"  s_lshl_b32 s{sT0}, s{sH}, 2\n  s_add_u32 s{sT0}, s{sT0}, s{sWv_}\n  s_cmp_eq_u32 s{sT0}, 0\n  s_cbranch_scc0 {lab2}")
        o(f"  s_lshl_b32 s{sT0}, s{sStep}, 3\n  s_add_u32 s{sT0}, s{sT0}, {FLAGS + 0x3000}\n  v_mov_b32 v74, s82\n  v_mov_b32 v75, s98\n  v_mov_b32 v76, s{sT0}\n  buffer_store_dwordx2 v[74:75], v76, {WSr}, 0 offen")
        for k_, sr_ in enumerate([86, 88, 90, 92, 94, 96]):
            o(f"  s_lshl_b32 s{sT0}, s{sStep}, 5\n  s_add_u32 s{sT0}, s{sT0}, {FLAGS + 0x70000 + 4*k_}\n  v_mov_b32 v74, s{sr_}\n  v_mov_b32 v76, s{sT0}\n  buffer_store_dword v74, v76, {WSr}, 0 offen")
        o.put(lab2)
        lab = o.label("nost")
        o(f"  s_cmp_eq_u32 s{sStep}, 21")
        o(f"  s_cbranch_scc0 {lab}")
        for k, sr in enumerate([86,88,90,92,94,96,98,64,66,68,70,72]):
            o(f"  v_mov_b32 v74, s{sr}")
            o(f"  s_lshl_b32 s{sT0}, s{sH}, 2\n  s_add_u32 s{sT0}, s{sT0}, s{sWv_}\n  s_lshl_b32 s{sT0}, s{sT0}, 6\n  s_add_u32 s{sT0}, s{sT0}, {FLAGS + 4096 + 4*k}")
            o(f"  v_mov_b32 v75, s{sT0}")
            o(f"  buffer_store_dword v74, v75, {WSr}, 0 offen")
        o.put(lab)
    o(f"{L}_adisp:")
    for wv in range(3):
        o(f"  s_cmp_eq_u32 s{sWv_}, {wv}\n  s_cbranch_scc1 {L}_av{wv}")
    o(f"  s_branch {L}_av3")
    o(f"{L}_bail:")
    o(f"  s_endpgm")
    o(f"{L}_done:")
    o(f"  buffer_store_dwordx4 {v(66,4)}, v{vA}, {WSr}, s{sVm} offen sc1")
    o(f"  s_waitcnt vmcnt(0) lgkmcnt(0)")
    o(f"  s_barrier")
    o(f"  s_cmp_lg_u32 s{sWv_}, 0\n  s_cbranch_scc1 {L}_fin")
    o(f"  v_mov_b32 v78, 64")
    o(f"  v_mov_b32 v77, s{sFlagOff}")
    o(f"  s_mov_b64 exec, 1\n  buffer_store_dword v78, v77, {WSr}, 0 offen sc1\n  s_mov_b64 exec, -1")
    o(f"  s_waitcnt vmcnt(0)")
    if can_exit:
        o(f"  s_branch {L}_fin")
        o(f"{L}_done2:")
        o(f"  s_waitcnt vmcnt(0) lgkmcnt(0)\n  s_barrier")
        o(f"  s_cmp_lg_u32 s{sWv_}, 0\n  s_cbranch_scc1 {L}_fin")
        o(f"  v_mov_b32 v78, s{sEx}\n  v_mov_b32 v77, s{sFlagOff}\n  s_mov_b64 exec, 1\n  buffer_atomic_umax v78, v77, {WSr}, 0 offen\n  s_mov_b64 exec, -1\n  s_waitcnt vmcnt(0)")
    o(f"{L}_fin:")

def emit_init(o, L):
    WSr = f"s[{sWS}:{sWS+3}]"
    lab = o.label("noh2")
    o(f"""  s_lshl_b32 s{sT0}, s{sH}, 2
  s_add_u32 s{sT0}, s{sT0}, s{sWv_}
  s_lshl_b32 s{sFlagOff}, s{sH}, 7
  s_add_u32 s{sFlagOff}, s{sFlagOff}, {RFLAG}
  s_cmp_lg_u32 s{sWv_}, 0
  s_cselect_b32 s{sFlagOff}, 0x80000000, s{sFlagOff}
{lab}:""")

def emit_early(o):
    WSr = f"s[{sWS}:{sWS+3}]"
    if TLBW:
        o(f"""  v_lshrrev_b32 v47, 4, v{vA}
  v_lshlrev_b32 v47, 21, v47
  buffer_load_dword v14, v47, {WSr}, 0 offen
  v_add_u32 v47, 0x8000000, v47
  buffer_load_dword v14, v47, {WSr}, 0 offen""")
    o(f"""  ; scalar state for step 0
  s_lshl_b32 s{sKoff}, s{sH}, 13
  s_lshl_b32 s{sT1}, s{sWv_}, 11
  s_add_u32 s{sKoff}, s{sKoff}, s{sT1}
  s_lshl_b32 s{sKm}, s{sH}, 12
  s_add_u32 s{sKm}, s{sKm}, s{sW1024}
  s_add_u32 s{sKm}, s{sKm}, {KM}
  s_mul_i32 s{sT1}, s{sS0}, {32*8192}
  s_add_u32 s{sKoff}, s{sKoff}, s{sT1}
  s_mul_i32 s{sT1}, s{sS0}, {32*4096}
  s_add_u32 s{sKm}, s{sKm}, s{sT1}
  s_mul_i32 s{sH1ld}, s{sS0}, {H1_SLOT}
  s_add_u32 s{sH1ld}, s{sH1ld}, {H1}
  s_mul_i32 s{sT1}, s{sH}, {H1_PROD}
  s_lshl_b32 s{sT2}, s{sWv_}, 11
  s_add_u32 s{sH1so}, s{sT1}, s{sT2}
  s_lshr_b32 s{sT2}, s{sWv_}, 1
  s_lshl_b32 s{sT2}, s{sT2}, 10
  s_add_u32 s{sH1ho}, s{sT1}, s{sT2}
  s_add_u32 s{sH1ho}, s{sH1ho}, 8192
  s_and_b32 s{sT2}, s{sWv_}, 1
  s_lshl_b32 s{sT2}, s{sT2}, 3
  s_add_u32 s{sH1ho}, s{sH1ho}, s{sT2}
  s_add_u32 s{sH1st}, s{sH1ld}, s{sH1so}
  s_add_u32 s{sH1h}, s{sH1ld}, s{sH1ho}
  s_mul_i32 s{sH2pub}, s{sS0}, {H2_SLOT}
  s_add_u32 s{sH2pub}, s{sH2pub}, {H2 + H2_SLOT}
  v_bfe_u32 v47, v{vA}, 4, 5
  v_mul_u32_u24 v47, {H1_PROD}, v47
  v_add_u32 v47, s{sUnit}, v47
  buffer_load_dword v14, v47, {WSr}, s{sH1ld} offen sc1
  s_add_u32 s{sT0}, s{sH2pub}, s{sW1024}
  v_lshlrev_b32 v47, 3, v{vA}
  buffer_load_dword v14, v47, {WSr}, s{sT0} offen sc1
  s_add_u32 s{sT1}, s{sKoff}, {VBUF-KBUF}
  buffer_load_dwordx4 {v(vKx,4)}, v{vA}, {WSr}, s{sKoff} offen
  buffer_load_dwordx4 {v(vKx+4,4)}, v{vA}, {WSr}, s{sKoff} offen offset:1024
  buffer_load_dwordx4 {v(vVx,4)}, v{vA}, {WSr}, s{sT1} offen
  buffer_load_dwordx4 {v(vVx+4,4)}, v{vA}, {WSr}, s{sT1} offen offset:1024
""")

def emit_mem0(o, mid=None):
    WSr = f"s[{sWS}:{sWS+3}]"
    lab0 = o.label("nom0")
    o(f"  s_waitcnt lgkmcnt(0)\n  s_barrier\n  s_cmp_lg_u32 s{sS0}, 0\n  s_cbranch_scc1 {lab0}")
    o.c("mem0 -> LDS: piece (j=8c+2g+u, t) = mem0[t][8j..8j+8)")
    o(f"""  s_mov_b32 s64, s48
  s_and_b32 s65, s49, 0xffff
  s_mov_b32 s66, 9216
  s_mov_b32 s67, 0x20000
  v_lshrrev_b32 v62, 4, v{vA}         ; lane
  v_and_b32 v63, 7, v62               ; t
  v_lshrrev_b32 v64, 3, v62           ; 2g+u
  v_mul_u32_u24 v63, 1152, v63
  v_lshl_add_u32 v63, v64, 4, v63     ; t*1152 + (2g+u)*16
  s_lshl_b32 s{sT0}, s{sWv_}, 7
  s_add_u32 s{sT1}, s{sT0}, 512
  v_mov_b32 v53, v63
  buffer_load_dwordx4 {v(58,4)}, v53, s[64:67], s{sT0} offen
  buffer_load_dwordx4 {v(62,4)}, v53, s[64:67], s{sT1} offen
  buffer_load_dwordx4 {v(66,4)}, v53, s[64:67], 0 offen offset:1024""")
    if mid: mid()
    o(f"""  s_waitcnt vmcnt(0)
  ds_write_b128 v{vXw}, {v(58,4)} offset:{L_MEM}
  ds_write_b128 v{vXw}, {v(62,4)} offset:{L_MEM+4096}
  ds_write_b128 v{vA}, {v(66,4)} offset:{L_MEM+8192}""")
    o.put(lab0)
    for r in range(30, 54):
        o(f"  v_mov_b32 v{r}, 0")
    o(f"""  s_mov_b32 s{sStep}, s{sS0}
  s_mov_b32 s{sPoll}, 0
  s_mov_b32 s80, 0
  s_mov_b32 s81, 0
  s_waitcnt vmcnt(0) lgkmcnt(0)
  v_mov_b32 v{vDummy}, 128
  s_barrier""")
```

```python
from asmlib import *
from rgen import Cnt, nop

sWS = 8
sWv = 13
sB1, sB2 = 64, 68
sAo = 72
sBo1, sBo2 = 73, 74
sT = [76, 77, 78, 79, 80, 81, 82, 83]
P_X, P_WQ, P_WK, P_WV, P_WO, P_W1, P_W3, P_W2, P_OUT = 84, 86, 88, 90, 92, 94, 96, 98, 100

def srd(o, dst, ptr, size):
    o(f"  s_mov_b32 s{dst}, s{ptr}\n  s_and_b32 s{dst+1}, s{ptr+1}, 0xffff\n  s_mov_b32 s{dst+2}, {size}\n  s_mov_b32 s{dst+3}, 0x20000")

TIMING = False
LDF = ''
class Gemm:
    def __init__(self, MB, NB, KT, swap, ldb, nrb_stride, PA=2, dual=False):
        self.MB, self.NB, self.KT, self.swap, self.ldb, self.PA, self.dual = MB, NB, KT, swap, ldb, PA, dual
        self.rbs = nrb_stride
        self.NS = NB // 2
        self.vA, self.vD = 0, 1
        self.vT = 2
        self.vBf = 8
        self.vAcc = self.vBf + 2*NB*4
        self.vFree = self.vAcc + MB*NB*16
    def acc(self, mb, nb): return self.vAcc + (mb*self.NB + nb)*16
    def setup(self, o):
        o(f"""
  v_lshrrev_b32 v10, 3, v0           ; l/8
  v_and_b32 v11, 7, v0               ; l%8
  v_bfe_u32 v12, v0, 4, 1            ; (l/16)%2
  v_lshlrev_b32 v12, 2, v12
  v_xor_b32 v11, v11, v12
  s_mov_b32 s{sT[0]}, {self.ldb}
  v_mul_lo_u32 v{self.vD}, v10, s{sT[0]}
  v_lshl_add_u32 v{self.vD}, v11, 4, v{self.vD}
  ; tr address: row=(4hi + r'), ch=(l/16)%2, c'=l%4
  v_lshrrev_b32 v10, 5, v0           ; hi
  v_bfe_u32 v11, v0, 2, 2            ; r'
  v_lshl_add_u32 v10, v10, 2, v11    ; 4hi + r'
  v_lshlrev_b32 v10, 7, v10          ; *128
  v_bfe_u32 v12, v0, 4, 1            ; ch
  v_lshl_add_u32 v10, v12, 5, v10
  v_and_b32 v12, 3, v0
  v_lshl_add_u32 v10, v12, 3, v10
  v_lshrrev_b32 v11, 1, v11          ; s = (r'/2)
  v_lshlrev_b32 v11, 6, v11          ; s*64
  v_add_u32 v{self.vT}, v10, v11
  v_xor_b32 v11, 64, v11
  v_add_u32 v{self.vT+1}, v10, v11
  v_add_u32 v{self.vT+2}, 0x10000, v{self.vT}
  v_add_u32 v{self.vT+3}, 0x10000, v{self.vT+1}
  v_add_u32 v{self.vT+4}, 0x20000, v{self.vT}
  v_add_u32 v{self.vT+5}, 0x20000, v{self.vT+1}
  v_lshlrev_b32 v0, 4, v0
""")
    def areg(self, t, mb, ks): return ((t % (self.PA+1))*self.MB + mb)*16 + ks*4
    def issue_tile(self, o, vm, t):
        for sub in range(self.NS):
            srdreg = sB2 if (self.dual and sub == 1) else sB1
            sbo = sBo2 if (self.dual and sub == 1) else sBo1
            colb = 0 if self.dual else sub*128
            for j in range(2):
                lds = t*self.NS*8192 + sub*8192 + j*1024
                o(f"  s_add_u32 m0, s{sT[7]}, {lds}")
                o(f"  s_add_u32 s{sT[0]}, s{sbo}, {(64*t + 8*j)*self.ldb + colb}")
                o(f"  buffer_load_dwordx4 v{self.vD}, s[{srdreg}:{srdreg+3}], s{sT[0]} offen lds")
                vm.issue(f"B{t}")
        for mb in range(self.MB):
            o(f"  s_add_u32 s{sT[0]}, s{sAo}, {mb*self.rbs + 4096*t}")
            for ks in range(4):
                o(f"  buffer_load_dwordx4 {a(self.areg(t,mb,ks),4)}, v{self.vA}, s[{sWS}:{sWS+3}], s{sT[0]} offen offset:{1024*ks} {LDF}")
                vm.issue(f"A{t}")
    def bfrag(self, buf, nb): return self.vBf + (buf*self.NB + nb)*4
    def read_b(self, o, lg, t, ks, buf):
        kb, q = ks // 2, ks % 2
        for nb in range(self.NB):
            sub, par = nb // 2, nb % 2
            for z in range(2):
                off = t*self.NS*8192 + sub*8192 + (32*kb + 8*q + 16*z)*128
                b, imm = off // 65536, off % 65536
                o(f"  ds_read_b64_tr_b16 {v(self.bfrag(buf,nb)+2*z,2)}, v{self.vT + 2*b + par} offset:{imm}")
                lg.issue(f"R{t}_{ks}")
    def run(self, o, pre_issue=None):
        MB, NB, KT, PA = self.MB, self.NB, self.KT, self.PA
        vm = Cnt(o, "vm", 63); lg = Cnt(o, "lgkm", 15)
        if TIMING: o("  s_memtime s[26:27]")
        for t in range(min(PA+1, KT)):
            self.issue_tile(o, vm, t)
        vm.wait("B0"); vm.wait("A0") if "A0" in vm.q else None
        o("  s_barrier")
        if TIMING: o("  s_memtime s[28:29]")
        self.read_b(o, lg, 0, 0, 0)
        step = 0
        for t in range(KT):
            for ks in range(4):
                buf = step % 2
                nt, nks = (t, ks+1) if ks < 3 else (t+1, 0)
                if ks == 3 and t+1 < KT:
                    vm.wait(f"B{t+1}"); vm.wait(f"A{t+1}")
                    o("  s_barrier")
                lg.wait(f"R{t}_{ks}")
                if nt < KT:
                    self.read_b(o, lg, nt, nks, 1-buf)
                for mb in range(MB):
                    for nb in range(NB):
                        a_, b_ = a(self.areg(t,mb,ks),4), v(self.bfrag(buf,nb),4)
                        c = v(self.acc(mb,nb),16)
                        x, y = (b_, a_) if self.swap else (a_, b_)
                        cin = "0" if step == 0 else c
                        o(f"  v_mfma_f32_32x32x16_bf16 {c}, {x}, {y}, {cin}")
                if ks == 3 and t+PA+1 < KT:
                    self.issue_tile(o, vm, t+PA+1)
                step += 1
        nop(o, 12)
        if TIMING: o("  s_memtime s[30:31]")


def lane_setup(o):
    o(f"""  v_lshrrev_b32 v1, 6, v0
  s_nop 1
  v_readfirstlane_b32 s{sWv}, v1
  v_and_b32 v0, 63, v0""")

def kv_store_off(o, vdst, vlane16):
    o(f"""  v_bfe_u32 v{vdst}, v{vlane16}, 8, 1          ; (l/16)%2
  v_lshlrev_b32 v{vdst}, 10, v{vdst}
  v_lshrrev_b32 v{vdst+1}, 9, v{vlane16}       ; l/32
  v_lshl_add_u32 v{vdst}, v{vdst+1}, 8, v{vdst}
  v_and_b32 v{vdst+1}, 0xf0, v{vlane16}        ; (l%16)*16
  v_add_u32 v{vdst}, v{vdst}, v{vdst+1}""")

def pack_piece(o, dst, acc, q):
    o(f"  v_cvt_pk_bf16_f32 v{dst}, v{acc+4*q}, v{acc+4*q+1}")
    o(f"  v_cvt_pk_bf16_f32 v{dst+1}, v{acc+4*q+2}, v{acc+4*q+3}")
    o(f"  v_cvt_pk_bf16_f32 v{dst+2}, v{acc+4*q+8}, v{acc+4*q+9}")
    o(f"  v_cvt_pk_bf16_f32 v{dst+3}, v{acc+4*q+10}, v{acc+4*q+11}")

def stage_ln(o, src_kind, stf):
    WS = f"s[{sWS}:{sWS+3}]"
    srd(o, sB1, P_X, 2048*576*2)
    o(f"""
  v_and_b32 v1, 31, v0                ; token
  v_lshrrev_b32 v2, 5, v0             ; hi
  v_mul_u32_u24 v3, 1152, v1
  v_lshl_add_u32 v3, v2, 4, v3
  s_mul_i32 s{sT[0]}, s20, {32*1152}
  s_lshl_b32 s{sT[1]}, s{sWv}, 6
  s_add_u32 s{sT[0]}, s{sT[0]}, s{sT[1]}
  v_lshlrev_b32 v0, 4, v0
  v_mov_b32 v4, 0x80000000
  s_cmp_lt_u32 s{sWv}, 2
  s_cselect_b32 s{sT[2]}, 0, 0x80000000
  v_or_b32 v5, s{sT[2]}, v3""")
    for i in range(5):
        vo = 3 if i < 4 else 5
        for j in range(2):
            o(f"  buffer_load_dwordx4 {v(16+8*i+4*j,4)}, v{vo}, s[{sB1}:{sB1+3}], s{sT[0]} offen offset:{256*i+32*j}")
    o("  s_waitcnt vmcnt(0)")
    for i in range(5):
        A_, B_ = 16+8*i, 20+8*i
        for r in (A_, B_):
            o(f"  v_permlane32_swap_b32 v{r}, v{r+2}")
            o(f"  v_permlane32_swap_b32 v{r+1}, v{r+3}")
    for i in range(5):
        A_, B_ = 16+8*i, 20+8*i
        for k in range(2):
            o(f"  v_swap_b32 v{A_+2+k}, v{B_+k}")
    o(f"""  s_mul_i32 s{sT[3]}, s20, {18*2048}
  s_lshl_b32 s{sT[4]}, s{sWv}, 11
  s_add_u32 s{sT[3]}, s{sT[3]}, s{sT[4]}      ; rb*18*2048 + w*2048
  v_or_b32 v6, s{sT[2]}, v0""")
    for i in range(5):
        vo = 0 if i < 4 else 6
        o(f"  s_add_u32 s{sT[4]}, s{sT[3]}, {XF + i*4*2048}")
        o(f"  buffer_store_dwordx4 {v(16+8*i,4)}, v{vo}, {WS}, s{sT[4]} offen {stf}")
        o(f"  buffer_store_dwordx4 {v(20+8*i,4)}, v{vo}, {WS}, s{sT[4]} offen offset:1024 {stf}")
    ln_core(o, 16, 40, XN, sT[3], 0, 6, stf)

def ln_core(o, R0, NR, dstbase, sOff, vo_full, vo_last, stf):
    WS = f"s[{sWS}:{sWS+3}]"
    F = 64
    for r in range(NR):
        o(f"  v_lshlrev_b32 v{F+2*r}, 16, v{R0+r}")
        o(f"  v_and_b32 v{F+2*r+1}, 0xffff0000, v{R0+r}")
    o("  v_mov_b32 v8, 0\n  v_mov_b32 v9, 0")
    for r in range(2*NR):
        o(f"  v_add_f32 v8, v8, v{F+r}")
    def xreduce(reg, slot):
        o(f"  v_mov_b32 v10, v{reg}\n  s_nop 1\n  v_permlane32_swap_b32 v{reg}, v10\n  v_add_f32 v{reg}, v{reg}, v10")
        o(f"  v_and_b32 v11, 0x1f0, v0\n  v_lshrrev_b32 v11, 2, v11          ; token*4")
        o(f"  s_lshl_b32 s{sT[5]}, s{sWv}, 7\n  v_add_u32 v12, s{sT[5]}, v11")
        o(f"  ds_write_b32 v12, v{reg} offset:{slot*512}\n  s_waitcnt lgkmcnt(0)\n  s_barrier")
        for w in range(4):
            o(f"  ds_read_b32 v{12+w}, v11 offset:{slot*512 + w*128}")
        o(f"  s_waitcnt lgkmcnt(0)\n  v_add_f32 v12, v12, v13\n  v_add_f32 v14, v14, v15\n  v_add_f32 v{reg}, v12, v14")
    xreduce(8, 0)
    o("  v_mul_f32 v8, 0x3ae38e39, v8")
    for r in range(2*NR):
        o(f"  v_sub_f32 v{F+r}, v{F+r}, v8")
    o(f"  s_cmp_lt_u32 s{sWv}, 2\n  s_cselect_b32 s{sT[6]}, 1.0, 0")
    for r in range(2*NR - 16, 2*NR):
        o(f"  v_mul_f32 v{F+r}, s{sT[6]}, v{F+r}")
    for r in range(2*NR):
        o(f"  v_fmac_f32 v9, v{F+r}, v{F+r}")
    xreduce(9, 1)
    o("""  v_mov_b32 v10, 0x3727c5ac          ; 1e-5
  v_fmac_f32 v10, 0x3ae38e39, v9
  v_rsq_f32 v9, v10
  s_nop 0""")
    for r in range(NR):
        o(f"  v_mul_f32 v{F+2*r}, v9, v{F+2*r}\n  v_mul_f32 v{F+2*r+1}, v9, v{F+2*r+1}")
        o(f"  v_cvt_pk_bf16_f32 v{R0+r}, v{F+2*r}, v{F+2*r+1}")
    for i in range(NR // 8):
        vo = vo_full if i < NR//8 - 1 else vo_last
        o(f"  s_add_u32 s{sT[4]}, s{sOff}, {dstbase + i*4*2048}")
        o(f"  buffer_store_dwordx4 {v(R0+8*i,4)}, v{vo}, {WS}, s{sT[4]} offen {stf}")
        o(f"  buffer_store_dwordx4 {v(R0+8*i+4,4)}, v{vo}, {WS}, s{sT[4]} offen offset:1024 {stf}")

def stage_a(o, stf):
    WS = f"s[{sWS}:{sWS+3}]"
    for swap, name in ((True, "qk"), (False, "v")):
        pass
    lab_v, lab_e = o.label("a_v"), o.label("a_e")
    g = Gemm(2, 4, 9, True, 8192, 18*2048)
    g.setup(o)
    o(f"""  s_lshr_b32 s22, s21, 5
  s_and_b32 s23, s21, 31
  s_cmp_eq_u32 s22, 0
  s_cselect_b32 s{sT[0]}, s{P_WK}, s{P_WQ}
  s_cselect_b32 s{sT[1]}, s{P_WK+1}, s{P_WQ+1}
  s_cmp_eq_u32 s22, 1
  s_cselect_b32 s{sT[0]}, s{P_WV}, s{sT[0]}
  s_cselect_b32 s{sT[1]}, s{P_WV+1}, s{sT[1]}""")
    srd(o, sB1, sT[0], 4718592)
    o(f"""  s_lshl_b32 s{sBo1}, s23, 8              ; head*256
  s_mul_i32 s{sT[0]}, s{sWv}, {16*8192}
  s_add_u32 s{sBo1}, s{sBo1}, s{sT[0]}
  s_lshl_b32 s{sT[7]}, s{sWv}, 11
  s_lshl_b32 s{sAo}, s20, 3
  s_lshl_b32 s{sT[0]}, s{sWv}, 1
  s_add_u32 s{sAo}, s{sAo}, s{sT[0]}
  s_mov_b32 s24, s{sAo}
  s_mul_i32 s{sAo}, s{sAo}, {18*2048}
  s_add_u32 s{sAo}, s{sAo}, {XN}
  s_cmp_eq_u32 s22, 1
  s_cbranch_scc1 {lab_v}""")
    g.run(o)
    o(f"  s_branch {lab_e}")
    o.put(lab_v)
    g2 = Gemm(2, 4, 9, False, 8192, 18*2048)
    g2.run(o)
    o.put(lab_e)
    vo = g.vFree
    kv_store_off(o, vo, 0)
    o(f"""  s_cmp_eq_u32 s22, 0
  s_cselect_b32 s{sT[0]}, {KBUF}, {QBUF}
  s_cmp_eq_u32 s22, 1
  s_cselect_b32 s{sT[0]}, {VBUF}, s{sT[0]}
  s_lshl_b32 s{sT[1]}, s24, 5
  s_add_u32 s{sT[1]}, s{sT[1]}, s23
  s_lshl_b32 s{sT[1]}, s{sT[1]}, 13
  s_add_u32 s{sT[0]}, s{sT[0]}, s{sT[1]}""")
    P = vo + 2
    n = 0
    for mb in range(2):
        for nb in range(4):
            o(f"  s_add_u32 s{sT[1]}, s{sT[0]}, {mb*32*8192 + nb*2048}")
            for q in range(2):
                d = P + 4*(n % 4); n += 1
                pack_piece(o, d, g.acc(mb, nb), q)
                o(f"  buffer_store_dwordx4 {v(d,4)}, v{vo}, {WS}, s{sT[1]} offen offset:{512*q} {stf}")

def stage_b(o, stf, wait_r=False):
    WS = f"s[{sWS}:{sWS+3}]"
    Q, K, KMr, V, VMr, SX, SM, OA = 16, 48, 80, 112, 144, 160, 176, 192
    o("  v_lshlrev_b32 v0, 4, v0")
    kv_store_off(o, 1, 0)
    o(f"""  v_lshrrev_b32 v3, 9, v0              ; hi
  v_bfe_u32 v4, v0, 4, 5                ; l%32 (token / key / e_local)
  v_lshlrev_b32 v5, 8, v3
  v_lshl_add_u32 v5, v4, 4, v5
  v_mov_b32 v6, 0x80000000
  v_cmp_gt_u32 vcc, 8, v4
  s_nop 1
  v_cndmask_b32 v5, v6, v5, vcc
  ; vm offset: hi*256 + (l%16)*16 + ((l%32)/16)*8
  v_lshlrev_b32 v6, 8, v3
  v_and_b32 v7, 0xf0, v0
  v_add_u32 v6, v6, v7
  v_bfe_u32 v7, v0, 8, 1
  v_lshl_add_u32 v6, v7, 3, v6
  v_lshlrev_b32 v7, 2, v3
  v_sub_u32 v7, v4, v7
  s_lshl_b32 s{sT[0]}, s20, 5
  s_add_u32 s{sT[0]}, s{sT[0]}, s21          ; seg*32+head
  s_lshl_b32 s{sT[1]}, s{sT[0]}, 13          ; *8192
  s_lshl_b32 s{sT[2]}, s{sT[0]}, 12          ; *4096
  s_add_u32 s{sT[3]}, s{sT[1]}, {QBUF}
  s_add_u32 s{sT[4]}, s{sT[1]}, {VBUF}
  s_add_u32 s{sT[5]}, s{sT[2]}, {KM}
  s_add_u32 s{sT[6]}, s{sT[2]}, {VM}""")
    for b in range(4):
        for q in range(2):
            ks = 2*b + q
            off = b*2048 + q*512
            so, imm = (off // 4096)*4096, off % 4096
            if so:
                o(f"  s_add_u32 s22, s{sT[3]}, {so}\n  s_add_u32 s23, s{sT[1]}, {so}\n  s_add_u32 s25, s{sT[4]}, {so}")
            else:
                o(f"  s_mov_b32 s22, s{sT[3]}\n  s_mov_b32 s23, s{sT[1]}\n  s_mov_b32 s25, s{sT[4]}")
            o(f"  buffer_load_dwordx4 {v(Q+4*ks,4)}, v1, {WS}, s22 offen offset:{imm} {LDF}")
            o(f"  buffer_load_dwordx4 {v(K+4*ks,4)}, v1, {WS}, s23 offen offset:{imm} {LDF}")
            o(f"  buffer_load_dwordx4 {v(V+8*b+4*q,4)}, v1, {WS}, s25 offen offset:{imm} {LDF}")
    if HOOK:
        o("  s_waitcnt vmcnt(24)\n  s_barrier"); HOOK(o)
    if wait_r:
        lp = o.label("rw")
        o(f"""  s_lshl_b32 s22, s21, 7
  s_add_u32 s22, s22, {RFLAG}
  v_mov_b32 v8, s22
  s_mov_b32 s24, 0
{lp}:
  buffer_load_dword v9, v8, {WS}, 0 offen sc1
  s_waitcnt vmcnt(0)
  v_readfirstlane_b32 s23, v9
  s_cmp_gt_u32 s23, s20
  s_cbranch_scc1 {lp}_ok
  s_sleep {BSLEEP}
  s_add_u32 s24, s24, 1
  s_cmp_lt_u32 s24, 1000000
  s_cbranch_scc1 {lp}
  s_endpgm
{lp}_ok:""")
    for b in range(4):
        for q in range(2):
            ks = 2*b + q
            o(f"  buffer_load_dwordx4 {v(KMr+4*ks,4)}, v5, {WS}, s{sT[5]} offen offset:{b*1024 + q*512} sc1")
            o(f"  buffer_load_dwordx2 {v(VMr+4*b+2*q,2)}, v6, {WS}, s{sT[6]} offen offset:{b*1024 + q*512} sc1")
    o("  s_waitcnt vmcnt(16)")
    for ks in range(8):
        o(f"  v_mfma_f32_32x32x16_bf16 {v(SX,16)}, {v(K+4*ks,4)}, {v(Q+4*ks,4)}, {'0' if ks == 0 else v(SX,16)}")
    o("  s_waitcnt vmcnt(0)")
    for ks in range(8):
        o(f"  v_mfma_f32_32x32x16_bf16 {v(SM,16)}, {v(KMr+4*ks,4)}, {v(Q+4*ks,4)}, {'0' if ks == 0 else v(SM,16)}")
    nop(o, 16)
    o("  v_mov_b32 v8, 0xff7fffff")
    for r in range(16):
        key = 8*(r//4) + r % 4
        o(f"  v_cmp_gt_i32 vcc, {key}, v7\n  s_nop 1\n  v_cndmask_b32 v{SX+r}, v{SX+r}, v8, vcc")
    o(f"  v_max3_f32 v9, v{SX}, v{SX+1}, v{SX+2}")
    for r in range(3, 15, 2):
        o(f"  v_max3_f32 v9, v9, v{SX+r}, v{SX+r+1}")
    o(f"  v_max3_f32 v9, v9, v{SX+15}, v{SM}")
    o(f"  v_max3_f32 v9, v9, v{SM+1}, v{SM+2}")
    o(f"  v_max_f32 v9, v9, v{SM+3}")
    o("  v_mov_b32 v10, v9\n  s_nop 1\n  v_permlane32_swap_b32 v9, v10\n  v_max_f32 v9, v9, v10")
    o("  s_mov_b32 s22, 0x3e0293ee\n  v_mul_f32 v9, s22, v9")
    regs = [SX+r for r in range(16)] + [SM+r for r in range(4)]
    for r in regs: o(f"  v_fma_f32 v{r}, v{r}, s22, -v9")
    for r in regs: o(f"  v_exp_f32 v{r}, v{r}")
    o(f"  s_nop 0\n  v_add_f32 v10, v{regs[0]}, v{regs[1]}")
    for r in regs[2:]: o(f"  v_add_f32 v10, v10, v{r}")
    o("  v_mov_b32 v11, v10\n  s_nop 1\n  v_permlane32_swap_b32 v10, v11\n  v_add_f32 v10, v10, v11\n  v_rcp_f32 v10, v10")
    PX, PM = Q, Q+8
    pack_piece(o, PX, SX, 0); pack_piece(o, PX+4, SX, 1)
    o(f"  v_cvt_pk_bf16_f32 v{PM}, v{SM}, v{SM+1}\n  v_cvt_pk_bf16_f32 v{PM+1}, v{SM+2}, v{SM+3}")
    o("  s_waitcnt vmcnt(0)\n  s_nop 1")
    for half in range(2):
        for b in range(4):
            o(f"  v_mfma_f32_32x32x8_bf16 {v(OA+16*b,16)}, {v(VMr+4*b+2*half,2)}, {v(PM,2)}, {'0' if half == 0 else v(OA+16*b,16)}")
    nop(o, 8)
    for q in range(2):
        for b in range(4):
            o(f"  v_mfma_f32_32x32x16_bf16 {v(OA+16*b,16)}, {v(V+8*b+4*q,4)}, {v(PX+4*q,4)}, {v(OA+16*b,16)}")
    nop(o, 16)
    o(f"""  s_mul_i32 s22, s20, {128*2048}
  s_lshl_b32 s23, s21, 13                   ; head*4*2048
  s_add_u32 s22, s22, s23
  s_add_u32 s22, s22, {OBUF}""")
    n = 0
    for b in range(4):
        for r in range(16): o(f"  v_mul_f32 v{OA+16*b+r}, v10, v{OA+16*b+r}")
        o(f"  s_add_u32 s23, s22, {b*2048}")
        for q in range(2):
            d = K + 4*(n % 8); n += 1
            pack_piece(o, d, OA+16*b, q)
            o(f"  buffer_store_dwordx4 {v(d,4)}, v0, {WS}, s23 offen offset:{1024*q} {stf}")

def stage_ce(o, which, stf):
    WS = f"s[{sWS}:{sWS+3}]"
    if which == 'C': KT, NKB, Abase, PW, wsz, part = 8, 128, OBUF, P_WO, 4718592, PART
    else:            KT, NKB, Abase, PW, wsz, part = 9, 144, ACT, P_W2, 5308416, PART2
    g = Gemm(1, 2, KT, True, 1152, NKB*2048)
    g.setup(o)
    srd(o, sB1, PW, wsz)
    o(f"""  s_mul_i32 s{sBo1}, s22, {KT*64*1152}
  s_lshl_b32 s{sT[0]}, s21, 7
  s_add_u32 s{sBo1}, s{sBo1}, s{sT[0]}
  s_mul_i32 s{sT[0]}, s{sWv}, {16*1152}
  s_add_u32 s{sBo1}, s{sBo1}, s{sT[0]}
  s_lshl_b32 s{sT[7]}, s{sWv}, 11
  s_lshl_b32 s24, s20, 2
  s_add_u32 s24, s24, s{sWv}
  s_mul_i32 s{sAo}, s24, {NKB*2048}
  s_mul_i32 s{sT[0]}, s22, {KT*4096}
  s_add_u32 s{sAo}, s{sAo}, s{sT[0]}
  s_add_u32 s{sAo}, s{sAo}, {Abase}""")
    g.run(o)
    o(f"""  s_lshl_b32 s{sT[0]}, s22, 6
  s_add_u32 s{sT[0]}, s{sT[0]}, s24
  s_mul_i32 s{sT[0]}, s{sT[0]}, 18
  s_lshl_b32 s{sT[1]}, s21, 1
  s_add_u32 s{sT[0]}, s{sT[0]}, s{sT[1]}
  s_lshl_b32 s{sT[0]}, s{sT[0]}, 12
  s_add_u32 s{sT[0]}, s{sT[0]}, {part}""")
    for nb in range(2):
        o(f"  s_add_u32 s{sT[1]}, s{sT[0]}, {nb*4096}")
        for r4 in range(4):
            o(f"  buffer_store_dwordx4 {v(g.acc(0,nb)+4*r4,4)}, v0, {WS}, s{sT[1]} offen offset:{1024*r4} {stf}")

def reduce_parts(o, part, resbase, ldf):
    WS = f"s[{sWS}:{sWS+3}]"
    F, Tm, RES = 64, 160, 16
    o(f"""  s_mul_i32 s{sT[3]}, s20, {18*2048}
  s_lshl_b32 s{sT[4]}, s{sWv}, 11
  s_add_u32 s{sT[3]}, s{sT[3]}, s{sT[4]}
  s_cmp_lt_u32 s{sWv}, 2
  s_cselect_b32 s{sT[2]}, 0, 0x80000000
  v_or_b32 v6, s{sT[2]}, v0""")
    for i in range(5):
        vo = 0 if i < 4 else 6
        o(f"  s_add_u32 s{sT[4]}, s{sT[3]}, {resbase + i*4*2048}")
        o(f"  buffer_load_dwordx4 {v(RES+8*i,4)}, v{vo}, {WS}, s{sT[4]} offen {ldf}")
        o(f"  buffer_load_dwordx4 {v(RES+8*i+4,4)}, v{vo}, {WS}, s{sT[4]} offen offset:1024 {ldf}")
    o(f"""  s_mul_i32 s{sT[5]}, s20, {18*4096}
  s_lshl_b32 s{sT[4]}, s{sWv}, 12
  s_add_u32 s{sT[5]}, s{sT[5]}, s{sT[4]}
  s_add_u32 s{sT[5]}, s{sT[5]}, {part}""")
    for i in range(5):
        vo = 0 if i < 4 else 6
        for sp in range(8):
            o(f"  s_add_u32 s{sT[4]}, s{sT[5]}, {sp*64*18*4096 + i*4*4096}")
            dst = F + 16*i if sp == 0 else Tm + 16*((sp-1) % 4)
            for r4 in range(4):
                o(f"  buffer_load_dwordx4 {v(dst+4*r4,4)}, v{vo}, {WS}, s{sT[4]} offen offset:{1024*r4} {ldf}")
            if sp == 4 or sp == 7:
                o("  s_waitcnt vmcnt(0)")
                lo = 1 if sp == 4 else 5
                for s2 in range(lo, sp+1):
                    src = Tm + 16*((s2-1) % 4)
                    for r in range(0, 16, 2):
                        o(f"  v_pk_add_f32 {v(F+16*i+r,2)}, {v(F+16*i+r,2)}, {v(src+r,2)}")
    for i in range(5):
        for q in range(2):
            for half in range(2):
                for k in range(2):
                    src = RES + 8*i + 4*q + 2*half + k
                    d = F + 16*i + 4*(q + 2*half) + 2*k
                    o(f"  v_lshlrev_b32 v8, 16, v{src}\n  v_and_b32 v9, 0xffff0000, v{src}")
                    o(f"  v_add_f32 v{d}, v{d}, v8\n  v_add_f32 v{d+1}, v{d+1}, v9")

def stage_ln2(o, stf, ldf):
    WS = f"s[{sWS}:{sWS+3}]"
    o("  v_lshlrev_b32 v0, 4, v0")
    reduce_parts(o, PART, XF, ldf)
    R0 = 16
    for i in range(5):
        pack_piece(o, R0+8*i, 64+16*i, 0); pack_piece(o, R0+8*i+4, 64+16*i, 1)
    for i in range(5):
        vo = 0 if i < 4 else 6
        o(f"  s_add_u32 s{sT[4]}, s{sT[3]}, {HBUF + i*4*2048}")
        o(f"  buffer_store_dwordx4 {v(R0+8*i,4)}, v{vo}, {WS}, s{sT[4]} offen {stf}")
        o(f"  buffer_store_dwordx4 {v(R0+8*i+4,4)}, v{vo}, {WS}, s{sT[4]} offen offset:1024 {stf}")
    o("  s_nop 1")
    ln_core(o, R0, 40, HN, sT[3], 0, 6, stf)

def stage_f(o, ldf):
    o("  v_lshlrev_b32 v0, 4, v0")
    reduce_parts(o, PART2, HBUF, ldf)
    srd(o, sB1, P_OUT, 2048*576*2)
    o(f"""  v_bfe_u32 v1, v0, 4, 5              ; token
  v_lshrrev_b32 v2, 9, v0             ; hi
  v_mul_u32_u24 v3, 1152, v1
  v_lshl_add_u32 v3, v2, 4, v3
  v_or_b32 v4, s{sT[2]}, v3
  s_mul_i32 s{sT[0]}, s20, {32*1152}
  s_lshl_b32 s{sT[1]}, s{sWv}, 6
  s_add_u32 s{sT[0]}, s{sT[0]}, s{sT[1]}""")
    for i in range(5):
        F = 64 + 16*i
        D = 16 + 8*i
        for q in range(4):
            o(f"  v_cvt_pk_bf16_f32 v{D+2*q}, v{F+4*q}, v{F+4*q+1}\n  v_cvt_pk_bf16_f32 v{D+2*q+1}, v{F+4*q+2}, v{F+4*q+3}")
        o("  s_nop 1")
        for j in range(2):
            o(f"  v_permlane32_swap_b32 v{D+4*j}, v{D+4*j+2}\n  v_permlane32_swap_b32 v{D+4*j+1}, v{D+4*j+3}")
        vo = 3 if i < 4 else 4
        for j in range(2):
            o(f"  buffer_store_dwordx4 {v(D+4*j,4)}, v{vo}, s[{sB1}:{sB1+3}], s{sT[0]} offen offset:{256*i + 32*j}")

def stage_d(o, stf):
    WS = f"s[{sWS}:{sWS+3}]"
    g = Gemm(1, 4, 9, True, 9216, 18*2048, dual=True)
    g.setup(o)
    srd(o, sB1, P_W1, 5308416)
    srd(o, sB2, P_W3, 5308416)
    o(f"""  s_lshl_b32 s{sBo1}, s21, 7
  s_mul_i32 s{sT[0]}, s{sWv}, {16*9216}
  s_add_u32 s{sBo1}, s{sBo1}, s{sT[0]}
  s_mov_b32 s{sBo2}, s{sBo1}
  s_lshl_b32 s{sT[7]}, s{sWv}, 11
  s_lshl_b32 s24, s20, 2
  s_add_u32 s24, s24, s{sWv}
  s_mul_i32 s{sAo}, s24, {18*2048}
  s_add_u32 s{sAo}, s{sAo}, {HN}""")
    g.run(o)
    o(f"""  s_mul_i32 s{sT[0]}, s24, {144*2048}
  s_lshl_b32 s{sT[1]}, s21, 12
  s_add_u32 s{sT[0]}, s{sT[0]}, s{sT[1]}
  s_add_u32 s{sT[0]}, s{sT[0]}, {ACT}
  s_mov_b32 s{sT[2]}, 0xbfb8aa3b           ; -log2(e)""")
    Tm = g.vFree
    for nb in range(2):
        G_, U_ = g.acc(0, nb), g.acc(0, nb+2)
        for r in range(16):
            o(f"  v_mul_f32 v{Tm+r}, s{sT[2]}, v{G_+r}")
        for r in range(16):
            o(f"  v_exp_f32 v{Tm+r}, v{Tm+r}")
        for r in range(16):
            o(f"  v_add_f32 v{Tm+r}, 1.0, v{Tm+r}")
        for r in range(16):
            o(f"  v_rcp_f32 v{Tm+r}, v{Tm+r}")
        for r in range(16):
            o(f"  v_mul_f32 v{G_+r}, v{G_+r}, v{U_+r}")
        for r in range(16):
            o(f"  v_mul_f32 v{G_+r}, v{G_+r}, v{Tm+r}")
        for q in range(2):
            d = Tm + 16 + 4*q
            pack_piece(o, d, G_, q)
            o(f"  buffer_store_dwordx4 {v(d,4)}, v0, {WS}, s{sT[0]} offen offset:{nb*2048 + q*1024} {stf}")


def stage_s(o, stf):
    WS = f"s[{sWS}:{sWS+3}]"
    o("  v_lshlrev_b32 v0, 4, v0")
    for r in range(4): o(f"  v_mov_b32 v{4+r}, -1")
    o(f"""  s_mul_i32 s{sT[0]}, s20, {H1_SLOT}
  s_lshl_b32 s{sT[1]}, s{sWv}, 10
  s_add_u32 s{sT[0]}, s{sT[0]}, s{sT[1]}
  s_add_u32 s{sT[0]}, s{sT[0]}, {H1}
  s_mov_b32 s{sT[2]}, 0""")
    lp = o.label("sf")
    nblk = H1_SLOT // 1024
    assert H1_SLOT % 4096 == 0
    o(f"""{lp}:
  buffer_store_dwordx4 v[4:7], v0, {WS}, s{sT[0]} offen {stf}
  s_add_u32 s{sT[0]}, s{sT[0]}, 4096
  s_add_u32 s{sT[2]}, s{sT[2]}, 1
  s_cmp_lt_u32 s{sT[2]}, {nblk // 4}
  s_cbranch_scc1 {lp}""")
    o(f"""  s_add_u32 s{sT[0]}, s20, 1
  s_mul_i32 s{sT[0]}, s{sT[0]}, {H2_SLOT}
  s_lshl_b32 s{sT[1]}, s{sWv}, 10
  s_add_u32 s{sT[0]}, s{sT[0]}, s{sT[1]}
  s_add_u32 s{sT[0]}, s{sT[0]}, {H2}
  buffer_store_dwordx4 v[4:7], v0, {WS}, s{sT[0]} offen {stf}
  s_add_u32 s{sT[0]}, s{sT[0]}, 4096
  buffer_store_dwordx4 v[4:7], v0, {WS}, s{sT[0]} offen {stf}
  s_mul_i32 s{sT[0]}, s20, {H2_SLOT}
  s_add_u32 s{sT[0]}, s{sT[0]}, {H2 + H2_SLOT + 8192}
  buffer_store_dwordx4 v[4:7], v0, {WS}, s{sT[0]} offen {stf}""")

def reduce8(o, part, resbase):
    WS = f"s[{sWS}:{sWS+3}]"
    F, T0 = 16, 40
    o(f"""  v_and_b32 v1, 7, v0                 ; token8
  v_bfe_u32 v2, v0, 3, 1              ; hi
  v_lshrrev_b32 v3, 4, v0             ; r4
  s_lshl_b32 s{sT[0]}, s21, 3
  v_add_u32 v4, s{sT[0]}, v1
  v_lshl_add_u32 v4, v2, 5, v4
  v_lshlrev_b32 v5, 4, v4             ; *16
  v_lshl_add_u32 v6, v3, 10, v5
  v_and_b32 v7, 1, v3
  v_lshl_add_u32 v7, v7, 10, v5
  v_lshrrev_b32 v8, 1, v3
  v_lshl_add_u32 v7, v8, 3, v7
  s_cmp_lt_u32 s{sWv}, 2
  s_cselect_b32 s{sT[2]}, 0, 0x80000000
  v_or_b32 v9, s{sT[2]}, v6
  v_or_b32 v10, s{sT[2]}, v7
  s_mul_i32 s{sT[3]}, s20, {18*2048}
  s_lshl_b32 s{sT[4]}, s{sWv}, 11
  s_add_u32 s{sT[3]}, s{sT[3]}, s{sT[4]}
  s_mul_i32 s{sT[5]}, s20, {18*4096}
  s_lshl_b32 s{sT[4]}, s{sWv}, 12
  s_add_u32 s{sT[5]}, s{sT[5]}, s{sT[4]}
  s_add_u32 s{sT[5]}, s{sT[5]}, {part}""")
    for i in range(5):
        o(f"  s_add_u32 s{sT[4]}, s{sT[3]}, {resbase + i*4*2048}")
        o(f"  buffer_load_dwordx2 {v(200+2*i,2)}, v{7 if i < 4 else 10}, {WS}, s{sT[4]} offen sc1")
    for i in range(5):
        for sp in range(8):
            o(f"  s_add_u32 s{sT[4]}, s{sT[5]}, {sp*64*18*4096 + i*4*4096}")
            o(f"  buffer_load_dwordx4 {v(T0+(8*i+sp)*4,4)}, v{6 if i < 4 else 9}, {WS}, s{sT[4]} offen sc1")
    for i in range(5):
        o(f"  s_waitcnt vmcnt({8*(4-i)})")
        if i == 0 and HOOK:
            o("  s_barrier"); HOOK(o)
        b = T0 + 32*i
        for k in range(2):
            o(f"  v_pk_add_f32 {v(b+2*k,2)}, {v(b+2*k,2)}, {v(b+4+2*k,2)}")
            o(f"  v_pk_add_f32 {v(b+8+2*k,2)}, {v(b+8+2*k,2)}, {v(b+12+2*k,2)}")
            o(f"  v_pk_add_f32 {v(b+16+2*k,2)}, {v(b+16+2*k,2)}, {v(b+20+2*k,2)}")
            o(f"  v_pk_add_f32 {v(b+24+2*k,2)}, {v(b+24+2*k,2)}, {v(b+28+2*k,2)}")
            o(f"  v_pk_add_f32 {v(b+2*k,2)}, {v(b+2*k,2)}, {v(b+8+2*k,2)}")
            o(f"  v_pk_add_f32 {v(b+16+2*k,2)}, {v(b+16+2*k,2)}, {v(b+24+2*k,2)}")
            o(f"  v_pk_add_f32 {v(b+2*k,2)}, {v(b+2*k,2)}, {v(b+16+2*k,2)}")
        for k in range(2):
            src = 200 + 2*i + k
            o(f"  v_lshlrev_b32 v12, 16, v{src}\n  v_and_b32 v13, 0xffff0000, v{src}")
            o(f"  v_add_f32 v{F+4*i+2*k}, v{b+2*k}, v12\n  v_add_f32 v{F+4*i+2*k+1}, v{b+2*k+1}, v13")

def xred8(o, reg, slot):
    o(f"  s_nop 1\n  v_add_f32_dpp v{reg}, v{reg}, v{reg} row_ror:8 row_mask:0xf bank_mask:0xf")
    o(f"  v_mov_b32 v12, v{reg}\n  s_nop 1\n  v_permlane16_swap_b32 v{reg}, v12\n  v_add_f32 v{reg}, v{reg}, v12")
    o(f"  v_mov_b32 v12, v{reg}\n  s_nop 1\n  v_permlane32_swap_b32 v{reg}, v12\n  v_add_f32 v{reg}, v{reg}, v12")
    o(f"  v_lshlrev_b32 v12, 2, v1\n  s_lshl_b32 s{sT[6]}, s{sWv}, 5\n  v_add_u32 v13, s{sT[6]}, v12")
    o(f"  ds_write_b32 v13, v{reg} offset:{slot*128}\n  s_waitcnt lgkmcnt(0)\n  s_barrier")
    for w in range(4): o(f"  ds_read_b32 v{36+w}, v12 offset:{slot*128 + w*32}")
    o(f"  s_waitcnt lgkmcnt(0)\n  v_add_f32 v36, v36, v37\n  v_add_f32 v38, v38, v39\n  v_add_f32 v{reg}, v36, v38")

def stage_ln2b(o, stf):
    WS = f"s[{sWS}:{sWS+3}]"
    F = 16
    reduce8(o, PART, XF)
    H = 200
    for i in range(5):
        o(f"  v_cvt_pk_bf16_f32 v{H+2*i}, v{F+4*i}, v{F+4*i+1}\n  v_cvt_pk_bf16_f32 v{H+2*i+1}, v{F+4*i+2}, v{F+4*i+3}")
    for i in range(5):
        o(f"  s_add_u32 s{sT[4]}, s{sT[3]}, {HBUF + i*4*2048}")
        o(f"  buffer_store_dwordx2 {v(H+2*i,2)}, v{7 if i < 4 else 10}, {WS}, s{sT[4]} offen {stf}")
    for i in range(5):
        for k in range(2):
            o(f"  v_lshlrev_b32 v{F+4*i+2*k}, 16, v{H+2*i+k}\n  v_and_b32 v{F+4*i+2*k+1}, 0xffff0000, v{H+2*i+k}")
    o(f"  v_add_f32 v14, v{F}, v{F+1}")
    for r in range(2, 20): o(f"  v_add_f32 v14, v14, v{F+r}")
    o(f"  v_mul_f32 v15, v{F}, v{F}")
    for r in range(1, 20): o(f"  v_fmac_f32 v15, v{F+r}, v{F+r}")
    for reg in (14, 15):
        o(f"  s_nop 1\n  v_add_f32_dpp v{reg}, v{reg}, v{reg} row_ror:8 row_mask:0xf bank_mask:0xf")
    o("  v_mov_b32 v12, v14\n  v_mov_b32 v13, v15\n  s_nop 1\n  v_permlane16_swap_b32 v14, v12\n  v_permlane16_swap_b32 v15, v13\n  v_add_f32 v14, v14, v12\n  v_add_f32 v15, v15, v13")
    o("  v_mov_b32 v12, v14\n  v_mov_b32 v13, v15\n  s_nop 1\n  v_permlane32_swap_b32 v14, v12\n  v_permlane32_swap_b32 v15, v13\n  v_add_f32 v14, v14, v12\n  v_add_f32 v15, v15, v13")
    o(f"  v_lshlrev_b32 v12, 3, v1\n  s_lshl_b32 s{sT[6]}, s{sWv}, 6\n  v_add_u32 v13, s{sT[6]}, v12")
    o("  ds_write_b64 v13, v[14:15]\n  s_waitcnt lgkmcnt(0)\n  s_barrier")
    for w_ in range(4): o(f"  ds_read_b64 v[{36+2*w_}:{37+2*w_}], v12 offset:{w_*64}")
    o("  s_waitcnt lgkmcnt(0)\n  v_pk_add_f32 v[36:37], v[36:37], v[38:39]\n  v_pk_add_f32 v[40:41], v[40:41], v[42:43]\n  v_pk_add_f32 v[14:15], v[36:37], v[40:41]")
    o("  v_mul_f32 v14, 0x3ae38e39, v14        ; mean\n  v_mul_f32 v15, 0x3ae38e39, v15        ; E[x^2]\n  v_fma_f32 v15, -v14, v14, v15\n  v_max_f32 v15, 0, v15\n  v_add_f32 v15, 0x3727c5ac, v15\n  v_rsq_f32 v15, v15")
    for r in range(20): o(f"  v_sub_f32 v{F+r}, v{F+r}, v14")
    for r in range(20): o(f"  v_mul_f32 v{F+r}, v15, v{F+r}")
    H2_ = 210
    for i in range(5):
        o(f"  v_cvt_pk_bf16_f32 v{H2_+2*i}, v{F+4*i}, v{F+4*i+1}\n  v_cvt_pk_bf16_f32 v{H2_+2*i+1}, v{F+4*i+2}, v{F+4*i+3}")
    for i in range(5):
        o(f"  s_add_u32 s{sT[4]}, s{sT[3]}, {HN + i*4*2048}")
        o(f"  buffer_store_dwordx2 {v(H2_+2*i,2)}, v{7 if i < 4 else 10}, {WS}, s{sT[4]} offen {stf}")

def stage_fb(o):
    F = 16
    reduce8(o, PART2, HBUF)
    srd(o, sB1, P_OUT, 2048*576*2)
    o(f"""  s_lshl_b32 s{sT[0]}, s20, 5
  s_lshl_b32 s{sT[1]}, s21, 3
  s_add_u32 s{sT[0]}, s{sT[0]}, s{sT[1]}
  s_mul_i32 s{sT[0]}, s{sT[0]}, 1152
  s_lshl_b32 s{sT[1]}, s{sWv}, 6
  s_add_u32 s{sT[0]}, s{sT[0]}, s{sT[1]}
  v_mul_u32_u24 v11, 1152, v1
  v_lshl_add_u32 v11, v3, 4, v11
  v_lshl_add_u32 v11, v2, 3, v11
  v_or_b32 v12, s{sT[2]}, v11""")
    H = 200
    for i in range(5):
        o(f"  v_cvt_pk_bf16_f32 v{H+2*i}, v{F+4*i}, v{F+4*i+1}\n  v_cvt_pk_bf16_f32 v{H+2*i+1}, v{F+4*i+2}, v{F+4*i+3}")
    for i in range(5):
        o(f"  buffer_store_dwordx2 {v(H+2*i,2)}, v{11 if i < 4 else 12}, s[{sB1}:{sB1+3}], s{sT[0]} offen offset:{256*i} {OUTF}")

NODMA = False
RSLEEP = 8
RSLG = 14
OUTF = "nt"
BSLEEP = 8
HOOK = None
class Gemm2(Gemm):
    def __init__(self, NB, KT, NC, NSLOT, swap, ldb, colstep, dual=False, resident=True, PA=3):
        super().__init__(1, NB, KT, swap, ldb, 0, PA, dual)
        self.NC, self.NSLOT, self.colstep, self.resident = NC, NSLOT, colstep, resident
    def areg2(self, t, ks):
        return (t*4 + ks)*4 if self.resident else ((t % (self.PA+1))*4 + ks)*4
    def issueB(self, o, vm, n):
        j, t = divmod(n, self.KT)
        slot = n % self.NSLOT
        for sub in range(self.NS):
            srdreg = sB2 if (self.dual and sub == 1) else sB1
            sbo = sBo2 if (self.dual and sub == 1) else sBo1
            colb = 0 if self.dual else sub*128
            for jj in range(2):
                lds = slot*self.NS*8192 + sub*8192 + jj*1024
                o(f"  s_add_u32 m0, s{sT[7]}, {lds}")
                o(f"  s_add_u32 s{sT[0]}, s{sbo}, {(64*t + 8*jj)*self.ldb + colb + j*self.colstep}")
                o(f"  buffer_load_dwordx4 v{self.vD}, s[{srdreg}:{srdreg+3}], s{sT[0]} offen lds")
                vm.issue(f"B{n}")
    def issueA(self, o, vm, t):
        o(f"  s_add_u32 s{sT[0]}, s{sAo}, {4096*t}")
        for ks in range(4):
            o(f"  buffer_load_dwordx4 {a(self.areg2(t,ks),4)}, v{self.vA}, s[{sWS}:{sWS+3}], s{sT[0]} offen offset:{1024*ks} {LDF}")
            vm.issue(f"A{t}")
    def readB(self, o, lg, n, ks, buf):
        kb, q = ks // 2, ks % 2
        slot = n % self.NSLOT
        for nb in range(self.NB):
            sub, par = nb // 2, nb % 2
            for z in range(2):
                off = slot*self.NS*8192 + sub*8192 + (32*kb + 8*q + 16*z)*128
                b, imm = off // 65536, off % 65536
                o(f"  ds_read_b64_tr_b16 {v(self.bfrag(buf,nb)+2*z,2)}, v{self.vT + 2*b + par} offset:{imm}")
                lg.issue(f"R{n}_{ks}")
    def run2(self, o, epilogue):
        NB, KT, NC, NS_ = self.NB, self.KT, self.NC, self.NSLOT
        NE = NC*KT
        vm = Cnt(o, "vm", 63); lg = Cnt(o, "lgkm", 15)
        nb_per = self.NS*2
        st = dict(nB=0, nA=0)
        def B_ops(n):
            j_, t = divmod(n, KT); slot = n % NS_
            ops = []
            for sub in range(self.NS):
                srdreg = sB2 if (self.dual and sub == 1) else sB1
                sbo = sBo2 if (self.dual and sub == 1) else sBo1
                colb = 0 if self.dual else sub*128
                for jj in range(2):
                    lds = slot*self.NS*8192 + sub*8192 + jj*1024
                    def f(lds=lds, sbo=sbo, srdreg=srdreg, off=(64*t + 8*jj)*self.ldb + colb + j_*self.colstep, n=n):
                        o(f"  s_add_u32 m0, s{sT[7]}, {lds}")
                        o(f"  s_add_u32 s{sT[0]}, s{sbo}, {off}")
                        if not (NODMA and n >= 4): o(f"  buffer_load_dwordx4 v{self.vD}, s[{srdreg}:{srdreg+3}], s{sT[0]} offen lds")
                        else: o("  buffer_load_dword v250, v0, s[8:11], 0 offen")
                        vm.issue(f"B{n}")
                    ops.append(f)
            return ops
        def A_ops(t):
            ops = []
            for ks in range(4):
                def f(t=t, ks=ks):
                    o(f"  s_add_u32 s{sT[0]}, s{sAo}, {4096*t}")
                    o(f"  buffer_load_dwordx4 {a(self.areg2(t,ks),4)}, v{self.vA}, s[{sWS}:{sWS+3}], s{sT[0]} offen offset:{1024*ks} {LDF}")
                    vm.issue(f"A{t}")
                ops.append(f)
            return ops
        def R_ops(n, ks, buf):
            kb, q = ks // 2, ks % 2; slot = n % NS_
            ops = []
            for nb in range(NB):
                sub, par = nb // 2, nb % 2
                for z in range(2):
                    off = slot*self.NS*8192 + sub*8192 + (32*kb + 8*q + 16*z)*128
                    b, imm = off // 65536, off % 65536
                    def f(nb=nb, z=z, b=b, imm=imm, par=par):
                        o(f"  ds_read_b64_tr_b16 {v(self.bfrag(buf,nb)+2*z,2)}, v{self.vT + 2*b + par} offset:{imm}")
                        lg.issue(f"R{n}_{ks}_{nb}")
                    ops.append(f)
            return ops
        init = min(4, KT)
        for i in range(init):
            for f in B_ops(st['nB']): f()
            st['nB'] += 1
            for f in A_ops(st['nA']): f()
            st['nA'] += 1
        vm.wait("A0")
        o("  s_barrier")
        if HOOK: HOOK(o)
        for f in R_ops(0, 0, 0): f()
        step = 0
        memq = []
        for n in range(NE):
            j, t = divmod(n, KT)
            for ks in range(4):
                buf = step % 2
                nn, nks = (n, ks+1) if ks < 3 else (n+1, 0)
                if ks == 3 and n+1 < NE:
                    need = {f"B{n+1}"} | ({f"A{t+1}"} if (j == 0 and t+1 < KT) else set())
                    while any(tg in need for tg, _ in memq): memq.pop(0)[1]()
                    vm.wait(f"B{n+1}")
                    if j == 0 and t+1 < KT: vm.wait(f"A{t+1}")
                    o("  s_barrier")
                rops = R_ops(nn, nks, 1-buf) if nn < NE else []
                per = -(-len(rops) // NB)
                for nb in range(NB):
                    lg.wait(f"R{n}_{ks}_{nb}")
                    a_, b_ = a(self.areg2(t,ks),4), v(self.bfrag(buf,nb),4)
                    c = v(self.acc(0,nb),16)
                    x, y = (b_, a_) if self.swap else (a_, b_)
                    cin = "0" if (t == 0 and ks == 0) else c
                    o(f"  v_mfma_f32_32x32x16_bf16 {c}, {x}, {y}, {cin}")
                    for f in rops[nb*per:(nb+1)*per]: f()
                    if nb == NB-1 or nb == NB//2 - 1:
                        if memq: memq.pop(0)[1]()
                if ks == 3 and n+1 < NE:
                    assert not memq or True
                    k = 0
                    pend = len(memq)
                    while st['nA'] < KT and k < 2 and len(vm.q) + pend + 4 <= 58 and (self.resident or st['nA'] <= t + self.PA + 1):
                        memq += [(f"A{st['nA']}", f) for f in A_ops(st['nA'])]; st['nA'] += 1; k += 1; pend += 4
                    k = 0
                    while st['nB'] < NE and st['nB'] <= n - 1 + NS_ and k < 2 and len(vm.q) + pend + nb_per <= 58:
                        memq += [(f"B{st['nB']}", f) for f in B_ops(st['nB'])]; st['nB'] += 1; k += 1; pend += nb_per
                step += 1
            if t == KT-1:
                nop(o, 12)
                epilogue(j, vm)
        assert not memq
        assert st['nB'] >= NE

def stage_a2(o, stf, NC=4):
    WS = f"s[{sWS}:{sWS+3}]"
    lab_v, lab_e = o.label("a2v"), o.label("a2e")
    g = Gemm2(4, 9, NC, 9, True, 8192, 256)
    g.setup(o)
    o(f"""  s_cmp_eq_u32 s21, 0
  s_cselect_b32 s{sT[0]}, s{P_WK}, s{P_WQ}
  s_cselect_b32 s{sT[1]}, s{P_WK+1}, s{P_WQ+1}
  s_cmp_eq_u32 s21, 1
  s_cselect_b32 s{sT[0]}, s{P_WV}, s{sT[0]}
  s_cselect_b32 s{sT[1]}, s{P_WV+1}, s{sT[1]}""")
    srd(o, sB1, sT[0], 4718592)
    o(f"""  s_mul_i32 s23, s22, {NC}
  s_lshl_b32 s{sBo1}, s23, 8
  s_mul_i32 s{sT[0]}, s{sWv}, {16*8192}
  s_add_u32 s{sBo1}, s{sBo1}, s{sT[0]}
  s_lshl_b32 s{sT[7]}, s{sWv}, 11
  s_lshl_b32 s24, s20, 2
  s_add_u32 s24, s24, s{sWv}
  s_mul_i32 s{sAo}, s24, {18*2048}
  s_add_u32 s{sAo}, s{sAo}, {XN}
  s_cmp_eq_u32 s21, 0
  s_cselect_b32 s{sT[6]}, {KBUF}, {QBUF}
  s_cmp_eq_u32 s21, 1
  s_cselect_b32 s{sT[6]}, {VBUF}, s{sT[6]}
  s_lshl_b32 s{sT[5]}, s24, 5
  s_add_u32 s{sT[5]}, s{sT[5]}, s23
  s_lshl_b32 s{sT[5]}, s{sT[5]}, 13
  s_add_u32 s{sT[6]}, s{sT[6]}, s{sT[5]}""")
    vo = g.vFree
    kv_store_off(o, vo, 0)
    P = vo + 2
    def epi(gg):
        def f(j, vm):
            n = 0
            for nb in range(4):
                o(f"  s_add_u32 s{sT[1]}, s{sT[6]}, {j*8192 + nb*2048}")
                for q in range(2):
                    d = P + 4*(n % 4); n += 1
                    pack_piece(o, d, gg.acc(0, nb), q)
                    o(f"  buffer_store_dwordx4 {v(d,4)}, v{vo}, {WS}, s{sT[1]} offen offset:{512*q} {stf}")
                    vm.issue("S")
        return f
    o(f"  s_cmp_eq_u32 s21, 1\n  s_cbranch_scc1 {lab_v}")
    g.run2(o, epi(g))
    o(f"  s_branch {lab_e}")
    o.put(lab_v)
    g2 = Gemm2(4, 9, NC, 9, False, 8192, 256)
    g2.run2(o, epi(g2))
    o.put(lab_e)

def stage_d2(o, stf, NC=3):
    WS = f"s[{sWS}:{sWS+3}]"
    g = Gemm2(4, 9, NC, 9, True, 9216, 128, dual=True)
    g.setup(o)
    srd(o, sB1, P_W1, 5308416)
    srd(o, sB2, P_W3, 5308416)
    o(f"""  s_mul_i32 s23, s21, {NC}
  s_lshl_b32 s{sBo1}, s23, 7
  s_mul_i32 s{sT[0]}, s{sWv}, {16*9216}
  s_add_u32 s{sBo1}, s{sBo1}, s{sT[0]}
  s_mov_b32 s{sBo2}, s{sBo1}
  s_lshl_b32 s{sT[7]}, s{sWv}, 11
  s_lshl_b32 s24, s20, 2
  s_add_u32 s24, s24, s{sWv}
  s_mul_i32 s{sAo}, s24, {18*2048}
  s_add_u32 s{sAo}, s{sAo}, {HN}
  s_mul_i32 s{sT[6]}, s24, {144*2048}
  s_lshl_b32 s{sT[5]}, s23, 12
  s_add_u32 s{sT[6]}, s{sT[6]}, s{sT[5]}
  s_add_u32 s{sT[6]}, s{sT[6]}, {ACT}
  s_mov_b32 s{sT[2]}, 0xbfb8aa3b           ; -log2(e)""")
    Tm = g.vFree
    def epi(j, vm):
        o(f"  s_add_u32 s{sT[1]}, s{sT[6]}, {j*4096}")
        for nb in range(2):
            G_, U_ = g.acc(0, nb), g.acc(0, nb+2)
            for r in range(16): o(f"  v_mul_f32 v{Tm+r}, s{sT[2]}, v{G_+r}")
            for r in range(16): o(f"  v_exp_f32 v{Tm+r}, v{Tm+r}")
            for r in range(16): o(f"  v_add_f32 v{Tm+r}, 1.0, v{Tm+r}")
            for r in range(16): o(f"  v_rcp_f32 v{Tm+r}, v{Tm+r}")
            for r in range(16): o(f"  v_mul_f32 v{G_+r}, v{G_+r}, v{U_+r}")
            for r in range(16): o(f"  v_mul_f32 v{G_+r}, v{G_+r}, v{Tm+r}")
            for q in range(2):
                d = Tm + 16 + 4*(2*nb+q)
                pack_piece(o, d, G_, q)
                o(f"  buffer_store_dwordx4 {v(d,4)}, v0, {WS}, s{sT[1]} offen offset:{nb*2048 + q*1024} {stf}")
                vm.issue("S")
    g.run2(o, epi)

def stage_ce2(o, which, stf, NB=6):
    WS = f"s[{sWS}:{sWS+3}]"
    if which == 'C': KT, NKB, Abase, PW, wsz, part = 8, 128, OBUF, P_WO, 4718592, PART
    else:            KT, NKB, Abase, PW, wsz, part = 9, 144, ACT, P_W2, 5308416, PART2
    g = Gemm2(NB, KT, 1, 6 if NB == 6 else KT, True, 1152, 0, resident=True)
    g.setup(o)
    srd(o, sB1, PW, wsz)
    o(f"""  s_mul_i32 s{sBo1}, s22, {KT*64*1152}
  s_mul_i32 s{sT[0]}, s21, {NB*64}
  s_add_u32 s{sBo1}, s{sBo1}, s{sT[0]}
  s_mul_i32 s{sT[0]}, s{sWv}, {16*1152}
  s_add_u32 s{sBo1}, s{sBo1}, s{sT[0]}
  s_lshl_b32 s{sT[7]}, s{sWv}, 11
  s_lshl_b32 s24, s20, 2
  s_add_u32 s24, s24, s{sWv}
  s_mul_i32 s{sAo}, s24, {NKB*2048}
  s_mul_i32 s{sT[0]}, s22, {KT*4096}
  s_add_u32 s{sAo}, s{sAo}, s{sT[0]}
  s_add_u32 s{sAo}, s{sAo}, {Abase}
  s_lshl_b32 s{sT[6]}, s22, 6
  s_add_u32 s{sT[6]}, s{sT[6]}, s24
  s_mul_i32 s{sT[6]}, s{sT[6]}, 18
  s_mul_i32 s{sT[5]}, s21, {NB}
  s_add_u32 s{sT[6]}, s{sT[6]}, s{sT[5]}
  s_lshl_b32 s{sT[6]}, s{sT[6]}, 12
  s_add_u32 s{sT[6]}, s{sT[6]}, {part}""")
    def epi(j, vm):
        for nb in range(NB):
            o(f"  s_add_u32 s{sT[1]}, s{sT[6]}, {nb*4096}")
            for r4 in range(4):
                o(f"  buffer_store_dwordx4 {v(g.acc(0,nb)+4*r4,4)}, v0, {WS}, s{sT[1]} offen offset:{1024*r4} {stf}")
                vm.issue("S")
    g.run2(o, epi)

class Gemm3(Gemm):
    def __init__(self, NB, KT, swap, ldb, dual=False):
        super().__init__(1, NB, KT, swap, ldb, 0, 0, dual)
    def load_B(self, o):
        vm = Cnt(o, "vm", 63)
        for t in range(self.KT):
            for sub in range(self.NS):
                srdreg = sB2 if (self.dual and sub == 1) else sB1
                sbo = sBo2 if (self.dual and sub == 1) else sBo1
                colb = 0 if self.dual else sub*128
                for jj in range(2):
                    lds = t*self.NS*8192 + sub*8192 + jj*1024
                    o(f"  s_add_u32 m0, s{sT[7]}, {lds}")
                    o(f"  s_add_u32 s{sT[0]}, s{sbo}, {(64*t + 8*jj)*self.ldb + colb}")
                    o(f"  buffer_load_dwordx4 v{self.vD}, s[{srdreg}:{srdreg+3}], s{sT[0]} offen lds")
        o("  s_waitcnt vmcnt(0)\n  s_barrier")
    def compute(self, o, prefetch_next=None):
        NB, KT = self.NB, self.KT
        vm = Cnt(o, "vm", 63); lg = Cnt(o, "lgkm", 15)
        for t in range(KT):
            o(f"  s_add_u32 s{sT[0]}, s{sAo}, {4096*t}")
            for ks in range(4):
                o(f"  buffer_load_dwordx4 {a((t*4+ks)*4,4)}, v{self.vA}, s[{sWS}:{sWS+3}], s{sT[0]} offen offset:{1024*ks} {LDF}")
                vm.issue(f"A{t}_{ks}")
        def R_ops(t, ks, buf):
            kb, q = ks // 2, ks % 2
            ops = []
            for nb in range(NB):
                sub, par = nb // 2, nb % 2
                for z in range(2):
                    off = t*self.NS*8192 + sub*8192 + (32*kb + 8*q + 16*z)*128
                    b, imm = off // 65536, off % 65536
                    def f(nb=nb, z=z, b=b, imm=imm, par=par):
                        o(f"  ds_read_b64_tr_b16 {v(self.bfrag(buf,nb)+2*z,2)}, v{self.vT + 2*b + par} offset:{imm}")
                        lg.issue(f"R{t}_{ks}_{nb}")
                    ops.append(f)
            return ops
        for f in R_ops(0, 0, 0): f()
        step = 0
        for t in range(KT):
            for ks in range(4):
                buf = step % 2
                nt, nks = (t, ks+1) if ks < 3 else (t+1, 0)
                rops = R_ops(nt, nks, 1-buf) if nt < KT else []
                per = -(-len(rops) // NB)
                vm.wait(f"A{t}_{ks}")
                for nb in range(NB):
                    lg.wait(f"R{t}_{ks}_{nb}")
                    a_, b_ = a((t*4+ks)*4,4), v(self.bfrag(buf,nb),4)
                    c = v(self.acc(0,nb),16)
                    x, y = (b_, a_) if self.swap else (a_, b_)
                    cin = "0" if step == 0 else c
                    o(f"  v_mfma_f32_32x32x16_bf16 {c}, {x}, {y}, {cin}")
                    for f in rops[nb*per:(nb+1)*per]: f()
                step += 1
        nop(o, 12)

def role_loop(o, name, dep_cnt, dep_target, sig_cnt, CNT, NONE, body, spin, tim=None):
    o(f"  s_mov_b32 s32, 0\n{name}_g:")
    if dep_cnt is not None:
        lp = o.label("rd")
        o(f"""  s_cmp_eq_u32 s{sWv}, 0
  s_cbranch_scc0 {lp}_b
  s_lshl_b32 s25, s32, 7
  s_add_u32 s25, s25, {CNT + 128*dep_cnt}
  v_mov_b32 v250, s25
  s_mov_b32 s24, 0
{lp}:
  buffer_load_dword v251, v250, s[{sWS}:{sWS+3}], 0 offen sc1
  s_waitcnt vmcnt(0)
  v_readfirstlane_b32 s25, v251
  s_cmp_ge_u32 s25, {dep_target}
  s_cbranch_scc1 {lp}_b
""" + (f"  s_cmp_lt_u32 s32, {RSLG}\n  s_cbranch_scc0 {lp}_ns\n  s_sleep {RSLEEP}\n{lp}_ns:\n" if RSLEEP else "") + f"""  s_add_u32 s24, s24, 1
  s_cmp_lt_u32 s24, {spin}
  s_cbranch_scc1 {lp}
  s_endpgm
{lp}_b:
  s_barrier""")
    if tim is not None: o("  s_memrealtime s[36:37]")
    body()
    o("  s_waitcnt vmcnt(0) lgkmcnt(0)\n  s_barrier")
    lab = o.label("rs")
    o(f"  s_cmp_eq_u32 s{sWv}, 0\n  s_cbranch_scc0 {lab}")
    if sig_cnt is not None:
        o(f"""  s_lshl_b32 s25, s32, 7
  s_add_u32 s25, s25, {CNT + 128*sig_cnt}
  v_mov_b32 v250, s25
  v_mov_b32 v251, 1
  s_mov_b64 exec, 1
  buffer_atomic_add v251, v250, s[{sWS}:{sWS+3}], 0 offen
  s_mov_b64 exec, -1""")
    if tim is not None:
        o(f"""  s_memrealtime s[38:39]
  s_waitcnt lgkmcnt(0)
  v_mov_b32 v248, s36
  v_mov_b32 v249, s38
  s_lshl_b32 s25, s33, 4
  s_add_u32 s25, s25, s32
  s_lshl_b32 s25, s25, 3
  s_add_u32 s25, s25, {tim}
  v_mov_b32 v250, s25
  buffer_store_dwordx2 v[248:249], v250, s[{sWS}:{sWS+3}], 0 offen""")
    o(f"""{lab}:
  s_add_u32 s32, s32, 1
  s_cmp_lt_u32 s32, 16
  s_cbranch_scc1 {name}_g""")

def role_d(o, stf, loopf):
    WS = f"s[{sWS}:{sWS+3}]"
    g = Gemm3(4, 9, True, 9216, dual=True)
    g.setup(o)
    srd(o, sB1, P_W1, 5308416); srd(o, sB2, P_W3, 5308416)
    o(f"""  s_lshl_b32 s{sBo1}, s28, 7
  s_mul_i32 s{sT[0]}, s{sWv}, {16*9216}
  s_add_u32 s{sBo1}, s{sBo1}, s{sT[0]}
  s_mov_b32 s{sBo2}, s{sBo1}
  s_lshl_b32 s{sT[7]}, s{sWv}, 11""")
    g.load_B(o)
    Tm = g.vFree
    def body():
        o(f"""  s_lshl_b32 s29, s32, 2
  s_add_u32 s29, s29, s{sWv}
  s_mul_i32 s{sAo}, s29, {18*2048}
  s_add_u32 s{sAo}, s{sAo}, {HN}
  s_mul_i32 s{sT[6]}, s29, {144*2048}
  s_lshl_b32 s{sT[5]}, s28, 12
  s_add_u32 s{sT[6]}, s{sT[6]}, s{sT[5]}
  s_add_u32 s{sT[6]}, s{sT[6]}, {ACT}
  s_mov_b32 s{sT[2]}, 0xbfb8aa3b""")
        g.compute(o)
        for nb in range(2):
            G_, U_ = g.acc(0, nb), g.acc(0, nb+2)
            for r in range(16): o(f"  v_mul_f32 v{Tm+r}, s{sT[2]}, v{G_+r}")
            for r in range(16): o(f"  v_exp_f32 v{Tm+r}, v{Tm+r}")
            for r in range(16): o(f"  v_add_f32 v{Tm+r}, 1.0, v{Tm+r}")
            for r in range(16): o(f"  v_rcp_f32 v{Tm+r}, v{Tm+r}")
            for r in range(16): o(f"  v_mul_f32 v{G_+r}, v{G_+r}, v{U_+r}")
            for r in range(16): o(f"  v_mul_f32 v{G_+r}, v{G_+r}, v{Tm+r}")
            for q in range(2):
                d = Tm + 16 + 4*(2*nb+q)
                pack_piece(o, d, G_, q)
                o(f"  buffer_store_dwordx4 {v(d,4)}, v0, {WS}, s{sT[6]} offen offset:{nb*2048 + q*1024} {stf}")
    loopf(body)

def role_ce(o, which, NB, stf, loopf):
    WS = f"s[{sWS}:{sWS+3}]"
    if which == 'C': KT, NKB, Abase, PW, wsz, part = 8, 128, OBUF, P_WO, 4718592, PART
    else:            KT, NKB, Abase, PW, wsz, part = 9, 144, ACT, P_W2, 5308416, PART2
    g = Gemm3(NB, KT, True, 1152)
    g.setup(o)
    srd(o, sB1, PW, wsz)
    o(f"""  s_mul_i32 s{sBo1}, s23, {KT*64*1152}
  s_lshl_b32 s{sT[0]}, s28, 6
  s_add_u32 s{sBo1}, s{sBo1}, s{sT[0]}
  s_mul_i32 s{sT[0]}, s{sWv}, {16*1152}
  s_add_u32 s{sBo1}, s{sBo1}, s{sT[0]}
  s_lshl_b32 s{sT[7]}, s{sWv}, 11""")
    g.load_B(o)
    def body():
        o(f"""  s_lshl_b32 s29, s32, 2
  s_add_u32 s29, s29, s{sWv}
  s_mul_i32 s{sAo}, s29, {NKB*2048}
  s_mul_i32 s{sT[0]}, s23, {KT*4096}
  s_add_u32 s{sAo}, s{sAo}, s{sT[0]}
  s_add_u32 s{sAo}, s{sAo}, {Abase}
  s_lshl_b32 s{sT[6]}, s23, 6
  s_add_u32 s{sT[6]}, s{sT[6]}, s29
  s_mul_i32 s{sT[6]}, s{sT[6]}, 18
  s_add_u32 s{sT[6]}, s{sT[6]}, s28
  s_lshl_b32 s{sT[6]}, s{sT[6]}, 12
  s_add_u32 s{sT[6]}, s{sT[6]}, {part}""")
        g.compute(o)
        for nb in range(NB):
            o(f"  s_add_u32 s{sT[1]}, s{sT[6]}, {nb*4096}")
            for r4 in range(4):
                o(f"  buffer_store_dwordx4 {v(g.acc(0,nb)+4*r4,4)}, v0, {WS}, s{sT[1]} offen offset:{1024*r4} {stf}")
    loopf(body)
```

```python
import sys, json
from asmlib import *
import rgen, wgen
from wgen import *
NAME = "sequential_preLN__memory_aug_recurrent_mem_tr__glu_gated_swiglu__prompt"
KN = NAME + "_kernel"
wgen.LDF = "sc1"; rgen.KVF = "sc1"
STF = "sc1"
SPIN = 300000
CNT = FLAGS + 0x4000
C_L1, C_KV, C_Q, C_SI, C_B, C_C, C_L, C_D, C_E = 0, 16, 32, 48, 64, 80, 96, 112, 128
NONE = 0xFFFF
D_T0, D_INIT, D_TB, D_WR, D_QH = 0, 4, 5, 32, 48
NQ = 7
LQ = 163840 - 16
ST_LN1, ST_S, ST_A, ST_B, ST_C, ST_LN2, ST_D, ST_E, ST_F, ST_C2, ST_D2, ST_E2, ST_A1 = range(13)
NST = 13
opts = dict(kv.split("=") for kv in sys.argv[2:])
FD, AD = int(opts.get("fd", 32)), int(opts.get("ad", 8))
TIM = int(opts.get("timing", 0))
for k_, v_ in opts.items():
    if k_.startswith("W_"): setattr(wgen, k_[2:], int(v_) if v_.isdigit() else v_)
    if k_.startswith("R_"): setattr(rgen, k_[2:], {"True": True, "False": False, "none": ""}.get(v_, int(v_) if v_.isdigit() else v_))

def item(stage, p0=0, p1=0, p2=0, d1=None, d2=None, sig=NONE):
    enc = lambda d: (NONE << 16) if d is None else ((d[0] << 16) | d[1])
    return [stage | (p0 << 8) | (p1 << 16) | (p2 << 24), enc(d1), enc(d2), sig]

C_RW = 49
KST = int(opts.get("kstart", 0))
def build_items():
    qs = [[] for _ in range(NQ)]
    NFAST = int(opts.get("nfast", 4)); NPRE = int(opts.get("npre", 1))
    rr = 0
    for rt in range(16):
        gate = (C_RW, 32) if rt >= NPRE else None
        if rt >= 1:
            for i in range(4):
                qs[rr % NQ].append(item(ST_S, 4*rt + i, d2=gate, sig=(16 << 16) | (C_KV + rt))); rr += 1
        for mat in range(3):
            if rt < NFAST and mat < 2:
                for hd in range(32):
                    qs[(mat*8 + hd//4) % NQ].append(item(ST_A1, rt, mat, hd, d1=(C_L1 + rt, 4), d2=gate, sig=C_KV + rt))
                continue
            for hg in range(8):
                qs[(mat*8 + hg) % NQ].append(item(ST_A, rt, mat, hg, d1=(C_L1 + rt, 4), d2=(gate if rt >= 1 else None), sig=(4 << 16) | (C_KV + rt if mat < 2 else C_Q + rt)))
    return qs
queues = build_items()
if int(opts.get("oneq", 0)):
    allq = sorted([x for q in queues for x in q], key=lambda x: ((x[0] >> 8) & 0xff if (x[0] & 0xff) != ST_S else ((x[0] >> 8) & 0xff) // 4))
    queues = [allq] + [[] for _ in range(NQ-1)]
items = [x for q in queues for x in q]
qstart = [sum(len(q) for q in queues[:k]) for k in range(NQ)]
NITEMS = len(items)

o = Asm()
L = "K"
o(f".globl {KN}\n.p2align 8\n.type {KN},@function\n{KN}:")
o(f"""  s_cmp_ge_u32 s2, 256
  s_cbranch_scc1 {L}_end
""" + ("  s_memrealtime s[62:63]\n" if TIM else "") + f"""  s_load_dwordx2 s[48:49], s[0:1], 8
  s_load_dwordx2 s[50:51], s[0:1], 16
  s_load_dwordx2 s[52:53], s[0:1], 24
  s_load_dwordx2 s[54:55], s[0:1], 32
  s_load_dwordx2 s[56:57], s[0:1], 40
  s_load_dwordx2 s[58:59], s[0:1], 104
  s_load_dwordx2 s[60:61], s[0:1], 96
  s_getreg_b32 s3, hwreg(HW_REG_XCC_ID)
  s_and_b32 s3, s3, 0xf
  v_lshrrev_b32 v1, 6, v0
  s_nop 1
  v_readfirstlane_b32 s13, v1
  v_and_b32 v0, 63, v0
  s_waitcnt lgkmcnt(0)
  s_mov_b32 s8, s58
  s_and_b32 s9, s59, 0xffff
  s_mov_b32 s10, {WS_USED}
  s_mov_b32 s11, 0x20000
  ; ---- workgroup 0 zeroes the counters and the recurrence flags
  s_cmp_eq_u32 s2, 0
  s_cbranch_scc0 {L}_noinit
  s_cmp_eq_u32 s13, 0
  s_cbranch_scc0 {L}_noinit
  v_lshlrev_b32 v1, 4, v0
  v_mov_b32 v4, 0
  v_mov_b32 v5, 0
  v_mov_b32 v6, 0
  v_mov_b32 v7, 0""")
for i in range(20):
    o(f"  s_mov_b32 s25, {CNT + 1024*i}\n  buffer_store_dwordx4 v[4:7], v1, s[8:11], s25 offen sc1")
for i in range(4):
    o(f"  s_mov_b32 s25, {RFLAG + 1024*i}\n  buffer_store_dwordx4 v[4:7], v1, s[8:11], s25 offen sc1")
def bcast(o, sreg, lab):
    o(f"""  v_mov_b32 v4, {LQ}
  v_mov_b32 v2, s{sreg}
  s_mov_b64 exec, 1
  ds_write_b32 v4, v2
  s_waitcnt lgkmcnt(0)
  s_mov_b64 exec, -1
{lab}:
  s_barrier
  v_mov_b32 v4, {LQ}
  ds_read_b32 v2, v4
  s_waitcnt lgkmcnt(0)
  v_readfirstlane_b32 s{sreg}, v2
  s_barrier""")
o(f"""  s_waitcnt vmcnt(0)
  s_mov_b32 s26, 1
  s_atomic_add s26, s[60:61], {4*D_INIT}
  s_waitcnt lgkmcnt(0)
{L}_noinit:
  s_cmp_eq_u32 s3, 0
  s_cbranch_scc0 {L}_worker
  ; ---- XCC 0: ticket for the recurrence team
  s_cmp_eq_u32 s13, 0
  s_cbranch_scc0 {L}_t1
""" + (f"""  s_mov_b32 s12, 1
  s_atomic_add s12, s[60:61], {4*D_TB} glc
  s_waitcnt lgkmcnt(0)
  s_cmp_lt_u32 s12, {int(opts.get('simslow', 0))}
  s_mov_b32 s12, 1000
  s_cbranch_scc0 {L}_sim
""" if 'simslow' in opts else "") + f"""  s_mov_b32 s12, 1
  s_atomic_add s12, s[60:61], {4*D_T0} glc
  s_waitcnt lgkmcnt(0)
{L}_sim:""")
bcast(o, 12, f"{L}_t1")
o(f"""  s_cmp_lt_u32 s12, 32
  s_cbranch_scc0 {L}_worker
  s_mov_b32 s30, {KST}
  s_mov_b32 s31, 64
{L}_R:
""")
if TIM: o(f"  s_memrealtime s[64:65]\n  s_waitcnt lgkmcnt(0)\n  v_mov_b32 v10, s62\n  v_mov_b32 v11, s64\n  s_lshl_b32 s25, s12, 3\n  s_add_u32 s25, s25, {FLAGS + 0x60000}\n  v_mov_b32 v12, s25\n  buffer_store_dwordx2 v[10:11], v12, s[8:11], 0 offen")
def poll_ge(o, off_expr_sgpr_or_imm, target, base="ws", label="pg"):
    lp = o.label(label)
    o("  s_mov_b32 s24, 0")
    if base == "ws":
        o(f"  v_mov_b32 v76, {off_expr_sgpr_or_imm}\n{lp}:\n  buffer_load_dword v77, v76, s[8:11], 0 offen sc1")
    else:
        o(f"  v_mov_b32 v76, {off_expr_sgpr_or_imm}\n{lp}:\n  global_load_dword v77, v76, s[60:61] sc1")
    o(f"  s_waitcnt vmcnt(0)\n  v_readfirstlane_b32 s25, v77\n  s_cmp_ge_u32 s25, {target}\n  s_cbranch_scc1 {lp}_ok\n  s_sleep 4\n  s_add_u32 s24, s24, 1\n  s_cmp_lt_u32 s24, {SPIN}\n  s_cbranch_scc1 {lp}\n  s_endpgm\n{lp}_ok:")
def r_polls():
    o(f"""  s_mov_b32 s24, 0
R_pi:
  s_load_dword s25, s[60:61], {4*D_INIT} glc
  s_add_u32 s24, s24, 1
  s_cmp_gt_u32 s24, {SPIN*4}
  s_cbranch_scc1 R_bail
  s_waitcnt lgkmcnt(0)
  s_cmp_ge_u32 s25, 1
  s_cbranch_scc0 R_pi
  s_add_u32 s62, s58, {CNT}
  s_addc_u32 s63, s59, 0
R_pk:
  s_load_dword s26, s[62:63], {128*C_KV} glc
  s_add_u32 s24, s24, 1
  s_cmp_gt_u32 s24, {SPIN*4}
  s_cbranch_scc1 R_bail
  s_waitcnt lgkmcnt(0)
  s_cmp_ge_u32 s26, 128
  s_cbranch_scc0 R_pk""")
def r_sig():
    o(f"""  s_cmp_eq_u32 s13, 0
  s_cbranch_scc0 R_sg
  s_cmp_eq_u32 s31, 64
  s_cbranch_scc0 R_sg
  s_mov_b32 s25, 1
  s_atomic_add s25, s[62:63], {128*C_RW}
R_sg:""")
rgen.emit_consts(o)
rgen.emit_init(o, "R")
rgen.emit_weights(o, lambda: (r_polls(), rgen.emit_early(o)))
if TIM: o(f"  s_memrealtime s[100:101]\n  s_waitcnt lgkmcnt(0)\n  v_mov_b32 v66, s100\n  s_lshl_b32 s25, s12, 2\n  s_add_u32 s25, s25, {FLAGS + 0x61000}\n  v_mov_b32 v67, s25\n  buffer_store_dword v66, v67, s[8:11], 0 offen")
rgen.KVCNT = CNT + 128*C_KV
r_sig()
rgen.emit_mem0(o)
o(f"""  s_cmp_eq_u32 s31, 64
  s_cbranch_scc0 RS_entry
  s_load_dword s25, s[60:61], {4*D_T0} glc
  s_waitcnt lgkmcnt(0)
  s_cmp_ge_u32 s25, 32
  s_cbranch_scc0 RS_entry""")
rgen.emit_loop(o, "R", "", bool(TIM), FD, AD)
if int(opts.get("wb", 1)):
    o(f"  s_cmp_eq_u32 s13, 0\n  s_cbranch_scc0 {L}_end\n  s_cmp_eq_u32 s12, 0\n  s_cbranch_scc0 {L}_end\n  buffer_wbl2 sc1\n  s_waitcnt vmcnt(0)")
o(f"  s_branch {L}_end")
o("RS_entry:")
rgen.emit_loop(o, "RS", "sc1", False, FD, AD, can_exit=True)
o(f"  s_cmp_eq_u32 s31, 64\n  s_cbranch_scc1 {L}_end\n  s_mov_b32 s51, 1\n  s_branch {L}_worker2")
def sig_now(o):
    lab = o.label("sg")
    o(f"""  s_and_b32 s52, s50, 0xffff
  s_cmp_eq_u32 s52, {NONE}
  s_cbranch_scc1 {lab}
  s_cmp_eq_u32 s13, 0
  s_cbranch_scc0 {lab}
  s_lshl_b32 s52, s52, 7
  s_add_u32 s52, s56, s52
  s_addc_u32 s53, s57, 0
  s_lshr_b32 s54, s50, 16
  s_max_u32 s54, s54, 1
  s_atomic_add s54, s[52:53], 0
{lab}:
  s_mov_b32 s50, {NONE}""")
def flush(o):
    o("  s_waitcnt vmcnt(0) lgkmcnt(0)\n  s_barrier")
    sig_now(o)
wgen.HOOK = None
o(f"""{L}_worker:
  s_mov_b32 s51, 0
{L}_worker2:
  s_load_dwordx2 s[{P_X}:{P_X+1}], s[0:1], 0
  s_load_dwordx2 s[{P_WQ}:{P_WQ+1}], s[0:1], 16
  s_load_dwordx2 s[{P_WK}:{P_WK+1}], s[0:1], 24
  s_load_dwordx2 s[{P_WV}:{P_WV+1}], s[0:1], 32
  s_load_dwordx2 s[{P_WO}:{P_WO+1}], s[0:1], 40
  s_load_dwordx2 s[{P_W1}:{P_W1+1}], s[0:1], 64
  s_load_dwordx2 s[{P_W3}:{P_W3+1}], s[0:1], 72
  s_load_dwordx2 s[{P_W2}:{P_W2+1}], s[0:1], 80
  s_load_dwordx2 s[{P_OUT}:{P_OUT+1}], s[0:1], 88
  s_load_dwordx2 s[56:57], s[0:1], 104
  s_getpc_b64 s[40:41]
{L}_pc:
  s_add_u32 s40, s40, {L}_items-{L}_pc
  s_addc_u32 s41, s41, 0
  s_mov_b32 s42, 0
  s_mov_b32 s50, {NONE}
  s_cmp_eq_u32 s51, 1
  s_cbranch_scc1 {L}_wr2
  s_cmp_eq_u32 s13, 0
  s_cbranch_scc0 {L}_wr1
  s_mov_b32 s33, 1
  s_atomic_add s33, s[60:61], {4*D_WR} glc
  s_waitcnt lgkmcnt(0)""")
bcast(o, 33, f"{L}_wr1")
o(f"""{L}_wr2:
  s_waitcnt lgkmcnt(0)
  s_add_u32 s56, s56, {CNT}
  s_addc_u32 s57, s57, 0
  ; more than 224 workers: XCC 0 did not receive 32 workgroups; the surplus completes the recurrence team
  s_cmp_lt_u32 s33, 224
  s_cbranch_scc1 {L}_w0
  s_mov_b32 s24, 0
{L}_an:
  s_load_dword s25, s[60:61], {4*D_T0} glc
  s_load_dword s26, s[60:61], {4*D_WR} glc
  s_waitcnt lgkmcnt(0)
  s_add_u32 s27, s25, s26
  s_cmp_ge_u32 s27, 256
  s_cbranch_scc1 {L}_an1
  s_sleep 4
  s_add_u32 s24, s24, 1
  s_cmp_lt_u32 s24, {SPIN}
  s_cbranch_scc1 {L}_an
  s_endpgm
{L}_an1:
  s_sub_u32 s12, s33, 224
  s_add_u32 s12, s12, s25
  s_mov_b32 s30, {KST}
  s_mov_b32 s31, 64
{L}_toR:
  v_mbcnt_lo_u32_b32 v0, -1, 0
  v_mbcnt_hi_u32_b32 v0, -1, v0
  s_load_dwordx2 s[48:49], s[0:1], 8
  s_load_dwordx2 s[50:51], s[0:1], 16
  s_load_dwordx2 s[52:53], s[0:1], 24
  s_load_dwordx2 s[54:55], s[0:1], 32
  s_load_dwordx2 s[56:57], s[0:1], 40
  s_waitcnt lgkmcnt(0)
  s_branch {L}_R
{L}_w0:
""" + (f"""  s_cmp_eq_u32 s51, 1
  s_cbranch_scc1 {L}_w1
  s_sub_u32 s12, s33, 68
  s_cmp_lt_u32 s12, 32
  s_cbranch_scc0 {L}_w1
  s_mov_b32 s30, 0
  s_mov_b32 s31, {KST}
  s_branch {L}_toR
{L}_w1:
""" if KST else "") + f"""  ; home queue: XCC 1..7 -> 0..6, otherwise rank mod 7 (speed only; stealing drains every queue)
  s_mul_hi_u32 s25, s33, {(1 << 32) // 7 + 1}
  s_mul_i32 s25, s25, 7
  s_sub_u32 s25, s33, s25
  s_sub_u32 s26, s3, 1
  s_cmp_lt_u32 s26, 7
  s_cselect_b32 s30, s26, s25
  s_mov_b32 s31, 0
  ; first unit is static: rank < 64 -> LN1, < 128 -> sentinel fill
  v_mbcnt_lo_u32_b32 v0, -1, 0
  v_mbcnt_hi_u32_b32 v0, -1, v0
  s_add_u32 s43, s33, {NITEMS}
""" + ("  s_memrealtime s[36:37]\n" if TIM else "") + f"""  s_cmp_eq_u32 s51, 1
  s_cbranch_scc1 {L}_pop
  s_cmp_lt_u32 s33, 68
  s_cbranch_scc0 {L}_warm
  s_cmp_lt_u32 s33, 64
  s_cbranch_scc0 {L}_wS
  s_mov_b32 s20, s33
  s_lshr_b32 s47, s33, 2
  s_add_u32 s47, s47, {C_L1}
  s_branch {L}_st{ST_LN1}
{L}_wS:
  s_sub_u32 s20, s33, 64
  s_mov_b32 s47, {(16 << 16) | C_KV}
  s_branch {L}_st{ST_S}
{L}_pop:
  s_lshl_b32 s25, s30, 3
  s_load_dwordx2 s[34:35], s[40:41], s25        ; queue (start, count)
  s_cmp_eq_u32 s13, 0
  s_cbranch_scc0 {L}_n1
  s_lshl_b32 s25, s30, 2
  s_add_u32 s52, s60, s25
  s_addc_u32 s53, s61, 0
  s_mov_b32 s43, 1
  s_atomic_add s43, s[52:53], {4*D_QH} glc
  s_waitcnt lgkmcnt(0)
  v_mov_b32 v4, {LQ}
  v_mov_b32 v2, s43
  s_mov_b64 exec, 1
  ds_write_b32 v4, v2
  s_waitcnt lgkmcnt(0)
  s_mov_b64 exec, -1
{L}_n1:
  s_waitcnt vmcnt(0) lgkmcnt(0)
  s_barrier
  v_mov_b32 v4, {LQ}
  ds_read_b32 v2, v4
  s_waitcnt lgkmcnt(0)
  v_readfirstlane_b32 s43, v2
  s_barrier
  ; the previous unit's stores are acknowledged in every wave: signal it (after init is known to be done)
  s_cmp_eq_u32 s42, 1
  s_cbranch_scc1 {L}_i1""")
poll_ge(o, 4*D_INIT, 1, base="dbg")
o(f"  s_mov_b32 s42, 1\n{L}_i1:")
sig_now(o)
o(f"""  s_cmp_lt_u32 s43, s35
  s_cbranch_scc1 {L}_have
  s_add_u32 s31, s31, 1
  s_cmp_ge_u32 s31, {NQ}
  s_cbranch_scc1 {L}_roles
  s_add_u32 s30, s30, 1
  s_cmp_eq_u32 s30, {NQ}
  s_cselect_b32 s30, 0, s30
  s_branch {L}_pop
{L}_have:
  s_add_u32 s43, s43, s34
  s_lshl_b32 s25, s43, 4
  s_add_u32 s25, s25, 64
  s_load_dwordx4 s[44:47], s[40:41], s25
  s_waitcnt lgkmcnt(0)
  s_cmp_eq_u32 s13, 0
  s_cbranch_scc0 {L}_d2""")
for w in (45, 46):
    lp = o.label("dep")
    o(f"""  s_lshr_b32 s26, s{w}, 16
  s_cmp_eq_u32 s26, {NONE}
  s_cbranch_scc1 {lp}_ok
  s_lshl_b32 s26, s26, 7
  s_add_u32 s26, s26, {CNT}
  s_and_b32 s27, s{w}, 0xffff
  v_mov_b32 v76, s26
  s_mov_b32 s24, 0
{lp}:
  buffer_load_dword v77, v76, s[8:11], 0 offen sc1
  s_waitcnt vmcnt(0)
  v_readfirstlane_b32 s25, v77
  s_cmp_ge_u32 s25, s27
  s_cbranch_scc1 {lp}_ok
  s_sleep 4
  s_add_u32 s24, s24, 1
  s_cmp_lt_u32 s24, {SPIN}
  s_cbranch_scc1 {lp}
  s_endpgm
{lp}_ok:""")
o(f"""{L}_d2:
  s_barrier
  v_mbcnt_lo_u32_b32 v0, -1, 0
  v_mbcnt_hi_u32_b32 v0, -1, v0
  s_bfe_u32 s20, s44, 0x80008
  s_bfe_u32 s21, s44, 0x80010
  s_lshr_b32 s22, s44, 24
  s_and_b32 s25, s44, 0xff""")
if TIM:
    o("  s_memrealtime s[36:37]")
o(f"  s_cmp_eq_u32 s25, {ST_A}\n  s_cbranch_scc1 {L}_st{ST_A}\n  s_cmp_eq_u32 s25, {ST_S}\n  s_cbranch_scc1 {L}_st{ST_S}\n  s_branch {L}_st{ST_A1}")
def stage_wrap(st, body, pre_flush=False):
    o(f"{L}_st{st}:")
    body()
    o(f"  s_branch {L}_sig")
stage_wrap(ST_LN1, lambda: stage_ln(o, 'x', STF), True)
stage_wrap(ST_S, lambda: stage_s(o, STF), True)
stage_wrap(ST_A, lambda: stage_a2(o, STF, 4))
stage_wrap(ST_A1, lambda: stage_a2(o, STF, 1))

o(f"{L}_warm:")
if int(opts.get("warm", 1)):
    o(f"""  s_sub_u32 s25, s33, {100 if KST else 68}
  s_mul_i32 s25, s25, {(38 if KST else 30)*1024}
  s_lshl_b32 s26, s13, 10
  s_add_u32 s25, s25, s26
  v_lshlrev_b32 v1, 4, v0""")
    for P in (P_WQ, P_WK, P_WO, P_WV):
        srd(o, 64, P, 4718592)
        for i in range(10 if KST else 8):
            o(f"  s_add_u32 s26, s25, {i*4096}\n  buffer_load_dwordx4 v[{16+4*i}:{19+4*i}], v1, s[64:67], s26 offen")
o(f"  s_branch {L}_pop")
o(f"{L}_sig:")
if TIM:
    o(f"""  s_cmp_eq_u32 s13, 0
  s_cbranch_scc0 {L}_not
  s_memrealtime s[38:39]
  s_waitcnt lgkmcnt(0)
  v_mov_b32 v4, s36
  v_mov_b32 v5, s38
  s_lshl_b32 s25, s43, 3
  s_add_u32 s25, s25, {FLAGS + 0x40000}
  v_mov_b32 v6, s25
  buffer_store_dwordx2 v[4:5], v6, s[8:11], 0 offen
{L}_not:""")
o(f"""  s_mov_b32 s50, s47
  s_branch {L}_pop""")

TIMB = (FLAGS + 0x50000) if TIM else None
def lane(o): o("  v_mbcnt_lo_u32_b32 v0, -1, 0\n  v_mbcnt_hi_u32_b32 v0, -1, v0")
o(f"{L}_roles:")
o(f"""{L}_ri:
  s_cmp_lt_u32 s33, 32
  s_cbranch_scc1 {L}_rB
  s_cmp_lt_u32 s33, 64
  s_cbranch_scc1 {L}_rC4
  s_cmp_lt_u32 s33, 72
  s_cbranch_scc1 {L}_rC2
  s_cmp_lt_u32 s33, 88
  s_cbranch_scc1 {L}_rL
  s_cmp_lt_u32 s33, 160
  s_cbranch_scc1 {L}_rD
  s_cmp_lt_u32 s33, 192
  s_cbranch_scc1 {L}_rE4
  s_cmp_lt_u32 s33, 200
  s_cbranch_scc1 {L}_rE2
  s_cmp_lt_u32 s33, 216
  s_cbranch_scc1 {L}_rF
  s_branch {L}_end""")
def mkloop(name, dep, tgt, sig):
    return lambda body: role_loop(o, name, dep, tgt, sig, CNT, NONE, body, SPIN*4, TIMB)
o(f"{L}_rB:")
def b_body():
    lane(o)
    lp = o.label("bq")
    o(f"""  s_lshl_b32 s25, s32, 7
  s_add_u32 s25, s25, {CNT + 128*C_Q}
  v_mov_b32 v250, s25
  s_mov_b32 s24, 0
{lp}:
  buffer_load_dword v251, v250, s[8:11], 0 offen sc1
  s_waitcnt vmcnt(0)
  v_readfirstlane_b32 s25, v251
  s_cmp_ge_u32 s25, 32
  s_cbranch_scc1 {lp}_ok
  s_add_u32 s24, s24, 1
  s_cmp_lt_u32 s24, {SPIN*4}
  s_cbranch_scc1 {lp}
  s_endpgm
{lp}_ok:
  s_lshr_b32 s20, s33, 3
  s_lshl_b32 s25, s32, 2
  s_add_u32 s20, s20, s25              ; seg = 4g + r/8
  s_and_b32 s21, s33, 7
  s_lshl_b32 s21, s21, 2
  s_add_u32 s21, s21, s13              ; head""")
    stage_b(o, STF, wait_r=True)
mkloop("RB", C_KV, 128, C_B)(b_body)
o(f"  s_branch {L}_end")
for nm, which, base4, base2, dep, tgt, sig in (("C", 'C', 32, 64, C_B, 32, C_C), ("E", 'E', 160, 192, C_D, 72, C_E)):
    o(f"{L}_r{nm}4:")
    lane(o)
    o(f"  s_sub_u32 s25, s33, {base4}\n  s_lshr_b32 s28, s25, 3\n  s_lshl_b32 s28, s28, 2\n  s_and_b32 s23, s25, 7")
    role_ce(o, which, 4, STF, mkloop(f"R{nm}4", dep, tgt, sig))
    o(f"  s_branch {L}_end")
    o(f"{L}_r{nm}2:")
    lane(o)
    o(f"  s_mov_b32 s28, 16\n  s_sub_u32 s23, s33, {base2}")
    role_ce(o, which, 2, STF, mkloop(f"R{nm}2", dep, tgt, sig))
    o(f"  s_branch {L}_end")
for nm, base, dep, tgt, sig, fn in (("L", 72, C_C, 40, C_L, lambda: stage_ln2b(o, STF)), ("F", 200, C_E, 40, None, lambda: stage_fb(o))):
    o(f"{L}_r{nm}:")
    def body(base=base, fn=fn):
        lane(o)
        o(f"  s_sub_u32 s25, s33, {base}\n  s_lshr_b32 s20, s25, 2\n  s_lshl_b32 s26, s32, 2\n  s_add_u32 s20, s20, s26\n  s_and_b32 s21, s25, 3")
        fn()
    mkloop(f"R{nm}", dep, tgt, sig)(body)
    o(f"  s_branch {L}_end")
o(f"{L}_rD:")
lane(o)
o(f"  s_sub_u32 s28, s33, 88")
role_d(o, STF, mkloop("RD", C_L, 16, C_D))
o(f"""{L}_end:
  s_waitcnt vmcnt(0) lgkmcnt(0)
  s_endpgm
.p2align 6
{L}_items:""")
for k in range(8):
    o(f"  .long {qstart[k] if k < NQ else 0}, {len(queues[k]) if k < NQ else 0}")
for x in items:
    o("  .long " + ", ".join(hex(w) for w in x))
kd = f"""
.section .rodata,"a"
.p2align 6
.amdhsa_kernel {KN}
  .amdhsa_next_free_vgpr 512
  .amdhsa_next_free_sgpr 102
  .amdhsa_accum_offset 256
  .amdhsa_group_segment_fixed_size 0
  .amdhsa_kernarg_size 112
  .amdhsa_user_sgpr_count 2
  .amdhsa_user_sgpr_kernarg_segment_ptr 1
  .amdhsa_system_sgpr_workgroup_id_x 1
.end_amdhsa_kernel
"""
hdr = open("cdna_kernels/" + NAME + ".s.ref").read().split("; Override launch")[0]
body = '\n'.join(l.split(';')[0].strip() for l in o.text().split('\n') if l.split(';')[0].strip()) + '\n'
txt = hdr + "; @launch grid=(256,1,1) block=(256,1,1) lds=163840\n" + '.amdgcn_target "amdgcn-amd-amdhsa--gfx950"\n.text\n' + body + kd
out = sys.argv[1] if len(sys.argv) > 1 else "fused.s"
open(out, "w").write(txt)
json.dump([(KN, 256, 163840)], open(out.replace(".s", ".json"), "w"))
json.dump(items + [item(ST_LN1, r) if r < 64 else item(ST_S, r-64) for r in range(68)], open("items.json", "w"))
print("items", NITEMS, "bytes", len(txt))
```
